```python
import torch

def _softmax(x, axis=-1):
    return torch.softmax(x, dim=axis)

def _gelu(x):
    return torch.nn.functional.gelu(x, approximate='tanh')

def _silu(x):
    return torch.nn.functional.silu(x)

def _sigmoid(x):
    return torch.sigmoid(x)

def _layernorm(x, axis=-1, eps=1e-05):
    m = x.mean(dim=axis, keepdim=True)
    v = x.var(dim=axis, keepdim=True, unbiased=False)
    return (x - m) / torch.sqrt(v + eps)

def _scatter_add(tgt, idx, src, axis=0):
    return tgt.clone().index_add_(axis, idx, src)

def _segment_sum(src, seg, n):
    out = torch.zeros((n,) + src.shape[1:], dtype=src.dtype)
    return out.index_add_(0, seg, src)

def _pad(x, pw):
    flat = tuple((v for pair in reversed(pw) for v in pair))
    return torch.nn.functional.pad(x, flat)
kernel_name = 'recurrent_scan__ssm_conv_s4d__mixer_gmlp__prompt'

def setup_inputs():

    _w = lambda a: (lambda t: t.to(torch.bfloat16) if t.is_floating_point() else t)(torch.as_tensor(a))

    def _A_setup():
        Bsz, L, D, N = (1, 2048, 512, 128)
        return {'u': _w((lambda *s: torch.randn(*s, dtype=torch.bfloat16) * 0.05)(Bsz, L, D)), 'log_A_real': _w((lambda *s: torch.randn(*s, dtype=torch.bfloat16) * 6.4)(D, N) * 0.5), 'A_imag': _w((lambda *s: torch.randn(*s, dtype=torch.bfloat16) * 0.05)(D, N) * 3.14), 'C_real': _w((lambda *s: torch.randn(*s, dtype=torch.bfloat16) * 0.05)(D, N) / N ** 0.5), 'C_imag': _w((lambda *s: torch.randn(*s, dtype=torch.bfloat16) * 0.05)(D, N) / N ** 0.5), 'log_dt': _w((lambda *s: torch.randn(*s, dtype=torch.bfloat16) * 0.05)(D) * 0.5 - 4.0), 'D_skip': _w((lambda *s: torch.randn(*s, dtype=torch.bfloat16) * 0.05)(D))}
    _A_in = _A_setup()

    def _B_setup():
        B, S, D, F = (1, 2048, 512, 1792)
        Fh = F // 2
        return {'x': _w((lambda *s: torch.randn(*s, dtype=torch.bfloat16) * 0.05)(B, S, D)), 'w_in': _w((lambda *s: torch.randn(*s, dtype=torch.bfloat16) * 0.4)(D, 2 * Fh)), 'w_sp': _w(0.01 * (lambda *s: torch.randn(*s, dtype=torch.bfloat16) * 0.4)(S, S)), 'b_sp': _w(1.0 + 0.01 * (lambda *s: torch.randn(*s, dtype=torch.bfloat16) * 0.05)(S)), 'w_out': _w((lambda *s: torch.randn(*s, dtype=torch.bfloat16) * 0.05)(Fh, D))}
    _B_in = _B_setup()
    return {'A_u': _A_in['u'], 'A_log_A_real': _A_in['log_A_real'], 'A_A_imag': _A_in['A_imag'], 'A_C_real': _A_in['C_real'], 'A_C_imag': _A_in['C_imag'], 'A_log_dt': _A_in['log_dt'], 'A_D_skip': _A_in['D_skip'], 'B_x': _B_in['x'], 'B_w_in': _B_in['w_in'], 'B_w_sp': _B_in['w_sp'], 'B_b_sp': _B_in['b_sp'], 'B_w_out': _B_in['w_out']}

def reference(A_u, A_log_A_real, A_A_imag, A_C_real, A_C_imag, A_log_dt, A_D_skip, B_x, B_w_in, B_w_sp, B_b_sp, B_w_out):

    def _A_ref(u, log_A_real, A_imag, C_real, C_imag, log_dt, D_skip):
        L = u.shape[1]
        dt = torch.exp(log_dt)
        A = -torch.exp(log_A_real) + 1j * A_imag
        C = (C_real + 1j * C_imag) * dt[:, None]
        pos = (lambda x, dt: x.to(dt))(torch.arange(L), log_dt.dtype)
        P = torch.exp((A * dt[:, None])[:, :, None] * pos[None, None, :])
        K = 2.0 * torch.einsum('dn,dnl->dl', C, P).real
        L2 = 2 * L
        u_t = (lambda x, *d: x.permute(*d))(u, 0, 2, 1)
        Kf = (lambda x, *a, **k: torch.fft.rfft(x.float(), *a, **k))(K, L2)
        Uf = (lambda x, *a, **k: torch.fft.rfft(x.float(), *a, **k))(u_t, L2)
        y = (lambda x, *a, **k: torch.fft.irfft(x, *a, **k).to(torch.bfloat16))(Uf * Kf[None, :, :], L2)[:, :, :L]
        y = (lambda x, *d: x.permute(*d))(y, 0, 2, 1)
        return y + u * D_skip[None, None, :]

    def _B_ref(x, w_in, w_sp, b_sp, w_out):
        B, S, D = x.shape
        F = w_in.shape[-1]
        Fh = F // 2
        z = _gelu(torch.einsum('bsd,df->bsf', x, w_in))
        z1 = z[..., :Fh].clone()
        z2 = _layernorm(z[..., Fh:], axis=-1)
        g = torch.einsum('ts,bsf->btf', w_sp, z2) + b_sp[None, :, None]
        return torch.einsum('bsf,fd->bsd', z1 * g, w_out)
    x = A_u
    xn = _layernorm(x, axis=-1)
    s = _A_ref(xn, A_log_A_real, A_A_imag, A_C_real, A_C_imag, A_log_dt, A_D_skip)
    g = _silu(_B_ref(xn, B_w_in, B_w_sp, B_b_sp, B_w_out))
    return x + s * g
```

```python
import re

def regs_of(tok):
    tok = tok.strip()
    tok = tok.lstrip('-')
    if tok.startswith('abs(') or tok.startswith('neg('): tok = tok[4:-1]
    if tok.startswith('|'): tok = tok.strip('|')
    m = re.fullmatch(r'([vas])(\d+)', tok)
    if m: return [(m.group(1), int(m.group(2)))]
    m = re.fullmatch(r'([vas])\[(\d+):(\d+)\]', tok)
    if m: return [(m.group(1), i) for i in range(int(m.group(2)), int(m.group(3)) + 1)]
    if tok == 'vcc': return [('s', 'vcc')]
    if tok in ('vcc_lo', 'vcc_hi'): return [('s', 'vcc')]
    if tok == 'exec': return [('s', 'exec')]
    if tok == 'm0': return [('s', 'm0')]
    return []

TRANS = ('v_exp_f32', 'v_log_f32', 'v_rcp_f32', 'v_rsq_f32', 'v_sqrt_f32', 'v_sin_f32', 'v_cos_f32')

class Ins:
    def __init__(self, txt):
        self.txt = txt
        t = txt.split(';')[0].strip()
        self.is_ins = bool(t) and not t.endswith(':') and not t.startswith('.')
        self.is_label = t.endswith(':')
        self.mn = ''; self.w = set(); self.r = set(); self.srcc = set(); self.ab = set(); self.sdata = set()
        if not self.is_ins: return
        parts = t.split(None, 1)
        mn = self.mn = parts[0]
        ops = []
        if len(parts) > 1:
            cur = ''; dep = 0
            for ch in parts[1]:
                if ch in '[(': dep += 1
                if ch in '])': dep -= 1
                if ch == ',' and dep == 0: ops.append(cur.strip()); cur = ''
                else: cur += ch
            ops.append(cur.strip())
            last = ops[-1].split()
            self.mods = last[1:] if last else []
            ops[-1] = last[0] if last else ''
        else: self.mods = []
        R = [regs_of(o) for o in ops]
        self.mfma = mn.startswith('v_mfma')
        self.valu = mn.startswith('v_') and not self.mfma
        self.salu = mn.startswith('s_')
        self.vmem = mn.startswith(('buffer_', 'global_', 'flat_'))
        self.ds = mn.startswith('ds_')
        self.trans = mn.startswith(TRANS)
        self.dot = mn.startswith('v_dot')
        self.dpp = '_dpp' in mn
        self.lds_dma = self.vmem and ('lds' in self.mods or 'load_lds' in mn)
        flat = lambda L: set(x for l in L for x in l)
        if self.mfma:
            self.w = set(R[0]); self.ab = flat(R[1:3]); self.srcc = set(R[3]); self.r = self.ab | self.srcc
            self.passes = 8 if '32x32' in mn else 4
            if '_f32_32x32x2' in mn: self.passes = 16
        elif self.valu:
            if mn.startswith('v_cmp'):
                self.w = set(R[0]); self.r = flat(R[1:])
                if mn.startswith('v_cmpx'): self.w.add(('s', 'exec'))
            elif mn.startswith('v_permlane') and 'swap' in mn:
                self.w = flat(R[:2]); self.r = flat(R[:2])
            elif '_co_' in mn:
                self.w = flat(R[:2]); self.r = flat(R[2:])
            elif mn == 'v_nop': pass
            else:
                self.w = set(R[0]); self.r = flat(R[1:])
                if mn.startswith(('v_fmac', 'v_dot2c', 'v_pk_fmac', 'v_writelane')) or self.dpp or 'sdwa' in mn: self.r |= set(R[0])
        elif self.vmem:
            if self.lds_dma: self.r = flat(R) | {('s', 'm0')}
            elif 'load' in mn: self.w = set(R[0]); self.r = flat(R[1:])
            elif 'store' in mn:
                self.r = flat(R)
                d = R[0] if mn.startswith('buffer_') else R[1]
                if len(d) >= 3: self.sdata = set(d)
            elif 'atomic' in mn:
                self.r = flat(R)
                if 'sc0' in self.mods: self.w = set(R[0])
            else: self.r = flat(R)
        elif self.ds:
            if 'read' in mn or 'permute' in mn or 'swizzle' in mn: self.w = set(R[0]); self.r = flat(R[1:])
            else: self.r = flat(R)
        elif self.salu:
            if mn.startswith(('s_cmp', 's_cbranch', 's_branch', 's_waitcnt', 's_barrier', 's_nop', 's_endpgm', 's_sleep', 's_setprio', 's_bitcmp')):
                self.r = flat(R)
            else:
                self.w = set(R[0]) if R else set(); self.r = flat(R[1:])
                if 'saveexec' in mn: self.w.add(('s', 'exec'))
    def states(self):
        if not self.is_ins: return 0
        if self.mn == 's_nop': return int(self.txt.split()[1], 0) + 1
        return 1

def need(p, c):
    n = 0
    vw = {x for x in p.w if x[0] in 'va'}
    sw = {x for x in p.w if x[0] == 's'}
    if p.mfma:
        big = {4: 8, 8: 12, 16: 18}[p.passes]
        if c.mfma:
            if vw & c.ab: n = max(n, big)
            if vw & c.srcc and not (p.w == c.srcc and p.passes == c.passes): n = max(n, big - 2)
            if vw & c.w and not (vw & c.srcc): n = max(n, big)
        elif (c.valu or c.vmem or c.ds) and (vw & (c.r | c.w)): n = max(n, big)
        if c.valu and (p.srcc & c.w): n = max(n, {4: 3, 8: 7, 16: 15}[p.passes])
    if p.valu:
        if c.mfma and (vw & c.r): n = max(n, 3 if p.dot else 2)
        if c.mfma and ('s', 'exec') in sw: n = max(n, 4)
        if p.dot and (c.valu or c.vmem or c.ds) and (vw & (c.r | c.w)):
            if not (c.mn == p.mn and c.mn.startswith('v_dot2c') and vw == {x for x in c.w}): n = max(n, 3)
        if p.trans and c.valu and not c.trans and (vw & c.r): n = max(n, 1)
        if c.valu and c.mn.startswith('v_permlane') and (vw & c.r): n = max(n, 2)
        if c.valu and c.dpp and (vw & c.r): n = max(n, 2)
        if c.valu and c.mn.startswith(('v_readlane', 'v_readfirstlane')) and (vw & c.r): n = max(n, 1)
        if c.valu and ('sdwa' in p.mn or 'op_sel' in ' '.join(p.mods) and not p.mn.startswith('v_pk') and not p.dot) and (vw & (c.r | c.w)): n = max(n, 1)
        if sw:
            if c.valu and (sw & c.r): n = max(n, 4 if c.mn.startswith(('v_readlane', 'v_writelane', 'v_div_fmas')) else 2)
            if c.vmem and (sw & c.r): n = max(n, 5)
            if ('s', 'exec') in sw and c.valu and (c.dpp or c.mn.startswith(('v_permlane', 'v_readlane', 'v_readfirstlane'))): n = max(n, 5)
            if c.salu and (sw & c.r): n = max(n, 1)
    if p.salu and ('s', 'm0') in sw and c.lds_dma: n = max(n, 1)
    if p.sdata and (p.sdata & c.w): n = max(n, 2)
    return n

def pad_hazards(lines, verbose=False):
    out = []
    hist = []
    t = 0; added = 0
    for ln in lines:
        i = Ins(ln)
        if not i.is_ins:
            out.append(ln); continue
        req = 0
        for p, tp in hist:
            k = need(p, i)
            if k:
                have = t - tp - 1
                req = max(req, k - have)
        while req > 0:
            k = min(req, 16)
            out.append(f's_nop {k-1}'); t += k; req -= k; added += k
            if verbose: print('pad', k, 'before', ln)
        out.append(ln)
        hist.append((i, t + i.states() - 1))
        t += i.states()
        hist = [(p, tp) for p, tp in hist if t - tp < 24]
        if i.mn in ('s_endpgm', 's_branch'): hist = []
    return out, added

class Asm:
    def __init__(self):
        self.L = []
        self.lab = 0
        self.vm = []
        self.lg = []
    def __call__(self, s='', tag=None):
        for ln in s.split('\n'):
            self.L.append(ln)
            t = ln.strip()
            if t.startswith(('buffer_', 'global_')): self.vm.append(tag)
            elif t.startswith('ds_'): self.lg.append(tag)
    def emit(self, lst):
        for x in lst:
            if callable(x): x()
            elif isinstance(x, tuple): self(x[0], x[1])
            else: self(x)
    def _wait(self, q, tags, mx):
        if not isinstance(tags, (list, tuple, set)): tags = [tags]
        last = -1
        for i, t in enumerate(q):
            if t in tags: last = i
        if last < 0: return None
        n = len(q) - 1 - last
        n = min(n, mx)
        del q[:len(q) - n]
        return n
    def waitvm(self, tags):
        n = self._wait(self.vm, tags, 63)
        if n is not None: self.L.append(f's_waitcnt vmcnt({n})')
    def waitlg(self, tags):
        n = self._wait(self.lg, tags, 15)
        if n is not None: self.L.append(f's_waitcnt lgkmcnt({n})')
    def waitall(self, vm=True, lg=True):
        s = 's_waitcnt'
        if vm: s += ' vmcnt(0)'; self.vm = []
        if lg: s += ' lgkmcnt(0)'; self.lg = []
        self.L.append(s)
    def label(self, name): self.L.append(name + ':')
    def newlab(self, p='L'):
        self.lab += 1
        return f'{p}_{self.lab}'
    def text(self, pad=False, verbose=False):
        L = self.L
        if pad: L, n = pad_hazards(L, verbose)
        return '\n'.join(L) + '\n'

def merge(main, fill, per=None):
    out = []; n = len(main); m = len(fill); k = 0
    for i, x in enumerate(main):
        out.append(x)
        tgt = (i + 1) * m // n if per is None else min(m, (i + 1) * per)
        while k < tgt: out.append(fill[k]); k += 1
    out += fill[k:]
    return out

def kernel_begin(a, name):
    a(f'.text\n.globl {name}\n.p2align 8\n.type {name},@function\n{name}:')

def kernel_desc(a, name, vgpr, sgpr, accum=None, kernarg=120):
    if accum is None: accum = (vgpr + 3) // 4 * 4
    a(f'''.section .rodata,"a"
.p2align 6
.amdhsa_kernel {name}
  .amdhsa_next_free_vgpr {vgpr}
  .amdhsa_next_free_sgpr {sgpr}
  .amdhsa_accum_offset {accum}
  .amdhsa_group_segment_fixed_size 0
  .amdhsa_kernarg_size {kernarg}
  .amdhsa_user_sgpr_count 2
  .amdhsa_user_sgpr_kernarg_segment_ptr 1
  .amdhsa_system_sgpr_workgroup_id_x 1
  .amdhsa_float_denorm_mode_32 3
.end_amdhsa_kernel''')

def srd(a, d, b, nbytes):
    a(f's_mov_b32 s{d}, s{b}\ns_and_b32 s{d+1}, s{b+1}, 0xffff\ns_mov_b32 s{d+2}, {hex(nbytes)}\ns_mov_b32 s{d+3}, 0x20000')
def vr(b, n=1): return f'v{b}' if n == 1 else f'v[{b}:{b+n-1}]'
```

```python
from gen import *
import struct, math
def fbits(x): return hex(struct.unpack('<I', struct.pack('<f', x))[0])
WS_Z2F = 0; WS_Z1F = 4 << 20; WS_XNT = 8 << 20; WS_HF = 12 << 20; WS_ST = 16 << 20; WS_STATS = 20 << 20
WS_BYTES = 24 << 20
KA = dict(u=0, logA=8, Aim=16, Cre=24, Cim=32, logdt=40, Dskip=48, bx=56, win=64, wsp=72, bsp=80, wout=88, out=96, dbg=104, ws=112)
C0 = -2 * math.log2(math.e) * math.sqrt(2 / math.pi); C1 = C0 * 0.044715

def stamp(a, opt, idx):
    if opt.get('prof'):
        a(f's_memtime s[{64+2*idx}:{65+2*idx}]')

def prof_store(a, opt, kidx, nst):
    if not opt.get('prof'): return
    lab = a.newlab('prof')
    a('s_memrealtime s[62:63]')
    a.waitall()
    a('v_mbcnt_lo_u32_b32 v1, -1, 0\nv_mbcnt_hi_u32_b32 v1, -1, v1')
    a('v_mov_b32 v2, 0')
    for i in range(nst):
        a(f's_sub_u32 s{65+2*i}, s{64+2*i}, s64' if i else 's_mov_b32 s65, 0')
        a(f'v_writelane_b32 v2, s{65+2*i}, {i+2}')
    a('v_writelane_b32 v2, s60, 0\nv_writelane_b32 v2, s62, 1')
    a(f's_lshl_b32 s3, s2, 3\ns_add_u32 s3, s3, s29\ns_lshl_b32 s3, s3, 6\ns_add_u32 s3, s3, {(22<<20) + kidx*(1<<18)}')
    a('v_lshlrev_b32 v1, 2, v1\nv_cmp_gt_u32 vcc, 64, v1\ns_and_saveexec_b64 s[58:59], vcc')
    a('buffer_store_dword v2, v1, s[12:15], s3 offen')
    a('s_mov_b64 exec, s[58:59]')

def ln_finalize(a, vS, vQ, n, vT, out_negm, out_r):
    a(f'v_mul_f32 v{vS}, {fbits(1.0/n)}, v{vS}')
    a(f'v_mul_f32 v{vQ}, {fbits(1.0/n)}, v{vQ}')
    a(f'v_fma_f32 v{vQ}, -v{vS}, v{vS}, v{vQ}')
    a(f'v_max_f32 v{vQ}, 0, v{vQ}')
    a(f'v_cvt_pk_bf16_f32 v{vT}, v{vQ}, v{vS}')
    a(f'v_lshlrev_b32 v{vQ}, 16, v{vT}')
    a(f'v_and_b32 v{vT}, 0xffff0000, v{vT}')
    a(f'v_add_f32 v{vQ}, {fbits(1e-5)}, v{vQ}')
    a(f'v_xor_b32 v{out_negm}, 0x80000000, v{vT}')
    a(f'v_cvt_pk_bf16_f32 v{vQ}, v{vQ}, v{vQ}')
    a(f'v_lshlrev_b32 v{vQ}, 16, v{vQ}')
    a(f'v_sqrt_f32 v{vQ}, v{vQ}')
    a(f'v_cvt_pk_bf16_f32 v{vQ}, v{vQ}, v{vQ}')
    a(f'v_lshlrev_b32 v{vQ}, 16, v{vQ}')
    a(f'v_rcp_f32 v{out_r}, v{vQ}')

def gelu_list(A, n, vC, vSD, T, pk=True):
    L = []
    for b in range(0, n, 8):
        P = [A + b + 2*i for i in range(4)]; Q = [T + 2*i for i in range(4)]
        for p, q in zip(P, Q): L.append(f'v_pk_mul_f32 {vr(q,2)}, {vr(p,2)}, {vr(p,2)}')
        for q in Q: L.append(f'v_pk_fma_f32 {vr(q,2)}, {vr(q,2)}, {vr(vC,2)}, {vr(vC,2)} op_sel:[0,0,1] op_sel_hi:[1,0,1]')
        for p, q in zip(P, Q): L.append(f'v_pk_mul_f32 {vr(q,2)}, {vr(q,2)}, {vr(p,2)}')
        for i in range(8): L.append(f'v_exp_f32 v{T+i}, v{T+i}')
        for q in Q:
            if vSD is None: L.append(f'v_pk_add_f32 {vr(q,2)}, {vr(q,2)}, 1.0 op_sel_hi:[1,0]')
            else: L.append(f'v_pk_fma_f32 {vr(q,2)}, {vr(q,2)}, {vr(vSD,2)}, {vr(vSD,2)} op_sel_hi:[1,0,0]')
        for i in range(8): L.append(f'v_rcp_f32 v{T+i}, v{T+i}')
        for p, q in zip(P, Q): L.append(f'v_pk_mul_f32 {vr(p,2)}, {vr(p,2)}, {vr(q,2)}')
    return L

def ln_list(vS, vQ, n, vT, out_negm, out_r, out_sd=None):
    t = Asm(); ln_finalize(t, vS, vQ, n, vT, out_negm, out_r)
    L = list(t.L)
    if out_sd is not None: L.insert(-1, f'v_mov_b32 v{out_sd}, v{vQ}')
    return L

def decode_ids(a):
    a('''s_and_b32 s24, s2, 7
s_lshr_b32 s25, s2, 3
s_lshr_b32 s26, s24, 1
s_lshl_b32 s26, s26, 2
s_and_b32 s3, s25, 3
s_add_u32 s26, s26, s3
s_lshr_b32 s27, s25, 2
s_and_b32 s28, s24, 1
s_mul_i32 s28, s28, 7
s_add_u32 s28, s28, s27
v_lshrrev_b32 v1, 6, v0
v_and_b32 v0, 63, v0
v_readfirstlane_b32 s29, v1''')

def loader_emit(a, groups, bars, D, hook=None):
    total = sum(len(g[1]) for g in groups)
    n = 0; bi = 0
    for setup, lds in groups:
        for x in setup: a.L.append(x)
        for x in lds:
            a.L.append(x); n += 1
            while bi < len(bars) and n == bars[bi] + D:
                a.L.append(f's_waitcnt vmcnt({D})')
                if hook: hook(bi, 0)
                a.L.append('s_barrier')
                if hook: hook(bi, 1)
                bi += 1
    return [total - b for b in bars[bi:]]

def k1(name, opt):
    a = Asm()
    kernel_begin(a, name)
    X = 128; A2 = 64; A1 = 96; WF = 32
    D1 = opt.get('d1', 32)
    stf = opt.get('stflag', '')
    done = f'{name}_done'; trole = f'{name}_trole'; gload = f'{name}_gload'; tload = f'{name}_tload'
    a(f's_cmp_ge_u32 s2, 256\ns_cbranch_scc1 {done}')
    if opt.get('prof'): a('s_memrealtime s[60:61]\ns_memtime s[64:65]')
    a(f's_load_dwordx2 s[4:5], s[0:1], {KA["u"]}')
    a(f's_load_dwordx4 s[8:11], s[0:1], {KA["win"]}')
    a(f's_load_dwordx4 s[16:19], s[0:1], {KA["dbg"]}')
    decode_ids(a)
    a(f's_cmp_eq_u32 s27, 7\ns_cbranch_scc1 {trole}')
    a(f's_cmp_eq_u32 s29, 4\ns_cbranch_scc0 {name}_gcomp')
    XO = [65536 + 16384 * ((c + 4) % 6) for c in range(8)]
    def xoffs(rowbase):
        a(f"""v_lshrrev_b32 v10, 3, v0
v_and_b32 v11, 7, v0
v_lshrrev_b32 v12, 4, v0
v_add_u32 v13, {rowbase}, v10
v_lshlrev_b32 v13, 10, v13
v_xor_b32 v14, v11, v12
v_lshl_add_u32 v2, v14, 4, v13
v_xor_b32 v3, 64, v2
v_add_u32 v3, 7168, v3
v_add_u32 v4, 14336, v2
v_add_u32 v5, 14336, v3""")
    a('s_lshl_b32 s30, s3, 1\ns_add_u32 s30, s30, s27\ns_and_b32 s30, s30, 7')
    if opt.get('norot'): a('s_mov_b32 s30, 0')
    a('s_lshl_b32 s33, s26, 7')
    xoffs('s33')
    a("""v_mul_u32_u24 v13, 3584, v10
v_and_b32 v14, 1, v12
v_lshlrev_b32 v14, 2, v14
v_xor_b32 v14, v14, v11
v_lshl_add_u32 v6, v14, 4, v13
s_lshl_b32 s31, s28, 7
v_add_u32 v6, s31, v6
v_add_u32 v7, 27648, v6
v_add_u32 v8, 27648, v7
v_add_u32 v9, 27648, v8""")
    for c in range(8): a(f's_add_u32 s31, s30, {c}\ns_and_b32 s31, s31, 7\ns_lshl_b32 s{40+c}, s31, 7\ns_mul_i32 s{48+c}, s31, {64*3584}')
    a('s_mov_b32 s6, 0x200000\ns_mov_b32 s7, 0x20000\ns_mov_b32 s22, 0x800000\ns_mov_b32 s23, 0x20000')
    a('s_waitcnt lgkmcnt(0)')
    a('s_and_b32 s5, s5, 0xffff\ns_mov_b32 s20, s10\ns_and_b32 s21, s11, 0xffff')
    a(f's_and_b32 s9, s9, 0xffff\ns_mov_b32 s10, {512*3584}\ns_mov_b32 s11, 0x20000')
    groups = []; bars = []; n = 0
    def wgroups(p):
        return [([f's_mov_b32 m0, {p*8192 + g*4096}', f's_add_u32 s31, s{48+p%8}, {g*32*3584 + (1792 if p < 8 else 0)}'],
                 [f'buffer_load_dwordx4 v{6+i}, s[8:11], s31 offen offset:{1024*i} lds' for i in range(4)]) for g in range(2)]
    for c in range(8):
        groups += [([f's_mov_b32 m0, {XO[c] + g*4096}', f's_add_u32 s31, s{40+c}, {g*32768}'],
                    [f'buffer_load_dwordx4 v{2+i}, s[4:7], s31 offen offset:{1024*i} lds' for i in range(4)]) for g in range(4)]
        groups += wgroups(c); bars.append(24 * (c + 1))
    for p in range(8, 16): groups += wgroups(p)
    rest = loader_emit(a, groups, bars, D1, lambda b, k: stamp(a, opt, 1 + 2*b + k) if b < 6 else None)
    assert not rest
    a('s_barrier')
    a('s_waitcnt vmcnt(0)\ns_barrier')
    if opt.get('prof'):
        srd(a, 12, 18, WS_BYTES); stamp(a, opt, 13)
    if opt.get('pfw'): prefetch_wsp(a, opt)
    prof_store(a, opt, 0, 14)
    a('s_endpgm')

    a(f'{name}_gcomp:')
    XR = A1; ST = A1 + 4; T = A1 + 8; SD = A1 + 16; CC = A1 + 18; NM = A1 + 20; FL = A1 + 22
    WR = 8; SEL = 16; CS = 20; NEG = 28
    def xraddr(base, rotk, extra):
        a(f"""v_and_b32 v1, 31, v0
v_lshrrev_b32 v{base+1}, 5, v0
v_bfe_u32 v{base}, v0, 1, 3
v_xor_b32 v{base}, v{base}, v{base+1}
v_lshlrev_b32 v{base}, 4, v{base}
v_lshl_add_u32 v1, v1, 7, v{base}
v_add_u32 v1, {extra}, v1""")
        for i in range(4):
            if rotk: a(f's_add_u32 s31, s29, {i}\ns_and_b32 s{96+i}, s31, 3\ns_lshl_b32 s31, s{96+i}, 5\nv_xor_b32 v{base+i}, s31, v1')
            else: a(f'v_xor_b32 v{base+i}, {32*i}, v1')
    a('s_lshl_b32 s32, s29, 12\ns_add_u32 s32, s32, 65536')
    xraddr(XR, True, 's32')
    a('s_mov_b32 s34, 0x3f803f80')
    for i in range(4): a(f'v_mov_b32 v{ST+i}, 0')
    a("""v_lshrrev_b32 v24, 5, v0
v_bfe_u32 v25, v0, 2, 2
v_lshl_add_u32 v24, v24, 3, v25
v_lshlrev_b32 v24, 7, v24
v_bfe_u32 v25, v0, 3, 1
v_lshl_add_u32 v24, v25, 6, v24
v_bfe_u32 v25, v0, 4, 1
v_lshl_add_u32 v24, v25, 5, v24
v_and_b32 v26, 1, v0
v_lshl_add_u32 v24, v26, 4, v24
v_bfe_u32 v26, v0, 1, 1
v_lshl_add_u32 v24, v26, 3, v24""")
    for i in range(4): a(f's_lshl_b32 s31, s{96+i}, 11\nv_add_u32 v{WR+2*i}, s31, v24\nv_xor_b32 v{WR+1+2*i}, 64, v{WR+2*i}')
    a(f'v_and_b32 v26, 15, v0\nv_cmp_eq_u32 vcc, v25, v26\nv_mov_b32 v27, s34\nv_lshrrev_b32 v25, 4, v0\nv_cndmask_b32 v{SEL}, 0, v27, vcc')
    for i in range(1, 4): a(f'v_mov_b32 v{SEL+i}, v{SEL}')
    a("""v_lshlrev_b32 v25, 6, v25
v_lshl_add_u32 v25, v26, 8, v25
s_lshl_b32 s31, s29, 2
v_cmp_gt_u32 vcc, 2, v26
v_add_u32 v25, s31, v25
v_mov_b32 v1, 1024
v_cndmask_b32 v1, v1, v25, vcc
v_and_b32 v2, 31, v0
v_lshlrev_b32 v2, 4, v2
v_lshlrev_b32 v6, 2, v0
v_lshlrev_b32 v7, 4, v0""")
    a(f's_lshl_b32 s31, s26, 4\nv_mov_b32 v{FL}, s31')
    a(f's_lshl_b32 s31, s26, 2\ns_add_u32 s31, s31, s29\ns_lshl_b32 s31, s31, 12\ns_add_u32 s37, s31, {WS_STATS}\ns_lshl_b32 s31, s28, 8\ns_add_u32 s38, s37, s31')
    a(f's_mul_i32 s31, s26, 14\ns_add_u32 s31, s31, s28\ns_lshl_b32 s31, s31, 2\ns_add_u32 s31, s31, s29\ns_lshl_b32 s31, s31, 12\ns_add_u32 s56, s31, {WS_Z1F}')
    a(f's_lshl_b32 s31, s28, 18\ns_lshl_b32 s57, s26, 14\ns_add_u32 s57, s57, s31\ns_lshl_b32 s31, s29, 12\ns_add_u32 s57, s57, s31')
    a('s_waitcnt lgkmcnt(0)')
    srd(a, 12, 18, WS_BYTES)
    def xreads(c, base, off): return [(f'ds_read_b128 {vr(X+16*c+4*i,4)}, v{base+i} offset:{off}', f'xr{c}') for i in range(4)]
    def gx(c):
        L = []
        if c == 0: L += [f'v_add_u32 v{XR+i}, 65536, v{XR+i}' for i in range(4)]
        if c == 2: L += [f'v_subrev_u32 v{XR+i}, 65536, v{XR+i}' for i in range(4)]
        if c == 6: L += [f'v_add_u32 v{XR+i}, 65536, v{XR+i}' for i in range(4)]
        return L, xreads(c, XR, (XO[c] - 65536) % 65536)
    def dots(c, S):
        for i in range(16):
            r = X + 16*c + i
            a(f'v_dot2c_f32_bf16 v{S + 2*(i&1)}, s34, v{r}\nv_dot2c_f32_bf16 v{S + 1 + 2*(i&1)}, v{r}, v{r}')
    def redux(S): return [f'v_add_f32 v{S}, v{S}, v{S+2}', f'v_add_f32 v{S+1}, v{S+1}, v{S+3}', f'v_mov_b32 v{S+2}, v{S}', f'v_mov_b32 v{S+3}, v{S+1}',
             f'v_permlane32_swap_b32 v{S}, v{S+2}', f'v_permlane32_swap_b32 v{S+1}, v{S+3}', f'v_add_f32 v{S}, v{S}, v{S+2}', f'v_add_f32 v{S+1}, v{S+1}, v{S+3}']
    def wreads(t):
        n, i = divmod(t, 4)
        L = []
        for fb in range(2):
            d = WF + 8*i + 4*fb
            L.append((f'ds_read_b64_tr_b16 {vr(d,2)}, v{WR+2*i+fb} offset:{(n%8)*8192}', f'wr{t}'))
            L.append((f'ds_read_b64_tr_b16 {vr(d+2,2)}, v{WR+2*i+fb} offset:{(n%8)*8192+512}', f'wr{t}'))
        return L
    def mfmas(t):
        n, i = divmod(t, 4); acc = A2 if n < 8 else A1; f = t % 32
        L = []
        for fb in range(2):
            c = '0' if f == 0 else vr(acc+16*fb, 16)
            L.append(f'v_mfma_f32_32x32x16_bf16 {vr(acc+16*fb,16)}, {vr(WF+8*i+4*fb,4)}, {vr(X+4*f,4)}, {c}')
        if i == 0:
            for fb in range(2):
                c = '0' if f == 0 else vr(CS+4*fb, 4)
                L.insert(fb, f'v_mfma_f32_16x16x32_bf16 {vr(CS+4*fb,4)}, {vr(WF+4*fb,4)}, {vr(SEL,4)}, {c}')
        return L
    def cs_write(part, T):
        L = []
        for j in range(8): L.append(f'v_cvt_pk_bf16_f32 v{T+j}, v{CS+j}, v{CS+j}')
        for j in range(8): L.append(f'v_lshlrev_b32 v{T+j}, 16, v{T+j}')
        for j in range(8): L.append(f'v_sub_f32 v{T+j}, v{CS+j}, v{T+j}')
        for j in range(8): L.append(f'v_cvt_pk_bf16_f32 v{T+j}, v{CS+j}, v{T+j}')
        for j in range(8): L.append((f'ds_write_b32 v1, v{T+j} offset:{part*2048 + 512*(j//4) + 16*(j%4)}', 'csw'))
        return L
    def cs_read(part, T):
        return [lambda: a.waitlg('csw'), 's_barrier'] + [(f'ds_read_b128 {vr(T+4*fb,4)}, v2 offset:{part*2048 + 512*fb}', 'csr') for fb in range(2)]
    def cs_apply(acc, T):
        return [lambda: a.waitlg('csr')] + [f'v_mfma_f32_32x32x16_bf16 {vr(acc+16*fb,16)}, {vr(T+4*fb,4)}, {vr(NEG,4)}, {vr(acc+16*fb,16)}' for fb in range(2)]
    fin1 = redux(ST) + ln_list(ST, ST+1, 512, ST+2, NM, 4, SD) + [
        f'v_lshrrev_b32 v{NEG}, 16, v{NM}', f'v_or_b32 v{NEG}, v{NEG}, v{NM}', 'v_cmp_gt_u32 vcc, 32, v0', f'v_mul_f32 v{CC+1}, {fbits(C0)}, v4', f'v_mul_f32 v{CC}, v4, v4',
        f'v_cndmask_b32 v{NEG}, 0, v{NEG}, vcc', f'v_mul_f32 v{CC}, v{CC}, v{CC+1}', f'v_mul_f32 v{CC}, {fbits(0.044715)}, v{CC}'] + \
        [f'v_mov_b32 v{NEG+i}, v{NEG}' for i in range(1, 4)]
    def chunk_head(c):
        pre, xr = gx(c)
        return pre, ['s_barrier'] + xr + wreads(4*c) + wreads(4*c+1) + wreads(4*c+2)
    pre, hd = chunk_head(0)
    a.emit(pre); stamp(a, opt, 1); a.emit(hd)
    cw = cs_write(0, T)
    for c in range(8):
        if opt.get('nodots'): a.waitlg(f'xr{c}')
        elif opt.get('lag', 1):
            if c > 0: dots(c-1, ST)
            a.waitlg(f'xr{c}')
            if c == 7: dots(c, ST)
        else:
            a.waitlg(f'xr{c}'); dots(c, ST)
        fills = {0: wreads(4*c+3), 1: [], 2: [], 3: []}
        if c < 7:
            pre, hd = chunk_head(c+1); fills[2] = pre
        else:
            fills[0] += fin1[:12]; fills[1] = fin1[12:24]; fills[2] = fin1[24:] + cw[:8]; fills[3] = cw[8:]
        for i in range(4):
            t = 4*c + i
            a.waitlg(f'wr{t}')
            m = mfmas(t)
            if i == 3 and c < 7: a.emit(m + hd)
            else: a.emit(merge(m, fills[i]))
    stamp(a, opt, 2)
    a.emit(cs_read(0, T))
    a(f'global_load_dword v{FL+1}, v{FL}, s[16:17] sc1', 'flag')
    for i in range(8): a(f'v_add_u32 v{WR+i}, 65536, v{WR+i}')
    a.emit(cs_apply(A2, T))
    a.emit(gelu_list(A2, 32, CC, SD, T))
    a('s_barrier')
    AH = 3
    for t in range(32, 32 + AH): a.emit(wreads(t))
    for i in range(16):
        p = A2 + 2*i
        if i == 0: a(f'v_pk_mul_f32 {vr(ST+2,2)}, {vr(p,2)}, {vr(p,2)}')
        else:
            a(f'v_pk_add_f32 {vr(ST,2)}, {vr(p-2,2) if i == 1 else vr(ST,2)}, {vr(p,2)}'); a(f'v_pk_fma_f32 {vr(ST+2,2)}, {vr(p,2)}, {vr(p,2)}, {vr(ST+2,2)}')
    a(f'v_add_f32 v{ST}, v{ST}, v{ST+1}\nv_add_f32 v{ST+2}, v{ST+2}, v{ST+3}')
    a(f'v_permlane32_swap_b32 v{ST}, v{ST+2}')
    a(f'v_add_f32 v3, v{ST}, v{ST+2}\nv_min_u32 v3, 0xfffffffe, v3')
    a.waitvm('flag')
    lf = a.newlab('k1flag'); lfo = a.newlab('k1flagok')
    a('s_mov_b32 s39, 0x40000')
    a(f'{lf}:\nv_readfirstlane_b32 s31, v{FL+1}\ns_cmp_lg_u32 s31, 0\ns_cbranch_scc1 {lfo}')
    a.L.append(f'global_load_dword v{FL+1}, v{FL}, s[16:17] sc1'); a.L.append('s_waitcnt vmcnt(0)')
    a(f's_sub_u32 s39, s39, 1\ns_cmp_lg_u32 s39, 0\ns_cbranch_scc1 {lf}\n{lfo}:')
    a('buffer_store_dword v3, v6, s[12:15], s38 offen sc1', 'pub')
    stamp(a, opt, 3)
    pl = [(f'buffer_load_dword v{X+j}, v6, s[12:15], s37 offen offset:{256*j} sc1', 'pl') for j in range(14)]
    TA = X + 16; T2 = X + 24; U = X + 32
    taddr = f"""v_and_b32 v{TA}, 31, v0
v_mul_u32_u24 v{TA}, 144, v{TA}
v_lshrrev_b32 v{TA+1}, 5, v0
v_lshl_add_u32 v{TA}, v{TA+1}, 4, v{TA}
s_lshl_b32 s31, s29, 13
s_add_u32 s31, s31, 131072
v_add_u32 v{TA}, s31, v{TA}
v_bfe_u32 v{TA+2}, v0, 2, 2
v_lshl_add_u32 v{TA+1}, v{TA+1}, 3, v{TA+2}
v_mul_u32_u24 v{TA+1}, 144, v{TA+1}
v_and_b32 v{TA+2}, 56, v{WR}
v_add3_u32 v{TA+1}, v{TA+1}, v{TA+2}, s31""".split('\n')
    fills = {41: taddr[:6], 42: taddr[6:]}
    tp = opt.get('pollt', 50)
    for j in range(7): fills[tp + j] = pl[2*j:2*j+2]
    cw = cs_write(1, T2)
    fills[61] = cw[:10]; fills[62] = cw[10:22]; fills[63] = cw[22:]
    for t in range(32, 64):
        a.waitlg(f'wr{t}')
        rd = wreads(t + AH) if t + AH < 64 else []
        a.emit(merge(mfmas(t), rd + fills.get(t, [])))
    stamp(a, opt, 4)
    a.emit(cs_read(1, T2))
    lp = a.newlab('k1poll'); lpo = a.newlab('k1pollok'); lpc = a.newlab('k1pollc')
    a('s_mov_b32 s39, 0x40000')
    a(f's_branch {lpc}\n{lp}:')
    for x in pl: a.L.append(x[0])
    a(f'{lpc}:')
    a.waitall(lg=False)
    a(f'v_max3_u32 v20, v{X}, v{X+1}, v{X+2}')
    for j in range(3, 13, 2): a(f'v_max3_u32 v20, v20, v{X+j}, v{X+j+1}')
    a(f'v_max_u32 v20, v20, v{X+13}')
    a(f'v_cmp_eq_u32 vcc, -1, v20\ns_cbranch_vccz {lpo}')
    a(f's_sub_u32 s39, s39, 1\ns_cmp_lg_u32 s39, 0\ns_cbranch_scc1 {lp}\n{lpo}:')
    stamp(a, opt, 5)
    a.emit(cs_apply(A1, T2))
    for j in range(6): a(f'v_add_f32 v{X+j}, v{X+j}, v{X+j+8}')
    for j in range(4): a(f'v_add_f32 v{X+j}, v{X+j}, v{X+j+4}')
    a(f'v_add_f32 v{X}, v{X}, v{X+2}\nv_add_f32 v{X+1}, v{X+1}, v{X+3}')
    a(f'v_add_f32 v20, v{X}, v{X+1}\nv_mov_b32 v21, v20\nv_permlane32_swap_b32 v20, v21')
    ln_finalize(a, 20, 21, 896, 22, 19, 18)
    a('v_mul_f32 v19, v19, v18')
    for q in range(4):
        for i in range(4):
            p = A2 + 8*q + 2*i
            a(f'v_pk_fma_f32 {vr(p,2)}, {vr(p,2)}, v[18:19], v[18:19] op_sel:[0,0,1] op_sel_hi:[1,0,1]')
        for i in range(4): a(f'v_cvt_pk_bf16_f32 v{U+4*q+i}, v{A2+8*q+2*i}, v{A2+8*q+2*i+1}')
        a(f'ds_write_b128 v{TA}, {vr(U+4*q,4)} offset:{32*q}', 'tw')
    def z1out(q):
        for i in range(4):
            p = A1 + 8*q + 2*i
            a(f'v_pk_mul_f32 {vr(p,2)}, {vr(p,2)}, v[4:5] op_sel_hi:[1,0]')
        for i in range(4): a(f'v_cvt_pk_bf16_f32 v{WF+4*q+i}, v{A1+8*q+2*i}, v{A1+8*q+2*i+1}')
        a(f'buffer_store_dwordx4 {vr(WF+4*q,4)}, v7, s[12:15], s56 offen offset:{1024*q} {stf}', 'z1st')
    z1out(0); z1out(1)
    a.waitlg('tw')
    for q in range(4):
        ks2, fb = divmod(q, 2)
        a(f'ds_read_b64_tr_b16 {vr(U+16+4*q,2)}, v{TA+1} offset:{ks2*16*144 + 64*fb}', f'tr{q}')
        a(f'ds_read_b64_tr_b16 {vr(U+18+4*q,2)}, v{TA+1} offset:{ks2*16*144 + 64*fb + 4*144}', f'tr{q}')
    z1out(2); z1out(3)
    for q in range(4):
        a.waitlg(f'tr{q}')
        a(f'buffer_store_dwordx4 {vr(U+16+4*q,4)}, v7, s[12:15], s57 offen offset:{1024*q} {stf}', 'z2st')
    stamp(a, opt, 6)
    prof_store(a, opt, 0, 7)
    a('s_endpgm')

    a(f'{trole}:')
    a.vm = []; a.lg = []
    a(f's_cmp_eq_u32 s29, 4\ns_cbranch_scc1 {tload}')
    LA = 3; T = 24
    a('s_and_b32 s30, s24, 1\ns_lshl_b32 s30, s30, 2')
    a('s_lshl_b32 s32, s29, 15')
    a('s_lshl_b32 s33, s26, 7\ns_lshl_b32 s31, s29, 5\ns_add_u32 s33, s33, s31')
    xoffs('s33')
    for c in range(8): a(f's_add_u32 s31, s30, {c}\ns_and_b32 s31, s31, 7\ns_lshl_b32 s{40+c}, s31, 7')
    xraddr(8, False, 's32')
    a('s_mov_b32 s34, 0x3f803f80\ns_mov_b32 s35, 0x00003f80\ns_mov_b32 s36, 0x3f800000\ns_mov_b32 s57, 0xffff0000')
    for i in range(4): a(f'v_mov_b32 v{20+i}, 0')
    a('v_and_b32 v12, 31, v0\nv_lshrrev_b32 v13, 5, v0\nv_lshlrev_b32 v13, 15, v13\nv_lshl_add_u32 v12, v12, 2, v13')
    for i in range(1, 4): a(f'v_add_u32 v{12+i}, {8192*i}, v12')
    a(f's_lshl_b32 s31, s33, 2\ns_add_u32 s56, s31, {WS_XNT}\ns_lshl_b32 s31, s30, 18\ns_add_u32 s56, s56, s31')
    a('s_mov_b32 s6, 0x200000\ns_mov_b32 s7, 0x20000')
    a('s_waitcnt lgkmcnt(0)')
    a('s_and_b32 s5, s5, 0xffff')
    def xload(c):
        return [f's_add_u32 m0, s32, {4096*c}'] + [(f'buffer_load_dwordx4 v{2+i}, s[4:7], s{40+c} offen offset:{1024*i} lds', f'x{c}') for i in range(4)]
    for c in range(LA): a.emit(xload(c))
    srd(a, 12, 18, WS_BYTES)
    stamp(a, opt, 1)
    for c in range(8):
        a.waitvm(f'x{c}')
        a.emit(xreads(c, 8, 4096*c))
        if c + LA < 8: a.emit(xload(c + LA))
        if c > 0: dots(c-1, 20)
        a.waitlg(f'xr{c}')
    dots(7, 20)
    a.emit(redux(20))
    ln_finalize(a, 20, 21, 512, 22, 19, 18)
    stamp(a, opt, 2)
    for f in range(16):
        for i in range(4):
            a(f'v_dot2_f32_bf16 v{T+2*i}, v{X+4*f+i}, s35, v19\nv_dot2_f32_bf16 v{T+2*i+1}, v{X+4*f+i}, s36, v19')
        for i in range(4): a(f'v_cvt_pk_bf16_f32 v{X+4*f+i}, v{T+2*i}, v{T+2*i+1}')
        for i in range(4): a(f'v_lshlrev_b32 v{T+2*i}, 16, v{X+4*f+i}\nv_and_b32 v{T+2*i+1}, s57, v{X+4*f+i}')
        for i in range(4): a(f'v_pk_mul_f32 {vr(T+2*i,2)}, {vr(T+2*i,2)}, v[18:19] op_sel_hi:[1,0]')
        for i in range(4): a(f'v_cvt_pk_bf16_f32 v{X+4*f+i}, v{T+2*i}, v{T+2*i+1}')
        for i in range(4): a(f'buffer_store_dword v{X+4*f+i}, v{12+i}, s[12:15], s56 offen {stf}', 'xst')
        a('s_add_u32 s56, s56, 65536')
    stamp(a, opt, 3)
    prof_store(a, opt, 0, 4)
    a('s_endpgm')
    a(f'{tload}:')
    a.vm = []; a.lg = []
    nofl = a.newlab('k1nofl')
    a('v_mov_b32 v24, -1\nv_mov_b32 v25, -1\nv_mov_b32 v26, -1\nv_mov_b32 v27, -1\nv_lshlrev_b32 v28, 4, v0')
    a(f's_lshl_b32 s31, s26, 14\ns_add_u32 s37, s31, {WS_STATS}')
    a('s_lshl_b32 s31, s26, 4\nv_mov_b32 v29, s31\nv_mov_b32 v30, 1')
    a('s_mov_b32 s22, 0x800000\ns_mov_b32 s23, 0x20000')
    a('s_waitcnt lgkmcnt(0)')
    srd(a, 12, 18, WS_BYTES)
    a('s_mov_b32 s20, s10\ns_and_b32 s21, s11, 0xffff')
    a(f's_bitcmp1_b32 s24, 0\ns_cbranch_scc1 {nofl}')
    for g in range(4):
        for q in range(4): a(f'buffer_store_dwordx4 v[24:27], v28, s[12:15], s37 offen offset:{1024*q} sc1')
        a('s_add_u32 s37, s37, 4096')
    a('s_waitcnt vmcnt(0)')
    a('global_store_dword v29, v30, s[16:17] sc1')
    a(f'{nofl}:')
    stamp(a, opt, 1)
    if opt.get('pfw'): prefetch_wsp(a, opt)
    prof_store(a, opt, 0, 2)
    a(f'{done}:\ns_endpgm')
    kernel_desc(a, name, 256, 102)
    return a.text(pad=True, verbose=opt.get('verbose'))

def prefetch_wsp(a, opt):
    pass
```

```python
from k1 import *
BAR = ('BAR',)
LOG2E = math.log2(math.e)
def f32(x): return struct.unpack('<f', struct.pack('<f', x))[0]

def exp_acc(d, x, t0, t1):
    return [f'v_mul_f32 v{t0}, s90, v{x}', f'v_fma_f32 v{t1}, v{x}, s90, -v{t0}', f'v_fma_f32 v{t1}, v{x}, s91, v{t1}',
            f'v_exp_f32 v{t0}, v{t0}', f'v_mul_f32 v{t1}, s92, v{t1}', f'v_fma_f32 v{d}, v{t0}, v{t1}, v{t0}']

class SSM:
    CA = 128; KF = 160; TF = 192; T = 204
    USTR = 4640
    def __init__(self, a, base):
        self.a = a
        self.U = base; self.RAW = base + 8 * self.USTR; self.K = self.RAW + 8192 + 16
        self.end = self.K + 2 * 4224
    def param_loads(self):
        T = self.T
        L = [f's_lshl_b32 s31, s85, 9', 's_lshl_b32 s84, s29, 7', 's_add_u32 s31, s31, s84', f'v_lshl_add_u32 v{T+8}, v0, 1, s31',
             's_lshl_b32 s31, s85, 2', f'v_mov_b32 v{T+9}, s31']
        for i in range(4): L.append((f'global_load_ushort v{T+i}, v{T+8}, s[{40+2*i}:{41+2*i}]', 'prm'))
        L.append((f'global_load_dword v{T+4}, v{T+9}, s[48:49]', 'prm'))
        L.append((f'global_load_dword v{T+46}, v{T+9}, s[50:51]', 'prm'))
        return L
    def kgen(self):
        a = self.a; T = self.T; CA = self.CA
        L = []
        Lhi = f32(LOG2E); Llo = LOG2E - Lhi
        L += [f's_mov_b32 s90, {fbits(Lhi)}', f's_mov_b32 s91, {fbits(Llo)}', f's_mov_b32 s92, {fbits(math.log(2))}', 's_mov_b32 s93, 0xffff0000']
        PF = T + 40; PG = T + 41; PA = T + 42
        hi = [0,0,0,0,1,1,1,2,2,2,4,4,6,6,0,0]; lo = [0,1,2,3,0,2,4,0,4,8,0,8,0,8,0,0]
        pk = lambda t: sum(v << (4*i) for i, v in enumerate(t))
        H, Lo = pk(hi), pk(lo)
        L += [f's_mov_b32 s86, {hex(H & 0xffffffff)}', f's_mov_b32 s87, {hex(H >> 32)}', f's_mov_b32 s88, {hex(Lo & 0xffffffff)}', f's_mov_b32 s89, {hex(Lo >> 32)}',
              f'v_bfe_u32 v{T+10}, v0, 3, 2', f'v_and_b32 v{T+11}, 3, v0', f'v_lshl_add_u32 v{T+10}, v{T+10}, 2, v{T+11}', f'v_lshlrev_b32 v{T+11}, 2, v{T+10}',
              f'v_lshrrev_b64 v[{T+12}:{T+13}], v{T+11}, s[86:87]', f'v_lshrrev_b64 v[{T+14}:{T+15}], v{T+11}, s[88:89]',
              f'v_cmp_gt_u32 vcc, 7, v{T+10}', f'v_and_b32 v{T+12}, 15, v{T+12}', f'v_and_b32 v{T+14}, 15, v{T+14}', f'v_lshl_add_u32 v{T+12}, v{T+12}, 8, v{T+14}',
              f'v_mov_b32 v{T+13}, 2', f'v_cndmask_b32 v{T+13}, 8, v{T+13}, vcc', f'v_bfe_u32 v{T+14}, v0, 2, 1', f'v_lshlrev_b32 v{T+14}, v{T+13}, v{T+14}',
              f'v_add_u32 v{T+12}, v{T+12}, v{T+14}', f'v_cvt_f32_u32 v{PG}, v{T+12}',
              f'v_and_b32 v{T+12}, 31, v0', f'v_lshlrev_b32 v{T+12}, 3, v{T+12}', f'v_cvt_f32_u32 v{PF}, v{T+12}']
        L += [f's_lshl_b32 s31, s29, 10', f's_add_u32 s31, s31, {self.U}', f'v_lshl_add_u32 v{PA+1}, v0, 4, s31', f'v_lshrrev_b32 v{T+12}, 5, v0', f'v_lshl_add_u32 v{PA}, v{T+12}, 6, s31']
        L.append(lambda: a.waitvm('prm'))
        L += ['s_lshr_b32 s31, s29, 1', 's_lshl_b32 s31, s31, 4', f'v_lshrrev_b32 v{T+4}, s31, v{T+4}']
        for i in range(5): L.append(f'v_lshlrev_b32 v{T+i}, 16, v{T+i}')
        L += exp_acc(T+4, T+4, T+10, T+11) + exp_acc(T, T, T+12, T+13)
        L += [f'v_cvt_pk_bf16_f32 v{T+4}, v{T}, v{T+4}', f'v_lshlrev_b32 v{T}, 16, v{T+4}', f'v_and_b32 v{T+4}, s93, v{T+4}']
        for i in range(4): L.append(f'v_mul_f32 v{T+i}, v{T+i}, v{T+4}')
        L += [f'v_mul_f32 v{T}, {fbits(-LOG2E)}, v{T}', f'v_mul_f32 v{T+1}, 0.15915494, v{T+1}', f'v_add_f32 v{T+2}, v{T+2}, v{T+2}', f'v_add_f32 v{T+3}, v{T+3}, v{T+3}']
        L.append((f'ds_write_b128 v{PA+1}, {vr(T,4)}', 'ptw'))
        L.append(lambda: a.waitlg('ptw'))
        P0 = self.KF
        def prd(j): return [(f'ds_read_b128 {vr(P0+16*(j&1)+4*nn,4)}, v{PA} offset:{128*j+16*nn}', f'pr{j}') for nn in range(4)]
        L += prd(0)
        FG = self.TF
        for j in range(8):
            if j < 7: L += prd(j+1)
            L.append(lambda j=j: a.waitlg(f'pr{j}'))
            for half in range(2):
                seqs = []
                for nn in (2*half, 2*half+1):
                    P = P0 + 16*(j&1) + 4*nn; t = T + 16*(nn & 1)
                    seqs.append([f'v_mul_f32 v{t}, v{P}, v{PF}', f'v_mul_f32 v{t+1}, v{P+1}, v{PF}', f'v_mul_f32 v{t+4}, v{P}, v{PG}', f'v_mul_f32 v{t+5}, v{P+1}, v{PG}',
                        f'v_exp_f32 v{t}, v{t}', f'v_fract_f32 v{t+1}, v{t+1}', f'v_exp_f32 v{t+4}, v{t+4}', f'v_fract_f32 v{t+5}, v{t+5}',
                        f'v_sin_f32 v{t+2}, v{t+1}', f'v_cos_f32 v{t+1}, v{t+1}', f'v_mul_f32 v{t+7}, v{P+2}, v{t+4}', f'v_sin_f32 v{t+6}, v{t+5}', f'v_mul_f32 v{t+8}, v{P+3}, v{t+4}', f'v_cos_f32 v{t+5}, v{t+5}',
                        f'v_mul_f32 v{t+2}, v{t}, v{t+2}', f'v_mul_f32 v{t+1}, v{t}, v{t+1}', f'v_mul_f32 v{t+9}, v{t+7}, v{t+5}', f'v_mul_f32 v{t+10}, v{t+7}, v{t+6}',
                        f'v_cvt_pk_bf16_f32 v{FG+nn}, v{t+1}, v{t+2}', f'v_fma_f32 v{t+9}, -v{t+8}, v{t+6}, v{t+9}', f'v_fmac_f32 v{t+10}, v{t+8}, v{t+5}',
                        f'v_cvt_pk_bf16_f32 v{FG+4+nn}, v{t+9}, -v{t+10}'])
                for x, y in zip(*seqs): L += [x, y]
            L.append(f'v_mfma_f32_32x32x16_bf16 {vr(CA,16)}, {vr(FG+4,4)}, {vr(FG,4)}, {"0" if j == 0 else vr(CA,16)}')
        XA = T + 12
        L += [f's_lshl_b32 s31, s29, 12', f's_add_u32 s31, s31, {self.U + 4096}', f'v_lshl_add_u32 v{XA}, v0, 4, s31',
              's_xor_b32 s31, s29, 1', f's_lshl_b32 s31, s31, 12', f's_add_u32 s31, s31, {self.U + 4096}', f'v_lshl_add_u32 v{XA+1}, v0, 4, s31']
        L += ['s_lshr_b32 s31, s29, 1', 's_mul_i32 s84, s31, 4224', f's_add_u32 s84, s84, {self.K}',
              f'v_and_b32 v{T}, 31, v0', f'v_lshlrev_b32 v{T}, 4, v{T}', f'v_sub_u32 v{T}, s84, v{T}', f'v_lshrrev_b32 v{T+1}, 5, v0',
              f'v_lshlrev_b32 v{T+2}, 3, v{T+1}', f'v_sub_u32 v{XA+2}, v{T}, v{T+2}', f'v_lshlrev_b32 v{T+2}, 9, v{T+1}', f'v_sub_u32 v{XA+3}, v{T}, v{T+2}',
              f'v_and_b32 v{T+2}, 15, v0', f'v_lshl_add_u32 v{XA+4}, v{T+2}, 3, s84', f'v_and_b32 v{T+2}, 1, v0', f'v_cmp_eq_u32 s[94:95], 0, v{T+2}',
              f'v_mov_b32 v{T+4}, 0', f'v_mov_b32 v{T+5}, 0', f'v_mov_b32 v{T+6}, 0', f'v_mov_b32 v{T+7}, 0']
        L.append((f'ds_write_b64 v{XA+4}, {vr(T+4,2)} offset:4096', 'kz'))
        for q in range(4): L.append((f'ds_write_b128 v{XA}, {vr(CA+4*q,4)} offset:{1024*q}', 'dx'))
        L.append(BAR)
        for q in range(4): L.append((f'ds_read_b128 {vr(CA+16+4*q,4)}, v{XA+1} offset:{1024*q}', f'dr'))
        L.append(lambda: a.waitlg('dr'))
        for r in range(14): L.append(f'v_add_f32 v{CA+r}, v{CA+r}, v{CA+16+r}')
        L += [f'v_cndmask_b32 v{CA+14}, v{CA+11}, v{CA+10}, s[94:95]', f'v_cndmask_b32 v{CA+15}, v{CA+13}, v{CA+12}, s[94:95]']
        O = CA + 16
        pairs = [(3,2),(1,0), (6,5),(4,4), (9,9),(8,8),(8,7),(7,7), (11,11),(11,14),(10,10),(10,10), (13,13),(13,15),(12,12),(12,12)]
        for i, (x, y) in enumerate(pairs): L.append(f'v_cvt_pk_bf16_f32 v{O+i}, v{CA+x}, v{CA+y}')
        L.append((f'ds_write_b64 v{XA+2}, {vr(O,2)} offset:{4080+8}', 'kw'))
        L.append((f'ds_write_b64 v{XA+2}, {vr(O+2,2)} offset:{4080-512+8}', 'kw'))
        for k, s in enumerate((2, 4, 6)): L.append((f'ds_write_b128 v{XA+3}, {vr(O+4+4*k,4)} offset:{4080-512*s}', 'kw'))
        L.append(BAR)
        return L
    def ubuild(self):
        a = self.a; T = self.T; R = self.KF; O = self.CA
        L = ['s_mov_b32 s86, 0x05040100', 's_mov_b32 s87, 0x07060302',
             's_lshl_b32 s31, s29, 11', f's_add_u32 s31, s31, {self.RAW}', f'v_lshlrev_b32 v{T}, 5, v0', f'v_add_u32 v{T}, s31, v{T}']
        for k in range(3): L.append((f'ds_read_b128 {vr(R+4*k,4)}, v{T} offset:{16*k}', 'rr'))
        L += [f'v_cmp_lt_u32 vcc, 31, v0', f'v_and_b32 v{T+1}, 31, v0', f'v_min_u32 v{T+1}, 23, v{T+1}', f'v_mov_b32 v{T+2}, {self.USTR}', f'v_cndmask_b32 v{T+2}, 0, v{T+2}, vcc',
              f's_mul_i32 s31, s29, {2*self.USTR}', f's_add_u32 s31, s31, {self.U}', f'v_lshl_add_u32 v{T+1}, v{T+1}, 4, v{T+2}', f'v_add_u32 v{T+1}, s31, v{T+1}']
        L.append((f'ds_write_b128 v{T+1}, {vr(T+4,4)}', 'uw'))
        L += ['s_lshl_b32 s31, s29, 10', f's_add_u32 s31, s31, {self.U + 384}', f'v_lshl_add_u32 v{T+1}, v0, 4, s31',
              's_cmp_eq_u32 s29, 0', 's_cselect_b32 s31, 0, -1', f'v_cmp_eq_u32 vcc, s31, v0']
        L.append(lambda: a.waitlg('rr'))
        for k in range(1, 4): L.append(f'v_cndmask_b32 v{R+k}, v{R+k}, v{T+4}, vcc')
        for dl in range(2):
            for e in range(4):
                d = O + 4 * (4*dl + e)
                for k in range(4): L.append(f'v_perm_b32 v{d+k}, v{R+4+2*k+e-2}, v{R+4+2*k+e-3}, s{86+dl}')
                L.append((f'ds_write_b128 v{T+1}, {vr(d,4)} offset:{(4*dl+e)*self.USTR}', 'uw'))
        L += ['s_lshr_b32 s31, s29, 1', f's_mul_i32 s31, s31, {4*self.USTR}', 's_and_b32 s88, s29, 1', 's_lshl_b32 s88, s88, 8', 's_add_u32 s31, s31, s88', f's_add_u32 s31, s31, {self.U}',
              f'v_and_b32 v{T}, 3, v0', f'v_mul_u32_u24 v{T}, {self.USTR}, v{T}', f'v_bfe_u32 v{T+2}, v0, 2, 2', f'v_lshl_add_u32 v{T}, v{T+2}, 7, v{T}',
              f'v_lshrrev_b32 v{T+2}, 4, v0', f'v_lshlrev_b32 v{T+2}, 4, v{T+2}', f'v_add3_u32 v{T+8}, v{T}, v{T+2}, s31',
              's_add_u32 s31, s84, s88', 's_add_u32 s31, s31, 120', f'v_and_b32 v{T}, 15, v0', f'v_lshlrev_b32 v{T}, 3, v{T}', f'v_sub_u32 v{T}, v{T+2}, v{T}', f'v_add_u32 v{T+9}, s31, v{T}']
        L.append(BAR)
        return L
    def conv(self):
        a = self.a; T = self.T; CA = self.CA; KF = self.KF; TF = self.TF
        L = []
        def kr(r, p):
            o = 3584 - 512*p + 64*r
            return [(f'ds_read_b64 {vr(KF+4*p,2)}, v{T+9} offset:{o}', f'k{r}_{p}'), (f'ds_read_b64 {vr(KF+4*p+2,2)}, v{T+9} offset:{o+8}', f'k{r}_{p}')]
        def tr(n):
            r, q = divmod(n, 8)
            return [(f'ds_read_b128 {vr(TF+4*(n%3),4)}, v{T+8} offset:{512*q+64*r}', f't{n}')]
        L += tr(0)
        for p in range(7, -1, -1): L += kr(0, p)
        L += tr(1)
        for n in range(32):
            r, q = divmod(n, 8)
            first = True
            for p in range(7 - q, -1, -1):
                tags = [f't{n}'] + ([f'k{r}_{p}'] if q == 0 else [])
                if first or q == 0: L.append(lambda tags=tags: a.waitlg(tags))
                A = p + q
                c = '0' if (r == 0 and q == 0) else vr(CA+4*A, 4)
                L.append(f'v_mfma_f32_16x16x32_bf16 {vr(CA+4*A,4)}, {vr(TF+4*(n%3),4)}, {vr(KF+4*p,4)}, {c}')
                if first:
                    if n + 2 < 32: L += tr(n+2)
                    if r < 3: L += kr(r+1, p)
                first = False
        L.append(BAR)
        return L
    def finish(self, stf):
        a = self.a; T = self.T; CA = self.CA; KF = self.KF; TF = self.TF
        L = ['s_lshl_b32 s31, s29, 13', f's_add_u32 s31, s31, {self.U}', f'v_lshl_add_u32 v{T}, v0, 4, s31']
        for A in range(8): L.append((f'ds_write_b128 v{T}, {vr(CA+4*A,4)} offset:{1024*A}', 'aw'))
        L += ['s_lshl_b32 s31, s29, 11', f'v_lshl_add_u32 v{T+2}, v0, 4, s31', f'v_add_u32 v{T}, {self.U}, v{T+2}', f'v_add_u32 v{T+1}, {self.RAW+16}, v{T+2}',
              's_lshl_b32 s31, s85, 13', f's_add_u32 s84, s31, {WS_ST}', f'v_lshlrev_b32 v{T+4}, 16, v{T+46}', f'v_and_b32 v{T+5}, s93, v{T+46}']
        for k in range(2): L.append((f'ds_read_b128 {vr(TF+4*k,4)}, v{T+1} offset:{1024*k}', 'ur'))
        L.append(BAR)
        for k in range(2):
            for w in range(4): L.append((f'ds_read_b128 {vr(CA+16*k+4*w,4)}, v{T} offset:{8192*w+1024*k}', f'ar{k}'))
        for k in range(2):
            for j in range(4): L += [f'v_lshlrev_b32 v{KF+8*k+2*j}, 16, v{TF+4*k+j}', f'v_and_b32 v{KF+8*k+2*j+1}, s93, v{TF+4*k+j}']
        for k in range(2):
            L.append(lambda k=k: a.waitlg(f'ar{k}'))
            B = CA + 16*k
            for j in range(4): L += [f'v_add_f32 v{B+j}, v{B+j}, v{B+4+j}', f'v_add_f32 v{B+8+j}, v{B+8+j}, v{B+12+j}']
            for j in range(4): L += [f'v_fmac_f32 v{B+j}, v{KF+8*k+2*j}, v{T+4}', f'v_fmac_f32 v{B+8+j}, v{KF+8*k+2*j+1}, v{T+5}']
            for j in range(4): L.append(f'v_cvt_pk_bf16_f32 v{B+4+j}, v{B+j}, v{B+8+j}')
            L.append((f'buffer_store_dwordx4 {vr(B+4,4)}, v{T+2}, s[12:15], s84 offen offset:{1024*k} {stf}', 'sst'))
        return L

def cost(x):
    if callable(x): return 4
    t = x[0] if isinstance(x, tuple) else x
    if t.startswith(TRANS): return 8
    if t.startswith('v_mfma_f32_32'): return 32
    if t.startswith('v_mfma'): return 16
    return 4

def emit_plain(a, L):
    for x in L:
        if x is BAR:
            a.waitall(vm=False); a('s_barrier')
        else: a.emit([x])

def k2(name, opt):
    a = Asm()
    kernel_begin(a, name)
    NB = opt.get('nb2', 4); D2 = opt.get('d2', 32); stf = opt.get('stflag', '')
    assert D2 <= 24 * (NB - 2)
    ssm = SSM(a, NB * 24576)
    lds = ssm.end
    assert lds <= 163840
    done = f'{name}_done'; comp = f'{name}_comp'
    a(f's_cmp_ge_u32 s2, 256\ns_cbranch_scc1 {done}')
    if opt.get('prof'): a('s_memrealtime s[60:61]\ns_memtime s[64:65]')
    a(f's_load_dwordx4 s[8:11], s[0:1], {KA["wsp"]}')
    a(f's_load_dwordx2 s[18:19], s[0:1], {KA["ws"]}')
    a(f's_load_dwordx8 s[40:47], s[0:1], {KA["logA"]}\ns_load_dwordx4 s[48:51], s[0:1], {KA["logdt"]}')
    decode_ids(a)
    a('s_mov_b32 s85, s2')
    a(f's_cmp_eq_u32 s29, 4\ns_cbranch_scc0 {comp}')
    a(f"""s_lshl_b32 s33, s26, 7
v_lshrrev_b32 v10, 3, v0
v_and_b32 v11, 7, v0
v_lshrrev_b32 v12, 4, v0
v_add_u32 v13, s33, v10
v_lshlrev_b32 v13, 12, v13
v_xor_b32 v14, v11, v12
v_lshl_add_u32 v2, v14, 4, v13
v_xor_b32 v3, 64, v2
v_add_u32 v3, {8*4096-1024}, v3
v_add_u32 v4, {16*4096-2048}, v2
v_add_u32 v5, {16*4096-2048}, v3
v_lshlrev_b32 v6, 4, v0""")
    sm, sn = opt.get('sm', 128), opt.get('sn', 0)
    a(f's_mul_i32 s30, s3, {sm}\ns_mul_i32 s31, s27, {sn}\ns_add_u32 s30, s30, s31\ns_lshr_b32 s30, s30, 4\ns_and_b32 s30, s30, 31')
    a('s_lshl_b32 s34, s28, 18')
    a(f's_lshl_b32 s35, s85, 13\ns_add_u32 s35, s35, {WS_XNT}')
    a('s_mov_b32 s6, 0x800000\ns_mov_b32 s7, 0x20000')
    a('s_waitcnt lgkmcnt(0)')
    a('s_mov_b32 s4, s8\ns_and_b32 s5, s9, 0xffff')
    srd(a, 12, 18, WS_BYTES)
    rawg = [([f's_mov_b32 m0, {ssm.RAW + 16 + g*4096}', f's_add_u32 s31, s35, {g*4096}'],
             [f'buffer_load_dwordx4 v6, s[12:15], s31 offen offset:{1024*i} lds' for i in range(4)]) for g in range(2)]
    tl = a.newlab('k2tl')
    a(f's_cmp_eq_u32 s27, 7\ns_cbranch_scc1 {tl}')
    groups = []; bars = []; n = 0
    RAWAT = opt.get('rawat', 3)
    for k in range(32):
        b = (k % NB) * 24576
        pre = ['s_lshl_b32 s36, s30, 7', 's_lshl_b32 s37, s30, 13', 's_add_u32 s37, s37, s34', 's_add_u32 s30, s30, 1', 's_and_b32 s30, s30, 31']
        for g in range(4):
            groups.append(((pre if g == 0 else ['s_add_u32 s36, s36, 0x20000']) + [f's_mov_b32 m0, {b + g*4096}', 's_nop 0'],
                           [f'buffer_load_dwordx4 v{2+i}, s[4:7], s36 offen offset:{1024*i} lds' for i in range(4)]))
        for g in range(2):
            groups.append(([f's_mov_b32 m0, {b + 16384 + g*4096}', 's_add_u32 s37, s37, 4096' if g else 's_nop 0'],
                           [f'buffer_load_dwordx4 v6, s[12:15], s37 offen offset:{1024*i} lds' for i in range(4)]))
        n += 24
        if k == RAWAT: groups += rawg; n += 8
        bars.append(n)
    rest = loader_emit(a, groups, bars, D2, lambda b, k: stamp(a, opt, 1 + (b//5)*2 + k) if b % 5 == 0 and b < 30 else None)
    for r in rest: a(f's_waitcnt vmcnt({r})\ns_barrier')
    stamp(a, opt, 13)
    prof_store(a, opt, 1, 14)
    a('s_endpgm')
    a(f'{tl}:')
    loader_emit(a, rawg, [], 0)
    a('s_waitcnt vmcnt(0)\ns_barrier')
    prof_store(a, opt, 1, 1)
    a('s_endpgm')

    a(f'{comp}:')
    a.vm = []; a.lg = []
    tc = a.newlab('k2tc')
    stream = lambda: ssm.kgen() + ssm.ubuild() + ssm.conv() + ssm.finish(stf)
    a(f's_cmp_eq_u32 s27, 7\ns_cbranch_scc1 {tc}')
    ACC = 16; Z1 = 48; F = [80, 104]
    a(f"""v_and_b32 v1, 31, v0
v_lshrrev_b32 v9, 5, v0
v_bfe_u32 v8, v0, 1, 3
v_xor_b32 v8, v8, v9
v_lshlrev_b32 v8, 4, v8
v_lshl_add_u32 v8, v1, 7, v8
s_lshl_b32 s31, s29, 12
v_add_u32 v8, s31, v8
v_xor_b32 v9, 32, v8
v_xor_b32 v10, 64, v8
v_xor_b32 v11, 96, v8
v_lshlrev_b32 v6, 4, v0
v_add_u32 v7, 49152, v6""")
    for i in range(4): a(f'v_add_u32 v{12+i}, 49152, v{8+i}')
    a('s_lshl_b32 s33, s26, 7\ns_lshl_b32 s31, s29, 5\ns_add_u32 s33, s33, s31\nv_add_lshl_u32 v1, v1, s33, 1')
    a(f's_mul_i32 s31, s26, 14\ns_add_u32 s31, s31, s28\ns_lshl_b32 s31, s31, 2\ns_add_u32 s31, s31, s29\ns_lshl_b32 s31, s31, 12\ns_add_u32 s56, s31, {WS_Z1F}')
    a(f's_lshl_b32 s31, s26, 2\ns_add_u32 s31, s31, s29\ns_mul_i32 s57, s31, 57344\ns_lshl_b32 s31, s28, 12\ns_add_u32 s57, s57, s31\ns_add_u32 s57, s57, {WS_HF}')
    a(f'v_mov_b32 v2, {fbits(C1)}\nv_mov_b32 v3, {fbits(C0)}\ns_mov_b32 s93, 0xffff0000')
    a('s_waitcnt lgkmcnt(0)')
    srd(a, 12, 18, WS_BYTES)
    for q in range(4): a(f'buffer_load_dwordx4 {vr(ACC+4*q,4)}, v6, s[12:15], s56 offen offset:{1024*q}', f'z1{q}')
    a('global_load_ushort v4, v1, s[10:11]', 'bsp')
    a.emit(ssm.param_loads())
    g1 = gelu_list(Z1, 32, 2, None, F[0])
    per = len(g1) // 4
    for q in range(4):
        a.waitvm(f'z1{q}')
        for i in range(4): a(f'v_lshlrev_b32 v{Z1+8*q+2*i}, 16, v{ACC+4*q+i}\nv_and_b32 v{Z1+8*q+2*i+1}, s93, v{ACC+4*q+i}')
        a.emit(g1[q*per:(q+1)*per])
    stamp(a, opt, 1)
    def rd(k, half):
        b = (k % NB) * 24576; hi = b >= 49152; b -= 49152 * hi
        L = []
        for j in range(2):
            ks = 2*half + j
            L.append((f'ds_read_b128 {vr(F[half]+12*j,4)}, v{8+ks+4*hi} offset:{b}', f'g{k}_{ks}'))
            for fb in range(2): L.append((f'ds_read_b128 {vr(F[half]+12*j+4+4*fb,4)}, v{6+hi} offset:{b+16384+ks*2048+fb*1024}', f'g{k}_{ks}'))
        return L
    def mm(k, half):
        L = []
        for j in range(2):
            for fb in range(2):
                c = '0' if (k == 0 and half == 0 and j == 0) else vr(ACC+16*fb, 16)
                L.append((f'g{k}_{2*half+j}', f'v_mfma_f32_32x32x16_bf16 {vr(ACC+16*fb,16)}, {vr(F[half]+12*j+4+4*fb,4)}, {vr(F[half]+12*j,4)}, {c}'))
        return L
    S = [] if opt.get('nossm') else stream()
    budget = opt.get('budget', 26)
    si = 0; blocked = False; nbar = 0
    def pull(bud, k):
        nonlocal si, blocked, nbar
        while si < len(S) and not blocked and bud > 0:
            x = S[si]
            if x is BAR:
                blocked = True; si += 1; nbar += 1
                if nbar == 2: assert k >= RAWAT
                if opt.get('verbose'): print('ssm bar', nbar, 'at stage', k)
                break
            a.emit([x]); bud -= cost(x); si += 1
    for k in range(33):
        if k < 32:
            a.waitall(vm=False); a('s_barrier'); blocked = False
        if k == 1: stamp(a, opt, 2)
        for ph in range(2):
            m = (mm(k-1, 1) if k > 0 else []) if ph == 0 else (mm(k, 0) if k < 32 else [])
            r = rd(k, ph) if k < 32 else []
            if not m: a.emit(r); continue
            for i, (tg, ins) in enumerate(m):
                a.waitlg(tg)
                a(ins)
                a.emit(r[2*i:2*i+2] if i < 3 else [])
                pull(budget - (8 if i < 3 else 0), k)
    stamp(a, opt, 3)
    if opt.get('verbose'): print('ssm left', len(S) - si)
    rest = S[si:]
    if blocked: rest = [BAR] + rest
    a.waitvm('bsp')
    a('v_lshlrev_b32 v4, 16, v4')
    for q in range(4):
        for i in range(4):
            p = ACC + 8*q + 2*i
            a(f'v_pk_add_f32 {vr(p,2)}, {vr(p,2)}, v[4:5] op_sel_hi:[1,0]')
        for i in range(4):
            p = ACC + 8*q + 2*i
            a(f'v_pk_mul_f32 {vr(p,2)}, {vr(p,2)}, {vr(Z1+8*q+2*i,2)}')
        for i in range(4): a(f'v_cvt_pk_bf16_f32 v{F[0]+4*q+i}, v{ACC+8*q+2*i}, v{ACC+8*q+2*i+1}')
        a(f'buffer_store_dwordx4 {vr(F[0]+4*q,4)}, v6, s[12:15], s57 offen offset:{1024*q} {stf}', 'hst')
    stamp(a, opt, 4)
    emit_plain(a, rest)
    stamp(a, opt, 5)
    prof_store(a, opt, 1, 6)
    a('s_endpgm')
    a(f'{tc}:')
    a.vm = []; a.lg = []
    a('s_waitcnt lgkmcnt(0)')
    srd(a, 12, 18, WS_BYTES)
    a.emit(ssm.param_loads())
    emit_plain(a, ssm.kgen()); stamp(a, opt, 1)
    emit_plain(a, ssm.ubuild()); stamp(a, opt, 2)
    emit_plain(a, ssm.conv()); stamp(a, opt, 3)
    emit_plain(a, ssm.finish(stf)); stamp(a, opt, 4)
    prof_store(a, opt, 1, 5)
    a(f'{done}:\ns_endpgm')
    kernel_desc(a, name, 256, 102)
    return a.text(pad=True, verbose=opt.get('verbose')), 256, lds
```

```python
from k1 import *
LOG2E = math.log2(math.e)
def k3(name, opt):
    a = Asm()
    kernel_begin(a, name)
    NB = 6; D3 = opt.get('d3', 32)
    assert D3 <= 16 * (NB - 2)
    XB = NB * 16384; OB = XB + 8192
    lds = OB + 4 * 2560
    done = f'{name}_done'; comp = f'{name}_comp'
    a(f's_cmp_ge_u32 s2, 256\ns_cbranch_scc1 {done}')
    if opt.get('prof'): a('s_memrealtime s[60:61]\ns_memtime s[64:65]')
    a(f's_load_dwordx4 s[8:11], s[0:1], {KA["wout"]}')
    a(f's_load_dwordx2 s[18:19], s[0:1], {KA["ws"]}\ns_load_dwordx2 s[20:21], s[0:1], {KA["u"]}')
    a('''s_and_b32 s24, s2, 7
s_lshr_b32 s25, s2, 3
s_and_b32 s3, s25, 3
s_lshl_b32 s26, s24, 2
s_add_u32 s26, s26, s3
s_lshr_b32 s27, s25, 2
v_lshrrev_b32 v1, 6, v0
v_and_b32 v0, 63, v0
v_readfirstlane_b32 s29, v1''')
    a(f's_cmp_eq_u32 s29, 4\ns_cbranch_scc0 {comp}')
    a(f"""v_lshrrev_b32 v10, 3, v0
v_and_b32 v11, 7, v0
v_lshrrev_b32 v12, 4, v0
v_lshlrev_b32 v13, 10, v10
s_lshl_b32 s31, s27, 7
v_add_u32 v13, s31, v13
v_and_b32 v14, 1, v12
v_lshlrev_b32 v14, 2, v14
v_xor_b32 v14, v14, v11
v_lshl_add_u32 v2, v14, 4, v13
v_add_u32 v3, 7168, v2
v_add_u32 v4, 7168, v3
v_add_u32 v5, 7168, v4
v_lshlrev_b32 v6, 4, v0
v_xor_b32 v14, v11, v12
v_lshl_add_u32 v16, v14, 4, v13
v_xor_b32 v17, 64, v16
v_add_u32 v17, 7168, v17
v_add_u32 v18, 14336, v16
v_add_u32 v19, 14336, v17""")
    sm, sn = opt.get('sm3', 56), opt.get('sn3', 28)
    a(f's_mul_i32 s30, s3, {sm}\ns_mul_i32 s31, s27, {sn}\ns_add_u32 s30, s30, s31\ns_lshr_b32 s30, s30, 4\ns_sub_u32 s31, s30, 14\ns_cmp_ge_u32 s30, 14\ns_cselect_b32 s30, s31, s30')
    a(f's_mul_i32 s34, s26, {2*57344}\ns_add_u32 s34, s34, {WS_HF}\ns_lshl_b32 s35, s26, 16')
    a(f's_mov_b32 s6, {896*1024}\ns_mov_b32 s7, 0x20000\ns_mov_b32 s22, 0x200000\ns_mov_b32 s23, 0x20000')
    a('s_waitcnt lgkmcnt(0)')
    a('s_mov_b32 s4, s8\ns_and_b32 s5, s9, 0xffff\ns_and_b32 s21, s21, 0xffff')
    srd(a, 12, 18, WS_BYTES)
    groups = []; bars = []; n = 0
    XAT = 4
    for k in range(14):
        b = (k % NB) * 16384
        pre = ['s_lshl_b32 s36, s30, 16', 's_lshl_b32 s37, s30, 12', 's_add_u32 s37, s37, s34', 's_add_u32 s30, s30, 1', 's_cmp_eq_u32 s30, 14', 's_cselect_b32 s30, 0, s30']
        for g in range(2):
            groups.append(((pre if g == 0 else ['s_add_u32 s37, s37, 57344']) + [f's_mov_b32 m0, {b + 8192 + g*4096}', 's_nop 0'],
                           [f'buffer_load_dwordx4 v6, s[12:15], s37 offen offset:{1024*i} lds' for i in range(4)]))
        for g in range(2):
            groups.append(([f's_mov_b32 m0, {b + g*4096}', 's_add_u32 s36, s36, 32768' if g else 's_nop 0'],
                           [f'buffer_load_dwordx4 v{2+i}, s[4:7], s36 offen offset:{1024*i} lds' for i in range(4)]))
        n += 16
        if k == XAT:
            for g in range(2):
                groups.append(([f's_mov_b32 m0, {XB + g*4096}', 's_add_u32 s35, s35, 32768' if g else 's_nop 0'],
                               [f'buffer_load_dwordx4 v{16+i}, s[20:23], s35 offen offset:{1024*i} lds' for i in range(4)]))
            n += 8
        bars.append(n)
    rest = loader_emit(a, groups, bars, D3, lambda b, k: stamp(a, opt, 1 + (b//2)*2 + k) if b % 2 == 0 and b < 12 else None)
    for r in rest: a(f's_waitcnt vmcnt({r})\ns_barrier')
    stamp(a, opt, 13)
    prof_store(a, opt, 2, 14)
    a('s_endpgm')
    a(f'{comp}:')
    a.vm = []; a.lg = []
    ACC = 16; F = [32, 48]; SR = 64; SF = 72; XR = 88; XF = 96; T = 112
    a('s_and_b32 s32, s29, 1\ns_lshr_b32 s33, s29, 1')
    a("""v_lshrrev_b32 v10, 5, v0
v_bfe_u32 v11, v0, 2, 2
v_lshl_add_u32 v12, v10, 3, v11
v_lshlrev_b32 v12, 7, v12
v_bfe_u32 v11, v0, 3, 1
v_xor_b32 v11, s33, v11
v_lshl_add_u32 v12, v11, 6, v12
v_bfe_u32 v11, v0, 4, 1
v_lshl_add_u32 v12, v11, 5, v12
v_and_b32 v11, 1, v0
v_lshl_add_u32 v12, v11, 4, v12
v_bfe_u32 v11, v0, 1, 1
v_lshl_add_u32 v2, v11, 3, v12
v_add_u32 v3, 49152, v2
s_lshl_b32 s31, s32, 12
s_add_u32 s31, s31, 8192
v_lshl_add_u32 v4, v0, 4, s31
v_add_u32 v5, 49152, v4""")
    a(f"""v_and_b32 v13, 31, v0
v_lshlrev_b32 v11, 15, v10
v_lshl_add_u32 v6, v13, 2, v11
s_lshl_b32 s31, s27, 1
s_add_u32 s31, s31, s33
s_lshl_b32 s36, s31, 17
s_lshl_b32 s31, s26, 1
s_add_u32 s31, s31, s32
s_lshl_b32 s37, s31, 7
s_add_u32 s36, s36, s37
s_add_u32 s36, s36, {WS_ST}
s_lshl_b32 s37, s31, 15
s_lshl_b32 s31, s27, 7
s_add_u32 s37, s37, s31
s_lshl_b32 s31, s33, 6
s_add_u32 s37, s37, s31""")
    a(f"""v_bfe_u32 v11, v0, 1, 3
v_xor_b32 v11, v11, v10
s_lshl_b32 s31, s33, 2
v_xor_b32 v11, s31, v11
v_lshlrev_b32 v11, 4, v11
v_lshl_add_u32 v7, v13, 7, v11
s_lshl_b32 s31, s32, 12
s_add_u32 s31, s31, {XB}
v_add_u32 v7, s31, v7
v_xor_b32 v8, 32, v7
s_mul_i32 s31, s29, 2560
s_add_u32 s31, s31, {OB}
v_mul_u32_u24 v9, 80, v13
v_lshl_add_u32 v9, v10, 4, v9
v_add_u32 v9, s31, v9
v_lshrrev_b32 v11, 2, v0
v_and_b32 v12, 3, v0
v_lshlrev_b32 v12, 4, v12
v_mul_u32_u24 v14, 80, v11
v_add3_u32 v14, v14, v12, s31
v_lshl_add_u32 v15, v11, 10, v12
s_mov_b32 s93, 0xffff0000
s_mov_b32 s22, 0x200000
s_mov_b32 s23, 0x20000""")
    a('s_waitcnt lgkmcnt(0)')
    srd(a, 12, 18, WS_BYTES)
    a('s_mov_b32 s20, s10\ns_and_b32 s21, s11, 0xffff')
    for i in range(8):
        a(f'buffer_load_dword v{SR+i}, v6, s[12:15], s36 offen', 'sl')
        a(f's_add_u32 s36, s36, {8192 if i != 3 else 5*8192}')
    stamp(a, opt, 1)
    def rd(k, half):
        b = (k % NB) * 16384; hi = b >= 49152; b -= 49152 * hi
        L = []
        for j in range(2):
            ks = 2*half + j
            L.append((f'ds_read_b128 {vr(F[half]+8*j,4)}, v{4+hi} offset:{b+ks*1024}', f'g{k}_{ks}'))
            L.append((f'ds_read_b64_tr_b16 {vr(F[half]+8*j+4,2)}, v{2+hi} offset:{b+ks*2048}', f'g{k}_{ks}'))
            L.append((f'ds_read_b64_tr_b16 {vr(F[half]+8*j+6,2)}, v{2+hi} offset:{b+ks*2048+512}', f'g{k}_{ks}'))
        return L
    def mm(k, half):
        return [(f'g{k}_{2*half+j}', f'v_mfma_f32_32x32x16_bf16 {vr(ACC,16)}, {vr(F[half]+8*j+4,4)}, {vr(F[half]+8*j,4)}, {"0" if (k == 0 and half == 0 and j == 0) else vr(ACC,16)}') for j in range(2)]
    for k in range(15):
        if k < 14:
            a.waitall(vm=False); a('s_barrier')
        if k == 1: stamp(a, opt, 2)
        for ph in range(2):
            m = (mm(k-1, 1) if k > 0 else []) if ph == 0 else (mm(k, 0) if k < 14 else [])
            r = rd(k, ph) if k < 14 else []
            if not m: a.emit(r); continue
            for i, (tg, ins) in enumerate(m):
                a.waitlg(tg); a(ins); a.emit(r[3*i:3*i+3])
        if k == XAT + 1:
            for p in range(2): a(f'ds_read_b128 {vr(XR+4*p,4)}, v{7+p}', 'xr')
        if k == XAT + 2:
            for i in range(8): a(f'v_lshlrev_b32 v{XF+2*i}, 16, v{XR+i}\nv_and_b32 v{XF+2*i+1}, s93, v{XR+i}')
        if k == XAT + 3:
            a.waitvm('sl')
            for i in range(8): a(f'v_lshlrev_b32 v{SF+2*i}, 16, v{SR+i}\nv_and_b32 v{SF+2*i+1}, s93, v{SR+i}')
    stamp(a, opt, 3)
    a(f'v_mov_b32 v10, {fbits(-LOG2E)}')
    for p in range(2):
        B = ACC + 8*p
        for i in range(4): a(f'v_pk_mul_f32 {vr(T+2*i,2)}, {vr(B+2*i,2)}, v[10:11] op_sel_hi:[1,0]')
        for i in range(8): a(f'v_exp_f32 v{T+i}, v{T+i}')
        for i in range(4): a(f'v_pk_mul_f32 {vr(B+2*i,2)}, {vr(B+2*i,2)}, {vr(SF+8*p+2*i,2)}')
        for i in range(4): a(f'v_pk_add_f32 {vr(T+2*i,2)}, {vr(T+2*i,2)}, 1.0 op_sel_hi:[1,0]')
        for i in range(8): a(f'v_rcp_f32 v{T+i}, v{T+i}')
        for i in range(4): a(f'v_pk_fma_f32 {vr(B+2*i,2)}, {vr(B+2*i,2)}, {vr(T+2*i,2)}, {vr(XF+8*p+2*i,2)}')
        for i in range(4): a(f'v_cvt_pk_bf16_f32 v{F[0]+4*p+i}, v{B+2*i}, v{B+2*i+1}')
        a(f'ds_write_b128 v9, {vr(F[0]+4*p,4)} offset:{32*p}', 'ow')
    a.waitlg('ow')
    for p in range(2): a(f'ds_read_b128 {vr(F[1]+4*p,4)}, v14 offset:{16*80*p}', f'or{p}')
    for p in range(2):
        a.waitlg(f'or{p}')
        if p: a('s_add_u32 s37, s37, 16384')
        a(f'buffer_store_dwordx4 {vr(F[1]+4*p,4)}, v15, s[20:23], s37 offen {opt.get("outflag","")}', 'ost')
    stamp(a, opt, 4)
    prof_store(a, opt, 2, 5)
    a(f'{done}:\ns_endpgm')
    kernel_desc(a, name, 128, 102)
    return a.text(pad=True, verbose=opt.get('verbose')), 256, lds
```

```python
import re

def regs_of(tok):
    tok = tok.strip()
    tok = tok.lstrip('-')
    if tok.startswith('abs(') or tok.startswith('neg('): tok = tok[4:-1]
    if tok.startswith('|'): tok = tok.strip('|')
    m = re.fullmatch(r'([vas])(\d+)', tok)
    if m: return [(m.group(1), int(m.group(2)))]
    m = re.fullmatch(r'([vas])\[(\d+):(\d+)\]', tok)
    if m: return [(m.group(1), i) for i in range(int(m.group(2)), int(m.group(3)) + 1)]
    if tok == 'vcc': return [('s', 'vcc')]
    if tok in ('vcc_lo', 'vcc_hi'): return [('s', 'vcc')]
    if tok == 'exec': return [('s', 'exec')]
    if tok == 'm0': return [('s', 'm0')]
    return []

TRANS = ('v_exp_f32', 'v_log_f32', 'v_rcp_f32', 'v_rsq_f32', 'v_sqrt_f32', 'v_sin_f32', 'v_cos_f32')

class Ins:
    def __init__(self, txt):
        self.txt = txt
        t = txt.split(';')[0].strip()
        self.is_ins = bool(t) and not t.endswith(':') and not t.startswith(('.', '@'))
        self.is_label = t.endswith(':')
        self.mn = ''; self.w = set(); self.r = set(); self.srcc = set(); self.ab = set(); self.sdata = set()
        if not self.is_ins: return
        parts = t.split(None, 1)
        mn = self.mn = parts[0]
        ops = []
        if len(parts) > 1:
            cur = ''; dep = 0
            for ch in parts[1]:
                if ch in '[(': dep += 1
                if ch in '])': dep -= 1
                if ch == ',' and dep == 0: ops.append(cur.strip()); cur = ''
                else: cur += ch
            ops.append(cur.strip())
            last = ops[-1].split()
            self.mods = last[1:] if last else []
            ops[-1] = last[0] if last else ''
        else: self.mods = []
        R = [regs_of(o) for o in ops]
        self.mfma = mn.startswith('v_mfma')
        self.valu = mn.startswith('v_') and not self.mfma
        self.salu = mn.startswith('s_')
        self.vmem = mn.startswith(('buffer_', 'global_', 'flat_'))
        self.ds = mn.startswith('ds_')
        self.trans = mn.startswith(TRANS)
        self.dot = mn.startswith('v_dot')
        self.dpp = '_dpp' in mn
        self.lds_dma = self.vmem and ('lds' in self.mods or 'load_lds' in mn)
        flat = lambda L: set(x for l in L for x in l)
        if self.mfma:
            self.w = set(R[0]); self.ab = flat(R[1:3]); self.srcc = set(R[3]); self.r = self.ab | self.srcc
            self.passes = 8 if '32x32' in mn else 4
            if '_f32_32x32x2' in mn: self.passes = 16
        elif self.valu:
            if mn.startswith('v_cmp'):
                self.w = set(R[0]); self.r = flat(R[1:])
                if mn.startswith('v_cmpx'): self.w.add(('s', 'exec'))
            elif mn.startswith('v_permlane') and 'swap' in mn:
                self.w = flat(R[:2]); self.r = flat(R[:2])
            elif '_co_' in mn:
                self.w = flat(R[:2]); self.r = flat(R[2:])
            elif mn == 'v_nop': pass
            else:
                self.w = set(R[0]); self.r = flat(R[1:])
                if mn.startswith(('v_fmac', 'v_dot2c', 'v_pk_fmac', 'v_writelane')) or self.dpp or 'sdwa' in mn: self.r |= set(R[0])
        elif self.vmem:
            if self.lds_dma: self.r = flat(R) | {('s', 'm0')}
            elif 'load' in mn: self.w = set(R[0]); self.r = flat(R[1:])
            elif 'store' in mn:
                self.r = flat(R)
                d = R[0] if mn.startswith('buffer_') else R[1]
                if len(d) >= 3: self.sdata = set(d)
            elif 'atomic' in mn:
                self.r = flat(R)
                if 'sc0' in self.mods: self.w = set(R[0])
            else: self.r = flat(R)
        elif self.ds:
            if 'read' in mn or 'permute' in mn or 'swizzle' in mn: self.w = set(R[0]); self.r = flat(R[1:])
            else: self.r = flat(R)
        elif self.salu:
            if mn.startswith(('s_cmp', 's_cbranch', 's_branch', 's_waitcnt', 's_barrier', 's_nop', 's_endpgm', 's_sleep', 's_setprio', 's_bitcmp')):
                self.r = flat(R)
            else:
                self.w = set(R[0]) if R else set(); self.r = flat(R[1:])
                if 'saveexec' in mn: self.w.add(('s', 'exec'))
    def states(self):
        if not self.is_ins: return 0
        if self.mn == 's_nop': return int(self.txt.split()[1], 0) + 1
        return 1

def need(p, c):
    n = 0
    vw = {x for x in p.w if x[0] in 'va'}
    sw = {x for x in p.w if x[0] == 's'}
    if p.mfma:
        big = {4: 8, 8: 12, 16: 18}[p.passes]
        if c.mfma:
            if vw & c.ab: n = max(n, big)
            if vw & c.srcc and not (p.w == c.srcc and p.passes == c.passes): n = max(n, big - 2)
            if vw & c.w and not (vw & c.srcc): n = max(n, big)
        elif (c.valu or c.vmem or c.ds) and (vw & (c.r | c.w)): n = max(n, big)
        if c.valu and (p.srcc & c.w): n = max(n, {4: 3, 8: 7, 16: 15}[p.passes])
    if p.valu:
        if c.mfma and (vw & c.r): n = max(n, 3 if p.dot else 2)
        if c.mfma and ('s', 'exec') in sw: n = max(n, 4)
        if p.dot and (c.valu or c.vmem or c.ds) and (vw & (c.r | c.w)):
            if not (c.mn == p.mn and c.mn.startswith('v_dot2c') and vw == {x for x in c.w}): n = max(n, 3)
        if p.trans and c.valu and not c.trans and (vw & c.r): n = max(n, 1)
        if c.valu and c.mn.startswith('v_permlane') and (vw & c.r): n = max(n, 2)
        if c.valu and c.dpp and (vw & c.r): n = max(n, 2)
        if c.valu and c.mn.startswith(('v_readlane', 'v_readfirstlane')) and (vw & c.r): n = max(n, 1)
        if c.valu and ('sdwa' in p.mn or 'op_sel' in ' '.join(p.mods) and not p.mn.startswith('v_pk') and not p.dot) and (vw & (c.r | c.w)): n = max(n, 1)
        if sw:
            if c.valu and (sw & c.r): n = max(n, 4 if c.mn.startswith(('v_readlane', 'v_writelane', 'v_div_fmas')) else 2)
            if c.vmem and (sw & c.r): n = max(n, 5)
            if ('s', 'exec') in sw and c.valu and (c.dpp or c.mn.startswith(('v_permlane', 'v_readlane', 'v_readfirstlane'))): n = max(n, 5)
            if c.salu and (sw & c.r): n = max(n, 1)
    if p.salu and ('s', 'm0') in sw and c.lds_dma: n = max(n, 1)
    if p.sdata and (p.sdata & c.w): n = max(n, 2)
    return n

def pad_hazards(lines, verbose=False):
    out = []
    hist = []
    t = 0; added = 0
    pend = {}
    for ln in lines:
        i = Ins(ln)
        if not i.is_ins:
            if i.is_label:
                for p, age in pend.pop(ln.split(';')[0].strip()[:-1], []): hist.append((p, t - age))
            out.append(ln); continue
        req = 0
        for p, tp in hist:
            k = need(p, i)
            if k:
                have = t - tp - 1
                req = max(req, k - have)
        while req > 0:
            k = min(req, 16)
            out.append(f's_nop {k-1}'); t += k; req -= k; added += k
            if verbose: print('pad', k, 'before', ln)
        out.append(ln)
        hist.append((i, t + i.states() - 1))
        t += i.states()
        hist = [(p, tp) for p, tp in hist if t - tp < 24]
        if i.mn.startswith(('s_branch', 's_cbranch')):
            pend.setdefault(ln.split()[1], []).extend((p, t - tp) for p, tp in hist)
        if i.mn in ('s_endpgm', 's_branch'): hist = []
    return out, added

class Asm:
    def __init__(self):
        self.L = []
        self.lab = 0
        self.vm = []
        self.lg = []
    def __call__(self, s='', tag=None):
        for ln in s.split('\n'):
            self.L.append(ln)
            t = ln.strip()
            if t.startswith(('buffer_', 'global_')): self.vm.append(tag)
            elif t.startswith('ds_'): self.lg.append(tag)
    def emit(self, lst):
        for x in lst:
            if callable(x): x()
            elif isinstance(x, tuple): self(x[0], x[1])
            else: self(x)
    def _wait(self, q, tags, mx):
        if not isinstance(tags, (list, tuple, set)): tags = [tags]
        last = -1
        for i, t in enumerate(q):
            if t in tags: last = i
        if last < 0: return None
        n = len(q) - 1 - last
        n = min(n, mx)
        del q[:len(q) - n]
        return n
    def waitvm(self, tags):
        n = self._wait(self.vm, tags, 63)
        if n is not None: self.L.append(f's_waitcnt vmcnt({n})')
    def waitlg(self, tags):
        n = self._wait(self.lg, tags, 15)
        if n is not None: self.L.append(f's_waitcnt lgkmcnt({n})')
    def waitall(self, vm=True, lg=True):
        s = 's_waitcnt'
        if vm: s += ' vmcnt(0)'; self.vm = []
        if lg: s += ' lgkmcnt(0)'; self.lg = []
        self.L.append(s)
    def label(self, name): self.L.append(name + ':')
    def newlab(self, p='L'):
        self.lab += 1
        return f'{p}_{self.lab}'
    def text(self, pad=False, verbose=False):
        L = self.L
        if pad: L, n = pad_hazards(L, verbose)
        return '\n'.join(L) + '\n'

def merge(main, fill, per=None):
    out = []; n = len(main); m = len(fill); k = 0
    for i, x in enumerate(main):
        out.append(x)
        tgt = (i + 1) * m // n if per is None else min(m, (i + 1) * per)
        while k < tgt: out.append(fill[k]); k += 1
    out += fill[k:]
    return out

def kernel_begin(a, name):
    a(f'.text\n.globl {name}\n.p2align 8\n.type {name},@function\n{name}:')

def kernel_desc(a, name, vgpr, sgpr, accum=None, kernarg=120):
    if accum is None: accum = (vgpr + 3) // 4 * 4
    a(f'''.section .rodata,"a"
.p2align 6
.amdhsa_kernel {name}
  .amdhsa_next_free_vgpr {vgpr}
  .amdhsa_next_free_sgpr {sgpr}
  .amdhsa_accum_offset {accum}
  .amdhsa_group_segment_fixed_size 0
  .amdhsa_kernarg_size {kernarg}
  .amdhsa_user_sgpr_count 2
  .amdhsa_user_sgpr_kernarg_segment_ptr 1
  .amdhsa_system_sgpr_workgroup_id_x 1
  .amdhsa_float_denorm_mode_32 3
.end_amdhsa_kernel''')

def srd(a, d, b, nbytes):
    a(f's_mov_b32 s{d}, s{b}\ns_and_b32 s{d+1}, s{b+1}, 0xffff\ns_mov_b32 s{d+2}, {hex(nbytes)}\ns_mov_b32 s{d+3}, 0x20000')
def vr(b, n=1): return f'v{b}' if n == 1 else f'v[{b}:{b+n-1}]'
```

```python
from gen import *
import struct, math
def fbits(x): return hex(struct.unpack('<I', struct.pack('<f', x))[0])
def f32(x): return struct.unpack('<f', struct.pack('<f', x))[0]
WS_Z2F = 0; WS_XNT = 4 << 20; WS_HF = 6 << 20; WS_ST = 10 << 20; WS_STATS = 12 << 20; WS_FL = WS_STATS + (256 << 10)
WS_PROF = 13 << 20; WS_BYTES = 14 << 20
FZ = WS_FL; FH = WS_FL + 4096; FX = WS_FL + 8192; FS = WS_FL + 12288
KA = dict(u=0, logA=8, Aim=16, Cre=24, Cim=32, logdt=40, Dskip=48, bx=56, win=64, wsp=72, bsp=80, wout=88, out=96, dbg=104, ws=112)
LOG2E = math.log2(math.e)
C0 = -2 * LOG2E * math.sqrt(2 / math.pi); C1 = C0 * 0.044715
BAR = ('BAR',)
SPIN = 0x20000
L_SSM = 65536; L_Z = 131072
USTR = 4640; L_U = L_SSM; L_RAW = L_U + 8 * USTR; L_K = L_RAW + 8192 + 16
L_CS = 131072; L_TR = 135168
W3LOC = [8192 * j for j in range(6)] + [L_Z + 8192 * j for j in range(3)] + [122880] + [49152, 57344, L_Z + 24576] + [L_SSM + 32768]
L_H = L_SSM; L_X3 = L_SSM + 40960

class G:
    def __init__(self, name, opt):
        self.a = Asm(); self.name = name; self.opt = opt
    def stamp(self, idx):
        if self.opt.get('prof'): self.a(f's_memtime s[{66+2*idx}:{67+2*idx}]')
    def prof_store(self):
        if not self.opt.get('prof'): return
        a = self.a
        a('s_memrealtime s[64:65]')
        a.waitall()
        a('v_mov_b32 v2, 0')
        for i in range(1, 18):
            a(f's_sub_u32 s31, s{66+2*i}, s66\nv_writelane_b32 v2, s31, {i+2}')
        a('v_writelane_b32 v2, s62, 0\nv_writelane_b32 v2, s64, 1')
        a(f's_lshl_b32 s3, s2, 3\ns_add_u32 s3, s3, s29\ns_lshl_b32 s3, s3, 7\ns_add_u32 s3, s3, {WS_PROF}')
        a('v_lshlrev_b32 v1, 2, v0\ns_mov_b32 exec_hi, 0')
        a('buffer_store_dword v2, v1, s[12:15], s3 offen')
    def spin(self, loads, regs, tmp, first_done=False, cond='-1', cmp='eq'):
        a = self.a
        lp = a.newlab('sp'); lc = a.newlab('spc'); lo = a.newlab('spo')
        a(f's_mov_b32 s39, {SPIN}')
        if first_done: a(f's_branch {lc}')
        a(f'{lp}:')
        for x in loads: a.L.append(x)
        a.L.append('s_waitcnt vmcnt(0)')
        if not first_done: a.vm = []
        a(f'{lc}:')
        r = list(regs)
        cur = r.pop(0)
        while r:
            if len(r) >= 2: a(f'v_max3_u32 v{tmp}, v{cur}, v{r[0]}, v{r[1]}'); r = r[2:]
            else: a(f'v_max_u32 v{tmp}, v{cur}, v{r[0]}'); r = []
            cur = tmp
        a(f'v_cmp_{cmp}_u32 vcc, {cond}, v{cur}\ns_cbranch_vccz {lo}')
        a(f's_sub_u32 s39, s39, 1\ns_cmp_lg_u32 s39, 0\ns_cbranch_scc1 {lp}\n{lo}:')
    def setflag(self, soff, vzero):
        return [lambda: self.a.waitall(lg=False), 's_mov_b64 exec, 1', (f'buffer_store_dword v{vzero}, off, s[12:15], {soff} sc1', 'flag'), 's_mov_b64 exec, -1']

def ln_list(vS, vQ, n, vT, out_negm, out_r, out_sd=None):
    L = [f'v_mul_f32 v{vS}, {fbits(1.0/n)}, v{vS}', f'v_mul_f32 v{vQ}, {fbits(1.0/n)}, v{vQ}', f'v_fma_f32 v{vQ}, -v{vS}, v{vS}, v{vQ}',
         f'v_max_f32 v{vQ}, 0, v{vQ}', f'v_cvt_pk_bf16_f32 v{vT}, v{vQ}, v{vS}', f'v_lshlrev_b32 v{vQ}, 16, v{vT}', f'v_and_b32 v{vT}, 0xffff0000, v{vT}',
         f'v_add_f32 v{vQ}, {fbits(1e-5)}, v{vQ}', f'v_xor_b32 v{out_negm}, 0x80000000, v{vT}', f'v_cvt_pk_bf16_f32 v{vQ}, v{vQ}, v{vQ}',
         f'v_lshlrev_b32 v{vQ}, 16, v{vQ}', f'v_sqrt_f32 v{vQ}, v{vQ}', f'v_cvt_pk_bf16_f32 v{vQ}, v{vQ}, v{vQ}']
    sd = vQ if out_sd is None else out_sd
    L += [f'v_lshlrev_b32 v{sd}, 16, v{vQ}', f'v_rcp_f32 v{out_r}, v{sd}']
    return L

def gelu_pk(A, n, vC, vSD, T):
    L = []
    for b in range(0, n, 8):
        P = [A + b + 2*i for i in range(4)]; Q = [T + 2*i for i in range(4)]
        for p, q in zip(P, Q): L.append(f'v_pk_mul_f32 {vr(q,2)}, {vr(p,2)}, {vr(p,2)}')
        for q in Q: L.append(f'v_pk_fma_f32 {vr(q,2)}, {vr(q,2)}, {vr(vC,2)}, {vr(vC,2)} op_sel:[0,0,1] op_sel_hi:[1,0,1]')
        for p, q in zip(P, Q): L.append(f'v_pk_mul_f32 {vr(q,2)}, {vr(q,2)}, {vr(p,2)}')
        for i in range(8): L.append(f'v_exp_f32 v{T+i}, v{T+i}')
        for q in Q: L.append(f'v_pk_fma_f32 {vr(q,2)}, {vr(q,2)}, {vr(vSD,2)}, {vr(vSD,2)} op_sel_hi:[1,0,0]')
        for i in range(8): L.append(f'v_rcp_f32 v{T+i}, v{T+i}')
        for p, q in zip(P, Q): L.append(f'v_pk_mul_f32 {vr(p,2)}, {vr(p,2)}, {vr(q,2)}')
    return L

def gelu_packed(Z, n, T, vC1):
    L = []
    for b in range(0, n, 2):
        for i in range(2): L += [f'v_lshlrev_b32 v{T+2*i}, 16, v{Z+b+i}', f'v_and_b32 v{T+2*i+1}, s33, v{Z+b+i}']
        for i in range(4): L.append(f'v_mul_f32 v{T+4+i}, v{T+i}, v{T+i}')
        for i in range(4): L.append(f'v_fmaak_f32 v{T+4+i}, v{vC1}, v{T+4+i}, {fbits(C0)}')
        for i in range(4): L.append(f'v_mul_f32 v{T+4+i}, v{T+i}, v{T+4+i}')
        for i in range(4): L.append(f'v_exp_f32 v{T+4+i}, v{T+4+i}')
        for i in range(4): L.append(f'v_add_f32 v{T+4+i}, 1.0, v{T+4+i}')
        for i in range(4): L.append(f'v_rcp_f32 v{T+4+i}, v{T+4+i}')
        for i in range(4): L.append(f'v_mul_f32 v{T+i}, v{T+i}, v{T+4+i}')
        for i in range(2): L.append(f'v_cvt_pk_bf16_f32 v{Z+b+i}, v{T+2*i}, v{T+2*i+1}')
    return L

def stream_emit(a, items, nbar, D, hook=None):
    comp = {}
    for i, it in enumerate(items):
        if it[2] is not None: comp[it[2]] = i + 1
    DD = D if callable(D) else (lambda b: D)
    nb = 0
    def bar(n):
        nonlocal nb
        c = max([comp.get(b, 0) for b in range(nb + 1)])
        assert c <= n, (nb, c, n)
        a.L.append(f's_waitcnt vmcnt({min(63, n - c)})')
        if hook: hook(nb, 0)
        a.L.append('s_barrier')
        if hook: hook(nb, 1)
        nb += 1
    for i, (setup, ld, cb, need) in enumerate(items):
        while need is not None and nb <= need: bar(i)
        for x in setup:
            if callable(x): x()
            else: a.L.append(x)
        a.L.append(ld)
        while nb < nbar and nb in comp and i + 1 >= comp[nb] + DD(nb): bar(i + 1)
    while nb < nbar: bar(len(items))

def grp(m0, soff_setup, vbase, srd_, soff, same=False, cb=None, need=None, fl=''):
    L = []
    for i in range(4):
        su = ([f's_mov_b32 m0, {m0}'] + (soff_setup or ['s_nop 0'])) if i == 0 else []
        L.append((su, f'buffer_load_dwordx4 v{vbase if same else vbase+i}, {srd_}, {soff} offen offset:{1024*i} {fl} lds', cb, need if i == 0 else None))
    return L

def rowoffs(a, d, rowbase, sh, colbase=None):
    st = 1 << sh
    a(f"""v_lshrrev_b32 v24, 3, v0
v_add_u32 v24, {rowbase}, v24
v_lshlrev_b32 v24, {sh}, v24
v_and_b32 v25, 7, v0
v_lshrrev_b32 v26, 4, v0
v_xor_b32 v25, v25, v26
v_lshl_add_u32 v{d}, v25, 4, v24""")
    if colbase: a(f'v_add_u32 v{d}, {colbase}, v{d}')
    a(f'v_xor_b32 v{d+1}, 64, v{d}\nv_add_u32 v{d+1}, {8*st-1024}, v{d+1}\nv_add_u32 v{d+2}, {16*st-2048}, v{d}\nv_add_u32 v{d+3}, {16*st-2048}, v{d+1}')

def troffs(a, d, stride, colbase):
    a(f"""v_lshrrev_b32 v24, 3, v0
v_mul_u32_u24 v24, {stride}, v24
v_bfe_u32 v25, v0, 4, 1
v_lshlrev_b32 v25, 2, v25
v_and_b32 v26, 7, v0
v_xor_b32 v25, v25, v26
v_lshl_add_u32 v24, v25, 4, v24
v_add_u32 v{d}, {colbase}, v24""")
    for i in range(1, 4): a(f'v_add_u32 v{d+i}, {8*stride-1024}, v{d+i-1}')

def rowread_list(d, t, base):
    return [f'v_lshrrev_b32 v{t}, 5, v0', f'v_bfe_u32 v{d}, v0, 1, 3', f'v_xor_b32 v{d}, v{d}, v{t}', f'v_lshlrev_b32 v{d}, 4, v{d}',
            f'v_and_b32 v{t}, 31, v0', f'v_lshl_add_u32 v{d}, v{t}, 7, v{d}', f'v_add_u32 v{d}, {base}, v{d}']
def trread_list(d, t):
    return [f'v_lshrrev_b32 v{d}, 5, v0', f'v_bfe_u32 v{t}, v0, 2, 2', f'v_lshl_add_u32 v{d}, v{d}, 3, v{t}', f'v_lshlrev_b32 v{d}, 7, v{d}',
            f'v_bfe_u32 v{t}, v0, 3, 1', f'v_lshl_add_u32 v{d}, v{t}, 6, v{d}', f'v_bfe_u32 v{t}, v0, 4, 1', f'v_lshl_add_u32 v{d}, v{t}, 5, v{d}',
            f'v_and_b32 v{t}, 1, v0', f'v_lshl_add_u32 v{d}, v{t}, 4, v{d}', f'v_bfe_u32 v{t}, v0, 1, 1', f'v_lshl_add_u32 v{d}, v{t}, 3, v{d}']

def cost(x):
    if callable(x): return 4
    t = x[0] if isinstance(x, tuple) else x
    if t.startswith(TRANS): return 8
    if t.startswith('v_mfma_f32_32'): return 32
    if t.startswith('v_mfma'): return 12
    return 4

class SSM:
    CA = 128; KF = 160; TF = 192; T = 204; PR = 148; DS = 5
    def __init__(self, g): self.g = g; self.a = g.a
    def param_loads(self):
        P = self.PR
        L = ['s_lshl_b32 s31, s2, 9', 's_lshl_b32 s3, s29, 7', 's_add_u32 s31, s31, s3', f'v_lshl_add_u32 v{P+6}, v0, 1, s31',
             's_lshl_b32 s31, s2, 2', f'v_mov_b32 v{P+7}, s31']
        for i in range(4): L.append((f'global_load_ushort v{P+i}, v{P+6}, s[{40+2*i}:{41+2*i}]', 'prm'))
        L.append((f'global_load_dword v{P+4}, v{P+7}, s[48:49]', 'prm'))
        L.append((f'global_load_dword v{self.DS}, v{P+7}, s[50:51]', 'prm'))
        return L
    def kprep(self):
        a = self.a; P = self.PR; t = 44
        Lhi = f32(LOG2E); Llo = LOG2E - Lhi
        def exp_acc(d, x, t0, t1):
            return [f'v_mul_f32 v{t0}, s40, v{x}', f'v_fma_f32 v{t1}, v{x}, s40, -v{t0}', f'v_fma_f32 v{t1}, v{x}, s41, v{t1}',
                    f'v_exp_f32 v{t0}, v{t0}', f'v_mul_f32 v{t1}, s42, v{t1}', f'v_fma_f32 v{d}, v{t0}, v{t1}, v{t0}']
        L = [lambda: a.waitvm('prm'), f's_mov_b32 s40, {fbits(Lhi)}', f's_mov_b32 s41, {fbits(Llo)}', f's_mov_b32 s42, {fbits(math.log(2))}',
             's_lshr_b32 s31, s29, 1', 's_lshl_b32 s31, s31, 4', f'v_lshrrev_b32 v{P+4}, s31, v{P+4}']
        for i in range(5): L.append(f'v_lshlrev_b32 v{P+i}, 16, v{P+i}')
        for x, y in zip(exp_acc(P+4, P+4, t, t+1), exp_acc(P, P, t+2, t+3)): L += [x, y]
        L += [f'v_cvt_pk_bf16_f32 v{P+4}, v{P}, v{P+4}', f'v_lshlrev_b32 v{P}, 16, v{P+4}', f'v_and_b32 v{P+4}, s33, v{P+4}']
        for i in range(4): L.append(f'v_mul_f32 v{P+i}, v{P+i}, v{P+4}')
        L += [f'v_mul_f32 v{P}, {fbits(-LOG2E)}, v{P}', f'v_mul_f32 v{P+1}, 0.15915494, v{P+1}', f'v_add_f32 v40, v{P+2}, v{P+2}', f'v_add_f32 v41, v{P+3}, v{P+3}']
        ps = [1.0, 8.0, 64.0, 256.0]
        for k, p in enumerate(ps): L += [f'v_mul_f32 v{t+k}, {fbits(p)}, v{P}', f'v_mul_f32 v{t+4+k}, {fbits(p)}, v{P+1}']
        for k in range(4): L += [f'v_exp_f32 v{t+k}, v{t+k}', f'v_fract_f32 v{t+4+k}, v{t+4+k}']
        for k in range(4): L += [f'v_cos_f32 v{32+2*k}, v{t+4+k}', f'v_sin_f32 v{33+2*k}, v{t+4+k}']
        for k in range(4): L += [f'v_mul_f32 v{32+2*k}, v{t+k}, v{32+2*k}', f'v_mul_f32 v{33+2*k}, v{t+k}, v{33+2*k}']
        return L
    def kgen(self):
        a = self.a
        E1, E8, E64, E256, Cc = 32, 34, 36, 38, 40
        O = 44
        L = ['s_lshl_b32 s31, s29, 14', f's_add_u32 s31, s31, {L_SSM}', 'v_bfe_u32 v12, v0, 1, 2', 'v_lshlrev_b32 v12, 4, v12', 'v_lshl_add_u32 v12, v0, 6, v12', 'v_add_u32 v8, s31, v12']
        for b in range(1, 4): L.append(f'v_xor_b32 v{8+b}, {16*b}, v8')
        L += ['v_lshrrev_b32 v13, 5, v0', 'v_bfe_u32 v14, v0, 2, 2', 'v_lshl_add_u32 v13, v13, 2, v14', 'v_lshrrev_b32 v14, 1, v13', 'v_bfe_u32 v15, v0, 4, 1', 'v_bfe_u32 v12, v0, 1, 1',
              'v_lshl_add_u32 v12, v15, 1, v12', 'v_xor_b32 v12, v12, v14', 'v_lshlrev_b32 v12, 4, v12', 'v_lshl_add_u32 v12, v13, 6, v12', 'v_and_b32 v14, 1, v0', 'v_lshl_add_u32 v12, v14, 3, v12',
              'v_add_u32 v12, s31, v12', 'v_lshl_add_u32 v13, v0, 4, s31']
        def cm(jobs):
            R = []
            for d, x, y in jobs: R.append(f'v_pk_mul_f32 {vr(d,2)}, {vr(x,2)}, {vr(y,2)} op_sel_hi:[1,0]')
            for d, x, y in jobs: R.append(f'v_pk_fma_f32 {vr(d,2)}, {vr(x,2)}, {vr(y,2)}, {vr(d,2)} op_sel:[1,1,0] op_sel_hi:[0,1,1] neg_lo:[1,0,0]')
            return R
        cnt = [0]
        def pack(vals, blk, plane, neg):
            o = O + 8 * (cnt[0] & 1); cnt[0] += 1
            R = []
            for i in range(4): R.append(f'v_cvt_pk_bf16_f32 v{o+i}, v{vals[2*i]}, v{vals[2*i+1]}')
            R.append((f'ds_write_b128 v{8+blk}, {vr(o,4)} offset:{plane*4096}', 'kt'))
            s = '-' if neg else ''
            for i in range(4): R.append(f'v_cvt_pk_bf16_f32 v{o+4+i}, {s}v{vals[2*i]+1}, {s}v{vals[2*i+1]+1}')
            R.append((f'ds_write_b128 v{8+blk}, {vr(o+4,4)} offset:{plane*4096+4096}', 'kt'))
            return R
        B = [60 + 2*i for i in range(26)]
        fa = B[0:8]; fb = B[8:16]; g = B[16:25]
        E2 = 42
        L += [f'v_mov_b32 v{fa[0]}, 1.0', f'v_mov_b32 v{fa[0]+1}, 0', f'v_mov_b32 v{fa[1]}, v{E8}', f'v_mov_b32 v{fa[1]+1}, v{E8+1}', f'v_mov_b32 v{g[0]}, v{Cc}', f'v_mov_b32 v{g[0]+1}, v{Cc+1}']
        L += cm([(fa[2], E8, E8), (g[1], Cc, E1), (E2, E1, E1), (g[8], Cc, E8)])
        L += cm([(fa[3], fa[2], E8), (fa[4], fa[2], fa[2]), (g[2], Cc, E2), (g[3], g[1], E2)])
        L += cm([(fa[5], fa[4], E8), (fa[6], fa[4], fa[2]), (fa[7], fa[4], fa[3]), (g[4], g[2], E2), (g[5], g[3], E2)])
        L += cm([(g[6], g[4], E2), (g[7], g[5], E2)] + [(fb[i], fa[i], E64) for i in range(8)])
        L += pack(fa, 0, 2, False)
        L += cm([(fa[i], fb[i], E64) for i in range(8)])
        L += pack(fb, 1, 2, False)
        L += cm([(fb[i], fa[i], E64) for i in range(8)])
        L += pack(fa, 2, 2, False) + pack(fb, 3, 2, False)
        h0, h2, h4, h6, h8, i0, i4, i8, j0, j4, j8, k0, k8, l0, l8 = B[0:15]
        L += cm([(h0, g[0], E256), (h2, g[2], E256), (h4, g[4], E256), (h6, g[6], E256), (h8, g[8], E256)])
        L += pack(g[0:8], 0, 0, True)
        L += cm([(i0, h0, E256), (i4, h4, E256), (i8, h8, E256), (E2, E256, E256)])
        L += cm([(j0, h0, E2), (j4, h4, E2), (j8, h8, E2), (k0, i0, E2), (k8, i8, E2)])
        L += pack([h0, h2, h4, i0, h4, h6, h8, j0], 1, 0, True)
        m0, m8, n0, n8 = g[0:4]
        L += cm([(l0, j0, E2), (l8, j8, E2), (m0, k0, E2), (m8, k8, E2)])
        L += cm([(n0, l0, E2), (n8, l8, E2)])
        L += pack([i4, i8, k0, k8, j4, j8, l0, l8], 2, 0, True)
        L += pack([m0, m8, m0, m8, n0, n8, n0, n8], 3, 0, True)
        L.append(lambda: a.waitlg('kt'))
        D = 32; FR = 48
        def rd(j): return [(f'ds_read_b64_tr_b16 {vr(FR+8*j+2*p,2)}, v12 offset:{512*j+4096*p}', f'kr{j}') for p in range(4)]
        for j in range(3): L += rd(j)
        for j in range(8):
            L.append(lambda j=j: a.waitlg(f'kr{j}'))
            L.append(f'v_mfma_f32_32x32x16_bf16 {vr(D,16)}, {vr(FR+8*j,4)}, {vr(FR+8*j+4,4)}, {"0" if j == 0 else vr(D,16)}')
            if j + 3 < 8: L += rd(j+3)
        return L, [(f'ds_write_b128 v13, {vr(D+4*q,4)} offset:{8192+1024*q}', 'dx') for q in range(4)]
    def kfin(self):
        a = self.a; T = self.T; CA = self.CA; XA = T + 12
        L = [BAR, 's_and_b32 s31, s29, 2', 's_lshl_b32 s31, s31, 14', f's_add_u32 s31, s31, {L_SSM + 8192}', f'v_lshl_add_u32 v{XA}, v0, 4, s31']
        for q in range(8): L.append((f'ds_read_b128 {vr(CA+4*q,4)}, v{XA} offset:{1024*(q%4) + 16384*(q//4)}', 'dr'))
        L += ['s_lshr_b32 s31, s29, 1', 's_mul_i32 s43, s31, 4224', f's_add_u32 s43, s43, {L_K}',
              f'v_and_b32 v{T}, 31, v0', f'v_lshlrev_b32 v{T}, 4, v{T}', f'v_sub_u32 v{T}, s43, v{T}', f'v_lshrrev_b32 v{T+1}, 5, v0',
              f'v_lshlrev_b32 v{T+2}, 3, v{T+1}', f'v_sub_u32 v{XA+2}, v{T}, v{T+2}', f'v_lshlrev_b32 v{T+2}, 9, v{T+1}', f'v_sub_u32 v{XA+3}, v{T}, v{T+2}',
              f'v_and_b32 v{T+2}, 15, v0', f'v_lshl_add_u32 v{XA+4}, v{T+2}, 3, s43', f'v_and_b32 v{T+2}, 1, v0', f'v_cmp_eq_u32 vcc, 0, v{T+2}',
              f'v_mov_b32 v{T+4}, 0', f'v_mov_b32 v{T+5}, 0', f'v_mov_b32 v{T+6}, 0', f'v_mov_b32 v{T+7}, 0']
        L.append((f'ds_write_b64 v{XA+4}, {vr(T+4,2)} offset:4096', 'kz'))
        L.append(lambda: a.waitlg('dr'))
        for r in range(14): L.append(f'v_add_f32 v{CA+r}, v{CA+r}, v{CA+16+r}')
        L += [f'v_cndmask_b32 v{CA+14}, v{CA+11}, v{CA+10}, vcc', f'v_cndmask_b32 v{CA+15}, v{CA+13}, v{CA+12}, vcc']
        O = CA + 16
        pairs = [(3,2),(1,0), (6,5),(4,4), (9,9),(8,8),(8,7),(7,7), (11,11),(11,14),(10,10),(10,10), (13,13),(13,15),(12,12),(12,12)]
        for i, (x, y) in enumerate(pairs): L.append(f'v_cvt_pk_bf16_f32 v{O+i}, v{CA+x}, v{CA+y}')
        L.append((f'ds_write_b64 v{XA+2}, {vr(O,2)} offset:{4080+8}', 'kw'))
        L.append((f'ds_write_b64 v{XA+2}, {vr(O+2,2)} offset:{4080-512+8}', 'kw'))
        for k, s in enumerate((2, 4, 6)): L.append((f'ds_write_b128 v{XA+3}, {vr(O+4+4*k,4)} offset:{4080-512*s}', 'kw'))
        L.append(BAR)
        return L
    def ubuild(self):
        a = self.a; T = self.T; R = self.KF; O = self.CA
        L = ['s_mov_b32 s44, 0x05040100', 's_mov_b32 s45, 0x07060302',
             's_lshl_b32 s31, s29, 11', f's_add_u32 s31, s31, {L_RAW}', f'v_lshlrev_b32 v{T}, 5, v0', f'v_add_u32 v{T}, s31, v{T}']
        for k in range(3): L.append((f'ds_read_b128 {vr(R+4*k,4)}, v{T} offset:{16*k}', 'rr'))
        L += [f'v_cmp_lt_u32 vcc, 31, v0', f'v_and_b32 v{T+1}, 31, v0', f'v_min_u32 v{T+1}, 23, v{T+1}', f'v_mov_b32 v{T+2}, {USTR}', f'v_cndmask_b32 v{T+2}, 0, v{T+2}, vcc',
              f's_mul_i32 s31, s29, {2*USTR}', f's_add_u32 s31, s31, {L_U}', f'v_lshl_add_u32 v{T+1}, v{T+1}, 4, v{T+2}', f'v_add_u32 v{T+1}, s31, v{T+1}']
        L.append((f'ds_write_b128 v{T+1}, {vr(T+4,4)}', 'uw'))
        L += ['s_lshl_b32 s31, s29, 10', f's_add_u32 s31, s31, {L_U + 384}', f'v_lshl_add_u32 v{T+1}, v0, 4, s31',
              's_cmp_eq_u32 s29, 0', 's_cselect_b32 s31, 0, -1', f'v_cmp_eq_u32 vcc, s31, v0']
        L.append(lambda: a.waitlg('rr'))
        for k in range(1, 4): L.append(f'v_cndmask_b32 v{R+k}, v{R+k}, v{T+4}, vcc')
        for dl in range(2):
            for e in range(4):
                d = O + 4 * (4*dl + e)
                for k in range(4): L.append(f'v_perm_b32 v{d+k}, v{R+4+2*k+e-2}, v{R+4+2*k+e-3}, s{44+dl}')
                L.append((f'ds_write_b128 v{T+1}, {vr(d,4)} offset:{(4*dl+e)*USTR}', 'uw'))
        L += ['s_lshr_b32 s31, s29, 1', f's_mul_i32 s31, s31, {4*USTR}', 's_and_b32 s3, s29, 1', 's_lshl_b32 s3, s3, 8', 's_add_u32 s31, s31, s3', f's_add_u32 s31, s31, {L_U}',
              f'v_and_b32 v{T}, 3, v0', f'v_mul_u32_u24 v{T}, {USTR}, v{T}', f'v_bfe_u32 v{T+2}, v0, 2, 2', f'v_lshl_add_u32 v{T}, v{T+2}, 7, v{T}',
              f'v_lshrrev_b32 v{T+2}, 4, v0', f'v_lshlrev_b32 v{T+2}, 4, v{T+2}', f'v_add3_u32 v{T+8}, v{T}, v{T+2}, s31',
              's_add_u32 s31, s43, s3', 's_add_u32 s31, s31, 120', f'v_and_b32 v{T}, 15, v0', f'v_lshlrev_b32 v{T}, 3, v{T}', f'v_sub_u32 v{T}, v{T+2}, v{T}', f'v_add_u32 v{T+9}, s31, v{T}']
        L.append(BAR)
        return L
    def conv(self):
        a = self.a; T = self.T; CA = self.CA; KF = self.KF; TF = self.TF
        L = []
        def kr(r, p):
            o = 3584 - 512*p + 64*r
            return [(f'ds_read_b64 {vr(KF+4*p,2)}, v{T+9} offset:{o}', f'k{r}_{p}'), (f'ds_read_b64 {vr(KF+4*p+2,2)}, v{T+9} offset:{o+8}', f'k{r}_{p}')]
        NT = 5; TB = T + 20
        def tr(n):
            r, q = divmod(n, 8)
            return [(f'ds_read_b128 {vr(TB+4*(n%NT),4)}, v{T+8} offset:{512*q+64*r}', f't{n}')]
        L += tr(0)
        for p in range(7, -1, -1): L += kr(0, p)
        for n in range(1, NT - 1): L += tr(n)
        for n in range(32):
            r, q = divmod(n, 8)
            first = True
            for p in range(7 - q, -1, -1):
                tags = [f't{n}'] + ([f'k{r}_{p}'] if q == 0 else [])
                if first or q == 0: L.append(lambda tags=tags: a.waitlg(tags))
                A = p + q
                c = '0' if (r == 0 and q == 0) else vr(CA+4*A, 4)
                L.append(f'v_mfma_f32_16x16x32_bf16 {vr(CA+4*A,4)}, {vr(TB+4*(n%NT),4)}, {vr(KF+4*p,4)}, {c}')
                if first:
                    if r < 3: L += kr(r+1, p)
                    if n + NT - 1 < 32: L += tr(n + NT - 1)
                first = False
        L.append(BAR)
        return L
    def finish(self):
        a = self.a; T = self.T; CA = self.CA; KF = self.KF; TF = self.TF
        L = ['s_lshl_b32 s31, s29, 13', f's_add_u32 s31, s31, {L_U}', f'v_lshl_add_u32 v{T}, v0, 4, s31']
        for A in range(8): L.append((f'ds_write_b128 v{T}, {vr(CA+4*A,4)} offset:{1024*A}', 'aw'))
        L += ['s_lshl_b32 s31, s29, 11', f'v_lshl_add_u32 v{T+2}, v0, 4, s31', f'v_add_u32 v{T}, {L_U}, v{T+2}', f'v_add_u32 v{T+1}, {L_RAW+16}, v{T+2}',
              's_lshl_b32 s31, s2, 13', f's_add_u32 s43, s31, {WS_ST}', f'v_lshlrev_b32 v{T+4}, 16, v{self.DS}', f'v_and_b32 v{T+5}, s33, v{self.DS}']
        for k in range(2): L.append((f'ds_read_b128 {vr(TF+4*k,4)}, v{T+1} offset:{1024*k}', 'ur'))
        L.append(BAR)
        for k in range(2):
            for w in range(4): L.append((f'ds_read_b128 {vr(CA+16*k+4*w,4)}, v{T} offset:{8192*w+1024*k}', f'ar{k}'))
        for k in range(2):
            for j in range(4): L += [f'v_lshlrev_b32 v{KF+8*k+2*j}, 16, v{TF+4*k+j}', f'v_and_b32 v{KF+8*k+2*j+1}, s33, v{TF+4*k+j}']
        L += ['s_lshr_b32 s31, s2, 5', 's_lshl_b32 s44, s31, 9', 's_lshl_b32 s31, s29, 7', 's_add_u32 s44, s44, s31', 's_and_b32 s31, s2, 31', 's_lshl_b32 s31, s31, 2', 's_add_u32 s44, s44, s31', f's_add_u32 s44, s44, {FS}']
        for k in range(2):
            L.append(lambda k=k: a.waitlg(f'ar{k}'))
            B = CA + 16*k
            for j in range(4): L += [f'v_add_f32 v{B+j}, v{B+j}, v{B+4+j}', f'v_add_f32 v{B+8+j}, v{B+8+j}, v{B+12+j}']
            for j in range(4): L += [f'v_fmac_f32 v{B+j}, v{KF+8*k+2*j}, v{T+4}', f'v_fmac_f32 v{B+8+j}, v{KF+8*k+2*j+1}, v{T+5}']
            for j in range(4): L.append(f'v_cvt_pk_bf16_f32 v{B+4+j}, v{B+j}, v{B+8+j}')
            L.append((f'buffer_store_dwordx4 {vr(B+4,4)}, v{T+2}, s[12:15], s43 offen offset:{1024*k} sc1', 'sst'))
        L.append(BAR)
        return L

def emit_plain(a, L):
    n = 0
    for x in L:
        if x is BAR:
            a.waitall(vm=False); a('s_barrier'); n += 1
        else: a.emit([x])
    return n

HLOC = [0, 8192, 16384, 24576, 49152]

def fused(name, opt):
    g = G(name, opt); a = g.a; ssm = SSM(g); stamp = g.stamp
    kernel_begin(a, name)
    lab = lambda s: f'{name}_{s}'
    a(f's_cmp_ge_u32 s2, 256\ns_cbranch_scc1 {lab("done")}')
    if opt.get('prof'): a('s_memrealtime s[62:63]\ns_memtime s[66:67]')
    a(f's_load_dwordx2 s[4:5], s[0:1], {KA["u"]}\ns_load_dwordx2 s[8:9], s[0:1], {KA["win"]}')
    a(f's_load_dwordx2 s[12:13], s[0:1], {KA["ws"]}\ns_load_dwordx2 s[16:17], s[0:1], {KA["dbg"]}')
    a('''v_lshrrev_b32 v1, 6, v0
s_and_b32 s24, s2, 7
s_bfe_u32 s25, s2, 0x20003
v_readfirstlane_b32 s29, v1
s_lshr_b32 s26, s24, 1
s_lshl_b32 s26, s26, 2
s_add_u32 s26, s26, s25
s_lshr_b32 s27, s2, 5
s_and_b32 s30, s24, 1
s_mul_i32 s28, s30, 7
s_add_u32 s28, s28, s27
v_and_b32 v0, 63, v0''')
    a(f's_mov_b32 s14, {hex(WS_BYTES)}\ns_mov_b32 s15, 0x20000\ns_mov_b32 s6, 0x200000\ns_mov_b32 s7, 0x20000\ns_mov_b32 s11, 0x20000')
    a(f's_cmp_eq_u32 s29, 4\ns_cbranch_scc0 {lab("comp")}')
    a(f's_load_dwordx2 s[20:21], s[0:1], {KA["wsp"]}\ns_load_dwordx2 s[36:37], s[0:1], {KA["wout"]}')
    a(f's_cmp_eq_u32 s27, 7\ns_cbranch_scc1 {lab("thelp")}')

    def late_loader_setup():
        a(f's_mov_b32 s22, 0x800000\ns_mov_b32 s23, 0x20000\ns_mov_b32 s38, {896*1024}\ns_mov_b32 s39, 0x20000')
        a('s_and_b32 s21, s21, 0xffff\ns_and_b32 s37, s37, 0xffff\ns_and_b32 s13, s13, 0xffff')
        a('v_lshlrev_b32 v14, 4, v0\nv_lshlrev_b32 v15, 2, v0')
        a('s_lshl_b32 s31, s27, 7'); troffs(a, 16, 1024, 's31')
        a('s_lshl_b32 s32, s26, 1\ns_add_u32 s32, s32, s30\ns_lshl_b32 s3, s32, 6'); rowoffs(a, 20, 's3', 10, 's31')
        sm, sn = opt.get('sm3', 56), opt.get('sn3', 28)
        a(f's_mul_i32 s60, s25, {sm}\ns_mul_i32 s31, s27, {sn}\ns_add_u32 s60, s60, s31\ns_lshr_b32 s60, s60, 4\ns_sub_u32 s31, s60, 14\ns_cmp_ge_u32 s60, 14\ns_cselect_b32 s60, s31, s60\ns_mov_b32 s61, s60')
        a(f's_lshl_b32 s35, s2, 13\ns_add_u32 s35, s35, {WS_XNT}')
        a(f's_lshr_b32 s31, s2, 7\ns_lshl_b32 s31, s31, 8\ns_add_u32 s59, s31, {FX}')
    def adv(r): return [f's_add_u32 s{r}, s{r}, 1', f's_cmp_eq_u32 s{r}, 14', f's_cselect_b32 s{r}, 0, s{r}']
    def w3(j, need=None):
        return grp(W3LOC[j], ['s_lshl_b32 s56, s60, 16'] + adv(60), 16, 's[36:39]', 's56', need=need) + grp(W3LOC[j] + 4096, ['s_add_u32 s56, s56, 32768'], 16, 's[36:39]', 's56')
    def rawg(cb=None, need=None):
        return grp(L_RAW + 16, None, 14, 's[12:15]', 's35', True, cb, need, 'sc1') + grp(L_RAW + 16 + 4096, ['s_add_u32 s35, s35, 4096'], 14, 's[12:15]', 's35', True, cb, None, 'sc1')
    class LS:
        pass
    def lspin(soff, voff='v15'):
        lp = a.newlab('lsp'); lo = a.newlab('lspo')
        a(f's_mov_b32 s58, {SPIN}\n{lp}:')
        a.L.append(f'buffer_load_dword v27, {voff}, s[12:15], {soff} offen sc1'); a.L.append('s_waitcnt vmcnt(0)')
        a(f'v_cmp_eq_u32 vcc, -1, v27\ns_cbranch_vccz {lo}\ns_sub_u32 s58, s58, 1\ns_cmp_lg_u32 s58, 0\ns_cbranch_scc1 {lp}\n{lo}:')

    XO = [65536 + 16384 * ((c + 4) % 6) for c in range(8)]
    a('s_lshl_b32 s34, s25, 1\ns_add_u32 s34, s34, s27\ns_and_b32 s34, s34, 7\ns_lshl_b32 s33, s26, 7')
    rowoffs(a, 2, 's33', 10)
    a('s_lshl_b32 s31, s28, 7'); troffs(a, 6, 3584, 's31')
    for c in range(8): a(f's_add_u32 s31, s34, {c}\ns_and_b32 s31, s31, 7\ns_lshl_b32 s{40+c}, s31, 7\ns_mul_i32 s{48+c}, s31, {64*3584}')
    a(f's_mov_b32 s10, {512*3584}')
    a('s_waitcnt lgkmcnt(0)')
    a('s_and_b32 s5, s5, 0xffff\ns_and_b32 s9, s9, 0xffff')
    f1 = opt.get('f1', '')
    items = []
    def wg(p, cb=None):
        return sum([grp(p*8192 + k*4096, [f's_add_u32 s31, s{48+p%8}, {k*32*3584 + (1792 if p < 8 else 0)}'], 6, 's[8:11]', 's31', cb=cb, fl=f1) for k in range(2)], [])
    for c in range(8):
        for k in range(4): items += grp(XO[c] + k*4096, [f's_add_u32 s31, s{40+c}, {k*32768}'], 2, 's[4:7]', 's31', cb=c, fl=f1)
        items += wg(c, c)
    for p in range(8, 16): items += wg(p)
    D1 = opt.get('d1', 32)
    stream_emit(a, items, 8, lambda b: opt.get('d1a', 16) if b == 0 else D1, lambda b, k: stamp({0: 1, 7: 2}[b]) if (b in (0, 7) and k == 1) else None)
    late_loader_setup()
    rowoffs(a, 10, 's33', 12)
    sm, sn = opt.get('sm', 0), opt.get('sn', 73)
    a(f's_mul_i32 s40, s25, {sm}\ns_mul_i32 s31, s27, {sn}\ns_add_u32 s40, s40, s31\ns_lshr_b32 s40, s40, 4\ns_and_b32 s40, s40, 31\ns_mov_b32 s41, s40')
    a(f's_lshl_b32 s34, s28, 18\ns_lshl_b32 s31, s28, 8\ns_add_u32 s44, s31, {FZ}')
    a('s_barrier')
    fw = opt.get('fw', '')
    def wst(k, cb=None, need=None):
        L = []
        for q in range(4):
            su = ['s_lshl_b32 s42, s40, 7', 's_add_u32 s40, s40, 1', 's_and_b32 s40, s40, 31'] if q == 0 else ['s_add_u32 s42, s42, 0x20000']
            L += grp((k % 4) * 16384 + q*4096, su, 10, 's[20:23]', 's42', cb=cb, need=need if q == 0 else None, fl=fw)
        return L
    def zst(k, cb=None, need=None):
        return grp(L_Z + (k % 4) * 8192, ['s_lshl_b32 s43, s41, 13', 's_add_u32 s43, s43, s34', 's_add_u32 s41, s41, 1', 's_and_b32 s41, s41, 31'], 14, 's[12:15]', 's43', True, cb, need, 'sc1') + \
               grp(L_Z + (k % 4) * 8192 + 4096, ['s_add_u32 s43, s43, 4096'], 14, 's[12:15]', 's43', True, cb, None, 'sc1')
    pre1 = opt.get('pre1', 1)
    pre2 = opt.get('pre2', 4)
    for k in range(pre1): stream_emit(a, wst(k), 0, 0)
    a(f's_waitcnt vmcnt({16*pre1})\ns_barrier')
    for k in range(pre1, pre2):
        if opt.get('thin') is not None: a(f's_waitcnt vmcnt({opt["thin"]})')
        stream_emit(a, wst(k), 0, 0)
    stamp(3)
    a('s_barrier')
    for k in range(pre2, 4): stream_emit(a, wst(k), 0, 0)
    stamp(4)
    lspin('s44')
    stamp(5)
    RAWAT = opt.get('rawat', 6)
    items = []
    for k in range(32):
        if k >= 4: items += wst(k, k, k - 3)
        items += zst(k, k)
        if k == RAWAT:
            r = rawg(k, opt.get('kfinbar', 2))
            r[0] = ([lambda: lspin('s59')] + r[0][0],) + r[0][1:]
            items += r
    order = [(9, None), (0, 29), (1, 29), (6, 29), (2, 30), (3, 30), (7, 30), (4, 31), (5, 31), (8, 31)]
    global W3LOC
    W3LOC_save = list(W3LOC)
    W3LOC = [W3LOC_save[j] for j, _ in order] + W3LOC_save[10:]
    for j, (_, need) in enumerate(order): items += w3(j, need)
    hk = {0: 6, 4: 7, 8: 8, 16: 9, 24: 10, 31: 11}
    stream_emit(a, items, 32, opt.get('d2', 32), lambda b, k: stamp(hk[b]) if (b in hk and k == 1) else None)
    a.L.append('@LEFTBARS@')
    a(f'{lab("g3load")}:')
    stamp(12)
    items = sum([w3(j) for j in range(10, 14)], [])
    items += grp(L_X3, ['s_mov_b32 s56, 0'], 20, 's[4:7]', 's56') + grp(L_X3 + 4096, ['s_mov_b32 s56, 32768'], 20, 's[4:7]', 's56')
    stream_emit(a, items, 0, 0)
    a(f's_lshl_b32 s31, s32, 7\ns_add_u32 s44, s31, {FH}\nv_min_u32 v28, 108, v15\ns_mul_i32 s34, s32, {2*57344}\ns_add_u32 s34, s34, {WS_HF}')
    lspin('s44', 'v28')
    stamp(13)
    items = []
    for j in range(14):
        b = L_H + HLOC[j % 5]
        items += grp(b, ['s_lshl_b32 s43, s61, 12', 's_add_u32 s43, s43, s34'] + adv(61), 14, 's[12:15]', 's43', True, j, j - 4 if j >= 5 else None, 'sc1')
        items += grp(b + 4096, ['s_add_u32 s43, s43, 57344'], 14, 's[12:15]', 's43', True, j, None, 'sc1')
    stream_emit(a, items, 14, opt.get('d3', 24), lambda b, k: stamp({0: 14, 13: 15}[b]) if (b in (0, 13) and k == 1) else None)
    g.prof_store()
    a('s_endpgm')

    a(f'{lab("thelp")}:')
    nofl = a.newlab('nofl')
    a('v_mov_b32 v28, -1\nv_mov_b32 v29, -1\nv_mov_b32 v30, -1\nv_mov_b32 v31, -1')
    a(f's_lshl_b32 s31, s26, 14\ns_add_u32 s40, s31, {WS_STATS}\ns_lshl_b32 s31, s26, 10\ns_add_u32 s41, s31, {WS_FL}')
    a('s_lshl_b32 s31, s26, 2\nv_mov_b32 v2, s31\nv_mov_b32 v3, 1\nv_lshlrev_b32 v14, 4, v0')
    a('s_waitcnt lgkmcnt(0)')
    a('s_and_b32 s5, s5, 0xffff\ns_and_b32 s13, s13, 0xffff')
    a(f's_cmp_eq_u32 s30, 1\ns_cbranch_scc1 {nofl}')
    a('buffer_store_dwordx4 v[28:31], v14, s[12:15], s41 offen sc1')
    for k in range(4):
        for q in range(4): a(f'buffer_store_dwordx4 v[28:31], v14, s[12:15], s40 offen offset:{1024*q} sc1')
        a('s_add_u32 s40, s40, 4096')
    a('s_waitcnt vmcnt(0)\ns_mov_b64 exec, 1')
    a('global_store_dword v2, v3, s[16:17] sc1')
    a('s_mov_b64 exec, -1')
    a(f'{nofl}:')
    stamp(1)
    late_loader_setup()
    a('s_barrier')
    a('s_barrier\ns_barrier')
    lspin('s59')
    stamp(5)
    stream_emit(a, rawg(0), 1, 0)
    stream_emit(a, sum([w3(j) for j in range(10)], []), 0, 0)
    a('s_barrier\ns_barrier\ns_barrier\ns_barrier')
    a(f's_branch {lab("g3load")}')

    a(f'{lab("comp")}:')
    a.vm = []; a.lg = []
    a(f's_load_dwordx8 s[40:47], s[0:1], {KA["logA"]}\ns_load_dwordx4 s[48:51], s[0:1], {KA["logdt"]}')
    a(f's_load_dwordx2 s[18:19], s[0:1], {KA["bsp"]}\ns_load_dwordx2 s[20:21], s[0:1], {KA["out"]}')
    a('s_mov_b32 s33, 0xffff0000\ns_mov_b32 s34, 0x3f803f80\ns_mov_b32 s22, 0x200000\ns_mov_b32 s23, 0x20000')
    a('v_lshlrev_b32 v6, 2, v0\nv_lshlrev_b32 v7, 4, v0')
    a(f's_cmp_eq_u32 s27, 7\ns_cbranch_scc1 {lab("tcomp")}')
    X = 128; A2 = 64; A1 = 96; WF = 32
    XR = A1; ST = A1 + 4; T = A1 + 8; SD = A1 + 16; CC = A1 + 18; NM = A1 + 20; FL = A1 + 22
    WR = 8; SEL = 16; CS = 24; NEG = 28
    a('s_lshl_b32 s32, s29, 12\ns_add_u32 s32, s32, 131072')
    a.emit(rowread_list(1, 2, 's32') + trread_list(3, 2))
    for i in range(4):
        a(f's_add_u32 s31, s29, {i}\ns_and_b32 s31, s31, 3\ns_lshl_b32 s3, s31, 5\nv_xor_b32 v{XR+i}, s3, v1\ns_lshl_b32 s3, s31, 11\nv_add_u32 v{WR+2*i}, s3, v3\nv_xor_b32 v{WR+1+2*i}, 64, v{WR+2*i}')
        a(f'v_mov_b32 v{ST+i}, 0')
    a(f'''v_bfe_u32 v1, v0, 4, 1
v_lshlrev_b32 v1, 2, v1
v_and_b32 v2, 15, v0
v_cmp_eq_u32 vcc, v1, v2
v_mov_b32 v3, s34
v_add_u32 v1, 8, v1
v_cndmask_b32 v{SEL}, 0, v3, vcc
v_cmp_eq_u32 vcc, v1, v2
v_and_b32 v{FL}, 60, v6
s_lshl_b32 s31, s29, 2
v_cndmask_b32 v{SEL+4}, 0, v3, vcc
s_add_u32 s31, s31, {L_CS}
v_add_u32 v1, s31, v7
v_and_b32 v2, 511, v7
v_add_u32 v2, {L_CS}, v2''')
    for i in range(1, 4): a(f'v_mov_b32 v{SEL+i}, v{SEL}\nv_mov_b32 v{SEL+4+i}, v{SEL+4}')
    a(f's_lshl_b32 s35, s26, 2\ns_add_u32 s35, s35, s29')
    a(f's_lshl_b32 s31, s35, 12\ns_add_u32 s37, s31, {WS_STATS}\ns_lshl_b32 s3, s28, 8\ns_add_u32 s38, s37, s3')
    a(f's_lshl_b32 s52, s28, 18\ns_add_u32 s52, s52, s31')
    a(f's_lshl_b32 s31, s35, 2\ns_add_u32 s53, s31, s3\ns_add_u32 s53, s53, {FZ}')
    a(f's_mul_i32 s54, s35, 57344\ns_lshl_b32 s31, s28, 12\ns_add_u32 s54, s54, s31\ns_add_u32 s54, s54, {WS_HF}')
    a(f's_lshr_b32 s31, s35, 1\ns_lshl_b32 s55, s31, 7\ns_lshl_b32 s31, s28, 3\ns_add_u32 s55, s55, s31\ns_and_b32 s31, s29, 1\ns_lshl_b32 s31, s31, 2\ns_add_u32 s55, s55, s31\ns_add_u32 s55, s55, {FH}')
    a('s_waitcnt lgkmcnt(0)')
    a('s_and_b32 s13, s13, 0xffff\ns_and_b32 s21, s21, 0xffff')
    def xreads(c, base, off): return [(f'ds_read_b128 {vr(X+16*c+4*i,4)}, v{base+i} offset:{off}', f'xr{c}') for i in range(4)]
    def gx(c):
        L = []
        if c == 2: L += [f'v_subrev_u32 v{XR+i}, 65536, v{XR+i}' for i in range(4)]
        if c == 6: L += [f'v_add_u32 v{XR+i}, 65536, v{XR+i}' for i in range(4)]
        return L, xreads(c, XR, XO[c] % 65536)
    def dots(c, S):
        for i in range(16):
            r = X + 16*c + i
            a(f'v_dot2c_f32_bf16 v{S + 2*(i&1)}, s34, v{r}\nv_dot2c_f32_bf16 v{S + 1 + 2*(i&1)}, v{r}, v{r}')
    def redux(S): return [f'v_add_f32 v{S}, v{S}, v{S+2}', f'v_add_f32 v{S+1}, v{S+1}, v{S+3}', f'v_mov_b32 v{S+2}, v{S}', f'v_mov_b32 v{S+3}, v{S+1}',
             f'v_permlane32_swap_b32 v{S}, v{S+2}', f'v_permlane32_swap_b32 v{S+1}, v{S+3}', f'v_add_f32 v{S}, v{S}, v{S+2}', f'v_add_f32 v{S+1}, v{S+1}, v{S+3}']
    def wreads(t):
        n, i = divmod(t, 4)
        L = []
        for fb in range(2):
            d = WF + 8*i + 4*fb
            L.append((f'ds_read_b64_tr_b16 {vr(d,2)}, v{WR+2*i+fb} offset:{(n%8)*8192}', f'wr{t}'))
            L.append((f'ds_read_b64_tr_b16 {vr(d+2,2)}, v{WR+2*i+fb} offset:{(n%8)*8192+512}', f'wr{t}'))
        return L
    def mfmas(t):
        n, i = divmod(t, 4); acc = A2 if n < 8 else A1; f = t % 32
        L = []
        for fb in range(2):
            c = '0' if f == 0 else vr(acc+16*fb, 16)
            L.append(f'v_mfma_f32_32x32x16_bf16 {vr(acc+16*fb,16)}, {vr(WF+8*i+4*fb,4)}, {vr(X+4*f,4)}, {c}')
        if i == 0:
            cs = [f'v_mfma_f32_16x16x32_bf16 {vr(CS,4)}, {vr(SEL+4*fb,4)}, {vr(WF+4*fb,4)}, {"0" if (f == 0 and fb == 0) else vr(CS,4)}' for fb in range(2)]
            L = ['\n'.join(cs + L[:1]), L[1]]
        return L
    def cs_write(part, T):
        return [f'v_cvt_pk_bf16_f32 v{T}, v{CS}, v{CS}', f'v_lshlrev_b32 v{T}, 16, v{T}', f'v_sub_f32 v{T}, v{CS}, v{T}', f'v_cvt_pk_bf16_f32 v{T}, v{CS}, v{T}',
                (f'ds_write_b32 v1, v{T} offset:{part*1024}', 'csw')]
    def cs_read(part, T):
        return [lambda: a.waitall(vm=False), 's_barrier'] + [(f'ds_read_b128 {vr(T+4*fb,4)}, v2 offset:{part*1024 + 512*fb}', 'csr') for fb in range(2)]
    def cs_apply(acc, T):
        return [lambda: a.waitlg('csr')] + [f'v_mfma_f32_32x32x16_bf16 {vr(acc+16*fb,16)}, {vr(T+4*fb,4)}, {vr(NEG,4)}, {vr(acc+16*fb,16)}' for fb in range(2)]
    fin1 = redux(ST) + ln_list(ST, ST+1, 512, ST+2, NM, 4, SD) + [
        f'v_lshrrev_b32 v{NEG}, 16, v{NM}', f'v_or_b32 v{NEG}, v{NEG}, v{NM}', 'v_cmp_gt_u32 vcc, 32, v0', f'v_mul_f32 v{CC+1}, {fbits(C0)}, v4', f'v_mul_f32 v{CC}, v4, v4',
        f'v_cndmask_b32 v{NEG}, 0, v{NEG}, vcc', f'v_mul_f32 v{CC}, v{CC}, v{CC+1}', f'v_mul_f32 v{CC}, {fbits(0.044715)}, v{CC}'] + \
        [f'v_mov_b32 v{NEG+i}, v{NEG}' for i in range(1, 4)]
    stamp(1)
    a('s_barrier'); a.emit(gx(0)[1] + wreads(0) + wreads(1) + wreads(2))
    mload = f'global_load_dword v{FL+1}, v{FL}, s[16:17] sc1'
    for c in range(8):
        a.waitlg(f'xr{c}'); dots(c, ST)
        if c < 7:
            pre, xr = gx(c+1)
            fills = {0: wreads(4*c+3) + pre, 1: ['s_barrier'] + xr + wreads(4*c+4), 2: wreads(4*c+5), 3: wreads(4*c+6)}
        else:
            fills = {0: wreads(4*c+3) + fin1[:8], 1: cs_write(0, T) + fin1[8:15], 2: fin1[15:27], 3: cs_read(0, T) + fin1[27:]}
        if c == 5: fills[3] = fills[3] + [(mload, 'mst')]
        for i in range(4):
            t = 4*c + i
            a.waitlg(f'wr{t}')
            a.emit(merge(mfmas(t), fills[i]))
    stamp(2)
    a.emit(cs_apply(A2, T))
    for i in range(8): a(f'v_add_u32 v{WR+i}, 65536, v{WR+i}')
    a.waitvm('mst')
    g.spin([mload], [FL+1], FL+1, True, '0')
    a.emit(gelu_pk(A2, 32, CC, SD, T))
    a('s_barrier')
    AH = 3
    rd = sum([wreads(t) for t in range(32, 32 + AH)], [])
    st = []
    for i in range(16):
        p = A2 + 2*i
        if i == 0: st.append(f'v_pk_mul_f32 {vr(ST+2,2)}, {vr(p,2)}, {vr(p,2)}')
        else: st += [f'v_pk_add_f32 {vr(ST,2)}, {vr(p-2,2) if i == 1 else vr(ST,2)}, {vr(p,2)}', f'v_pk_fma_f32 {vr(ST+2,2)}, {vr(p,2)}, {vr(p,2)}, {vr(ST+2,2)}']
    st += [f'v_add_f32 v{ST}, v{ST}, v{ST+1}', f'v_add_f32 v{ST+2}, v{ST+2}, v{ST+3}']
    a.emit(st); a.emit(rd[:2])
    a(f'v_permlane32_swap_b32 v{ST}, v{ST+2}')
    a(f'v_add_f32 v3, v{ST}, v{ST+2}\nv_min_u32 v3, 0xfffffffe, v3')
    a('buffer_store_dword v3, v6, s[12:15], s38 offen sc1', 'pub')
    a.emit(rd[2:])
    stamp(3)
    pl = [f'buffer_load_dword v{X+j}, v6, s[12:15], s37 offen offset:{256*j} sc1' for j in range(14)]
    TA = X + 16; T2 = X + 64; U = X + 32; Q = X + 14
    taddr = f"""v_and_b32 v{TA}, 31, v0
v_mul_u32_u24 v{TA}, 144, v{TA}
v_lshrrev_b32 v{TA+1}, 5, v0
v_lshl_add_u32 v{TA}, v{TA+1}, 4, v{TA}
s_mul_i32 s31, s29, 4608
s_add_u32 s31, s31, {L_TR}
v_add_u32 v{TA}, s31, v{TA}
v_bfe_u32 v{TA+2}, v0, 2, 2
v_lshl_add_u32 v{TA+1}, v{TA+1}, 3, v{TA+2}
v_mul_u32_u24 v{TA+1}, 144, v{TA+1}
v_and_b32 v{TA+2}, 56, v{WR}
v_add3_u32 v{TA+1}, v{TA+1}, v{TA+2}, s31""".split('\n')
    fin2 = [f'v_add_f32 v{X+j}, v{X+j}, v{X+j+8}' for j in range(6)] + [f'v_add_f32 v{X+j}, v{X+j}, v{X+j+4}' for j in range(4)] + \
           [f'v_add_f32 v{X}, v{X}, v{X+2}', f'v_add_f32 v{X+1}, v{X+1}, v{X+3}', f'v_add_f32 v{X}, v{X}, v{X+1}', f'v_mov_b32 v{X+1}, v{X}', f'v_permlane32_swap_b32 v{X}, v{X+1}'] + \
           ln_list(X, X+1, 896, X+2, X+3, X+4) + [f'v_mul_f32 v{X+3}, v{X+3}, v{X+4}']
    for q in range(4):
        for i in range(8): fin2.append(f'v_fma_f32 v{A2+8*q+i}, v{A2+8*q+i}, v{X+4}, v{X+3}')
        for i in range(4): fin2.append(f'v_cvt_pk_bf16_f32 v{U+4*q+i}, v{A2+8*q+2*i}, v{A2+8*q+2*i+1}')
        fin2.append((f'ds_write_b128 v{TA}, {vr(U+4*q,4)} offset:{32*q}', 'tw'))
    fin3 = []
    for q in range(4):
        ks2, fb = divmod(q, 2)
        fin3.append((f'ds_read_b64_tr_b16 {vr(A2+4*q,2)}, v{TA+1} offset:{ks2*16*144 + 64*fb}', 'tr'))
        fin3.append((f'ds_read_b64_tr_b16 {vr(A2+2+4*q,2)}, v{TA+1} offset:{ks2*16*144 + 64*fb + 4*144}', 'tr'))
    fin4 = [lambda: a.waitlg('tr')] + [(f'buffer_store_dwordx4 {vr(A2+4*q,4)}, v7, s[12:15], s52 offen offset:{1024*q} sc1', 'z2st') for q in range(4)]
    tp = opt.get('tp', 42); tc = opt.get('tc', 50); fper = opt.get('fper', 14)
    fills = {t: [] for t in range(32, 70)}
    fills[37] += taddr[:6]; fills[38] += taddr[6:]
    prm = ssm.param_loads() + ['s_lshl_b32 s31, s35, 5', 'v_and_b32 v3, 31, v0', 'v_add_lshl_u32 v3, v3, s31, 1', ('global_load_ushort v3, v3, s[18:19]', 'prm')]
    fills[39] += prm[:8]; fills[40] += prm[8:]
    for j in range(14): fills[tp + j//4].append((pl[j], 'pl'))
    t = tc; k = 0
    while k < len(fin2):
        fills[t] += fin2[k:k+fper]; k += fper; t += 1
    fills[t] += fin3; fills[t+2] += fin4
    tz = t + 2
    assert tz < 64, tz
    fills[61] = fills[61] + cs_write(1, T2)
    for t in range(32, 64):
        if t == tc:
            a.waitvm('pl'); g.spin(pl, range(X, X+14), Q, True); stamp(4)
        a.waitlg(f'wr{t}')
        rd = wreads(t + AH) if t + AH < 64 else []
        a.emit(merge(mfmas(t), rd + fills[t]))
        if t == tz: stamp(5)
    stamp(6)
    kp = ssm.kprep()
    flagz = ['v_mov_b32 v14, 0'] + g.setflag('s53', 14) + [lambda: stamp(7)]
    zf = opt.get('zflag', 1)
    a.emit(cs_read(1, T2)); a.emit(kp[:30])
    a.emit(cs_apply(A1, T2)); a.emit(kp[30:])
    if zf == 0: a.emit(flagz)
    Z1 = 112
    for i in range(16): a(f'v_pk_mul_f32 {vr(A1+2*i,2)}, {vr(A1+2*i,2)}, v[4:5] op_sel_hi:[1,0]')
    for i in range(15, -1, -1): a(f'v_cvt_pk_bf16_f32 v{Z1+i}, v{A1+2*i}, v{A1+2*i+1}')
    if zf == 1: a.emit(flagz)
    kg, kx = ssm.kgen()
    if zf >= 2:
        a.emit(kg[:zf]); a.emit(['v_mov_b32 v16, 0'] + g.setflag('s53', 16) + [lambda: stamp(7)]); a.emit(kg[zf:])
    else: a.emit(kg)
    ACC = 32; F = [64, 88]
    a('s_lshl_b32 s31, s29, 12')
    a.emit(rowread_list(8, 9, 's31'))
    a(f'v_xor_b32 v9, 32, v8\nv_xor_b32 v10, 64, v8\nv_xor_b32 v11, 96, v8\nv_add_u32 v12, {L_Z}, v7\nv_lshlrev_b32 v4, 16, v3\nv_mov_b32 v14, {fbits(C1)}')
    a.emit(kx)
    stamp(8)
    def rd2(k, half):
        L = []
        for j in range(2):
            ks = 2*half + j
            L.append((f'ds_read_b128 {vr(F[half]+12*j,4)}, v{8+ks} offset:{(k%4)*16384}', f'g{k}_{ks}'))
            for fb in range(2): L.append((f'ds_read_b128 {vr(F[half]+12*j+4+4*fb,4)}, v12 offset:{(k%4)*8192+ks*2048+fb*1024}', f'g{k}_{ks}'))
        return L
    def mm2(k, half):
        L = []
        for j in range(2):
            for fb in range(2):
                c = '0' if (k == 0 and half == 0 and j == 0) else vr(ACC+16*fb, 16)
                L.append((f'g{k}_{2*half+j}', f'v_mfma_f32_32x32x16_bf16 {vr(ACC+16*fb,16)}, {vr(F[half]+12*j+4+4*fb,4)}, {vr(F[half]+12*j,4)}, {c}'))
        return L
    HOLD = ('HOLD',)
    S = ssm.kfin()[1:] + gelu_packed(Z1, 16, 16, 14) + [HOLD] + ssm.ubuild() + ssm.conv() + ssm.finish()
    budget = opt.get('budget', 28)
    si = 0; blocked = False; nbar = 0
    def pull(bud, k):
        nonlocal si, blocked, nbar
        while si < len(S) - 1 and not blocked and bud > 0:
            x = S[si]
            if x is HOLD:
                if k < RAWAT: return
                si += 1; continue
            if x is BAR:
                if k >= 31: return
                blocked = True; si += 1; nbar += 1
                if nbar == 1: assert k + 1 <= opt.get('kfinbar', 2), k
                if opt.get('verbose'): print('ssm bar', nbar, 'at stage', k)
                break
            a.emit([x]); bud -= cost(x); si += 1
    for k in range(33):
        if k < 32:
            a.waitall(vm=False); a('s_barrier'); blocked = False
        if k == 0: stamp(9)
        for ph in range(2):
            m = (mm2(k-1, 1) if k > 0 else []) if ph == 0 else (mm2(k, 0) if k < 32 else [])
            r = rd2(k, ph) if k < 32 else []
            if not m:
                a.emit(r)
                if k == 0: pull(4 * budget, k)
                continue
            for i, (tg, ins) in enumerate(m):
                a.waitlg(tg)
                a(ins)
                a.emit(r[2*i:2*i+2] if i < 3 else [])
                if k < 32: pull(budget - (8 if i < 3 else 0), k)
    stamp(10)
    rest = S[si:]
    if opt.get('verbose'): print('ssm left', len(rest))
    for q in range(4):
        for i in range(4): a(f'v_lshlrev_b32 v{16+2*i}, 16, v{Z1+4*q+i}\nv_and_b32 v{17+2*i}, s33, v{Z1+4*q+i}')
        for i in range(4):
            p = ACC + 8*q + 2*i
            a(f'v_pk_add_f32 {vr(p,2)}, {vr(p,2)}, v[4:5] op_sel_hi:[1,0]')
        for i in range(4):
            p = ACC + 8*q + 2*i
            a(f'v_pk_mul_f32 {vr(p,2)}, {vr(p,2)}, {vr(16+2*i,2)}')
        for i in range(4): a(f'v_cvt_pk_bf16_f32 v{F[0]+4*q+i}, v{ACC+8*q+2*i}, v{ACC+8*q+2*i+1}')
        a(f'buffer_store_dwordx4 {vr(F[0]+4*q,4)}, v7, s[12:15], s54 offen offset:{1024*q} sc1', 'hst')
    stamp(11)
    a('v_mov_b32 v16, 0')
    a.emit(g.setflag('s55', 16))
    stamp(12)
    nleft = emit_plain(a, rest)
    i = a.L.index('@LEFTBARS@'); a.L[i:i+1] = ['s_barrier'] * nleft

    a(f'{lab("g3comp")}:')
    ACC = 16; F = [32, 48]; SR = 64; SF = 72; XR = 88; XF = 96; T = 112
    a('s_and_b32 s36, s29, 1\ns_lshr_b32 s37, s29, 1\ns_lshl_b32 s32, s26, 1\ns_add_u32 s32, s32, s30')
    a.emit(trread_list(2, 3))
    a(f'''s_lshl_b32 s31, s37, 6
v_xor_b32 v2, s31, v2
v_add_u32 v3, 65536, v2
v_add_u32 v4, 131072, v2
s_lshl_b32 s3, s36, 12
s_add_u32 s38, s3, {L_H}
v_add_u32 v8, s38, v7
s_add_u32 s3, s3, {L_X3}''')
    a.emit(rowread_list(9, 10, 's3'))
    a(f'''v_xor_b32 v9, s31, v9
v_xor_b32 v10, 32, v9
v_lshrrev_b32 v11, 2, v0
v_and_b32 v12, 3, v0
v_lshlrev_b32 v13, 4, v12
v_lshl_add_u32 v15, v11, 10, v13
v_bfe_u32 v13, v0, 3, 3
v_xor_b32 v12, v12, v13
v_lshlrev_b32 v12, 4, v12
v_xor_b32 v12, s31, v12
v_lshl_add_u32 v12, v11, 7, v12
v_add_u32 v14, s3, v12
v_lshrrev_b32 v11, 5, v0
v_lshlrev_b32 v11, 15, v11
v_and_b32 v13, 127, v6
v_add_u32 v11, v11, v13
s_lshl_b32 s3, s27, 1
s_add_u32 s3, s3, s37
s_lshl_b32 s46, s3, 17
s_lshl_b32 s3, s32, 1
s_add_u32 s3, s3, s36
s_lshl_b32 s47, s3, 7
s_add_u32 s46, s46, s47
s_add_u32 s46, s46, {WS_ST}
s_lshl_b32 s47, s3, 15
s_lshl_b32 s3, s27, 7
s_add_u32 s47, s47, s3
s_add_u32 s47, s47, s31
s_lshl_b32 s48, s27, 9
s_lshr_b32 s3, s26, 2
s_lshl_b32 s3, s3, 7
s_add_u32 s48, s48, s3
s_add_u32 s48, s48, {FS}
v_mov_b32 v16, 0''')
    a.emit(g.setflag('s44', 16))
    stamp(13)
    def rd3(k, half):
        w = W3LOC[k]; wr = 2 + w // 65536; w %= 65536
        L = []
        for j in range(2):
            ks = 2*half + j
            L.append((f'ds_read_b128 {vr(F[half]+8*j,4)}, v8 offset:{HLOC[k%5]+ks*1024}', f'h{k}_{ks}'))
            L.append((f'ds_read_b64_tr_b16 {vr(F[half]+8*j+4,2)}, v{wr} offset:{w+ks*2048}', f'h{k}_{ks}'))
            L.append((f'ds_read_b64_tr_b16 {vr(F[half]+8*j+6,2)}, v{wr} offset:{w+ks*2048+512}', f'h{k}_{ks}'))
        return L
    def mm3(k, half):
        return [(f'h{k}_{2*half+j}', f'v_mfma_f32_32x32x16_bf16 {vr(ACC,16)}, {vr(F[half]+8*j+4,4)}, {vr(F[half]+8*j,4)}, {"0" if (k == 0 and half == 0 and j == 0) else vr(ACC,16)}') for j in range(2)]
    fsl = f'buffer_load_dword v{T}, v13, s[12:15], s48 offen sc1'
    ks0 = opt.get('ks0', 0); ks1 = opt.get('ks1', 5); ks2_ = opt.get('ks2', 11)
    for k in range(15):
        if k < 14:
            a.waitall(vm=False); a('s_barrier')
        if k == 0: stamp(14)
        for ph in range(2):
            m = (mm3(k-1, 1) if k > 0 else []) if ph == 0 else (mm3(k, 0) if k < 14 else [])
            r = rd3(k, ph) if k < 14 else []
            if not m: a.emit(r); continue
            for i, (tg, ins) in enumerate(m):
                a.waitlg(tg); a(ins); a.emit(r[3*i:3*i+3])
        if k == ks0: a(fsl, 'fs')
        if k == 1:
            for p in range(2): a(f'ds_read_b128 {vr(XR+4*p,4)}, v{9+p}', 'xr')
        if k == 2:
            for i in range(8): a(f'v_lshlrev_b32 v{XF+2*i}, 16, v{XR+i}\nv_and_b32 v{XF+2*i+1}, s33, v{XR+i}')
        if k == ks1:
            a.waitvm('fs'); g.spin([fsl], [T], T, True)
            for i in range(8):
                a(f'buffer_load_dword v{SR+i}, v11, s[12:15], s46 offen sc1', 'sl')
                a(f's_add_u32 s46, s46, {8192 if i != 3 else 5*8192}')
        if k == ks2_:
            a.waitvm('sl')
            for i in range(8): a(f'v_lshlrev_b32 v{SF+2*i}, 16, v{SR+i}\nv_and_b32 v{SF+2*i+1}, s33, v{SR+i}')
    stamp(15)
    a(f'v_mov_b32 v12, {fbits(-LOG2E)}')
    for p in range(2):
        B = ACC + 8*p
        for i in range(4): a(f'v_pk_mul_f32 {vr(T+2*i,2)}, {vr(B+2*i,2)}, v[12:13] op_sel_hi:[1,0]')
        for i in range(8): a(f'v_exp_f32 v{T+i}, v{T+i}')
        for i in range(4): a(f'v_pk_mul_f32 {vr(B+2*i,2)}, {vr(B+2*i,2)}, {vr(SF+8*p+2*i,2)}')
        for i in range(4): a(f'v_pk_add_f32 {vr(T+2*i,2)}, {vr(T+2*i,2)}, 1.0 op_sel_hi:[1,0]')
        for i in range(8): a(f'v_rcp_f32 v{T+i}, v{T+i}')
        for i in range(4): a(f'v_pk_fma_f32 {vr(B+2*i,2)}, {vr(B+2*i,2)}, {vr(T+2*i,2)}, {vr(XF+8*p+2*i,2)}')
        for i in range(4): a(f'v_cvt_pk_bf16_f32 v{F[0]+4*p+i}, v{B+2*i}, v{B+2*i+1}')
        a(f'ds_write_b128 v{9+p}, {vr(F[0]+4*p,4)}', 'ow')
    for p in range(2): a(f'ds_read_b128 {vr(F[1]+4*p,4)}, v14 offset:{2048*p}', f'or{p}')
    for p in range(2):
        a.waitlg(f'or{p}')
        if p: a('s_add_u32 s47, s47, 16384')
        a(f'buffer_store_dwordx4 {vr(F[1]+4*p,4)}, v15, s[20:23], s47 offen {opt.get("outflag","")}', 'ost')
    stamp(16)
    g.prof_store()
    a('s_endpgm')

    a(f'{lab("tcomp")}:')
    a.vm = []; a.lg = []
    LA = 3; T = 24; X = 128
    a('s_lshl_b32 s32, s29, 15\ns_lshl_b32 s35, s26, 7\ns_lshl_b32 s31, s29, 5\ns_add_u32 s35, s35, s31')
    rowoffs(a, 32, 's35', 10)
    a.emit(rowread_list(8, 9, 's32'))
    a('v_xor_b32 v9, 32, v8\nv_xor_b32 v10, 64, v8\nv_xor_b32 v11, 96, v8')
    a('s_mov_b32 s36, 0x00003f80\ns_mov_b32 s37, 0x3f800000\ns_lshl_b32 s38, s30, 9')
    for i in range(4): a(f'v_mov_b32 v{20+i}, 0')
    a('v_lshrrev_b32 v13, 5, v0\nv_lshlrev_b32 v13, 15, v13\nv_and_b32 v12, 127, v6\nv_add_u32 v12, v12, v13\nv_and_b32 v16, 60, v6')
    for i in range(1, 4): a(f'v_add_u32 v{12+i}, {8192*i}, v12')
    a(f's_lshl_b32 s31, s35, 2\ns_add_u32 s52, s31, {WS_XNT}\ns_lshl_b32 s31, s30, 20\ns_add_u32 s52, s52, s31')
    a(f's_lshr_b32 s31, s35, 3\ns_lshl_b32 s53, s30, 8\ns_add_u32 s53, s53, s31\ns_add_u32 s53, s53, {FX}')
    a('s_waitcnt lgkmcnt(0)')
    a('s_and_b32 s5, s5, 0xffff\ns_and_b32 s13, s13, 0xffff\ns_and_b32 s21, s21, 0xffff')
    def xload(c):
        return [f's_add_u32 m0, s32, {4096*c}', f's_xor_b32 s31, s38, {128*c}'] + [(f'buffer_load_dwordx4 v{32+i}, s[4:7], s31 offen offset:{1024*i} lds', f'x{c}') for i in range(4)]
    for c in range(LA): a.emit(xload(c))
    stamp(1)
    mload = 'global_load_dword v17, v16, s[16:17] sc1'
    for c in range(8):
        a.waitvm(f'x{c}')
        a.emit(xreads(c, 8, 4096*c))
        if c + LA < 8: a.emit(xload(c + LA))
        if c > 0: dots(c-1, 20)
        a.waitlg(f'xr{c}')
    a(mload, 'mst')
    dots(7, 20)
    a.emit(redux(20) + ln_list(20, 21, 512, 22, 19, 18))
    stamp(2)
    for f in range(16):
        for i in range(4):
            a(f'v_dot2_f32_bf16 v{T+2*i}, v{X+4*f+i}, s36, v19\nv_dot2_f32_bf16 v{T+2*i+1}, v{X+4*f+i}, s37, v19')
        for i in range(4): a(f'v_cvt_pk_bf16_f32 v{X+4*f+i}, v{T+2*i}, v{T+2*i+1}')
        for i in range(4): a(f'v_lshlrev_b32 v{T+2*i}, 16, v{X+4*f+i}\nv_and_b32 v{T+2*i+1}, s33, v{X+4*f+i}')
        for i in range(4): a(f'v_pk_mul_f32 {vr(T+2*i,2)}, {vr(T+2*i,2)}, v[18:19] op_sel_hi:[1,0]')
        for i in range(4): a(f'v_cvt_pk_bf16_f32 v{32+4*f+i}, v{T+2*i}, v{T+2*i+1}')
        for i in range(4): a(f'buffer_store_dword v{32+4*f+i}, v{12+i}, s[12:15], s52 offen sc1', 'xst')
        a('s_add_u32 s52, s52, 65536')
    a.emit(ssm.param_loads())
    stamp(3)
    a.waitall(lg=False)
    g.spin([mload], [17], 17, True, '0')
    a('v_mov_b32 v16, 0')
    a.emit(g.setflag('s53', 16))
    stamp(7)
    a('s_barrier')
    a.vm.append('prm')
    a.emit(ssm.kprep())
    kg, kx = ssm.kgen()
    a.emit(kg + kx)
    stamp(8)
    n = emit_plain(a, ssm.kfin() + [BAR]); stamp(9)
    n += emit_plain(a, ssm.ubuild() + ssm.conv()); stamp(10)
    n += emit_plain(a, ssm.finish()); stamp(12)
    assert n == 7
    a(f's_branch {lab("g3comp")}')
    a(f'{lab("done")}:\ns_endpgm')
    W3LOC = W3LOC_save
    kernel_desc(a, name, 256, 102)
    return a.text(pad=True, verbose=opt.get('verbose'))

if __name__ == '__main__':
    import sys
    sys.path.insert(0, 'work')
    opt = {}
    for kv in sys.argv[2:]:
        k, _, v = kv.partition('=')
        opt[k] = (int(v) if v.lstrip('-').isdigit() else v) if v else True
    NAME = 'recurrent_scan__ssm_conv_s4d__mixer_gmlp__prompt_kernel'
    HDR = open('recurrent_scan__ssm_conv_s4d__mixer_gmlp__prompt.s.ref').read().split('; Override launch')[0]
    txt = HDR + '; @launch grid=(256,1,1) block=(320,1,1) lds=163840\n.amdgcn_target "amdgcn-amd-amdhsa--gfx950"\n' + fused(NAME, opt)
    open(sys.argv[1], 'w').write(txt)
    from hx import build
    import cdna_launch as cl
    co, _ = build(sys.argv[1], 15, NAME)
    p = cl.address_register_problem(co, NAME)
    if p: print('CHECK PROBLEM:', p)
```

```python
from gen import *
import struct, math
def fbits(x): return hex(struct.unpack('<I', struct.pack('<f', x))[0])
def f32(x): return struct.unpack('<f', struct.pack('<f', x))[0]
WS_Z2F = 0; WS_XNT = 4 << 20; WS_HF = 6 << 20; WS_ST = 10 << 20; WS_STATS = 12 << 20; WS_FL = WS_STATS + (512 << 10)
WS_EPOCH = WS_FL + (384 << 10)
WS_PROF = 13 << 20; WS_BYTES = 14 << 20
FZ = WS_FL; FX = WS_FL + 896*128; FH = WS_FL + 1024*128; FT = WS_FL + 1536*128; FS = WS_FL + 2048*128
KA = dict(u=0, logA=8, Aim=16, Cre=24, Cim=32, logdt=40, Dskip=48, bx=56, win=64, wsp=72, bsp=80, wout=88, out=96, dbg=104, ws=112)
LOG2E = math.log2(math.e)
C0 = -2 * LOG2E * math.sqrt(2 / math.pi); C1 = C0 * 0.044715
BAR = ('BAR',)
SPIN = 0x20000
L_SSM = 65536; L_Z = 114688
USTR = 4640; UGRP = 3 * USTR + 4480; L_U = L_SSM; L_RAW = 102400 - 16; L_K = 147456
L_CS = 159744; L_TR = 131072
L_X3 = 81920; L_S3 = 90112; KSTR = 4736

class G:
    def __init__(self, name, opt):
        self.a = Asm(); self.name = name; self.opt = opt; self.comp = False; self.cold = []
    def stamp(self, idx, fine=False):
        if self.opt.get('fine') and not fine and 3 <= idx <= 15 and self.comp: return
        if self.opt.get('prof'): self.a(f's_memtime s[{66+2*idx}:{67+2*idx}]')
    def prof_store(self):
        if not self.opt.get('prof'): return
        a = self.a
        a('s_memrealtime s[64:65]\ns_memtime s[60:61]')
        a.waitall()
        a('v_mov_b32 v2, 0\ns_sub_u32 s31, s60, s66\nv_writelane_b32 v2, s31, 2')
        for i in range(1, 18):
            a(f's_sub_u32 s31, s{66+2*i}, s66\nv_writelane_b32 v2, s31, {i+2}')
        a('v_writelane_b32 v2, s62, 0\nv_writelane_b32 v2, s64, 1')
        a(f's_lshl_b32 s3, s2, 3\ns_add_u32 s3, s3, s29\ns_lshl_b32 s3, s3, 7\ns_add_u32 s3, s3, {WS_PROF}')
        a('v_lshlrev_b32 v1, 2, v0\ns_mov_b32 exec_hi, 0')
        a('buffer_store_dword v2, v1, s[12:15], s3 offen')
    def spin(self, loads, tags, tmp, sentinel=False):
        a = self.a
        lp = a.newlab('sp'); lc = a.newlab('spc'); lo = a.newlab('spo')
        chk = []
        r = list(tags)
        if sentinel:
            cur = r.pop(0)
            while r:
                if len(r) >= 2: chk.append(f'v_max3_u32 v{tmp}, v{cur}, v{r[0]}, v{r[1]}'); r = r[2:]
                else: chk.append(f'v_max_u32 v{tmp}, v{cur}, v{r[0]}'); r = []
                cur = tmp
            chk.append(f'v_cmp_eq_u32 vcc, -1, v{tmp}')
        elif len(r) == 1: chk.append(f'v_cmp_ne_u32 vcc, s24, v{r[0]}')
        else:
            chk.append(f'v_xor_b32 v{tmp}, s24, v{r[0]}')
            for x in r[1:]: chk.append(f'v_bitop3_b32 v{tmp}, v{tmp}, v{x}, s24 bitop3:0xf6')
            chk.append(f'v_cmp_ne_u32 vcc, 0, v{tmp}')
        for x in chk: a(x)
        a(f's_cbranch_vccnz {lp}\n{lo}:')
        self.cold += [f'{lp}:', f's_mov_b32 s39, {SPIN}', f'{lc}:'] + list(loads) + ['s_waitcnt vmcnt(0)'] + chk + \
            [f's_cbranch_vccz {lo}', 's_sub_u32 s39, s39, 1', 's_cmp_lg_u32 s39, 0', f's_cbranch_scc1 {lc}', f's_branch {lo}']
    def setflag(self, soff, vtmp):
        return [f'v_mov_b32 v{vtmp}, s24', lambda: self.a.waitall(lg=False), (f's_mov_b32 exec_hi, 0\nbuffer_store_dword v{vtmp}, v6, s[12:15], {soff} offen sc1\ns_mov_b64 exec, -1', 'flag')]

def ln_list(vS, vQ, n, vT, out_negm, out_r, out_sd=None):
    L = [f'v_mul_f32 v{vS}, {fbits(1.0/n)}, v{vS}', f'v_mul_f32 v{vQ}, {fbits(1.0/n)}, v{vQ}', f'v_fma_f32 v{vQ}, -v{vS}, v{vS}, v{vQ}',
         f'v_max_f32 v{vQ}, 0, v{vQ}', f'v_cvt_pk_bf16_f32 v{vT}, v{vQ}, v{vS}', f'v_lshlrev_b32 v{vQ}, 16, v{vT}', f'v_and_b32 v{vT}, 0xffff0000, v{vT}',
         f'v_add_f32 v{vQ}, {fbits(1e-5)}, v{vQ}', f'v_xor_b32 v{out_negm}, 0x80000000, v{vT}', f'v_cvt_pk_bf16_f32 v{vQ}, v{vQ}, v{vQ}',
         f'v_lshlrev_b32 v{vQ}, 16, v{vQ}', f'v_sqrt_f32 v{vQ}, v{vQ}', f'v_cvt_pk_bf16_f32 v{vQ}, v{vQ}, v{vQ}']
    sd = vQ if out_sd is None else out_sd
    L += [f'v_lshlrev_b32 v{sd}, 16, v{vQ}', f'v_rcp_f32 v{out_r}, v{sd}']
    return L

def gelu_pk(A, n, vC, vSD, T):
    L = []
    for b in range(0, n, 8):
        P = [A + b + 2*i for i in range(4)]; Q = [T + 2*i for i in range(4)]
        for p, q in zip(P, Q): L.append(f'v_pk_mul_f32 {vr(q,2)}, {vr(p,2)}, {vr(p,2)}')
        for q in Q: L.append(f'v_pk_fma_f32 {vr(q,2)}, {vr(q,2)}, {vr(vC,2)}, {vr(vC,2)} op_sel:[0,0,1] op_sel_hi:[1,0,1]')
        for p, q in zip(P, Q): L.append(f'v_pk_mul_f32 {vr(q,2)}, {vr(q,2)}, {vr(p,2)}')
        for i in range(8): L.append(f'v_exp_f32 v{T+i}, v{T+i}')
        for q in Q: L.append(f'v_pk_fma_f32 {vr(q,2)}, {vr(q,2)}, {vr(vSD,2)}, {vr(vSD,2)} op_sel_hi:[1,0,0]')
        for i in range(8): L.append(f'v_rcp_f32 v{T+i}, v{T+i}')
        for p, q in zip(P, Q): L.append(f'v_pk_mul_f32 {vr(p,2)}, {vr(p,2)}, {vr(q,2)}')
    return L

def gelu_packed(Z, n, T, vC1):
    L = []
    for b in range(0, n, 2):
        for i in range(2): L += [f'v_lshlrev_b32 v{T+2*i}, 16, v{Z+b+i}', f'v_and_b32 v{T+2*i+1}, s33, v{Z+b+i}']
        for i in range(4): L.append(f'v_mul_f32 v{T+4+i}, v{T+i}, v{T+i}')
        for i in range(4): L.append(f'v_fmaak_f32 v{T+4+i}, v{vC1}, v{T+4+i}, {fbits(C0)}')
        for i in range(4): L.append(f'v_mul_f32 v{T+4+i}, v{T+i}, v{T+4+i}')
        for i in range(4): L.append(f'v_exp_f32 v{T+4+i}, v{T+4+i}')
        for i in range(4): L.append(f'v_add_f32 v{T+4+i}, 1.0, v{T+4+i}')
        for i in range(4): L.append(f'v_rcp_f32 v{T+4+i}, v{T+4+i}')
        for i in range(4): L.append(f'v_mul_f32 v{T+i}, v{T+i}, v{T+4+i}')
        for i in range(2): L.append(f'v_cvt_pk_bf16_f32 v{Z+b+i}, v{T+2*i}, v{T+2*i+1}')
    return L

def stream_emit(a, items, nbar, D, hook=None):
    comp = {}
    for i, it in enumerate(items):
        if it[2] is not None: comp[it[2]] = i + 1
    DD = D if callable(D) else (lambda b: D)
    nb = 0
    def bar(n):
        nonlocal nb
        c = max([comp.get(b, 0) for b in range(nb + 1)])
        assert c <= n, (nb, c, n)
        if hook: hook(nb, -1)
        if c: a.L.append(f's_waitcnt vmcnt({min(63, n - c)})')
        if hook: hook(nb, 0)
        a.L.append('s_barrier')
        if hook: hook(nb, 1)
        nb += 1
    for i, (setup, ld, cb, need) in enumerate(items):
        while need is not None and nb <= need: bar(i)
        for x in setup:
            if callable(x): x()
            else: a.L.append(x)
        a.L.append(ld)
        while nb < nbar and nb in comp and i + 1 >= comp[nb] + DD(nb): bar(i + 1)
    while nb < nbar: bar(len(items))

def grp(m0, soff_setup, vbase, srd_, soff, same=False, cb=None, need=None, fl='', mreg='s19'):
    L = []
    for i in range(4):
        su = ([f's_add_u32 m0, {mreg}, {m0}'] + (soff_setup or ['s_nop 0'])) if i == 0 else []
        L.append((su, f'buffer_load_dwordx4 v{vbase if same else vbase+i}, {srd_}, {soff} offen offset:{1024*i} {fl} lds', cb, need if i == 0 else None))
    return L

def rowoffs(a, d, rowbase, sh, colbase=None):
    st = 1 << sh
    a(f"""v_lshrrev_b32 v24, 3, v0
v_add_u32 v24, {rowbase}, v24
v_lshlrev_b32 v24, {sh}, v24
v_and_b32 v25, 7, v0
v_lshrrev_b32 v26, 4, v0
v_xor_b32 v25, v25, v26
v_lshl_add_u32 v{d}, v25, 4, v24""")
    if colbase: a(f'v_add_u32 v{d}, {colbase}, v{d}')
    a(f'v_xor_b32 v{d+1}, 64, v{d}\nv_add_u32 v{d+1}, {8*st-1024}, v{d+1}\nv_add_u32 v{d+2}, {16*st-2048}, v{d}\nv_add_u32 v{d+3}, {16*st-2048}, v{d+1}')

def troffs(a, d, stride, colbase):
    a(f"""v_lshrrev_b32 v24, 3, v0
v_mul_u32_u24 v24, {stride}, v24
v_bfe_u32 v25, v0, 4, 1
v_lshlrev_b32 v25, 2, v25
v_and_b32 v26, 7, v0
v_xor_b32 v25, v25, v26
v_lshl_add_u32 v24, v25, 4, v24
v_add_u32 v{d}, {colbase}, v24""")
    for i in range(1, 4): a(f'v_add_u32 v{d+i}, {8*stride-1024}, v{d+i-1}')

def rowread_list(d, t, base):
    return [f'v_lshrrev_b32 v{t}, 5, v0', f'v_bfe_u32 v{d}, v0, 1, 3', f'v_xor_b32 v{d}, v{d}, v{t}', f'v_lshlrev_b32 v{d}, 4, v{d}',
            f'v_and_b32 v{t}, 31, v0', f'v_lshl_add_u32 v{d}, v{t}, 7, v{d}', f'v_add_u32 v{d}, {base}, v{d}']
def trread_list(d, t):
    return [f'v_lshrrev_b32 v{d}, 5, v0', f'v_bfe_u32 v{t}, v0, 2, 2', f'v_lshl_add_u32 v{d}, v{d}, 3, v{t}', f'v_lshlrev_b32 v{d}, 7, v{d}',
            f'v_bfe_u32 v{t}, v0, 3, 1', f'v_lshl_add_u32 v{d}, v{t}, 6, v{d}', f'v_bfe_u32 v{t}, v0, 4, 1', f'v_lshl_add_u32 v{d}, v{t}, 5, v{d}',
            f'v_and_b32 v{t}, 1, v0', f'v_lshl_add_u32 v{d}, v{t}, 4, v{d}', f'v_bfe_u32 v{t}, v0, 1, 1', f'v_lshl_add_u32 v{d}, v{t}, 3, v{d}']

def cost(x):
    if callable(x): return 4
    t = x[0] if isinstance(x, tuple) else x
    if t.startswith(TRANS): return 8
    if t.startswith('v_mfma_f32_32'): return 32
    if t.startswith('v_mfma'): return 12
    return 4

class SSM:
    CA = 16; PR = 208; DS = 5
    def __init__(self, g): self.g = g; self.a = g.a
    def param_addr(self):
        P = self.PR
        return ['s_lshl_b32 s31, s2, 9', 's_lshl_b32 s3, s29, 7', 's_add_u32 s31, s31, s3', f'v_lshl_add_u32 v{P+6}, v0, 1, s31',
                's_lshl_b32 s31, s2, 2', f'v_mov_b32 v{P+7}, s31']
    def param_loads(self):
        P = self.PR
        L = [(f'global_load_dword v{P+4}, v{P+7}, s[48:49]', 'prm')]
        for i in range(4): L.append((f'global_load_ushort v{P+i}, v{P+6}, s[{40+2*i}:{41+2*i}]', 'prm'))
        L.append((f'global_load_dword v{self.DS}, v{P+7}, s[50:51]', 'prm'))
        return L
    def kaddr(self):
        A = 216
        L = ['s_lshl_b32 s31, s29, 14', f's_add_u32 s31, s31, {L_SSM}', f'v_bfe_u32 v{A+4}, v0, 1, 2', f'v_lshlrev_b32 v{A+4}, 4, v{A+4}', f'v_lshl_add_u32 v{A+4}, v0, 6, v{A+4}', f'v_add_u32 v{A}, s31, v{A+4}']
        for b in range(1, 4): L.append(f'v_xor_b32 v{A+b}, {16*b}, v{A}')
        R, t, u = A+4, A+6, A+7
        L += ['s_and_b32 s3, s31, 0xffff8000', f'v_bfe_u32 v{t}, v0, 3, 2', f'v_bfe_u32 v{R}, v0, 1, 1', f'v_xor_b32 v{R}, v{R}, v{t}', f'v_lshlrev_b32 v{R}, 4, v{R}',
              f'v_lshrrev_b32 v{t}, 2, v0', f'v_lshl_add_u32 v{R}, v{t}, 6, v{R}', f'v_and_b32 v{u}, 1, v0', f'v_lshl_add_u32 v{R}, v{u}, 3, v{R}', f'v_add_u32 v{R}, s3, v{R}',
              f'v_xor_b32 v{A+5}, 32, v{R}', 's_and_b32 s3, s29, 1', 's_lshl_b32 s31, s3, 5', f'v_xor_b32 v{A+6}, s31, v{R}',
              f'v_cmp_eq_u32 s[58:59], 0, v{u}', f'v_and_b32 v{u}, 16, v0', f'v_cmp_eq_u32 s[46:47], 0, v{u}']
        L += ['s_lshr_b32 s31, s29, 1', f's_mul_i32 s57, s31, {KSTR}', f's_add_u32 s57, s57, {L_K}', 's_lshl_b32 s3, s3, 8', 's_sub_u32 s3, s57, s3',
              f'v_and_b32 v{A+9}, 255, v7', f'v_sub_u32 v{A+9}, s3, v{A+9}', f'v_lshrrev_b32 v{A+10}, 4, v0',
              f'v_lshlrev_b32 v{A+11}, 2, v{A+10}', f'v_sub_u32 v{A+7}, v{A+9}, v{A+11}', f'v_lshlrev_b32 v{A+11}, 9, v{A+10}', f'v_sub_u32 v{A+14}, v{A+9}, v{A+11}',
              f'v_lshrrev_b32 v{A+11}, 5, v0', f'v_lshlrev_b32 v{A+11}, 9, v{A+11}', f'v_sub_u32 v{A+8}, v{A+9}, v{A+11}', f'v_bfe_u32 v{A+11}, v0, 4, 1', f'v_lshlrev_b32 v{A+11}, 3, v{A+11}', f'v_sub_u32 v{A+8}, v{A+8}, v{A+11}',
              f'v_min_u32 v{A+9}, 39, v0', f'v_lshl_add_u32 v{A+9}, v{A+9}, 4, s57'] + [f'v_mov_b32 v{A+10+i}, 0' for i in range(4)]
        L.append((f'ds_write_b128 v{A+9}, {vr(A+10,4)} offset:4096', 'kt'))
        return L
    def kgen(self):
        a = self.a; P = self.PR; A = 216
        E1, E8, E64, E256, Cc, E2 = 128, 130, 132, 134, 136, 138
        t = 140
        Lhi = f32(LOG2E); Llo = LOG2E - Lhi
        def exp_acc(d, x, t0, t1):
            return [f'v_mul_f32 v{t0}, s40, v{x}', f'v_fma_f32 v{t1}, v{x}, s40, -v{t0}', f'v_fma_f32 v{t1}, v{x}, s41, v{t1}',
                    f'v_exp_f32 v{t0}, v{t0}', f'v_mul_f32 v{t1}, s42, v{t1}', f'v_fma_f32 v{d}, v{t0}, v{t1}, v{t0}']
        L = [f's_mov_b32 s40, {fbits(Lhi)}', f's_mov_b32 s41, {fbits(Llo)}', f's_mov_b32 s42, {fbits(math.log(2))}',
             's_lshr_b32 s31, s29, 1', 's_lshl_b32 s31, s31, 4', lambda: a.waitall(lg=False), lambda: self.g.stamp(17), f'v_lshrrev_b32 v{P+4}, s31, v{P+4}']
        for i in range(5): L.append(f'v_lshlrev_b32 v{P+i}, 16, v{P+i}')
        for x, y in zip(exp_acc(P+4, P+4, t, t+1), exp_acc(P, P, t+2, t+3)): L += [x, y]
        L += [f'v_cvt_pk_bf16_f32 v{P+4}, v{P}, v{P+4}', f'v_lshlrev_b32 v{P}, 16, v{P+4}', f'v_and_b32 v{P+4}, s33, v{P+4}']
        for i in range(4): L.append(f'v_mul_f32 v{P+i}, v{P+i}, v{P+4}')
        L += [f'v_mul_f32 v{t}, {fbits(-LOG2E)}, v{P}', f'v_mul_f32 v{t+4}, 0.15915494, v{P+1}', f'v_add_f32 v{Cc}, v{P+2}, v{P+2}', f'v_add_f32 v{Cc+1}, v{P+3}, v{P+3}']
        for k, p in enumerate([8.0, 64.0, 256.0]): L += [f'v_mul_f32 v{t+1+k}, {fbits(p)}, v{t}', f'v_mul_f32 v{t+5+k}, {fbits(p)}, v{t+4}']
        for k in range(4): L += [f'v_exp_f32 v{t+k}, v{t+k}', f'v_fract_f32 v{t+4+k}, v{t+4+k}']
        for k in range(4): L += [f'v_cos_f32 v{E1+2*k}, v{t+4+k}', f'v_sin_f32 v{E1+1+2*k}, v{t+4+k}']
        for k in range(4): L += [f'v_mul_f32 v{E1+2*k}, v{t+k}, v{E1+2*k}', f'v_mul_f32 v{E1+1+2*k}, v{t+k}, v{E1+1+2*k}']
        fk = lambda i: (lambda: self.g.stamp(i, True) if self.g.opt.get('fine') == 'kg' else None)
        L.append(fk(3))
        O = 140
        def cm(jobs):
            R = []
            for d, x, y in jobs: R.append(f'v_pk_mul_f32 {vr(d,2)}, {vr(x,2)}, {vr(y,2)} op_sel_hi:[1,0]')
            for d, x, y in jobs: R.append(f'v_pk_fma_f32 {vr(d,2)}, {vr(x,2)}, {vr(y,2)}, {vr(d,2)} op_sel:[1,1,0] op_sel_hi:[0,1,1] neg_lo:[1,0,0]')
            return R
        cnt = [0]
        def pack(vals, blk, plane, neg):
            o = O + 8 * (cnt[0] & 1); cnt[0] += 1
            R = []
            for i in range(4): R.append(f'v_cvt_pk_bf16_f32 v{o+i}, v{vals[2*i]}, v{vals[2*i+1]}')
            R.append((f'ds_write_b128 v{A+blk}, {vr(o,4)} offset:{plane*4096}', 'kt'))
            s = '-' if neg else ''
            for i in range(4): R.append(f'v_cvt_pk_bf16_f32 v{o+4+i}, {s}v{vals[2*i]+1}, {s}v{vals[2*i+1]+1}')
            R.append((f'ds_write_b128 v{A+blk}, {vr(o+4,4)} offset:{plane*4096+4096}', 'kt'))
            return R
        B = [156 + 2*i for i in range(26)]
        fa = B[0:8]; fb = B[8:16]; g = [Cc] + B[16:24]
        fa0 = [fa[0], E8] + fa[2:]
        L += [f'v_mov_b32 v{fa[0]}, 1.0', f'v_mov_b32 v{fa[0]+1}, 0']
        L += cm([(fa[2], E8, E8), (g[1], Cc, E1), (E2, E1, E1), (g[8], Cc, E8)])
        L += cm([(fa[3], fa[2], E8), (fa[4], fa[2], fa[2]), (g[2], Cc, E2), (g[3], g[1], E2)])
        L += cm([(fa[5], fa[4], E8), (fa[6], fa[4], fa[2]), (fa[7], fa[4], fa[3]), (g[4], g[2], E2), (g[5], g[3], E2)])
        L += pack(fa0, 0, 2, False)
        fb0 = [E64] + fb[1:]
        L += cm([(g[6], g[4], E2), (g[7], g[5], E2)] + [(fb[i], fa0[i], E64) for i in range(1, 8)])
        L += cm([(fa[i], fb0[i], E64) for i in range(8)])
        L += pack(fb0, 1, 2, False)
        L += cm([(fb[i], fa[i], E64) for i in range(8)])
        L += pack(fa, 2, 2, False)
        h0, h2, h4, h6, h8, i0, i4, i8 = B[0:8]
        j0, j4, j8, k0, k8, l0, l8 = B[8:15]
        L += cm([(h0, g[0], E256), (h2, g[2], E256), (h4, g[4], E256), (h6, g[6], E256), (h8, g[8], E256), (E2, E256, E256)])
        L += pack(fb, 3, 2, False)
        L += cm([(i0, g[0], E2), (i4, g[4], E2), (i8, g[8], E2), (j0, h0, E2), (j4, h4, E2), (j8, h8, E2)])
        L += pack([g[0], g[1], h0, h0, g[2], g[3], h2, h4], 0, 0, True)
        m0, m8, n0, n8 = g[1], g[2], g[3], B[15]
        L += cm([(k0, i0, E2), (k8, i8, E2), (l0, j0, E2), (l8, j8, E2)])
        L += pack([g[4], g[5], h4, h4, g[6], g[7], h6, h8], 1, 0, True)
        L += cm([(m0, k0, E2), (m8, k8, E2), (n0, l0, E2), (n8, l8, E2)])
        L += pack([i0, i4, k0, k8, i4, i8, l0, l8], 2, 0, True)
        L += pack([j0, j4, m0, m8, j4, j8, n0, n8], 3, 0, True)
        L.append(fk(4))
        L.append(BAR)
        L.append(fk(5))
        D = 128; FR = 136
        def rd(j):
            o = 16384 * (j // 4) + 1024 * (j % 4); b = FR + 12 * (j % 5)
            return [(f'ds_read_b64_tr_b16 {vr(b+4*k+2*p,2)}, v{A+(6,4,5)[k]} offset:{o + 4096*p + (8192 if k == 0 else 0)}', f'kr{j}') for k in range(3) for p in range(2)]
        for j in range(2): L += rd(j)
        for j in range(8):
            b = FR + 12 * (j % 5); nx = rd(j+2) if j + 2 < 8 else []
            L += nx[:3]
            L.append(lambda j=j: a.waitlg(f'kr{j}'))
            L.append(f'v_mfma_f32_16x16x32_bf16 {vr(D,4)}, {vr(b+4,4)}, {vr(b,4)}, {"0" if j == 0 else vr(D,4)}')
            L += nx[3:]
            L.append(f'v_mfma_f32_16x16x32_bf16 {vr(D+4,4)}, {vr(b+8,4)}, {vr(b,4)}, {"0" if j == 0 else vr(D+4,4)}')
        L.append(fk(6))
        O = 196
        L += [f'v_cvt_pk_bf16_f32 v{O}, v{D+1}, v{D}', f'v_cvt_pk_bf16_f32 v{O+1}, v{D+3}, v{D+2}',
              f'v_cndmask_b32 v{O+2}, v{D+5}, v{D+4}, s[46:47]', f'v_cndmask_b32 v{O+5}, v{D+7}, v{D+6}, s[58:59]',
              f'v_cvt_pk_bf16_f32 v{O+4}, v{D+7}, v{D+7}', f'v_cvt_pk_bf16_f32 v{O+5}, v{D+7}, v{O+5}', f'v_cvt_pk_bf16_f32 v{O+6}, v{D+6}, v{D+6}', f'v_cvt_pk_bf16_f32 v{O+7}, v{D+6}, v{D+6}',
              (f'ds_write_b128 v{A+14}, {vr(O+4,4)} offset:{4080-2048}', 'kw'),
              f'v_cvt_pk_bf16_f32 v{O+2}, v{D+5}, v{O+2}', f'v_cvt_pk_bf16_f32 v{O+3}, v{D+4}, v{D+4}',
              (f'ds_write_b64 v{A+8}, {vr(O+2,2)} offset:{4088-1024}', 'kw'),
              (f'ds_write_b32 v{A+7}, v{O} offset:4092', 'kw'), (f'ds_write_b32 v{A+7}, v{O+1} offset:{4092-512}', 'kw')]
        return L
    UA = 13; KA_ = 15
    def ubuild(self, T=244, R=232, O=200):
        a = self.a
        L = ['s_mov_b32 s44, 0x05040100', 's_mov_b32 s45, 0x07060302',
             's_lshl_b32 s31, s29, 11', f's_add_u32 s31, s31, {L_RAW}', f'v_lshl_add_u32 v{T+3}, v0, 5, s31']
        L += [f'v_mov_b32 v{T+4+k}, 0' for k in range(4)]
        L += ['s_lshr_b32 s31, s29, 1', f's_mul_i32 s46, s31, {UGRP}', f's_add_u32 s46, s46, {L_U}', 's_and_b32 s47, s29, 1', 's_lshl_b32 s3, s47, 9',
              f'v_and_b32 v{T}, 3, v0', f'v_mul_u32_u24 v{T}, {USTR}, v{T}', f'v_bfe_u32 v{T+2}, v0, 2, 2', f'v_lshl_add_u32 v{T}, v{T+2}, 7, v{T}',
              f'v_and_b32 v{T+2}, 48, v0', f'v_add3_u32 v{self.UA}, v{T}, v{T+2}, s46',
              's_sub_u32 s31, s57, s3', 's_add_u32 s31, s31, 632', f'v_and_b32 v{T}, 15, v0', f'v_lshlrev_b32 v{T}, 3, v{T}', f'v_sub_u32 v{T}, v{T+2}, v{T}', f'v_add_u32 v{self.KA_}, s31, v{T}']
        L += [f'v_lshrrev_b32 v{T+2}, 5, v0', f'v_mul_u32_u24 v{T+2}, {USTR}, v{T+2}', f'v_and_b32 v{T}, 31, v0', f'v_min_u32 v{T}, 23, v{T}',
              f's_mul_i32 s31, s47, {2*USTR}', 's_add_u32 s31, s31, s46', f'v_lshl_add_u32 v{T}, v{T}, 4, v{T+2}', f'v_add_u32 v{T}, s31, v{T}']
        L += ['s_lshl_b32 s31, s29, 10', f's_add_u32 s31, s31, {L_U + 384}', f'v_add_u32 v{T+1}, s31, v7',
              's_cmp_eq_u32 s29, 0', 's_cselect_b32 s31, 0, -1', f'v_cmp_eq_u32 s[58:59], s31, v0']
        L.append(BAR)
        for k in range(3): L.append((f'ds_read_b128 {vr(R+4*k,4)}, v{T+3} offset:{16*k}', 'rr'))
        L.append((f'ds_write_b128 v{T}, {vr(T+4,4)}', 'uw'))
        L.append(lambda: a.waitlg('rr'))
        for k in range(1, 4): L.append(f'v_cndmask_b32 v{R+k}, v{R+k}, v{T+4}, s[58:59]')
        for dl in range(2):
            for e in range(4):
                d = O + 4 * (4*dl + e)
                for k in range(4): L.append(f'v_perm_b32 v{d+k}, v{R+4+2*k+e-2}, v{R+4+2*k+e-3}, s{44+dl}')
                L.append((f'ds_write_b128 v{T+1}, {vr(d,4)} offset:{dl*UGRP+e*USTR}', 'uw'))
        L.append(BAR)
        return L
    def conv(self):
        a = self.a; CA = self.CA
        FB = [192, 224]
        def reads(n):
            r, par = divmod(n, 2)
            L = []
            for i in range(4):
                kk = 3 - i
                pp = 2*kk + 1 - par
                if i == 0: L.append((f'ds_read_b128 {vr(FB[n&1],4)}, v{self.UA} offset:{512*par+64*r}', f't{n}_0'))
                for h in range(2): L.append((f'ds_read_b64 {vr(FB[n&1]+16+4*kk+2*h,2)}, v{self.KA_} offset:{3584 - 512*pp + 64*r + 8*h}', f'k{n}_{kk}'))
            for i in range(1, 4): L.append((f'ds_read_b128 {vr(FB[n&1]+4*i,4)}, v{self.UA} offset:{512*(2*i+par)+64*r}', f't{n}_{i}'))
            return L
        G_ = []
        for n in range(16):
            nx = reads(n+1) if n < 15 else []
            m = 0
            for i in range(4):
                for kk in range(3 - i, -1, -1):
                    A = i + kk
                    tags = [f't{n}_{i}', f'k{n}_{kk}']
                    c = '0' if (n == 0 and i == 0) else vr(CA+4*A, 4)
                    g = [lambda tags=tags: a.waitlg(tags), f'v_mfma_f32_16x16x32_bf16 {vr(CA+4*A,4)}, {vr(FB[n&1]+4*i,4)}, {vr(FB[n&1]+16+4*kk,4)}, {c}']
                    k = 2 if m < 4 else (1 if m < 8 else 0)
                    g += nx[:k]; nx = nx[k:]; m += 1
                    G_.append(g)
            assert not nx
        return reads(0), G_
    def finish(self):
        a = self.a; CA = self.CA; R = 192; T = 224
        L = ['s_and_b32 s3, s29, 1', 's_lshl_b32 s31, s3, 10', f's_add_u32 s31, s31, {L_RAW+16}', f'v_add_u32 v{T}, s31, v7']
        for k in range(4): L.append((f'ds_read_b128 {vr(R+4*k,4)}, v{T} offset:{2048*k}', f'ur{k}'))
        L += ['s_lshr_b32 s31, s29, 1', 's_lshl_b32 s55, s2, 1', 's_add_u32 s55, s55, s31', 's_lshl_b32 s3, s3, 9', 's_lshl_b32 s56, s55, 12', 's_add_u32 s56, s56, s3', f's_add_u32 s56, s56, {WS_ST}',
              's_add_u32 s55, s55, s3', 's_lshl_b32 s55, s55, 7', f's_add_u32 s55, s55, {FS}',
              's_cmp_eq_u32 s31, 0', 's_cselect_b32 s3, 0x01000c0c, 0x03020c0c'.replace(', 0x03020c0c', ', s45x'), f'v_lshlrev_b32 v{T+1}, 3, v0']
        L[-2:-1] = ['s_mov_b32 s3, 0x03020c0c', 's_cselect_b32 s3, 0x01000c0c, s3']
        L.append(f'v_perm_b32 v{T+2}, v{self.DS}, v{self.DS}, s3')
        for k in range(4):
            L.append(lambda k=k: a.waitlg(f'ur{k}'))
            for j in range(4): L.append(f'v_perm_b32 v{R+4*k+j}, v{R+4*k+j}, v{R+4*k+j}, s3')
            for j in range(4): L.append(f'v_fmac_f32 v{CA+4*k+j}, v{R+4*k+j}, v{T+2}')
            for j in range(2): L.append(f'v_cvt_pk_bf16_f32 v{T+4+2*k+j}, v{CA+4*k+2*j}, v{CA+4*k+2*j+1}')
            L.append((f'buffer_store_dwordx2 {vr(T+4+2*k,2)}, v{T+1}, s[12:15], s56 offen offset:{1024*k} sc1', 'sst'))
        return L, self.g.setflag('s55', T+3)

def emit_plain(a, L):
    n = 0
    for x in L:
        if x is BAR:
            a.waitall(vm=False); a('s_barrier'); n += 1
        else: a.emit([x])
    return n


def sizes_of(lines):
    import subprocess, tempfile, os
    d = tempfile.mkdtemp()
    open(d + '/t.s', 'w').write('.amdgcn_target "amdgcn-amd-amdhsa--gfx950"\n' + '\n'.join(lines) + '\n')
    r = subprocess.run(['llvm-mc', '-triple=amdgcn-amd-amdhsa', '-mcpu=gfx950', '-show-encoding', d + '/t.s'], capture_output=True, text=True)
    assert r.returncode == 0, r.stderr[:2000]
    enc = [len(l.split('encoding: [')[1].split(']')[0].split(',')) for l in r.stdout.split('\n') if 'encoding: [' in l]
    idx = [i for i, l in enumerate(lines) if Ins(l).is_ins]
    assert len(enc) == len(idx), (len(enc), len(idx))
    return dict(zip(idx, enc))

def finalize(a, name, opt):
    L, _ = pad_hazards([x for x in a.L], opt.get('verbose'))
    warm = [i for i, x in enumerate(L) if x == '@WARM@']
    base = [x if x != '@WARM@' else '' for x in L]
    sz = sizes_of(base)
    start = base.index('.p2align 12')
    out = base[:start + 1]; addr = 0; pads = []
    stop = base.index(f'{name}_tcomp:')
    n = len(base); i = start + 1
    E64 = ('v_add_f32', 'v_mul_f32', 'v_sub_f32', 'v_lshlrev_b32', 'v_and_b32', 'v_xor_b32', 'v_or_b32', 'v_mov_b32', 'v_exp_f32', 'v_rcp_f32', 'v_add_u32', 'v_max_f32',
           'v_lshrrev_b32', 'v_sqrt_f32', 'v_fmac_f32', 'v_max_u32', 'v_min_u32', 'v_sin_f32', 'v_cos_f32', 'v_fract_f32')
    while i < n:
        ln = base[i]
        if i in sz:
            if addr >= 4096 * (len(pads) + 1) and i < stop and not opt.get('nopad'):
                lb = f'{name}_pad{len(pads)}'; pads.append(lb)
                out.append(f'{lb}:'); out.append(f'@PAD{len(pads)-1}@'); addr += 4
            s = sz[i]
            if s == 4 and not opt.get('noalign') and (addr + 4) % 8 == 4:
                j = i + 1; run = 0; mf = 0
                while j < n and (j not in sz or sz[j] == 8):
                    if j in sz:
                        run += 1; mf += base[j].startswith('v_mfma')
                    j += 1
                mn = ln.split()[0]
                if run >= 3 and mn in E64:
                    ln = ln.replace(mn, mn + '_e64', 1); s = 8
                elif run >= 10 and mf == 0:
                    out.append('s_nop 0'); addr += 4
            addr += s
        out.append(ln); i += 1
    res = []; wi = 0
    for k, x in enumerate(out):
        if x.startswith('@PAD'):
            p = int(x[4:-1])
            res.append(f's_cbranch_execz {name + "_warmret0" if p < 2 else pads[p+2] if p + 2 < len(pads) else name + "_warmret1"}')
        elif k in warm and pads:
            res += ['s_mov_b64 exec, 0', 's_cmp_eq_u32 s18, 0', f's_cbranch_scc1 {pads[2*wi]}', f's_branch {pads[2*wi+1]}', f'{name}_warmret{wi}:', 's_mov_b64 exec, -1']
            wi += 1
        else: res.append(x)
    return '\n'.join(res) + '\n'

def fused(name, opt):
    g = G(name, opt); a = g.a; ssm = SSM(g); stamp = g.stamp
    nb = {'gl': 0, 'gc': 0, 'tl': 0, 'tc': 0}
    NR = opt.get('nr', 4)
    rp = opt.get('rpat', 'RS')
    pat = ''
    while len(pat) < 32:
        ch = rp[len(pat) % len(rp)]
        pat += ch if pat.count('R') < NR else 'S'
    RPOS = [k for k in range(32) if pat[k] == 'R']; SPOS = [k for k in range(32) if pat[k] == 'S']
    MEM = {k: r for r, k in enumerate(RPOS)}; MEM.update({k: NR + s for s, k in enumerate(SPOS)})
    SIDX = {k: s for s, k in enumerate(SPOS)}
    assert len(SPOS) % 4 == 0 and SPOS[-4:] == [28, 29, 30, 31]
    W3 = [(0, 29), (8192, 29), (L_Z, 29), (16384, 30), (24576, 30), (L_Z + 8192, 30), (32768, 31), (40960, 31), (L_Z + 16384, 31),
          (147456, 31), (155648, 31), (49152, 32), (57344, 32), (L_Z + 24576, 32)]
    W3LOC = [x[0] for x in W3]
    kernel_begin(a, name)
    lab = lambda s: f'{name}_{s}'
    a(f's_cmp_ge_u32 s2, 256\ns_cbranch_scc1 {lab("done")}')
    if opt.get('prof'): a('s_memrealtime s[62:63]\ns_memtime s[66:67]')
    a(f's_load_dwordx2 s[4:5], s[0:1], {KA["u"]}\ns_load_dwordx2 s[12:13], s[0:1], {KA["ws"]}')
    a('''v_lshrrev_b32 v1, 6, v0
s_and_b32 s24, s2, 7
s_bfe_u32 s25, s2, 0x20003
v_readfirstlane_b32 s29, v1
s_lshr_b32 s26, s24, 1
s_lshl_b32 s26, s26, 2
s_add_u32 s26, s26, s25
s_lshr_b32 s27, s2, 5
s_and_b32 s30, s24, 1
s_mul_i32 s28, s30, 7
s_add_u32 s28, s28, s27
v_and_b32 v0, 63, v0''')
    a(f's_cmp_ge_u32 s29, 4\ns_cbranch_scc1 {lab("help")}')
    a(f's_load_dwordx8 s[40:47], s[0:1], {KA["logA"]}\ns_load_dwordx4 s[48:51], s[0:1], {KA["logdt"]}')
    a(f's_load_dwordx2 s[18:19], s[0:1], {KA["bsp"]}\ns_load_dwordx2 s[20:21], s[0:1], {KA["out"]}')
    a.emit(ssm.param_addr())
    a('s_waitcnt lgkmcnt(0)')
    tagload = f's_add_u32 s16, s12, {WS_EPOCH}\ns_addc_u32 s17, s13, 0\ns_load_dword s24, s[16:17], 0'
    tagmake = 's_waitcnt lgkmcnt(0)\ns_mul_i32 s24, s24, 0x19660d\ns_add_u32 s24, s24, 0x3c6ef35f'
    a.emit(ssm.param_loads())
    a(tagload)
    a(f's_cmp_eq_u32 s27, 7\ns_cbranch_scc1 {lab("tcomp")}')
    a(f's_branch {lab("comp")}')
    a(f'{lab("help")}:')
    a(f's_load_dwordx2 s[8:9], s[0:1], {KA["win"]}\ns_load_dwordx2 s[20:21], s[0:1], {KA["wsp"]}\ns_load_dwordx2 s[36:37], s[0:1], {KA["wout"]}')
    a('s_and_b32 s18, s29, 1\ns_lshl_b32 s19, s18, 12')
    srdc = f's_mov_b32 s14, {hex(WS_BYTES)}\ns_mov_b32 s15, 0x20000\ns_mov_b32 s6, 0x200000\ns_mov_b32 s7, 0x20000'
    a(srdc)
    if not opt.get('nocpf'):
        a(f's_getpc_b64 s[56:57]\n{lab("pc")}:\ns_lshr_b32 s31, s2, 2\ns_and_b32 s31, s31, 62\ns_add_u32 s31, s31, s18\nv_and_b32 v1, 7, v0\nv_lshlrev_b32 v1, 6, v1\nv_add_lshl_u32 v1, v1, s31, 7\nv_min_u32 v1, {lab("done")}-{lab("pc")}, v1')
        a('global_load_dword v31, v1, s[56:57]')
    a(f's_cmp_eq_u32 s27, 7\ns_cbranch_scc1 {lab("thelp")}')

    def rot3(r):
        sm, sn = opt.get('sm3', 0), opt.get('sn3', 0)
        a(f's_mul_i32 s{r}, s25, {sm}\ns_mul_i32 s31, s27, {sn}\ns_add_u32 s{r}, s{r}, s31\ns_lshr_b32 s{r}, s{r}, 4\ns_sub_u32 s31, s{r}, 14\ns_cmp_ge_u32 s{r}, 14\ns_cselect_b32 s{r}, s31, s{r}')
    def late_loader_setup():
        a(f's_mov_b32 s22, 0x800000\ns_mov_b32 s23, 0x20000\ns_mov_b32 s38, {896*1024}\ns_mov_b32 s39, 0x20000')
        a('s_and_b32 s21, s21, 0xffff\ns_and_b32 s37, s37, 0xffff\ns_and_b32 s13, s13, 0xffff')
        a('v_lshl_add_u32 v14, v0, 4, s19\nv_lshlrev_b32 v15, 7, v0')
        a('s_lshl_b32 s31, s27, 7\ns_lshl_b32 s3, s18, 15\ns_add_u32 s31, s31, s3'); troffs(a, 16, 1024, 's31')
        a('s_lshl_b32 s32, s26, 1\ns_add_u32 s32, s32, s30\ns_lshl_b32 s3, s32, 6'); rowoffs(a, 20, 's3', 10, 's31')
        rot3(60)
        a(f's_lshl_b32 s35, s2, 13')
        a(f's_lshr_b32 s31, s2, 7\ns_lshl_b32 s31, s31, 13\ns_add_u32 s59, s31, s19\ns_add_u32 s59, s59, {FX}\nv_and_b32 v32, 0xfff, v15')
        a(f"""v_min_u32 v33, {3*128}, v15
s_lshl_b32 s31, s26, 9
s_add_u32 s31, s31, {FH}
v_add_u32 v33, s31, v33
s_lshl_b32 s31, s27, 13
s_bfe_u32 s3, s26, 0x10001
s_lshl_b32 s3, s3, 16
s_add_u32 s31, s31, s3
s_add_u32 s31, s31, s19
s_add_u32 s61, s31, {FS}
v_mov_b32 v36, -1
v_mov_b32 v37, -1
v_mov_b32 v38, -1
v_mov_b32 v39, -1
v_mov_b32 v34, 0
v_lshlrev_b32 v44, 2, v0
s_lshl_b32 s31, s27, 18
s_lshl_b32 s3, s18, 17
s_add_u32 s31, s31, s3
s_lshl_b32 s3, s32, 7
s_add_u32 s31, s31, s3
s_add_u32 s31, s31, {WS_ST}""")
        troffs(a, 40, 4096, 's31')
    def adv(r): return [f's_add_u32 s{r}, s{r}, 1', f's_cmp_eq_u32 s{r}, 14', f's_cselect_b32 s{r}, 0, s{r}']
    def w3(j, need=None): return grp(W3LOC[j], ['s_lshl_b32 s56, s60, 16'] + adv(60), 16, 's[36:39]', 's56', need=need)
    def x3(need=None): return grp(L_X3, None, 20, 's[4:7]', '0', need=need)
    w3m = opt.get('w3m', 8)
    fsload = 'buffer_load_dword v27, v32, s[12:15], s61 offen sc1'
    def s3tail():
        stream_emit(a, sum([w3(j) for j in range(w3m, 14)], []) + x3(), 0, 0)
        lspin('s61', 'v32', True)
        stream_emit(a, grp(L_S3, None, 40, 's[12:15]', '0', fl='sc1'), 0, 0)
        a('s_waitcnt vmcnt(8)\ns_barrier')
        a('s_waitcnt vmcnt(0)')
        stamp(15)
    def rawg(cb=None): return grp(L_RAW + 16, [f's_add_u32 s31, s35, {WS_XNT}'], 14, 's[12:15]', 's31', True, cb, None, 'sc1')
    def lspin(soff, voff, first=False):
        lp = a.newlab('lsp'); lo = a.newlab('lspo')
        a(f's_mov_b32 s58, {SPIN}')
        if first: a(f's_branch {lp}c')
        a(f'{lp}:')
        a.L.append(f'buffer_load_dword v27, {voff}, s[12:15], {soff} offen sc1'); a.L.append('s_waitcnt vmcnt(0)')
        a(f'{lp}c:\nv_cmp_ne_u32 vcc, s24, v27\ns_cbranch_vccz {lo}\ns_sub_u32 s58, s58, 1\ns_cmp_lg_u32 s58, 0\ns_cbranch_scc1 {lp}\n{lo}:')
    def lflag(soff):
        a('s_mov_b32 exec_hi, 0'); a.L.append(f'buffer_store_dword v35, v44, s[12:15], {soff} offen sc1'); a('s_mov_b64 exec, -1')
    def paced(items, thin):
        for i in range(0, len(items), 4):
            stream_emit(a, items[i:i+4], 0, 0)
            if thin < 60: a(f's_waitcnt vmcnt({thin})')
    ft = opt.get('ft', ''); gs = opt.get('gs', 2); lg = gs.bit_length() - 1
    def k0calc(r, with_c):
        sm, sn = opt.get('sm', 0), opt.get('sn', 0)
        a(f's_mul_i32 s{r}, s25, {sm}')
        if with_c: a(f's_mul_i32 s3, s27, {sn}\ns_add_u32 s{r}, s{r}, s3')
        a(f's_lshr_b32 s{r}, s{r}, 4\ns_and_b32 s{r}, s{r}, 31')
    def wtouch(groups, other, pace):
        for gi in groups:
            a(f's_xor_b32 s31, s30, {other}\ns_add_u32 s31, s31, {2*gi}\ns_lshl_b32 s31, s31, {lg}\ns_add_u32 s31, s31, s45\ns_and_b32 s31, s31, 31\ns_lshl_b32 s31, s31, 7')
            for i in range(gs):
                a.L.append(f'buffer_load_dword v30, v29, s[20:23], s31 offen {ft}')
                if i + 1 < gs: a(f's_add_u32 s31, s31, {(64 // gs) * 4096}')
                if pace is not None: a(f's_waitcnt vmcnt({pace})')
    def count_bars(start): return sum(1 for x in a.L[start:] if x.strip() == 's_barrier')

    st0 = len(a.L)
    XO = [131072, 49152, 65536, 81920, 98304, 114688, 131072, 0]
    a('s_lshl_b32 s34, s25, 1\ns_add_u32 s34, s34, s27\ns_and_b32 s34, s34, 7\ns_lshl_b32 s33, s26, 7\ns_lshl_b32 s3, s18, 5\ns_add_u32 s33, s33, s3')
    rowoffs(a, 2, 's33', 10)
    a(f's_lshl_b32 s31, s28, 7\ns_mul_i32 s3, s18, {32*3584}\ns_add_u32 s31, s31, s3'); troffs(a, 6, 3584, 's31')
    def so(c): a(f's_add_u32 s31, s34, {c}\ns_and_b32 s31, s31, 7\ns_lshl_b32 s{40+c}, s31, 7\ns_mul_i32 s{48+c}, s31, {64*3584}')
    for c in range(4): so(c)
    a(f's_mov_b32 s10, {512*3584}\ns_mov_b32 s11, 0x20000')
    a('s_waitcnt lgkmcnt(0)')
    a(tagload)
    a('s_and_b32 s5, s5, 0xffff\ns_and_b32 s9, s9, 0xffff')
    f1 = opt.get('f1', '')
    def wg(p, cb=None): return grp(p*8192, [f's_add_u32 s31, s{48+p%8}, {1792 if p < 8 else 0}'], 6, 's[8:11]', 's31', cb=cb, fl=f1)
    def xg(c, need=None):
        return sum([grp(XO[c] + k*8192, [f's_add_u32 s31, s{40+c}, {k*65536}'], 2, 's[4:7]', 's31', cb=c+1, need=need if k == 0 else None, fl=f1) for k in range(2)], [])
    we = opt.get('we', 3)
    items = xg(0) + wg(0, 1) + wg(1, 2) + xg(1) + sum([wg(p, p+1) for p in range(2, we + 1)], [])
    for c in range(2, 8):
        items += xg(c, 1)
        if c > we: items += wg(c, c+1)
    ncs = opt.get('ncs', 4)
    for p in range(8, 8 + ncs): items += wg(p)
    early = opt.get('early', 2)
    def setup2():
        for c in range(4, 8): so(c)
        late_loader_setup()
        rowoffs(a, 10, 's33', 12)
        k0calc(57, True)
    if early >= 1: setup2()
    if early >= 2: a('@WARM@')
    def hook1(b, k):
        if b == 0 and k == -1:
            if early < 1: setup2()
            if early < 2: a('@WARM@')
            a(tagmake + '\nv_mov_b32 v35, s24')
        if k == 1 and b in (1, 8): stamp({1: 1, 8: 2}[b])
    stream_emit(a, items, 9, opt.get('d1', 16), hook1)
    a(f's_mov_b32 s40, s57\ns_lshl_b32 s34, s28, 18\ns_lshl_b32 s31, s28, 13\ns_lshl_b32 s3, s18, 7\ns_add_u32 s44, s31, s3\ns_add_u32 s44, s44, {FZ}\nv_lshlrev_b32 v28, 1, v32')
    a('s_barrier')
    stream_emit(a, sum([wg(p) for p in range(8 + ncs, 16)], []), 0, 0)
    fw = opt.get('fw', '')
    def wst(slot, half, cb=None, need=None):
        su = ['s_lshl_b32 s42, s40, 7', 's_add_u32 s40, s40, 1', 's_and_b32 s40, s40, 31'] if half == 0 else ['s_add_u32 s42, s42, 0x40000']
        return grp(slot * 16384 + half*8192, su, 10, 's[20:23]', 's42', cb=cb, need=need, fl=fw)
    def wfull(slot): return wst(slot, 0) + wst(slot, 1)
    def zst(k, cb=None, need=None):
        return grp(L_Z + (k % 4) * 8192, [f's_add_u32 s43, s57, {MEM[k]}', 's_and_b32 s43, s43, 31', 's_lshl_b32 s43, s43, 13', 's_add_u32 s43, s43, s34'], 14, 's[12:15]', 's43', True, cb, need, 'sc1')
    pre1 = opt.get('pre1', 2); thin = opt.get('thin', 12)
    for k in range(pre1): paced(wfull(k), thin)
    a(f's_waitcnt vmcnt({8*pre1})\ns_barrier')
    pre2 = opt.get('pre2', 4)
    for k in range(pre1, pre2): paced(wfull(k), thin)
    a('@WARM@')
    if pre2 < 4:
        a('s_barrier')
        for k in range(pre2, 4): paced(wfull(k), 60)
    stamp(3)
    spre = 4 if NR == 0 else opt.get('spre', 4)
    sp1 = min(spre, opt.get('sp1', 2))
    lspin('s59', 'v32')
    if NR >= 4: a('s_barrier')
    a('s_barrier')
    stream_emit(a, rawg(0) + (sum([wfull(k) for k in range(sp1)], []) if NR >= 4 else []), 1, 64)
    if NR >= 4:
        for k in range(sp1, spre): paced(wfull(k), 60)
    stamp(4)
    lspin('s44', 'v28')
    stamp(5)
    tiles = [(k, 0, lambda k=k: zst(k, k, k - 3 if k >= 4 else None)) for k in range(32)]
    last = -1
    for s in range(spre, len(SPOS)):
        need = SPOS[s-4] + 1 if s >= 4 else None
        for h in range(2):
            key = min(SPOS[s] - 0.5, max((need + 3 if need is not None else 0) - 0.5, last + opt.get('wgap', 10) / 10))
            last = key
            tiles.append((key, s*2 + h + 1, lambda s=s, h=h, need=need: wst(s % 4, h, SPOS[s], need)))
    hc = opt.get('hc', 24)
    tiles.append((hc - 0.9, 0, lambda: [([], 'buffer_load_dword v27, v33, s[12:15], 0 offen sc1', hc, None)]))
    tiles.sort(key=lambda x: (x[0], x[1]))
    items = sum([t[2]() for t in tiles], [])
    w3e = opt.get('w3e', 6)
    for j in range(w3e): items += w3(j, W3[j][1])
    hk = {(0,1): 6, (4,1): 7, (8,1): 8, (16,1): 9, (24,1): 10, (31,1): 11, (16,0): 16, (24,0): 17, (32,1): 12}
    hintb = opt.get('hintb', 33)
    def hook2(b, k):
        if (b, k) in hk: stamp(hk[(b, k)])
        if (b, k) == (hc, 1): lspin('0', 'v33', True)
        if (b, k) == (hintb, 1):
            sk = a.newlab('nohint')
            a(f's_or_b32 s3, s27, s18\ns_cmp_lg_u32 s3, 0\ns_cbranch_scc1 {sk}\ns_lshl_b32 s3, s32, 7\ns_add_u32 s3, s3, {FT}')
            lflag('s3')
            a(f'{sk}:')
    stream_emit(a, items, 33, lambda b: opt.get('d2', 20) if b < 30 else opt.get('d2e', 12), hook2)
    paced(sum([w3(j) for j in range(w3e, w3m)], []), 60)
    a.L.append(fsload)
    stamp(14)
    hook2(33, 1)
    a('s_waitcnt vmcnt(0)')
    hook2(34, 1)
    a('s_barrier')
    stamp(13)
    s3tail()
    nb['gl'] = count_bars(st0)
    g.prof_store()
    a('s_endpgm')

    a(f'{lab("thelp")}:')
    st0 = len(a.L)
    a('v_mov_b32 v36, -1\nv_mov_b32 v37, -1\nv_mov_b32 v38, -1\nv_mov_b32 v39, -1\nv_lshlrev_b32 v14, 4, v0')
    a(f's_lshl_b32 s31, s26, 1\ns_add_u32 s31, s31, s30\ns_lshl_b32 s31, s31, 1\ns_add_u32 s31, s31, s18\ns_lshl_b32 s31, s31, 13\ns_add_u32 s31, s31, {WS_STATS}')
    a('s_waitcnt lgkmcnt(0)')
    a(tagload)
    a('s_and_b32 s5, s5, 0xffff\ns_and_b32 s13, s13, 0xffff')
    for q in range(4): a.L.append(f'buffer_store_dwordx4 v[36:39], v14, s[12:15], s31 offen offset:{1024*q} sc1')
    late_loader_setup()
    k0calc(45, False)
    a(f's_lshl_b32 s31, s26, 7\ns_lshl_b32 s3, s18, 6\ns_add_u32 s31, s31, s3\nv_lshrrev_b32 v29, {lg}, v0\nv_add_u32 v29, s31, v29\nv_lshlrev_b32 v29, 5, v29\nv_and_b32 v1, {gs-1}, v0\nv_add_lshl_u32 v29, v29, v1, 7')
    ng = 16 // gs; tp_ = opt.get('tpace', 2); te = opt.get('te', 4) // gs
    a(tagmake + '\nv_mov_b32 v35, s24')
    a('s_waitcnt vmcnt(0)')
    stamp(1)
    a('s_barrier')
    te = opt.get('te', 0) // gs
    wtouch(range(te), 0, None)
    a('s_barrier')
    tm = opt.get('tm', 2) // gs; tn = opt.get('tn', 10) // gs
    wtouch(range(te, max(te, tm)), 0, None); tm = max(te, tm)
    a('s_barrier')
    wtouch(range(tm, tn), 0, tp_)
    a('s_barrier')
    wtouch(range(tn, ng), 0, tp_)
    stamp(2)
    a('s_barrier')
    cl_ = a.newlab('hclr')
    a(f's_lshl_b32 s41, s32, 1\ns_add_u32 s41, s41, s18\ns_mul_i32 s31, s41, 57344\ns_sub_u32 s31, s31, s19\ns_add_u32 s31, s31, {WS_HF}\ns_mov_b32 s3, 14\n{cl_}:')
    for q in range(4): a.L.append(f'buffer_store_dwordx4 v[36:39], v14, s[12:15], s31 offen offset:{1024*q} sc1')
    a(f's_add_u32 s31, s31, 4096\ns_sub_u32 s3, s3, 1\ns_cmp_lg_u32 s3, 0\ns_cbranch_scc1 {cl_}')
    a(f's_waitcnt vmcnt(0)\ns_lshl_b32 s31, s41, 7\ns_add_u32 s31, s31, {FH}')
    lflag('s31')
    wtouch(range(opt.get('tskip', 16) // gs, ng), 1, tp_)
    stamp(3)
    lspin('s59', 'v32')
    stream_emit(a, rawg(0), 1, 0)
    stamp(5)
    nwo = opt.get('nwo', 14)
    a(f's_lshl_b32 s31, s25, 1\ns_add_u32 s31, s31, s18\ns_mul_i32 s31, s31, {14*8192}')
    for i in range(nwo):
        a.L.append('buffer_load_dword v30, v15, s[36:39], s31 offen')
        a(f's_add_u32 s31, s31, 8192')
    a('s_barrier')
    assert w3m <= 9
    paced(sum([w3(j) for j in range(w3m)], []), 12)
    stamp(6)
    a('s_barrier')
    stamp(12)
    a(f's_lshl_b32 s3, s32, 7\ns_add_u32 s3, s3, {FT}')
    lspin('s3', 'v34')
    a('s_barrier')
    a.L.append(fsload)
    a('s_waitcnt vmcnt(0)\ns_barrier')
    stamp(13)
    s3tail()
    nb['tl'] = count_bars(st0)
    g.prof_store()
    a('s_endpgm')

    a('.p2align 12')
    a(f'{lab("comp")}:')
    g.comp = True
    a.vm = ['prm'] * 6; a.lg = []
    def cprologue():
        a(srdc)
        a('s_mov_b32 s33, 0xffff0000\ns_mov_b32 s34, 0x3f803f80\ns_mov_b32 s22, 0x200000\ns_mov_b32 s23, 0x20000')
        a('s_and_b32 s5, s5, 0xffff\ns_and_b32 s13, s13, 0xffff\ns_and_b32 s21, s21, 0xffff')
        a('v_lshlrev_b32 v7, 4, v0\nv_lshlrev_b32 v6, 2, v0')
    cprologue()
    a(f's_lshl_b32 s35, s26, 2\ns_add_u32 s35, s35, s29\ns_lshl_b32 s31, s35, 13\ns_add_u32 s37, s31, {WS_STATS}\ns_add_u32 s60, s37, 4096\ns_lshl_b32 s3, s28, 8\ns_add_u32 s38, s37, s3')
    a.emit(ssm.kaddr())
    X = 128; A2 = 64; A1 = 96; WF = 32
    XR = A1; ST = A1 + 4; T = A1 + 8; SD = A1 + 16; CC = A1 + 18; NM = A1 + 20; FL = A1 + 22
    WR = 8; SEL = 16; CS = 24; NEG = 28
    a('s_lshl_b32 s32, s29, 12\ns_add_u32 s32, s32, 131072')
    a.emit(rowread_list(1, 2, 's32') + trread_list(3, 2))
    for i in range(4):
        a(f's_add_u32 s31, s29, {i}\ns_and_b32 s31, s31, 3\ns_lshl_b32 s3, s31, 5\nv_xor_b32 v{XR+i}, s3, v1\ns_lshl_b32 s3, s31, 11\nv_add_u32 v{WR+2*i}, s3, v3\nv_xor_b32 v{WR+1+2*i}, 64, v{WR+2*i}')
    a(f'''v_bfe_u32 v1, v0, 4, 1
v_lshlrev_b32 v1, 2, v1
v_and_b32 v2, 15, v0
v_cmp_eq_u32 vcc, v1, v2
v_mov_b32 v3, s34
v_add_u32 v1, 8, v1
v_cndmask_b32 v{SEL}, 0, v3, vcc
v_cmp_eq_u32 vcc, v1, v2
s_lshl_b32 s31, s29, 2
s_add_u32 s31, s31, {L_CS}
v_cndmask_b32 v{SEL+4}, 0, v3, vcc
v_add_u32 v1, s31, v7
v_and_b32 v2, 511, v7
v_add_u32 v2, {L_CS}, v2''')
    for i in range(1, 4): a(f'v_mov_b32 v{SEL+i}, v{SEL}\nv_mov_b32 v{SEL+4+i}, v{SEL+4}')
    a(f's_lshl_b32 s31, s35, 12\ns_lshl_b32 s3, s28, 8')
    a(f's_lshl_b32 s52, s28, 18\ns_add_u32 s52, s52, s31')
    a(f's_lshl_b32 s31, s35, 2\ns_add_u32 s53, s31, s3\ns_lshl_b32 s53, s53, 5\ns_add_u32 s53, s53, {FZ}')
    a(f's_mul_i32 s54, s35, 57344\ns_lshl_b32 s31, s28, 12\ns_add_u32 s54, s54, s31\ns_add_u32 s54, s54, {WS_HF}')
    a(tagmake); a.lg = []
    a(f'{lab("kgen")}:')
    emit_plain(a, ssm.kgen())
    stamp(1)
    a(f's_cmp_eq_u32 s27, 7\ns_cbranch_scc1 {lab("tcomp2")}')
    lg_split = list(a.lg)
    st0 = len(a.L)
    def xreads(c, base, off): return [(f'ds_read_b128 {vr(X+16*c+4*i,4)}, v{base+i} offset:{off}', f'xr{c}') for i in range(4)]
    XB = [131072, 49152, 49152, 49152, 49152, 114688, 114688, 0]
    def gx(c):
        L = []
        if c and XB[c] != XB[c-1]: L += [f'v_add_u32 v{XR+i}, {hex((XB[c] - XB[c-1]) & 0xffffffff)}, v{XR+i}' for i in range(4)]
        return L, xreads(c, XR, XO[c] - XB[c])
    def dots(c, S):
        for i in range(16):
            r = X + 16*c + i
            a(f'v_dot2c_f32_bf16 v{S + 2*(i&1)}, s34, v{r}\nv_dot2c_f32_bf16 v{S + 1 + 2*(i&1)}, v{r}, v{r}')
    def redux(S): return [f'v_add_f32 v{S}, v{S}, v{S+2}', f'v_add_f32 v{S+1}, v{S+1}, v{S+3}', f'v_mov_b32 v{S+2}, v{S}', f'v_mov_b32 v{S+3}, v{S+1}',
             f'v_permlane32_swap_b32 v{S}, v{S+2}', f'v_permlane32_swap_b32 v{S+1}, v{S+3}', f'v_add_f32 v{S}, v{S}, v{S+2}', f'v_add_f32 v{S+1}, v{S+1}, v{S+3}']
    def wreads(t):
        n, i = divmod(t, 4)
        L = []
        for fb in range(2):
            d = WF + 8*i + 4*fb
            L.append((f'ds_read_b64_tr_b16 {vr(d,2)}, v{WR+2*i+fb} offset:{(n%8)*8192}', f'wr{t}'))
            L.append((f'ds_read_b64_tr_b16 {vr(d+2,2)}, v{WR+2*i+fb} offset:{(n%8)*8192+512}', f'wr{t}'))
        return L
    def mfmas(t):
        n, i = divmod(t, 4); acc = A2 if n < 8 else A1; f = t % 32
        L = []
        for fb in range(2):
            c = '0' if f == 0 else vr(acc+16*fb, 16)
            L.append(f'v_mfma_f32_32x32x16_bf16 {vr(acc+16*fb,16)}, {vr(WF+8*i+4*fb,4)}, {vr(X+4*f,4)}, {c}')
        if i == 0:
            cs = [f'v_mfma_f32_16x16x32_bf16 {vr(CS,4)}, {vr(SEL+4*fb,4)}, {vr(WF+4*fb,4)}, {"0" if (f == 0 and fb == 0) else vr(CS,4)}' for fb in range(2)]
            L = ['\n'.join(cs + L[:1]), L[1]]
        return L
    def cs_write(part, T):
        return [f'v_cvt_pk_bf16_f32 v{T}, v{CS}, v{CS}', f'v_lshlrev_b32 v{T}, 16, v{T}', f'v_sub_f32 v{T}, v{CS}, v{T}', f'v_cvt_pk_bf16_f32 v{T}, v{CS}, v{T}',
                (f'ds_write_b32 v1, v{T} offset:{part*1024}', 'csw')]
    def cs_read(part, T):
        return [lambda: a.waitall(vm=False), 's_barrier'] + [(f'ds_read_b128 {vr(T+4*fb,4)}, v2 offset:{part*1024 + 512*fb}', 'csr') for fb in range(2)]
    def cs_apply(acc, T):
        return [lambda: a.waitlg('csr')] + [f'v_mfma_f32_32x32x16_bf16 {vr(acc+16*fb,16)}, {vr(T+4*fb,4)}, {vr(NEG,4)}, {vr(acc+16*fb,16)}' for fb in range(2)]
    def gconst(cc, r): return [f'v_mul_f32 v{cc+1}, {fbits(C0)}, v{r}', f'v_mul_f32 v{cc}, v{r}, v{r}', f'v_mul_f32 v{cc}, v{cc}, v{cc+1}', f'v_mul_f32 v{cc}, {fbits(0.044715)}, v{cc}']
    def halves(S, Q): return [f'v_permlane32_swap_b32 v{S}, v{Q}', f'v_add_f32 v{S}, v{S}, v{Q}', f'v_mov_b32 v{S+1}, v{S}', f'v_permlane32_swap_b32 v{S}, v{S+1}']
    fin1 = halves(ST, ST+2) + ln_list(ST, ST+1, 512, ST+2, NM, 4, SD) + [
        'v_cmp_gt_u32 vcc, 32, v0', f'v_lshrrev_b32 v{NEG}, 16, v{NM}', f'v_or_b32 v{NEG}, v{NEG}, v{NM}', f'v_cndmask_b32 v{NEG}, 0, v{NEG}, vcc'] + \
        [f'v_mov_b32 v{NEG+i}, v{NEG}' for i in range(1, 4)] + gconst(CC, 4)
    sload = f'buffer_load_dwordx4 {vr(ST,4)}, v7, s[12:15], s60 offen offset:3072 sc1'
    a.waitall(vm=False)
    a('s_barrier'); a.emit(gx(0)[1] + wreads(0) + wreads(1) + wreads(2))
    ts = opt.get('ts', 10); tk = opt.get('tk', 29)
    for c in range(8):
        fi = opt.get('fine') == 'p1' and c in (3, 4)
        if fi: stamp(3 + 6*(c-3), True)
        if c < 7:
            pre, xr = gx(c+1)
            last = [] if c == 0 else [xlast]
            fills = {0: last + wreads(4*c+3) + pre + ['s_barrier'], 1: xr[:1] + wreads(4*c+4), 2: xr[1:2] + wreads(4*c+5), 3: xr[2:3] + wreads(4*c+6)}
            xlast = xr[3]
        else:
            fills = {0: [xlast] + wreads(4*c+3), 1: cs_write(0, T), 2: [], 3: cs_read(0, T)}
            n = 32 - tk
            for j in range(n): fills[tk - 28 + j] += fin1[j*len(fin1)//n:(j+1)*len(fin1)//n]
        for i in range(4):
            t = 4*c + i
            if opt.get('fine') == 'p1e' and t >= 19 and t != 22: stamp(3 + t - 19 - (t > 22), True)
            if t == ts: a(sload, 'st1')
            if t == tk:
                a.waitvm('st1'); g.spin([sload], [ST+1, ST+3], FL)
            if opt.get('fine') == 'p1e' and t == tk: stamp(15, True)
            a.waitlg(f'wr{t}')
            a.emit(merge(mfmas(t), fills[i]))
            if fi: stamp(5 + i + 6*(c-3), True)
    stamp(2)
    a.emit(cs_apply(A2, T))
    for i in range(8): a(f'v_add_u32 v{WR+i}, 65536, v{WR+i}')
    a(f'v_and_b32 v{FL}, 15, v0\nv_lshrrev_b32 v{FL+1}, 4, v0\nv_lshlrev_b32 v{FL}, 4, v{FL}\nv_lshl_add_u32 v{FL}, v{FL+1}, 2, v{FL}')
    a.emit(gelu_pk(A2, 32, CC, SD, T))
    AH = 3
    rd = sum([wreads(t) for t in range(32, 32 + AH)], [])
    st = []
    for i in range(16):
        p = A2 + 2*i
        if i == 0: st.append(f'v_pk_mul_f32 {vr(ST+2,2)}, {vr(p,2)}, {vr(p,2)}')
        else: st += [f'v_pk_add_f32 {vr(ST,2)}, {vr(p-2,2) if i == 1 else vr(ST,2)}, {vr(p,2)}', f'v_pk_fma_f32 {vr(ST+2,2)}, {vr(p,2)}, {vr(p,2)}, {vr(ST+2,2)}']
    st += [f'v_add_f32 v{ST}, v{ST}, v{ST+1}', f'v_add_f32 v{ST+2}, v{ST+2}, v{ST+3}']
    a.emit(st)
    a(f'v_permlane32_swap_b32 v{ST}, v{ST+2}')
    a(f'v_add_f32 v3, v{ST}, v{ST+2}\nv_min_u32 v3, 0xfffffffe, v3')
    a(f'buffer_store_dword v3, v{FL}, s[12:15], s38 offen sc1', 'pub')
    stamp(3)
    a('s_barrier')
    a.emit(rd)
    TA = X; P = X + 8; T2 = A2 + 16; U = X + 16; Q = X + 6; RA = A2 + 24
    pl = [f'buffer_load_dwordx4 {vr(P+4*j,4)}, v{7 if j < 3 else TA+7}, s[12:15], s37 offen offset:{1024*j} sc1' for j in range(4)]
    taddr = f"""v_and_b32 v{TA+6}, 7, v0
v_lshrrev_b32 v{TA+7}, 5, v0
v_xor_b32 v{TA+6}, v{TA+6}, v{TA+7}
v_lshlrev_b32 v{TA+6}, 4, v{TA+6}
v_and_b32 v{TA}, 31, v0
v_lshl_add_u32 v{TA}, v{TA}, 7, v{TA+6}
v_add_u32 v{TA}, s32, v{TA}
v_xor_b32 v{TA+1}, 32, v{TA}
v_xor_b32 v{TA+2}, 64, v{TA}
v_xor_b32 v{TA+3}, 96, v{TA}
v_bfe_u32 v{TA+6}, v0, 2, 2
v_lshl_add_u32 v{TA+7}, v{TA+7}, 3, v{TA+6}
v_lshlrev_b32 v{TA+6}, 4, v{TA+6}
v_and_b32 v{TA+4}, 56, v{WR}
v_xor_b32 v{TA+4}, v{TA+4}, v{TA+6}
v_lshl_add_u32 v{TA+4}, v{TA+7}, 7, v{TA+4}
v_add_u32 v{TA+4}, s32, v{TA+4}
v_xor_b32 v{TA+5}, 64, v{TA+4}
v_lshlrev_b32 v{TA+7}, 25, v0
v_and_b32 v{TA+7}, 0x40000000, v{TA+7}
v_add_u32 v{TA+7}, v{TA+7}, v7""".split('\n')
    fin2 = [f'v_pk_add_f32 {vr(P+j,2)}, {vr(P+j,2)}, {vr(P+j+8,2)}' for j in range(0, 8, 2)] + [f'v_pk_add_f32 {vr(P+j,2)}, {vr(P+j,2)}, {vr(P+j+4,2)}' for j in range(0, 4, 2)] + \
           [f'v_permlane16_swap_b32 v{P}, v{P+1}', f'v_permlane16_swap_b32 v{P+2}, v{P+3}', f'v_add_f32 v{P}, v{P}, v{P+1}', f'v_add_f32 v{P+2}, v{P+2}, v{P+3}']
    fin2 += halves(P, P+2) + ln_list(P, P+1, 896, P+2, P+5, P+4) + [f'v_mul_f32 v{P+5}, v{P+5}, v{P+4}']
    for q in range(4):
        for i in range(4): fin2.append(f'v_pk_fma_f32 {vr(A2+8*q+2*i,2)}, {vr(A2+8*q+2*i,2)}, {vr(P+4,2)}, {vr(P+4,2)} op_sel:[0,0,1] op_sel_hi:[1,0,1]')
        for i in range(4): fin2.append(f'v_cvt_pk_bf16_f32 v{U+4*q+i}, v{A2+8*q+2*i}, v{A2+8*q+2*i+1}')
        fin2.append((f'ds_write_b128 v{TA+q}, {vr(U+4*q,4)}', 'tw'))
    for q in range(4):
        ks2, fb = divmod(q, 2)
        fin2.append((f'ds_read_b64_tr_b16 {vr(A2+4*q,2)}, v{TA+4+fb} offset:{ks2*2048}', f'tr{q}'))
        fin2.append((f'ds_read_b64_tr_b16 {vr(A2+2+4*q,2)}, v{TA+5-fb} offset:{ks2*2048 + 512}', f'tr{q}'))
    fin4 = []
    for q in range(4): fin4 += [lambda q=q: a.waitlg(f'tr{q}'), (f'buffer_store_dwordx4 {vr(A2+4*q,4)}, v7, s[12:15], s52 offen offset:{1024*q} sc1', 'z2st')]
    tp = opt.get('tp', 38); tc = opt.get('tc', 45)
    assert tp >= 37 and tc >= 41
    fills = {t: [] for t in range(32, 70)}
    fills[34] += taddr[:7]; fills[35] += taddr[7:14]; fills[36] += taddr[14:]
    fills[33] += ['s_lshl_b32 s31, s35, 5', 'v_and_b32 v3, 31, v0', 'v_add_lshl_u32 v3, v3, s31, 1', ('global_load_ushort v3, v3, s[18:19]', 'bsp')]
    for j in range(4): fills[tp + j//2].append((pl[j], 'pl'))
    if pre2 < 4: fills[tp + 1].append('s_barrier')
    def waddr(d): return ['s_lshl_b32 s31, s29, 12'] + rowread_list(d, d+1, 's31') + [f'v_xor_b32 v{d+i}, {32*i}, v{d}' for i in range(1, 4)]
    def rreads(r, base): return [(f'ds_read_b128 {vr(X+16*r+4*ks,4)}, v{base+ks} offset:{(r%4)*16384}', f'res{r}') for ks in range(4)]
    t0 = tc + 1
    if NR >= 4:
        fills[t0] += waddr(RA) + ['s_barrier']
        rr = sum([rreads(r, RA) for r in range(4)], [])
        rper = opt.get('rper', 3)
        for j in range(16):
            t = max(t0 + 1 + j // rper, 33 + j)
            fills[t].append(rr[j])
    fills[max(56, t0 + 3 + 15 // opt.get('rper', 3))] += [lambda: a.waitlg('res3'), 's_barrier']
    fills[61] = fills[61] + cs_write(1, T2)
    tf = opt.get('tf', 60)
    flagz = g.setflag('s53', T2+1) + [lambda: stamp(7)]
    fills[tf] += flagz
    fp = lambda i: stamp(i, True) if opt.get('fine') == 'p3' else None
    for t in range(32, 64):
        if t in (32, tp, tp + 4, tc): fp({32: 3, tp: 4, tp + 4: 5, tc: 6}[t])
        if t in (tc + 1, tc + 2, tc + 6, tc + 10, tf, tf + 1): fp({tc + 1: 10, tc + 2: 11, tc + 6: 12, tc + 10: 13, tf: 14, tf + 1: 15}[t])
        if t == tc:
            a.waitvm('pl'); fp(7)
            g.spin(pl, range(P, P+16), Q, True); stamp(4); fp(8)
            a.emit(fin2); fp(9)
        a.waitlg(f'wr{t}')
        rd = wreads(t + AH) if t + AH < 64 else []
        if t == tc:
            m = mfmas(t); a.emit(m + fin4 + rd + fills[t]); stamp(5)
        else: a.emit(merge(mfmas(t), rd + fills[t]))
    a.emit(fills[64])
    stamp(6)
    ub = ssm.ubuild()
    ib = ub.index(BAR)
    a.emit(cs_read(1, T2))
    gw = opt.get('gw', 1)
    if gw: a('v_rcp_f32 v24, v4')
    a.emit(waddr(8) + (gconst(26, 4) if gw else []))
    a.emit(cs_apply(A1, T2))
    a.emit(ub[:ib] + ub[ib+1:ib+4])
    Z1 = 112
    if gw: a.emit(gelu_pk(A1, 32, 26, 24, 16))
    else:
        for i in range(16): a(f'v_pk_mul_f32 {vr(A1+2*i,2)}, {vr(A1+2*i,2)}, v[4:5] op_sel_hi:[1,0]')
    for i in range(15, -1, -1): a(f'v_cvt_pk_bf16_f32 v{Z1+i}, v{A1+2*i}, v{A1+2*i+1}')
    a(f'v_add_u32 v12, {L_Z}, v7\nv_lshlrev_b32 v4, 16, v3\nv_mov_b32 v14, {fbits(C1)}')
    a.emit(ub[ib+4:-1])
    stamp(8)
    assert NR <= 4 and gw
    ACC = 32; F = [64, 88]
    def rd2(k, half):
        L = []
        for j in range(2):
            ks = 2*half + j
            if k in SIDX: L.append((f'ds_read_b128 {vr(F[half]+12*j,4)}, v{8+ks} offset:{(SIDX[k]%4)*16384}', f'g{k}_{ks}'))
            for fb in range(2): L.append((f'ds_read_b128 {vr(F[half]+12*j+4+4*fb,4)}, v12 offset:{(k%4)*8192+ks*2048+fb*1024}', f'g{k}_{ks}'))
        return L
    def mm2(k, half):
        L = []
        for j in range(2):
            wreg = F[half]+12*j if k in SIDX else X + 16*MEM[k] + 4*(2*half+j)
            for fb in range(2):
                c = '0' if (k == 0 and half == 0 and j == 0) else vr(ACC+16*fb, 16)
                L.append((f'g{k}_{2*half+j}', f'v_mfma_f32_32x32x16_bf16 {vr(ACC+16*fb,16)}, {vr(F[half]+12*j+4+4*fb,4)}, {vr(wreg,4)}, {c}'))
        return L
    cpre, cg = ssm.conv()
    kf = 0
    c0, c1 = opt.get('c0', 2), opt.get('c1', 24)
    plan = {}
    def spread(groups, slots, wts):
        cum = 0; tot = sum(int(wts[s[2]]) for s in slots); done = 0
        for s in slots:
            cum += int(wts[s[2]]); n = cum * len(groups) // tot
            plan.setdefault(s, []).extend(groups[done:n]); done = n
    allslots = [(k, ph, i) for k in range(32) for ph in range(2) for i in range(4) if (k, ph) != (0, 0)]
    if not opt.get('noconv'): spread(cg, [s for s in allslots if c0 <= s[0] <= c1], opt.get('cw', '0013'))
    spread([[x] for x in cpre], [s for s in allslots if (kf, 1) <= s[:2] and s[0] < c0], '1113')
    if not gw: spread([[x] for x in gelu_packed(Z1, 16, 16, 14)], [s for s in allslots if s[0] < opt.get('ge', 9)], '2223')
    fin, fflag = ssm.finish()
    spread([[x] for x in fin], [s for s in allslots if c1 + 1 <= s[0] <= c1 + 2], '2223')
    plan.setdefault((min(31, c1 + 5), 0, 3), []).append(fflag)
    assert c1 + 2 <= 30
    for k in range(33):
        if k in (0, 31): a.waitall(vm=False)
        else: a.waitlg(f'g{k-1}_3')
        a('s_barrier')
        if k == 0: stamp(9)
        if str(opt.get('fine')).startswith('g2'):
            k0 = int(opt['fine'][2:])
            if k0 <= k < k0 + 13: stamp(3 + k - k0, True)
        for ph in range(2):
            m = (mm2(k-1, 1) if k > 0 else []) if ph == 0 else (mm2(k, 0) if k < 32 else [])
            r = rd2(k, ph) if k < 32 else []
            if not m:
                a.emit(r); continue
            for i, (tg, ins) in enumerate(m):
                a.waitlg(tg)
                a(ins)
                a.emit(r[2*i:2*i+2])
                for x in plan.get((k, ph, i), []): a.emit(x)
                if k == 31:
                    for j in range(2):
                        z = 8*ph + 2*i + j
                        a(f'v_lshlrev_b32 v{128+2*z}, 16, v{Z1+z}\nv_and_b32 v{129+2*z}, s33, v{Z1+z}')
    stamp(10)
    for q in range(4):
        for i in range(4):
            p = ACC + 8*q + 2*i
            a(f'v_pk_add_f32 {vr(p,2)}, {vr(p,2)}, v[4:5] op_sel_hi:[1,0]')
        for i in range(4):
            p = ACC + 8*q + 2*i
            a(f'v_pk_mul_f32 {vr(p,2)}, {vr(p,2)}, {vr(128+8*q+2*i,2)}')
        for i in range(4): a(f'v_cvt_pk_bf16_f32 v{F[0]+4*q+i}, v{ACC+8*q+2*i}, v{ACC+8*q+2*i+1}')
        a(f'buffer_store_dwordx4 {vr(F[0]+4*q,4)}, v7, s[12:15], s54 offen offset:{1024*q} sc1', 'hst')
    stamp(11)
    nb['gc'] = count_bars(st0) + 3

    a(f'{lab("g3comp")}:')
    HB = 16; ACC = 160; WB = [224, 240]; SR = 192; SF = 200; XR = 216; XF = 136; T = 152
    a('s_and_b32 s36, s29, 1\ns_lshr_b32 s37, s29, 1\ns_lshl_b32 s32, s26, 1\ns_add_u32 s32, s32, s30')
    a.emit(trread_list(1, 2))
    a(f'''s_lshl_b32 s55, s37, 6
s_lshl_b32 s31, s37, 12
v_xor_b32 v1, s55, v1
v_add_u32 v1, s31, v1
v_xor_b32 v2, 64, v1
v_add_u32 v3, {L_Z}, v1
v_add_u32 v4, {L_Z}, v2
s_lshl_b32 s3, s36, 12
s_add_u32 s3, s3, {L_X3}''')
    a.emit(rowread_list(9, 10, 's3'))
    a(f'''v_xor_b32 v9, s55, v9
v_xor_b32 v10, 32, v9
v_lshrrev_b32 v11, 2, v0
v_and_b32 v12, 3, v0
v_lshlrev_b32 v13, 4, v12
v_lshl_add_u32 v15, v11, 10, v13
v_bfe_u32 v13, v0, 3, 3
v_xor_b32 v12, v12, v13
v_lshlrev_b32 v12, 4, v12
v_xor_b32 v12, s55, v12
v_lshl_add_u32 v12, v11, 7, v12
v_add_u32 v14, s3, v12
v_lshrrev_b32 v11, 5, v0
v_bfe_u32 v13, v0, 2, 2
v_lshl_add_u32 v11, v11, 3, v13
v_lshlrev_b32 v11, 7, v11
v_bfe_u32 v13, v0, 3, 1
v_xor_b32 v13, s36, v13
v_lshl_add_u32 v11, v13, 6, v11
v_bfe_u32 v13, v0, 4, 1
v_lshl_add_u32 v11, v13, 5, v11
v_and_b32 v13, 3, v0
v_lshl_add_u32 v11, v13, 3, v11
s_add_u32 s31, s31, {L_S3}
v_add_u32 v11, s31, v11
s_lshl_b32 s3, s32, 1
s_add_u32 s3, s3, s36
s_lshl_b32 s61, s3, 15
s_mul_i32 s38, s3, 57344
s_lshl_b32 s3, s27, 7
s_add_u32 s61, s61, s3
s_add_u32 s61, s61, s55
s_lshl_b32 s3, s37, 11
s_add_u32 s38, s38, s3
s_add_u32 s38, s38, {WS_HF}
s_lshl_b32 s3, s29, 12
s_add_u32 s3, s3, {L_U}
v_add_u32 v8, s3, v7
v_xor_b32 v13, 8192, v8
v_mov_b32 v12, {fbits(-LOG2E)}''')
    rot3(35)
    for j in range(14):
        a(f's_lshl_b32 s31, s35, 12\ns_add_u32 s{40+j}, s31, s38')
        if j < 13: a('\n'.join(adv(35)))
    a(f's_mov_b32 s39, {SPIN >> 3}')
    a.waitall(lg=False)
    stamp(12)
    NI = opt.get('ni', 6)
    def hl(j): return [f'buffer_load_dwordx4 {vr(HB+8*j+4*p,4)}, v7, s[12:15], s{40+j} offen offset:{1024*p} sc1' for p in range(2)]
    def rdw(j, ks):
        w = W3LOC[j]; hi = w >= L_Z; w -= L_Z * hi
        return [(f'ds_read_b64_tr_b16 {vr(WB[j&1]+8*ks+4*b+2*p,2)}, v{1+b+2*hi} offset:{w+ks*2048+512*p}', f'w{j}_{ks}') for b in (1, 0) for p in range(2)]
    for j in range(NI): a.emit([(x, f'h{j}') for x in hl(j)])
    a('s_barrier')
    stamp(13)
    a.emit(rdw(0, 0) + rdw(0, 1))
    es = opt.get('es', 10)
    xs = [(f'ds_read_b128 {vr(XR+4*p,4)}, v{9+p}', 'xr') for p in range(2)] + [(f'ds_read_b64_tr_b16 {vr(SR+2*q,2)}, v11 offset:{2048*(q//2)+512*(q%2)}', 'xr') for q in range(4)]
    un = sum([[f'v_lshlrev_b32 v{d+2*i}, 16, v{s_+i}', f'v_and_b32 v{d+2*i+1}, s33, v{s_+i}'] for d, s_ in ((XF, XR), (SF, SR)) for i in range(8)], [])
    retry = []
    def check(j):
        lc = a.newlab('hchk'); lr = a.newlab('hretry')
        a.waitvm(f'h{j}')
        H = HB + 8*j
        a(f'{lc}:\nv_max3_u32 v{T}, v{H}, v{H+1}, v{H+2}\nv_max3_u32 v{T+1}, v{H+3}, v{H+4}, v{H+5}\nv_max3_u32 v{T}, v{T}, v{H+6}, v{H+7}\nv_max_u32 v{T}, v{T}, v{T+1}')
        a(f'v_cmp_eq_u32 vcc, -1, v{T}')
        return lc, lr
    def cbr(j, lc, lr, mid=None):
        a(f's_cbranch_vccnz {lr}\n{lc}x:')
        retry.append((lr, lc, j, sum([hl(i) for i in range(j, min(14, j + NI))], [])))
    lc, lr = check(0); cbr(0, lc, lr)
    stamp(14)
    for j in range(14):
        if opt.get('fine') == 'g3' and j % 2 == 0: stamp(3 + j // 2, True)
        seq = []
        for ks in range(2):
            for b in (1, 0):
                seq.append((ks, f'v_mfma_f32_32x32x16_bf16 {vr(ACC+16*b,16)}, {vr(WB[j&1]+8*ks+4*b,4)}, {vr(HB+8*j+4*ks,4)}, {"0" if (j == 0 and ks == 0) else vr(ACC+16*b,16)}'))
        if j == 13: seq = [seq[0], seq[2], seq[1], seq[3]]
        nxt = (rdw(j+1, 0) + rdw(j+1, 1)) if j < 13 else []
        for i, (ks, ins) in enumerate(seq):
            a.waitlg(f'w{j}_{ks}')
            a(ins)
            if j == w3m - 1 and i == 0: a('s_barrier')
            if i < 2:
                a.emit(nxt[3*i:3*i+3])
                if j + NI < 14: a(hl(j + NI)[i], f'h{j+NI}')
            if j == es and i == 0: a('s_barrier')
            if j == es and i in (0, 1): a.emit(xs[3*i:3*i+3])
            if j > es and i in (0, 1, 3):
                a.waitlg('xr'); a.emit(un[:4]); un = un[4:]
            if i == 2 and j < 13: lc, lr = check(j + 1)
            if i == 3 and j < 13:
                a.emit(nxt[6:]); cbr(j + 1, lc, lr)
    stamp(15)
    if opt.get('prof'): a(f's_sub_u32 s100, {SPIN >> 3}, s39\ns_mul_i32 s100, s100, 10\ns_add_u32 s100, s100, s66')
    ft_ = lambda i: stamp(i, True) if opt.get('fine') == 'g3' else None
    ft_(10)
    for q in range(4): a(f'ds_write_b128 v8, {vr(ACC+16+4*q,4)} offset:{1024*q}', 'rw')
    a.waitall(vm=False); ft_(11); a('s_barrier'); ft_(12)
    for q in range(4): a(f'ds_read_b128 {vr(WB[0]+4*q,4)}, v13 offset:{1024*q}', f'rr{q//2}')
    a.emit(un)
    for p in range(2):
        B = ACC + 8*p
        a.waitlg(f'rr{p}')
        if p == 0: ft_(13)
        for i in range(4): a(f'v_pk_add_f32 {vr(B+2*i,2)}, {vr(B+2*i,2)}, {vr(WB[0]+8*p+2*i,2)}')
        for i in range(4): a(f'v_pk_mul_f32 {vr(T+2*i,2)}, {vr(B+2*i,2)}, v[12:13] op_sel_hi:[1,0]')
        for i in range(8): a(f'v_exp_f32 v{T+i}, v{T+i}')
        for i in range(4): a(f'v_pk_mul_f32 {vr(B+2*i,2)}, {vr(B+2*i,2)}, {vr(SF+8*p+2*i,2)}')
        for i in range(4): a(f'v_pk_add_f32 {vr(T+2*i,2)}, {vr(T+2*i,2)}, 1.0 op_sel_hi:[1,0]')
        for i in range(8): a(f'v_rcp_f32 v{T+i}, v{T+i}')
        for i in range(4): a(f'v_pk_fma_f32 {vr(B+2*i,2)}, {vr(B+2*i,2)}, {vr(T+2*i,2)}, {vr(XF+8*p+2*i,2)}')
        for i in range(4): a(f'v_cvt_pk_bf16_f32 v{HB+4*p+i}, v{B+2*i}, v{B+2*i+1}')
        a(f'ds_write_b128 v{9+p}, {vr(HB+4*p,4)}', 'ow')
    ft_(14)
    for p in range(2): a(f'ds_read_b128 {vr(HB+8+4*p,4)}, v14 offset:{2048*p}', f'or{p}')
    for p in range(2):
        a.waitlg(f'or{p}')
        if p: a('s_add_u32 s61, s61, 16384')
        a(f'buffer_store_dwordx4 {vr(HB+8+4*p,4)}, v15, s[20:23], s61 offen {opt.get("outflag","")}', 'ost')
    stamp(16)
    sk = a.newlab('noepoch')
    a(f's_or_b32 s3, s2, s29\ns_cmp_lg_u32 s3, 0\ns_cbranch_scc1 {sk}\nv_mov_b32 v1, s24\ns_mov_b32 s3, {WS_EPOCH}\ns_mov_b64 exec, 1')
    a('buffer_store_dword v1, off, s[12:15], s3 sc1')
    a(f's_mov_b64 exec, -1\n{sk}:')
    g.prof_store()
    a('s_endpgm')
    for x in g.cold: a.L.append(x)
    g.cold = []
    for lr, lc, j, lds_ in retry:
        H = HB + 8*j
        a(f'{lr}:\ns_sub_u32 s39, s39, 1\ns_cmp_lt_i32 s39, 0\ns_cbranch_scc1 {lc}x')
        for x in lds_: a.L.append(x)
        a(f's_waitcnt vmcnt(0)\nv_max3_u32 v{T}, v{H}, v{H+1}, v{H+2}\nv_max3_u32 v{T+1}, v{H+3}, v{H+4}, v{H+5}\nv_max3_u32 v{T}, v{T}, v{H+6}, v{H+7}\nv_max_u32 v{T}, v{T}, v{T+1}')
        a(f'v_cmp_eq_u32 vcc, -1, v{T}\ns_cbranch_vccnz {lr}\ns_branch {lc}x')

    a(f'{lab("tcomp")}:')
    st0 = len(a.L)
    a.vm = ['prm'] * 6; a.lg = []
    T = 24; X = 64
    a('s_mov_b32 s6, 0x200000\ns_mov_b32 s7, 0x20000\ns_and_b32 s5, s5, 0xffff')
    a('s_lshl_b32 s32, s29, 14\ns_lshl_b32 s35, s26, 1\ns_add_u32 s35, s35, s30\ns_lshl_b32 s35, s35, 1\ns_and_b32 s3, s29, 1\ns_add_u32 s35, s35, s3\ns_lshl_b32 s3, s35, 5\ns_lshr_b32 s61, s29, 1\ns_lshl_b32 s38, s61, 9')
    rowoffs(a, 32, 's3', 10)
    for c in range(4):
        a.emit([f's_add_u32 m0, s32, {4096*c}', f's_add_u32 s31, s38, {128*c}'] + [(f'buffer_load_dwordx4 v{32+i}, s[4:7], s31 offen offset:{1024*i} lds', f'x{c}') for i in range(4)])
    cprologue()
    a.emit(rowread_list(8, 9, 's32'))
    a('v_xor_b32 v9, 32, v8\nv_xor_b32 v10, 64, v8\nv_xor_b32 v11, 96, v8')
    a('s_mov_b32 s36, 0x00003f80\ns_mov_b32 s37, 0x3f800000')
    for i in range(4): a(f'v_mov_b32 v{20+i}, 0')
    a('v_lshrrev_b32 v13, 5, v0\nv_lshlrev_b32 v13, 15, v13\nv_and_b32 v16, 31, v0\nv_lshl_add_u32 v12, v16, 2, v13')
    for i in range(1, 4): a(f'v_add_u32 v{12+i}, {8192*i}, v12')
    a(f's_lshl_b32 s31, s35, 7\ns_add_u32 s52, s31, {WS_XNT}\ns_lshl_b32 s3, s61, 20\ns_add_u32 s52, s52, s3')
    a(f's_lshl_b32 s53, s61, 13\ns_add_u32 s53, s53, s31\ns_add_u32 s53, s53, {FX}')
    a(f's_lshl_b32 s31, s35, 13\ns_add_u32 s60, s31, s38\ns_add_u32 s60, s60, {WS_STATS + 14*512}')
    a(f's_lshl_b32 s31, s29, 8\ns_add_u32 s31, s31, {L_CS}\nv_lshl_add_u32 v16, v0, 2, s31\nv_xor_b32 v17, 512, v16')
    a(tagmake)
    for c in range(4):
        a.waitvm(f'x{c}')
        a.emit(xreads(c, 8, 4096*c))
        if c == opt.get('tb', 1): a('s_barrier')
        if c > 0: dots(c-1, 20)
        a.waitlg(f'xr{c}')
    dots(3, 20)
    a('v_add_f32 v20, v20, v22\nv_add_f32 v21, v21, v23\nv_mov_b32 v41, s24\nv_mov_b32 v43, s24\nv_permlane32_swap_b32 v20, v21\nv_add_f32 v22, v20, v21\nv_add_f32 v40, v20, v21\nv_permlane32_swap_b32 v40, v42\ns_mov_b32 exec_hi, 0')
    a(f'buffer_store_dwordx4 v[40:43], v7, s[12:15], s60 offen sc1', 'pub')
    a('s_mov_b64 exec, -1')
    a('ds_write_b32 v16, v22')
    a.waitall(vm=False); a('s_barrier')
    a('ds_read_b32 v20, v17')
    a.waitall(vm=False)
    a('v_add_f32 v20, v20, v22\nv_mov_b32 v21, v20\nv_permlane32_swap_b32 v20, v21')
    a.emit(ln_list(20, 21, 512, 22, 19, 18))
    stamp(2)
    for f in range(16):
        for i in range(4):
            a(f'v_dot2_f32_bf16 v{T+2*i}, v{X+4*f+i}, s36, v19\nv_dot2_f32_bf16 v{T+2*i+1}, v{X+4*f+i}, s37, v19')
        for i in range(4): a(f'v_cvt_pk_bf16_f32 v{X+4*f+i}, v{T+2*i}, v{T+2*i+1}')
        for i in range(4): a(f'v_lshlrev_b32 v{T+2*i}, 16, v{X+4*f+i}\nv_and_b32 v{T+2*i+1}, s33, v{X+4*f+i}')
        for i in range(4): a(f'v_pk_mul_f32 {vr(T+2*i,2)}, {vr(T+2*i,2)}, v[18:19] op_sel_hi:[1,0]')
        for i in range(4): a(f'v_cvt_pk_bf16_f32 v{X+4*f+i}, v{T+2*i}, v{T+2*i+1}')
        for i in range(4): a(f'buffer_store_dword v{X+4*f+i}, v{12+i}, s[12:15], s52 offen sc1', 'xst')
        a('s_add_u32 s52, s52, 65536')
    stamp(3)
    a.emit(ssm.kaddr())
    a.emit(g.setflag('s53', 16))
    stamp(7)
    a('s_barrier')
    a(f's_branch {lab("kgen")}')
    a(f'{lab("tcomp2")}:')
    a.vm = []; a.lg = list(lg_split)
    a.waitall(vm=False); a('s_barrier')
    emit_plain(a, ssm.ubuild()); stamp(9)
    cpre, cg = ssm.conv()
    fin, fflag = ssm.finish()
    emit_plain(a, cpre + sum(cg, []) + fin + [BAR] + fflag); stamp(10)
    a('s_barrier')
    nb['tc'] = count_bars(st0) + 3
    a(f's_branch {lab("g3comp")}')
    a(f'{lab("done")}:\ns_endpgm')
    assert nb['gl'] == nb['gc'] and nb['tl'] == nb['tc'], nb
    kernel_desc(a, name, 256, 102)
    return finalize(a, name, opt)

NAME = 'recurrent_scan__ssm_conv_s4d__mixer_gmlp__prompt_kernel'
def write(path, args):
    opt = {}
    for kv in args:
        k, _, v = kv.partition('=')
        opt[k] = (int(v) if v.lstrip('-').isdigit() and k != 'cw' else v) if v else True
    try: HDR = open('recurrent_scan__ssm_conv_s4d__mixer_gmlp__prompt.s.ref').read().split('; Override launch')[0]
    except OSError: HDR = ''
    txt = HDR + '; @launch grid=(256,1,1) block=(384,1,1) lds=163840\n.amdgcn_target "amdgcn-amd-amdhsa--gfx950"\n' + fused(NAME, opt)
    open(path, 'w').write(txt)

if __name__ == '__main__':
    import sys
    sys.path.insert(0, 'work')
    write(sys.argv[1], sys.argv[2:])
    from hx import build
    import cdna_launch as cl
    co, _ = build(sys.argv[1], 15, NAME)
    p = cl.address_register_problem(co, NAME)
    if p: print('CHECK PROBLEM:', p)
```

```python
from gen import *
import struct, math
def fbits(x): return hex(struct.unpack('<I', struct.pack('<f', x))[0])
def f32(x): return struct.unpack('<f', struct.pack('<f', x))[0]
WS_Z2F = 0; WS_XNT = 4 << 20; WS_HF = 6 << 20; WS_ST = 10 << 20; WS_STATS = 12 << 20; WS_FL = WS_STATS + (512 << 10)
WS_EPOCH = WS_FL + (384 << 10)
WS_PROF = 13 << 20; WS_BYTES = 14 << 20
FZ = WS_FL; FX = WS_FL + 896*128; FH = WS_FL + 1024*128; FT = WS_FL + 1536*128; FS = WS_FL + 2048*128
KA = dict(u=0, logA=8, Aim=16, Cre=24, Cim=32, logdt=40, Dskip=48, bx=56, win=64, wsp=72, bsp=80, wout=88, out=96, dbg=104, ws=112)
LOG2E = math.log2(math.e)
C0 = -2 * LOG2E * math.sqrt(2 / math.pi); C1 = C0 * 0.044715
BAR = ('BAR',)
SPIN = 0x20000
L_SSM = 65536; L_Z = 114688
USTR = 4640; UGRP = 3 * USTR + 4480; L_U = L_SSM; L_RAW = 102400 - 16; L_K = 147456
L_CS = 159744; L_TR = 131072
L_X3 = 81920; L_S3 = 90112; KSTR = 4736

class G:
    def __init__(self, name, opt):
        self.a = Asm(); self.name = name; self.opt = opt; self.comp = False; self.cold = []
    def stamp(self, idx, fine=False):
        if self.opt.get('fine') and not fine and 3 <= idx <= 15 and self.comp: return
        if self.opt.get('prof'): self.a(f's_mem{"real" if self.opt.get("rt") else ""}time s[{66+2*idx}:{67+2*idx}]')
    def prof_store(self):
        if not self.opt.get('prof'): return
        a = self.a
        a('s_memrealtime s[64:65]\ns_memtime s[60:61]')
        a.waitall()
        a('v_mov_b32 v2, 0\ns_sub_u32 s31, s60, s66\nv_writelane_b32 v2, s31, 2')
        for i in range(1, 18):
            a(f's_sub_u32 s31, s{66+2*i}, s{62 if self.opt.get("rt") else 66}\nv_writelane_b32 v2, s31, {i+2}')
        a('v_writelane_b32 v2, s62, 0\nv_writelane_b32 v2, s64, 1')
        a(f's_lshl_b32 s3, s2, 3\ns_add_u32 s3, s3, s29\ns_lshl_b32 s3, s3, 7\ns_add_u32 s3, s3, {WS_PROF}')
        a('v_lshlrev_b32 v1, 2, v0\ns_mov_b32 exec_hi, 0')
        a('buffer_store_dword v2, v1, s[12:15], s3 offen')
    def spin(self, loads, tags, tmp, sentinel=False):
        a = self.a
        lp = a.newlab('sp'); lc = a.newlab('spc'); lo = a.newlab('spo')
        chk = []
        r = list(tags)
        if sentinel:
            cur = r.pop(0)
            while r:
                if len(r) >= 2: chk.append(f'v_max3_u32 v{tmp}, v{cur}, v{r[0]}, v{r[1]}'); r = r[2:]
                else: chk.append(f'v_max_u32 v{tmp}, v{cur}, v{r[0]}'); r = []
                cur = tmp
            chk.append(f'v_cmp_eq_u32 vcc, -1, v{tmp}')
        elif len(r) == 1: chk.append(f'v_cmp_ne_u32 vcc, s24, v{r[0]}')
        else:
            chk.append(f'v_xor_b32 v{tmp}, s24, v{r[0]}')
            for x in r[1:]: chk.append(f'v_bitop3_b32 v{tmp}, v{tmp}, v{x}, s24 bitop3:0xf6')
            chk.append(f'v_cmp_ne_u32 vcc, 0, v{tmp}')
        for x in chk: a(x)
        a(f's_cbranch_vccnz {lp}\n{lo}:')
        self.cold += [f'{lp}:', f's_mov_b32 s39, {SPIN}', f'{lc}:'] + list(loads) + ['s_waitcnt vmcnt(0)'] + chk + \
            [f's_cbranch_vccz {lo}', 's_sub_u32 s39, s39, 1', 's_cmp_lg_u32 s39, 0', f's_cbranch_scc1 {lc}', f's_branch {lo}']
    def setflag(self, soff, vtmp):
        return [f'v_mov_b32 v{vtmp}, s24', lambda: self.a.waitall(lg=False), (f's_mov_b32 exec_hi, 0\nbuffer_store_dword v{vtmp}, v6, s[12:15], {soff} offen sc1\ns_mov_b64 exec, -1', 'flag')]

def ln_list(vS, vQ, n, vT, out_negm, out_r, out_sd=None):
    L = [f'v_mul_f32 v{vS}, {fbits(1.0/n)}, v{vS}', f'v_mul_f32 v{vQ}, {fbits(1.0/n)}, v{vQ}', f'v_fma_f32 v{vQ}, -v{vS}, v{vS}, v{vQ}',
         f'v_max_f32 v{vQ}, 0, v{vQ}', f'v_cvt_pk_bf16_f32 v{vT}, v{vQ}, v{vS}', f'v_lshlrev_b32 v{vQ}, 16, v{vT}', f'v_and_b32 v{vT}, 0xffff0000, v{vT}',
         f'v_add_f32 v{vQ}, {fbits(1e-5)}, v{vQ}', f'v_xor_b32 v{out_negm}, 0x80000000, v{vT}', f'v_cvt_pk_bf16_f32 v{vQ}, v{vQ}, v{vQ}',
         f'v_lshlrev_b32 v{vQ}, 16, v{vQ}', f'v_sqrt_f32 v{vQ}, v{vQ}', f'v_cvt_pk_bf16_f32 v{vQ}, v{vQ}, v{vQ}']
    sd = vQ if out_sd is None else out_sd
    L += [f'v_lshlrev_b32 v{sd}, 16, v{vQ}', f'v_rcp_f32 v{out_r}, v{sd}']
    return L

def gelu_pk(A, n, vC, vSD, T):
    L = []
    for b in range(0, n, 8):
        P = [A + b + 2*i for i in range(4)]; Q = [T + 2*i for i in range(4)]
        for p, q in zip(P, Q): L.append(f'v_pk_mul_f32 {vr(q,2)}, {vr(p,2)}, {vr(p,2)}')
        for q in Q: L.append(f'v_pk_fma_f32 {vr(q,2)}, {vr(q,2)}, {vr(vC,2)}, {vr(vC,2)} op_sel:[0,0,1] op_sel_hi:[1,0,1]')
        for p, q in zip(P, Q): L.append(f'v_pk_mul_f32 {vr(q,2)}, {vr(q,2)}, {vr(p,2)}')
        for i in range(8): L.append(f'v_exp_f32 v{T+i}, v{T+i}')
        for q in Q: L.append(f'v_pk_fma_f32 {vr(q,2)}, {vr(q,2)}, {vr(vSD,2)}, {vr(vSD,2)} op_sel_hi:[1,0,0]')
        for i in range(8): L.append(f'v_rcp_f32 v{T+i}, v{T+i}')
        for p, q in zip(P, Q): L.append(f'v_pk_mul_f32 {vr(p,2)}, {vr(p,2)}, {vr(q,2)}')
    return L

def gelu_packed(Z, n, T, vC1):
    L = []
    for b in range(0, n, 2):
        for i in range(2): L += [f'v_lshlrev_b32 v{T+2*i}, 16, v{Z+b+i}', f'v_and_b32 v{T+2*i+1}, s33, v{Z+b+i}']
        for i in range(4): L.append(f'v_mul_f32 v{T+4+i}, v{T+i}, v{T+i}')
        for i in range(4): L.append(f'v_fmaak_f32 v{T+4+i}, v{vC1}, v{T+4+i}, {fbits(C0)}')
        for i in range(4): L.append(f'v_mul_f32 v{T+4+i}, v{T+i}, v{T+4+i}')
        for i in range(4): L.append(f'v_exp_f32 v{T+4+i}, v{T+4+i}')
        for i in range(4): L.append(f'v_add_f32 v{T+4+i}, 1.0, v{T+4+i}')
        for i in range(4): L.append(f'v_rcp_f32 v{T+4+i}, v{T+4+i}')
        for i in range(4): L.append(f'v_mul_f32 v{T+i}, v{T+i}, v{T+4+i}')
        for i in range(2): L.append(f'v_cvt_pk_bf16_f32 v{Z+b+i}, v{T+2*i}, v{T+2*i+1}')
    return L

def stream_emit(a, items, nbar, D, hook=None):
    comp = {}
    for i, it in enumerate(items):
        if it[2] is not None: comp[it[2]] = i + 1
    DD = D if callable(D) else (lambda b: D)
    nb = 0
    def bar(n):
        nonlocal nb
        c = max([comp.get(b, 0) for b in range(nb + 1)])
        assert c <= n, (nb, c, n)
        if hook: hook(nb, -1)
        if c: a.L.append(f's_waitcnt vmcnt({min(63, n - c)})')
        if hook: hook(nb, 0)
        a.L.append('s_barrier')
        if hook: hook(nb, 1)
        nb += 1
    for i, (setup, ld, cb, need) in enumerate(items):
        while need is not None and nb <= need: bar(i)
        for x in setup:
            if callable(x): x()
            else: a.L.append(x)
        a.L.append(ld)
        while nb < nbar and nb in comp and i + 1 >= comp[nb] + DD(nb): bar(i + 1)
    while nb < nbar: bar(len(items))

def grp(m0, soff_setup, vbase, srd_, soff, same=False, cb=None, need=None, fl='', mreg='s19'):
    L = []
    for i in range(4):
        su = ([f's_add_u32 m0, {mreg}, {m0}'] + (soff_setup or ['s_nop 0'])) if i == 0 else []
        L.append((su, f'buffer_load_dwordx4 v{vbase if same else vbase+i}, {srd_}, {soff} offen offset:{1024*i} {fl} lds', cb, need if i == 0 else None))
    return L

def rowoffs(a, d, rowbase, sh, colbase=None):
    st = 1 << sh
    a(f"""v_lshrrev_b32 v24, 3, v0
v_add_u32 v24, {rowbase}, v24
v_lshlrev_b32 v24, {sh}, v24
v_and_b32 v25, 7, v0
v_lshrrev_b32 v26, 4, v0
v_xor_b32 v25, v25, v26
v_lshl_add_u32 v{d}, v25, 4, v24""")
    if colbase: a(f'v_add_u32 v{d}, {colbase}, v{d}')
    a(f'v_xor_b32 v{d+1}, 64, v{d}\nv_add_u32 v{d+1}, {8*st-1024}, v{d+1}\nv_add_u32 v{d+2}, {16*st-2048}, v{d}\nv_add_u32 v{d+3}, {16*st-2048}, v{d+1}')

def troffs(a, d, stride, colbase):
    a(f"""v_lshrrev_b32 v24, 3, v0
v_mul_u32_u24 v24, {stride}, v24
v_bfe_u32 v25, v0, 4, 1
v_lshlrev_b32 v25, 2, v25
v_and_b32 v26, 7, v0
v_xor_b32 v25, v25, v26
v_lshl_add_u32 v24, v25, 4, v24
v_add_u32 v{d}, {colbase}, v24""")
    for i in range(1, 4): a(f'v_add_u32 v{d+i}, {8*stride-1024}, v{d+i-1}')

def rowread_list(d, t, base):
    return [f'v_lshrrev_b32 v{t}, 5, v0', f'v_bfe_u32 v{d}, v0, 1, 3', f'v_xor_b32 v{d}, v{d}, v{t}', f'v_lshlrev_b32 v{d}, 4, v{d}',
            f'v_and_b32 v{t}, 31, v0', f'v_lshl_add_u32 v{d}, v{t}, 7, v{d}', f'v_add_u32 v{d}, {base}, v{d}']
def trread_list(d, t):
    return [f'v_lshrrev_b32 v{d}, 5, v0', f'v_bfe_u32 v{t}, v0, 2, 2', f'v_lshl_add_u32 v{d}, v{d}, 3, v{t}', f'v_lshlrev_b32 v{d}, 7, v{d}',
            f'v_bfe_u32 v{t}, v0, 3, 1', f'v_lshl_add_u32 v{d}, v{t}, 6, v{d}', f'v_bfe_u32 v{t}, v0, 4, 1', f'v_lshl_add_u32 v{d}, v{t}, 5, v{d}',
            f'v_and_b32 v{t}, 1, v0', f'v_lshl_add_u32 v{d}, v{t}, 4, v{d}', f'v_bfe_u32 v{t}, v0, 1, 1', f'v_lshl_add_u32 v{d}, v{t}, 3, v{d}']

def cost(x):
    if callable(x): return 4
    t = x[0] if isinstance(x, tuple) else x
    if t.startswith(TRANS): return 8
    if t.startswith('v_mfma_f32_32'): return 32
    if t.startswith('v_mfma'): return 12
    return 4

class SSM:
    CA = 16; PR = 208; DS = 5
    def __init__(self, g): self.g = g; self.a = g.a
    def param_addr(self):
        P = self.PR
        return ['s_lshl_b32 s31, s2, 9', 's_lshl_b32 s3, s29, 7', 's_add_u32 s31, s31, s3', f'v_lshl_add_u32 v{P+6}, v0, 1, s31',
                's_lshl_b32 s31, s2, 2', f'v_mov_b32 v{P+7}, s31']
    def param_loads(self):
        P = self.PR
        L = [(f'global_load_dword v{P+4}, v{P+7}, s[48:49]', 'prm')]
        for i in range(4): L.append((f'global_load_ushort v{P+i}, v{P+6}, s[{40+2*i}:{41+2*i}]', 'prm'))
        L.append((f'global_load_dword v{self.DS}, v{P+7}, s[50:51]', 'prm'))
        return L
    def kaddr(self):
        A = 216
        L = ['s_lshl_b32 s31, s29, 14', f's_add_u32 s31, s31, {L_SSM}', f'v_bfe_u32 v{A+4}, v0, 1, 2', f'v_lshlrev_b32 v{A+4}, 4, v{A+4}', f'v_lshl_add_u32 v{A+4}, v0, 6, v{A+4}', f'v_add_u32 v{A}, s31, v{A+4}']
        for b in range(1, 4): L.append(f'v_xor_b32 v{A+b}, {16*b}, v{A}')
        R, t, u = A+4, A+6, A+7
        L += ['s_and_b32 s3, s31, 0xffff8000', f'v_bfe_u32 v{t}, v0, 3, 2', f'v_bfe_u32 v{R}, v0, 1, 1', f'v_xor_b32 v{R}, v{R}, v{t}', f'v_lshlrev_b32 v{R}, 4, v{R}',
              f'v_lshrrev_b32 v{t}, 2, v0', f'v_lshl_add_u32 v{R}, v{t}, 6, v{R}', f'v_and_b32 v{u}, 1, v0', f'v_lshl_add_u32 v{R}, v{u}, 3, v{R}', f'v_add_u32 v{R}, s3, v{R}',
              f'v_xor_b32 v{A+5}, 32, v{R}', 's_and_b32 s3, s29, 1', 's_lshl_b32 s31, s3, 5', f'v_xor_b32 v{A+6}, s31, v{R}',
              f'v_cmp_eq_u32 s[58:59], 0, v{u}', f'v_and_b32 v{u}, 16, v0', f'v_cmp_eq_u32 s[46:47], 0, v{u}']
        L += ['s_lshr_b32 s31, s29, 1', f's_mul_i32 s57, s31, {KSTR}', f's_add_u32 s57, s57, {L_K}', 's_lshl_b32 s3, s3, 8', 's_sub_u32 s3, s57, s3',
              f'v_and_b32 v{A+9}, 255, v7', f'v_sub_u32 v{A+9}, s3, v{A+9}', f'v_lshrrev_b32 v{A+10}, 4, v0',
              f'v_lshlrev_b32 v{A+11}, 2, v{A+10}', f'v_sub_u32 v{A+7}, v{A+9}, v{A+11}', f'v_lshlrev_b32 v{A+11}, 9, v{A+10}', f'v_sub_u32 v{A+14}, v{A+9}, v{A+11}',
              f'v_lshrrev_b32 v{A+11}, 5, v0', f'v_lshlrev_b32 v{A+11}, 9, v{A+11}', f'v_sub_u32 v{A+8}, v{A+9}, v{A+11}', f'v_bfe_u32 v{A+11}, v0, 4, 1', f'v_lshlrev_b32 v{A+11}, 3, v{A+11}', f'v_sub_u32 v{A+8}, v{A+8}, v{A+11}',
              f'v_min_u32 v{A+9}, 39, v0', f'v_lshl_add_u32 v{A+9}, v{A+9}, 4, s57'] + [f'v_mov_b32 v{A+10+i}, 0' for i in range(4)]
        L.append((f'ds_write_b128 v{A+9}, {vr(A+10,4)} offset:4096', 'kt'))
        return L
    def kgen(self):
        a = self.a; P = self.PR; A = 216
        E1, E8, E64, E256, Cc, E2 = 128, 130, 132, 134, 136, 138
        t = 140
        Lhi = f32(LOG2E); Llo = LOG2E - Lhi
        def exp_acc(d, x, t0, t1):
            return [f'v_mul_f32 v{t0}, s40, v{x}', f'v_fma_f32 v{t1}, v{x}, s40, -v{t0}', f'v_fma_f32 v{t1}, v{x}, s41, v{t1}',
                    f'v_exp_f32 v{t0}, v{t0}', f'v_mul_f32 v{t1}, s42, v{t1}', f'v_fma_f32 v{d}, v{t0}, v{t1}, v{t0}']
        L = [f's_mov_b32 s40, {fbits(Lhi)}', f's_mov_b32 s41, {fbits(Llo)}', f's_mov_b32 s42, {fbits(math.log(2))}',
             's_lshr_b32 s31, s29, 1', 's_lshl_b32 s31, s31, 4', lambda: a.waitvm('prm'), lambda: self.g.stamp(17), f'v_lshrrev_b32 v{P+4}, s31, v{P+4}']
        for i in range(5): L.append(f'v_lshlrev_b32 v{P+i}, 16, v{P+i}')
        for x, y in zip(exp_acc(P+4, P+4, t, t+1), exp_acc(P, P, t+2, t+3)): L += [x, y]
        L += [f'v_cvt_pk_bf16_f32 v{P+4}, v{P}, v{P+4}', f'v_lshlrev_b32 v{P}, 16, v{P+4}', f'v_and_b32 v{P+4}, s33, v{P+4}']
        for i in range(4): L.append(f'v_mul_f32 v{P+i}, v{P+i}, v{P+4}')
        L += [f'v_mul_f32 v{t}, {fbits(-LOG2E)}, v{P}', f'v_mul_f32 v{t+4}, 0.15915494, v{P+1}', f'v_add_f32 v{Cc}, v{P+2}, v{P+2}', f'v_add_f32 v{Cc+1}, v{P+3}, v{P+3}']
        for k, p in enumerate([8.0, 64.0, 256.0]): L += [f'v_mul_f32 v{t+1+k}, {fbits(p)}, v{t}', f'v_mul_f32 v{t+5+k}, {fbits(p)}, v{t+4}']
        for k in range(4): L += [f'v_exp_f32 v{t+k}, v{t+k}', f'v_fract_f32 v{t+4+k}, v{t+4+k}']
        for k in range(4): L += [f'v_cos_f32 v{E1+2*k}, v{t+4+k}', f'v_sin_f32 v{E1+1+2*k}, v{t+4+k}']
        for k in range(4): L += [f'v_mul_f32 v{E1+2*k}, v{t+k}, v{E1+2*k}', f'v_mul_f32 v{E1+1+2*k}, v{t+k}, v{E1+1+2*k}']
        fk = lambda i: (lambda: self.g.stamp(i, True) if self.g.opt.get('fine') == 'kg' else None)
        L.append(fk(3))
        O = 140
        def cm(jobs):
            R = []
            for d, x, y in jobs: R.append(f'v_pk_mul_f32 {vr(d,2)}, {vr(x,2)}, {vr(y,2)} op_sel_hi:[1,0]')
            for d, x, y in jobs: R.append(f'v_pk_fma_f32 {vr(d,2)}, {vr(x,2)}, {vr(y,2)}, {vr(d,2)} op_sel:[1,1,0] op_sel_hi:[0,1,1] neg_lo:[1,0,0]')
            return R
        cnt = [0]
        def pack(vals, blk, plane, neg):
            o = O + 8 * (cnt[0] & 1); cnt[0] += 1
            R = []
            for i in range(4): R.append(f'v_cvt_pk_bf16_f32 v{o+i}, v{vals[2*i]}, v{vals[2*i+1]}')
            R.append((f'ds_write_b128 v{A+blk}, {vr(o,4)} offset:{plane*4096}', 'kt'))
            s = '-' if neg else ''
            for i in range(4): R.append(f'v_cvt_pk_bf16_f32 v{o+4+i}, {s}v{vals[2*i]+1}, {s}v{vals[2*i+1]+1}')
            R.append((f'ds_write_b128 v{A+blk}, {vr(o+4,4)} offset:{plane*4096+4096}', 'kt'))
            return R
        B = [156 + 2*i for i in range(26)]
        fa = B[0:8]; fb = B[8:16]; g = [Cc] + B[16:24]
        fa0 = [fa[0], E8] + fa[2:]
        L += [f'v_mov_b32 v{fa[0]}, 1.0', f'v_mov_b32 v{fa[0]+1}, 0']
        L += cm([(fa[2], E8, E8), (g[1], Cc, E1), (E2, E1, E1), (g[8], Cc, E8)])
        L += cm([(fa[3], fa[2], E8), (fa[4], fa[2], fa[2]), (g[2], Cc, E2), (g[3], g[1], E2)])
        L += cm([(fa[5], fa[4], E8), (fa[6], fa[4], fa[2]), (fa[7], fa[4], fa[3]), (g[4], g[2], E2), (g[5], g[3], E2)])
        L += pack(fa0, 0, 2, False)
        fb0 = [E64] + fb[1:]
        L += cm([(g[6], g[4], E2), (g[7], g[5], E2)] + [(fb[i], fa0[i], E64) for i in range(1, 8)])
        L += cm([(fa[i], fb0[i], E64) for i in range(8)])
        L += pack(fb0, 1, 2, False)
        L += cm([(fb[i], fa[i], E64) for i in range(8)])
        L += pack(fa, 2, 2, False)
        h0, h2, h4, h6, h8, i0, i4, i8 = B[0:8]
        j0, j4, j8, k0, k8, l0, l8 = B[8:15]
        L += cm([(h0, g[0], E256), (h2, g[2], E256), (h4, g[4], E256), (h6, g[6], E256), (h8, g[8], E256), (E2, E256, E256)])
        L += pack(fb, 3, 2, False)
        L += cm([(i0, g[0], E2), (i4, g[4], E2), (i8, g[8], E2), (j0, h0, E2), (j4, h4, E2), (j8, h8, E2)])
        L += pack([g[0], g[1], h0, h0, g[2], g[3], h2, h4], 0, 0, True)
        m0, m8, n0, n8 = g[1], g[2], g[3], B[15]
        L += cm([(k0, i0, E2), (k8, i8, E2), (l0, j0, E2), (l8, j8, E2)])
        L += pack([g[4], g[5], h4, h4, g[6], g[7], h6, h8], 1, 0, True)
        L += cm([(m0, k0, E2), (m8, k8, E2), (n0, l0, E2), (n8, l8, E2)])
        L += pack([i0, i4, k0, k8, i4, i8, l0, l8], 2, 0, True)
        L += pack([j0, j4, m0, m8, j4, j8, n0, n8], 3, 0, True)
        L.append(fk(4))
        L.append(BAR)
        L.append(fk(5))
        D = 128; FR = 136
        def rd(j):
            o = 16384 * (j // 4) + 1024 * (j % 4); b = FR + 12 * (j % 5)
            return [(f'ds_read_b64_tr_b16 {vr(b+4*k+2*p,2)}, v{A+(6,4,5)[k]} offset:{o + 4096*p + (8192 if k == 0 else 0)}', f'kr{j}') for k in range(3) for p in range(2)]
        for j in range(2): L += rd(j)
        for j in range(8):
            b = FR + 12 * (j % 5); nx = rd(j+2) if j + 2 < 8 else []
            L += nx[:3]
            L.append(lambda j=j: a.waitlg(f'kr{j}'))
            L.append(f'v_mfma_f32_16x16x32_bf16 {vr(D,4)}, {vr(b+4,4)}, {vr(b,4)}, {"0" if j == 0 else vr(D,4)}')
            L += nx[3:]
            L.append(f'v_mfma_f32_16x16x32_bf16 {vr(D+4,4)}, {vr(b+8,4)}, {vr(b,4)}, {"0" if j == 0 else vr(D+4,4)}')
        L.append(fk(6))
        O = 196
        L += [f'v_cvt_pk_bf16_f32 v{O}, v{D+1}, v{D}', f'v_cvt_pk_bf16_f32 v{O+1}, v{D+3}, v{D+2}',
              f'v_cndmask_b32 v{O+2}, v{D+5}, v{D+4}, s[46:47]', f'v_cndmask_b32 v{O+5}, v{D+7}, v{D+6}, s[58:59]',
              f'v_cvt_pk_bf16_f32 v{O+4}, v{D+7}, v{D+7}', f'v_cvt_pk_bf16_f32 v{O+5}, v{D+7}, v{O+5}', f'v_cvt_pk_bf16_f32 v{O+6}, v{D+6}, v{D+6}', f'v_cvt_pk_bf16_f32 v{O+7}, v{D+6}, v{D+6}',
              (f'ds_write_b128 v{A+14}, {vr(O+4,4)} offset:{4080-2048}', 'kw'),
              f'v_cvt_pk_bf16_f32 v{O+2}, v{D+5}, v{O+2}', f'v_cvt_pk_bf16_f32 v{O+3}, v{D+4}, v{D+4}',
              (f'ds_write_b64 v{A+8}, {vr(O+2,2)} offset:{4088-1024}', 'kw'),
              (f'ds_write_b32 v{A+7}, v{O} offset:4092', 'kw'), (f'ds_write_b32 v{A+7}, v{O+1} offset:{4092-512}', 'kw')]
        return L
    UA = 13; KA_ = 15
    def ubuild(self, T=244, R=232, O=200):
        a = self.a
        L = ['s_mov_b32 s44, 0x05040100', 's_mov_b32 s45, 0x07060302',
             's_lshl_b32 s31, s29, 11', f's_add_u32 s31, s31, {L_RAW}', f'v_lshl_add_u32 v{T+3}, v0, 5, s31']
        L += [f'v_mov_b32 v{T+4+k}, 0' for k in range(4)]
        L += ['s_lshr_b32 s31, s29, 1', f's_mul_i32 s46, s31, {UGRP}', f's_add_u32 s46, s46, {L_U}', 's_and_b32 s47, s29, 1', 's_lshl_b32 s3, s47, 9',
              f'v_and_b32 v{T}, 3, v0', f'v_mul_u32_u24 v{T}, {USTR}, v{T}', f'v_bfe_u32 v{T+2}, v0, 2, 2', f'v_lshl_add_u32 v{T}, v{T+2}, 7, v{T}',
              f'v_and_b32 v{T+2}, 48, v0', f'v_add3_u32 v{self.UA}, v{T}, v{T+2}, s46',
              's_sub_u32 s31, s57, s3', 's_add_u32 s31, s31, 632', f'v_and_b32 v{T}, 15, v0', f'v_lshlrev_b32 v{T}, 3, v{T}', f'v_sub_u32 v{T}, v{T+2}, v{T}', f'v_add_u32 v{self.KA_}, s31, v{T}']
        L += [f'v_lshrrev_b32 v{T+2}, 5, v0', f'v_mul_u32_u24 v{T+2}, {USTR}, v{T+2}', f'v_and_b32 v{T}, 31, v0', f'v_min_u32 v{T}, 23, v{T}',
              f's_mul_i32 s31, s47, {2*USTR}', 's_add_u32 s31, s31, s46', f'v_lshl_add_u32 v{T}, v{T}, 4, v{T+2}', f'v_add_u32 v{T}, s31, v{T}']
        L += ['s_lshl_b32 s31, s29, 10', f's_add_u32 s31, s31, {L_U + 384}', f'v_add_u32 v{T+1}, s31, v7',
              's_cmp_eq_u32 s29, 0', 's_cselect_b32 s31, 0, -1', f'v_cmp_eq_u32 s[58:59], s31, v0']
        L.append(BAR)
        for k in range(3): L.append((f'ds_read_b128 {vr(R+4*k,4)}, v{T+3} offset:{16*k}', 'rr'))
        L.append((f'ds_write_b128 v{T}, {vr(T+4,4)}', 'uw'))
        L.append(lambda: a.waitlg('rr'))
        for k in range(1, 4): L.append(f'v_cndmask_b32 v{R+k}, v{R+k}, v{T+4}, s[58:59]')
        for dl in range(2):
            for e in range(4):
                d = O + 4 * (4*dl + e)
                for k in range(4): L.append(f'v_perm_b32 v{d+k}, v{R+4+2*k+e-2}, v{R+4+2*k+e-3}, s{44+dl}')
                L.append((f'ds_write_b128 v{T+1}, {vr(d,4)} offset:{dl*UGRP+e*USTR}', 'uw'))
        L.append(BAR)
        return L
    def conv(self):
        a = self.a; CA = self.CA
        FB = [192, 224]
        def reads(n):
            r, par = divmod(n, 2)
            L = []
            for i in range(4):
                kk = 3 - i
                pp = 2*kk + 1 - par
                if i == 0: L.append((f'ds_read_b128 {vr(FB[n&1],4)}, v{self.UA} offset:{512*par+64*r}', f't{n}_0'))
                for h in range(2): L.append((f'ds_read_b64 {vr(FB[n&1]+16+4*kk+2*h,2)}, v{self.KA_} offset:{3584 - 512*pp + 64*r + 8*h}', f'k{n}_{kk}'))
            for i in range(1, 4): L.append((f'ds_read_b128 {vr(FB[n&1]+4*i,4)}, v{self.UA} offset:{512*(2*i+par)+64*r}', f't{n}_{i}'))
            return L
        G_ = []
        for n in range(16):
            nx = reads(n+1) if n < 15 else []
            m = 0
            for i in range(4):
                for kk in range(3 - i, -1, -1):
                    A = i + kk
                    tags = [f't{n}_{i}', f'k{n}_{kk}']
                    c = '0' if (n == 0 and i == 0) else vr(CA+4*A, 4)
                    g = [lambda tags=tags: a.waitlg(tags), f'v_mfma_f32_16x16x32_bf16 {vr(CA+4*A,4)}, {vr(FB[n&1]+4*i,4)}, {vr(FB[n&1]+16+4*kk,4)}, {c}']
                    k = 2 if m < 4 else (1 if m < 8 else 0)
                    g += nx[:k]; nx = nx[k:]; m += 1
                    G_.append(g)
            assert not nx
        return reads(0), G_
    def finish(self):
        a = self.a; CA = self.CA; R = 192; T = 224
        L = ['s_and_b32 s3, s29, 1', 's_lshl_b32 s31, s3, 10', f's_add_u32 s31, s31, {L_RAW+16}', f'v_add_u32 v{T}, s31, v7']
        for k in range(4): L.append((f'ds_read_b128 {vr(R+4*k,4)}, v{T} offset:{2048*k}', f'ur{k}'))
        L += ['s_lshr_b32 s31, s29, 1', 's_lshl_b32 s55, s2, 1', 's_add_u32 s55, s55, s31', 's_lshl_b32 s3, s3, 9', 's_lshl_b32 s56, s55, 12', 's_add_u32 s56, s56, s3', f's_add_u32 s56, s56, {WS_ST}',
              's_add_u32 s55, s55, s3', 's_lshl_b32 s55, s55, 7', f's_add_u32 s60, s55, {FS}',
              's_cmp_eq_u32 s31, 0', 's_cselect_b32 s3, 0x01000c0c, 0x03020c0c'.replace(', 0x03020c0c', ', s45x'), f'v_lshlrev_b32 v{T+1}, 3, v0']
        L[-2:-1] = ['s_mov_b32 s3, 0x03020c0c', 's_cselect_b32 s3, 0x01000c0c, s3']
        L.append(f'v_perm_b32 v{T+2}, v{self.DS}, v{self.DS}, s3')
        for k in range(4):
            L.append(lambda k=k: a.waitlg(f'ur{k}'))
            for j in range(4): L.append(f'v_perm_b32 v{R+4*k+j}, v{R+4*k+j}, v{R+4*k+j}, s3')
            for j in range(4): L.append(f'v_fmac_f32 v{CA+4*k+j}, v{R+4*k+j}, v{T+2}')
            for j in range(2): L.append(f'v_cvt_pk_bf16_f32 v{T+4+2*k+j}, v{CA+4*k+2*j}, v{CA+4*k+2*j+1}')
            L.append((f'buffer_store_dwordx2 {vr(T+4+2*k,2)}, v{T+1}, s[12:15], s56 offen offset:{1024*k} sc1', 'sst'))
        return L, self.g.setflag('s60', T+3)

def emit_plain(a, L):
    n = 0
    for x in L:
        if x is BAR:
            a.waitall(vm=False); a('s_barrier'); n += 1
        else: a.emit([x])
    return n


def sizes_of(lines):
    import subprocess, tempfile, os
    d = tempfile.mkdtemp()
    open(d + '/t.s', 'w').write('.amdgcn_target "amdgcn-amd-amdhsa--gfx950"\n' + '\n'.join(lines) + '\n')
    r = subprocess.run(['llvm-mc', '-triple=amdgcn-amd-amdhsa', '-mcpu=gfx950', '-show-encoding', d + '/t.s'], capture_output=True, text=True)
    assert r.returncode == 0, r.stderr[:2000]
    enc = [len(l.split('encoding: [')[1].split(']')[0].split(',')) for l in r.stdout.split('\n') if 'encoding: [' in l]
    idx = [i for i, l in enumerate(lines) if Ins(l).is_ins]
    assert len(enc) == len(idx), (len(enc), len(idx))
    return dict(zip(idx, enc))

def finalize(a, name, opt):
    L, _ = pad_hazards([x for x in a.L], opt.get('verbose'))
    warm = [i for i, x in enumerate(L) if x == '@WARM@']
    base = [x if x != '@WARM@' else '' for x in L]
    sz = sizes_of(base)
    start = base.index('.p2align 12')
    out = base[:start + 1]; addr = 0; pads = []
    stop = base.index(f'{name}_tcomp:')
    n = len(base); i = start + 1
    E64 = ('v_add_f32', 'v_mul_f32', 'v_sub_f32', 'v_lshlrev_b32', 'v_and_b32', 'v_xor_b32', 'v_or_b32', 'v_mov_b32', 'v_exp_f32', 'v_rcp_f32', 'v_add_u32', 'v_max_f32',
           'v_lshrrev_b32', 'v_sqrt_f32', 'v_fmac_f32', 'v_max_u32', 'v_min_u32', 'v_sin_f32', 'v_cos_f32', 'v_fract_f32')
    while i < n:
        ln = base[i]
        if i in sz:
            if addr >= 4096 * (len(pads) + 1) and i < stop and not opt.get('nopad'):
                lb = f'{name}_pad{len(pads)}'; pads.append(lb)
                out.append(f'{lb}:'); out.append(f'@PAD{len(pads)-1}@'); addr += 4
            s = sz[i]
            if s == 4 and not opt.get('noalign') and (addr + 4) % 8 == 4:
                j = i + 1; run = 0; mf = 0
                while j < n and (j not in sz or sz[j] == 8):
                    if j in sz:
                        run += 1; mf += base[j].startswith('v_mfma')
                    j += 1
                mn = ln.split()[0]
                if run >= 3 and mn in E64:
                    ln = ln.replace(mn, mn + '_e64', 1); s = 8
                elif run >= 10 and mf == 0:
                    out.append('s_nop 0'); addr += 4
            addr += s
        out.append(ln); i += 1
    res = []; wi = 0
    for k, x in enumerate(out):
        if x.startswith('@PAD'):
            p = int(x[4:-1])
            res.append(f's_cbranch_execz {name + "_warmret0" if p < 2 else pads[p+2] if p + 2 < len(pads) else name + "_warmret1"}')
        elif k in warm and pads:
            res += ['s_mov_b64 exec, 0', 's_cmp_eq_u32 s18, 0', f's_cbranch_scc1 {pads[2*wi]}', f's_branch {pads[2*wi+1]}', f'{name}_warmret{wi}:', 's_mov_b64 exec, -1']
            wi += 1
        else: res.append(x)
    return '\n'.join(res) + '\n'

def fused(name, opt):
    g = G(name, opt); a = g.a; ssm = SSM(g); stamp = g.stamp
    nb = {'gl': 0, 'gc': 0, 'tl': 0, 'tc': 0}
    NR = opt.get('nr', 4)
    rp = opt.get('rpat', 'SSSSSSR')
    pat = ''
    while len(pat) < 32:
        ch = rp[len(pat) % len(rp)]
        pat += ch if pat.count('R') < NR else 'S'
    RPOS = [k for k in range(32) if pat[k] == 'R']; SPOS = [k for k in range(32) if pat[k] == 'S']
    MEM = {k: r for r, k in enumerate(RPOS)}; MEM.update({k: NR + s for s, k in enumerate(SPOS)})
    SIDX = {k: s for s, k in enumerate(SPOS)}
    assert len(SPOS) % 4 == 0 and SPOS[-4:] == [28, 29, 30, 31]
    W3 = [(0, 29), (8192, 29), (L_Z, 29), (16384, 30), (24576, 30), (L_Z + 8192, 30), (32768, 31), (40960, 31), (L_Z + 16384, 31),
          (147456, 31), (155648, 31), (49152, 32), (57344, 32), (L_Z + 24576, 32)]
    W3LOC = [x[0] for x in W3]
    kernel_begin(a, name)
    lab = lambda s: f'{name}_{s}'
    a(f's_cmp_ge_u32 s2, 256\ns_cbranch_scc1 {lab("done")}')
    if opt.get('prof'): a('s_memrealtime s[62:63]\ns_memtime s[66:67]')
    a(f's_load_dwordx2 s[4:5], s[0:1], {KA["u"]}\ns_load_dwordx2 s[12:13], s[0:1], {KA["ws"]}')
    a('''v_lshrrev_b32 v1, 6, v0
s_and_b32 s24, s2, 7
s_bfe_u32 s25, s2, 0x20003
v_readfirstlane_b32 s29, v1
s_lshr_b32 s26, s24, 1
s_lshl_b32 s26, s26, 2
s_add_u32 s26, s26, s25
s_lshr_b32 s27, s2, 5
s_and_b32 s30, s24, 1
s_mul_i32 s28, s30, 7
s_add_u32 s28, s28, s27
v_and_b32 v0, 63, v0''')
    a(f's_cmp_ge_u32 s29, 4\ns_cbranch_scc1 {lab("help")}')
    a(f's_load_dwordx8 s[40:47], s[0:1], {KA["logA"]}\ns_load_dwordx4 s[48:51], s[0:1], {KA["logdt"]}')
    a(f's_load_dwordx2 s[18:19], s[0:1], {KA["bsp"]}\ns_load_dwordx2 s[20:21], s[0:1], {KA["out"]}')
    a.emit(ssm.param_addr())
    a(f's_lshl_b32 s35, s26, 2\ns_add_u32 s35, s35, s29\ns_mul_i32 s54, s35, 57344\ns_lshl_b32 s31, s28, 12\ns_add_u32 s54, s54, s31\ns_add_u32 s54, s54, {WS_HF}')
    a('v_lshlrev_b32 v7, 4, v0\nv_mov_b32 v8, -1\nv_mov_b32 v9, -1\nv_mov_b32 v10, -1\nv_mov_b32 v11, -1')
    a('s_waitcnt lgkmcnt(0)')
    tagload = f's_add_u32 s16, s12, {WS_EPOCH}\ns_addc_u32 s17, s13, 0\ns_load_dword s24, s[16:17], 0'
    tagmake = 's_waitcnt lgkmcnt(0)\ns_mul_i32 s24, s24, 0x19660d\ns_add_u32 s24, s24, 0x3c6ef35f'
    a.emit(ssm.param_loads())
    a(tagload)
    a(f's_cmp_eq_u32 s27, 7\ns_cbranch_scc1 {lab("tcomp")}')
    hcl = opt.get('hcl', 't')
    if hcl == 'g':
        a(f's_and_b32 s13, s13, 0xffff\ns_mov_b32 s14, {hex(WS_BYTES)}\ns_mov_b32 s15, 0x20000')
        for q in range(4): a(f'buffer_store_dwordx4 v[8:11], v7, s[12:15], s54 offen offset:{1024*q} sc1')
    a(f's_branch {lab("comp")}')
    a(f'{lab("help")}:')
    a(f's_load_dwordx2 s[8:9], s[0:1], {KA["win"]}\ns_load_dwordx2 s[20:21], s[0:1], {KA["wsp"]}\ns_load_dwordx2 s[36:37], s[0:1], {KA["wout"]}')
    a('s_and_b32 s18, s29, 1\ns_lshl_b32 s19, s18, 12')
    srdc = f's_mov_b32 s14, {hex(WS_BYTES)}\ns_mov_b32 s15, 0x20000\ns_mov_b32 s6, 0x200000\ns_mov_b32 s7, 0x20000'
    a(srdc)
    if not opt.get('nocpf'):
        a(f's_getpc_b64 s[56:57]\n{lab("pc")}:\ns_lshr_b32 s31, s2, 2\ns_and_b32 s31, s31, 62\ns_add_u32 s31, s31, s18\nv_and_b32 v1, 7, v0\nv_lshlrev_b32 v1, 6, v1\nv_add_lshl_u32 v1, v1, s31, 7\nv_min_u32 v1, {lab("done")}-{lab("pc")}, v1')
        a('global_load_dword v31, v1, s[56:57]')
    a(f's_cmp_eq_u32 s27, 7\ns_cbranch_scc1 {lab("thelp")}')

    def rot3(r):
        sm, sn = opt.get('sm3', 0), opt.get('sn3', 0)
        a(f's_mul_i32 s{r}, s25, {sm}\ns_mul_i32 s31, s27, {sn}\ns_add_u32 s{r}, s{r}, s31\ns_lshr_b32 s{r}, s{r}, 4\ns_sub_u32 s31, s{r}, 14\ns_cmp_ge_u32 s{r}, 14\ns_cselect_b32 s{r}, s31, s{r}')
    def late_loader_setup():
        a(f's_mov_b32 s22, 0x800000\ns_mov_b32 s23, 0x20000\ns_mov_b32 s38, {896*1024}\ns_mov_b32 s39, 0x20000')
        a('s_and_b32 s21, s21, 0xffff\ns_and_b32 s37, s37, 0xffff\ns_and_b32 s13, s13, 0xffff')
        a('v_lshl_add_u32 v14, v0, 4, s19\nv_lshlrev_b32 v15, 7, v0')
        a('s_lshl_b32 s31, s27, 7\ns_lshl_b32 s3, s18, 15\ns_add_u32 s31, s31, s3'); troffs(a, 16, 1024, 's31')
        a('s_lshl_b32 s32, s26, 1\ns_add_u32 s32, s32, s30\ns_lshl_b32 s3, s32, 6'); rowoffs(a, 20, 's3', 10, 's31')
        rot3(60)
        a(f's_lshl_b32 s35, s2, 13')
        a(f's_lshr_b32 s31, s2, 7\ns_lshl_b32 s31, s31, 13\ns_add_u32 s59, s31, s19\ns_add_u32 s59, s59, {FX}\nv_and_b32 v32, 0xfff, v15')
        if hcl == 't': a(f'v_min_u32 v33, {3*128}, v15\ns_lshl_b32 s31, s26, 9\ns_add_u32 s31, s31, {FH}')
        else:
            a(f'v_min_u32 v33, 13, v0\nv_lshlrev_b32 v33, 13, v33\ns_lshl_b32 s31, s32, 1\ns_add_u32 s31, s31, s18\ns_lshl_b32 s31, s31, 7\ns_add_u32 s31, s31, {FZ}')
        a(f"""v_add_u32 v33, s31, v33
s_lshl_b32 s31, s27, 13
s_bfe_u32 s3, s26, 0x10001
s_lshl_b32 s3, s3, 16
s_add_u32 s31, s31, s3
s_add_u32 s31, s31, s19
s_add_u32 s61, s31, {FS}
v_mov_b32 v36, -1
v_mov_b32 v37, -1
v_mov_b32 v38, -1
v_mov_b32 v39, -1
v_mov_b32 v34, 0
v_lshlrev_b32 v44, 2, v0
s_lshl_b32 s31, s27, 18
s_lshl_b32 s3, s18, 17
s_add_u32 s31, s31, s3
s_lshl_b32 s3, s32, 7
s_add_u32 s31, s31, s3
s_add_u32 s31, s31, {WS_ST}""")
        troffs(a, 40, 4096, 's31')
    def adv(r): return [f's_add_u32 s{r}, s{r}, 1', f's_cmp_eq_u32 s{r}, 14', f's_cselect_b32 s{r}, 0, s{r}']
    def w3(j, need=None): return grp(W3LOC[j], ['s_lshl_b32 s56, s60, 16'] + adv(60), 16, 's[36:39]', 's56', need=need)
    def x3(need=None): return grp(L_X3, None, 20, 's[4:7]', '0', need=need)
    w3m = opt.get('w3m', 14)
    fsload = 'buffer_load_dword v27, v32, s[12:15], s61 offen sc1'
    def s3tail():
        if w3m < 14:
            paced(sum([w3(j) for j in range(w3m, 14)], []), opt.get('thin4', 60))
            a.L.append(fsload)
            a('s_waitcnt vmcnt(1)\ns_barrier\ns_waitcnt vmcnt(0)')
        lspin('s61', 'v32', w3m < 14)
        stream_emit(a, grp(L_S3, None, 40, 's[12:15]', '0', fl='sc1'), 0, 0)
        a('s_waitcnt vmcnt(0)')
        stamp(15)
    def rawg(cb=None): return grp(L_RAW + 16, [f's_add_u32 s31, s35, {WS_XNT}'], 14, 's[12:15]', 's31', True, cb, None, 'sc1')
    def lspin(soff, voff, first=False):
        lp = a.newlab('lsp'); lo = a.newlab('lspo')
        a(f's_mov_b32 s58, {SPIN}')
        if first: a(f's_branch {lp}c')
        a(f'{lp}:')
        a.L.append(f'buffer_load_dword v27, {voff}, s[12:15], {soff} offen sc1'); a.L.append('s_waitcnt vmcnt(0)')
        a(f'{lp}c:\nv_cmp_ne_u32 vcc, s24, v27\ns_cbranch_vccz {lo}\ns_sub_u32 s58, s58, 1\ns_cmp_lg_u32 s58, 0\ns_cbranch_scc1 {lp}\n{lo}:')
    def lflag(soff):
        a('s_mov_b32 exec_hi, 0'); a.L.append(f'buffer_store_dword v35, v44, s[12:15], {soff} offen sc1'); a('s_mov_b64 exec, -1')
    def paced(items, thin):
        for i in range(0, len(items), 4):
            stream_emit(a, items[i:i+4], 0, 0)
            if thin < 60: a(f's_waitcnt vmcnt({thin})')
    ft = opt.get('ft', ''); gs = opt.get('gs', 2); lg = gs.bit_length() - 1
    prog = opt.get('prog', 8)
    RG = 32 if prog else opt.get('rg', 1)
    def k0calc(r, with_c):
        if prog: a(f's_lshr_b32 s{r}, s26, 2\ns_lshl_b32 s{r}, s{r}, 3\ns_add_u32 s{r}, s{r}, {(32 - NR) % 32}')
        else: a(f's_mul_i32 s{r}, s25, {RG // 4 if RG >= 4 else 0}')
    def memidx(d, r, idx): return [f's_add_u32 s{d}, s{r}, {idx}', f's_and_b32 s{d}, s{d}, {RG-1}', f's_or_b32 s{d}, s{d}, {idx & ~(RG-1)}']
    def wtouch(groups, other, pace):
        for gi in groups:
            assert RG == 1 or (RG // 4) % gs == 0
            a(f's_xor_b32 s31, s30, {other}\ns_add_u32 s31, s31, {2*gi}\ns_lshl_b32 s31, s31, {lg}\ns_and_b32 s3, s31, {31 & ~(RG-1)}\ns_add_u32 s31, s31, s45\ns_and_b32 s31, s31, {RG-1}\ns_or_b32 s31, s31, s3\ns_lshl_b32 s31, s31, 7')
            for i in range(gs):
                a.L.append(f'buffer_load_dword v30, v29, s[20:23], s31 offen {ft}')
                if i + 1 < gs: a(f's_add_u32 s31, s31, {(64 // gs) * 4096}')
                if pace is not None: a(f's_waitcnt vmcnt({pace})')
    def count_bars(start): return sum(1 for x in a.L[start:] if x.strip() == 's_barrier')

    st0 = len(a.L)
    XO = [131072, 49152, 65536, 81920, 98304, 114688, 131072, 0]
    a('s_lshl_b32 s34, s25, 1\ns_add_u32 s34, s34, s27\ns_and_b32 s34, s34, 7\ns_lshl_b32 s33, s26, 7\ns_lshl_b32 s3, s18, 5\ns_add_u32 s33, s33, s3')
    rowoffs(a, 2, 's33', 10)
    a(f's_lshl_b32 s31, s28, 7\ns_mul_i32 s3, s18, {32*3584}\ns_add_u32 s31, s31, s3'); troffs(a, 6, 3584, 's31')
    def so(c): a(f's_add_u32 s31, s34, {c}\ns_and_b32 s31, s31, 7\ns_lshl_b32 s{40+c}, s31, 7\ns_mul_i32 s{48+c}, s31, {64*3584}')
    for c in range(4): so(c)
    a(f's_mov_b32 s10, {512*3584}\ns_mov_b32 s11, 0x20000')
    a('s_waitcnt lgkmcnt(0)')
    a(tagload)
    a('s_and_b32 s5, s5, 0xffff\ns_and_b32 s9, s9, 0xffff')
    f1 = opt.get('f1', '')
    def wg(p, cb=None): return grp(p*8192, [f's_add_u32 s31, s{48+p%8}, {1792 if p < 8 else 0}'], 6, 's[8:11]', 's31', cb=cb, fl=f1)
    def xg(c, need=None):
        return sum([grp(XO[c] + k*8192, [f's_add_u32 s31, s{40+c}, {k*65536}'], 2, 's[4:7]', 's31', cb=c+1, need=need if k == 0 else None, fl=f1) for k in range(2)], [])
    we = opt.get('we', 3)
    items = xg(0) + wg(0, 1) + wg(1, 2) + xg(1) + sum([wg(p, p+1) for p in range(2, we + 1)], [])
    for c in range(2, 8):
        items += xg(c, 1)
        if c > we: items += wg(c, c+1)
    ncs = opt.get('ncs', 4)
    for p in range(8, 8 + ncs): items += wg(p)
    early = opt.get('early', 2)
    def setup2():
        for c in range(4, 8): so(c)
        late_loader_setup()
        rowoffs(a, 10, 's33', 12)
        k0calc(57, True)
    if early >= 1: setup2()
    if early >= 2: a('@WARM@')
    def hook1(b, k):
        if b == 0 and k == -1:
            if early < 1: setup2()
            if early < 2: a('@WARM@')
            a(tagmake + '\nv_mov_b32 v35, s24')
        if k == 1 and b in (1, 8): stamp({1: 1, 8: 2}[b])
    stream_emit(a, items, 9, opt.get('d1', 16), hook1)
    a(f's_lshl_b32 s34, s28, 18\ns_lshl_b32 s31, s28, 13\ns_lshl_b32 s3, s18, 7\ns_add_u32 s44, s31, s3\ns_add_u32 s44, s44, {FZ}\nv_lshlrev_b32 v28, 1, v32')
    a('s_barrier')
    stream_emit(a, sum([wg(p) for p in range(8 + ncs, 16)], []), 0, 0)
    fw = opt.get('fw', '')
    wcnt = [0]
    def wst(slot, half, cb=None, need=None):
        if half == 0:
            su = memidx(42, 57, wcnt[0] % opt.get('wfix', 32)) + ['s_lshl_b32 s42, s42, 7']; wcnt[0] += 1
        else: su = ['s_add_u32 s42, s42, 0x40000']
        return grp(slot * 16384 + half*8192, su, 10, 's[20:23]', 's42', cb=cb, need=need, fl=fw)
    def wfull(slot): return wst(slot, 0) + wst(slot, 1)
    def zst(k, cb=None, need=None):
        return grp(L_Z + (k % 4) * 8192, memidx(43, 57, MEM[k] % opt.get('zfix', 32)) + ['s_lshl_b32 s43, s43, 13', 's_add_u32 s43, s43, s34'], 14, 's[12:15]', 's43', True, cb, need, 'sc1')
    pre1 = opt.get('pre1', 2); thin = opt.get('thin', 12)
    for k in range(pre1): paced(wfull(k), thin)
    a(f's_waitcnt vmcnt({8*pre1})\ns_barrier')
    pre2 = opt.get('pre2', 4)
    for k in range(pre1, pre2): paced(wfull(k), thin)
    a('@WARM@')
    if pre2 < 4:
        a('s_barrier')
        for k in range(pre2, 4): paced(wfull(k), 60)
    stamp(3)
    spre = 4 if NR == 0 else opt.get('spre', 4)
    sp1 = min(spre, opt.get('sp1', 2))
    lspin('s59', 'v32')
    gt = opt.get('gt', 1)
    def gtouch():
        assert gs == 2 and RG == 32
        a('s_and_b32 s3, s27, 1\ns_lshl_b32 s3, s3, 6\ns_add_u32 s3, s3, s33\nv_lshrrev_b32 v29, 1, v0\nv_add_u32 v29, s3, v29\nv_lshlrev_b32 v29, 5, v29\nv_and_b32 v1, 1, v0\nv_add_lshl_u32 v29, v29, v1, 7')
        for i in range(gt):
            a(f's_lshr_b32 s31, s27, 1\ns_min_u32 s31, s31, 2\ns_add_u32 s31, s31, {8 - 3*gt + 3*i}\ns_lshl_b32 s31, s31, 1\ns_add_u32 s31, s31, s30\ns_lshl_b32 s31, s31, 1\ns_add_u32 s31, s31, s57\ns_and_b32 s31, s31, 31\ns_lshl_b32 s31, s31, 7')
            a.L.append('buffer_load_dword v30, v29, s[20:23], s31 offen')
    if NR >= 4: a('s_barrier')
    if gt: gtouch()
    a('s_barrier')
    stream_emit(a, rawg(0) + (sum([wfull(k) for k in range(sp1)], []) if NR >= 4 else []), 1, 64)
    if NR >= 4:
        for k in range(sp1, spre): paced(wfull(k), 60)
    npre = opt.get('npre', 0)
    if npre: a('s_barrier')
    stamp(4)
    if prog:
        assert all(pat[k] == 'S' for k in range(min(prog, 6)))
        pn = min(prog, pat.index('R') if 'R' in pat else 32)
        a(f's_lshr_b32 s31, s26, 2\ns_lshl_b32 s31, s31, 11\nv_min_u32 v45, {(pn-1)*256}, v28\nv_add_u32 v45, s31, v45')
        lspin('s44', 'v45')
    else: lspin('s44', 'v28')
    stamp(5)
    tiles = [(k, 0, lambda k=k: zst(k, k, k - 3 if k >= 4 else None)) for k in range(32)]
    last = -1
    for s in range(spre, len(SPOS)):
        need = SPOS[s-4] + 1 if s >= 4 else None
        for h in range(2):
            key = min(SPOS[s] - 0.5, max((need + 3 if need is not None else 0) - 0.5, last + opt.get('wgap', 10) / 10))
            last = key
            tiles.append((key, s*2 + h + 1, lambda s=s, h=h, need=need: wst(s % 4, h, SPOS[s], need)))
    hc = opt.get('hc', 28)
    if hcl != 'g': tiles.append((hc - 0.9, 0, lambda: [([], 'buffer_load_dword v27, v33, s[12:15], 0 offen sc1', hc, None)]))
    if prog:
        pb = pn - 3
        tiles.append((pb + 0.1, 0, lambda: [([], 'buffer_load_dword v27, v28, s[12:15], s44 offen sc1', pb, None)]))
    tiles.sort(key=lambda x: (x[0], x[1]))
    items = sum([t[2]() for t in tiles], [])
    w3e = opt.get('w3e', 6)
    for j in range(w3e): items += w3(j, W3[j][1])
    hk = {(0,1): 6, (4,1): 7, (8,1): 8, (16,1): 9, (24,1): 10, (31,1): 11, (16,0): 16, (24,0): 17, (32,1): 12}
    hintb = opt.get('hintb', 32)
    def hook2(b, k):
        if (b, k) in hk: stamp(hk[(b, k)])
        if prog and (b, k) == (pb, 1): lspin('s44', 'v28', True)
        if (b, k) == (hc, 1) and hcl != 'g': lspin('0', 'v33', True)
        if (b, k) == (hintb, 1):
            sk = a.newlab('nohint')
            a(f's_or_b32 s3, s27, s18\ns_cmp_lg_u32 s3, 0\ns_cbranch_scc1 {sk}\ns_lshl_b32 s3, s32, 7\ns_add_u32 s3, s3, {FT}')
            lflag('s3')
            a(f'{sk}:')
    stream_emit(a, items, 33, lambda b: opt.get('d2', 20) if b < 30 else opt.get('d2e', 12), hook2)
    hb = opt.get('hb', 7)
    if hb:
        paced(x3() + sum([w3(j) for j in range(w3e, hb)], []), 60)
        hook2(32.5, 1)
        a('s_barrier')
        paced(sum([w3(j) for j in range(max(hb, w3e), w3m)], []), 60)
    else: paced(x3() + sum([w3(j) for j in range(w3e, w3m)], []), 60)
    stamp(14)
    hook2(33, 1)
    a('s_waitcnt vmcnt(0)')
    hook2(34, 1)
    a('s_barrier')
    stamp(13)
    s3tail()
    nb['gl'] = count_bars(st0)
    g.prof_store()
    a('s_endpgm')

    a(f'{lab("thelp")}:')
    st0 = len(a.L)
    a('v_mov_b32 v36, -1\nv_mov_b32 v37, -1\nv_mov_b32 v38, -1\nv_mov_b32 v39, -1\nv_lshlrev_b32 v14, 4, v0')
    a(f's_lshl_b32 s31, s26, 1\ns_add_u32 s31, s31, s30\ns_lshl_b32 s31, s31, 1\ns_add_u32 s31, s31, s18\ns_lshl_b32 s31, s31, 13\ns_add_u32 s31, s31, {WS_STATS}')
    a('s_waitcnt lgkmcnt(0)')
    a(tagload)
    a('s_and_b32 s5, s5, 0xffff\ns_and_b32 s13, s13, 0xffff')
    for q in range(4): a.L.append(f'buffer_store_dwordx4 v[36:39], v14, s[12:15], s31 offen offset:{1024*q} sc1')
    late_loader_setup()
    if opt.get('tlbs'): a(f's_load_dwordx2 s[40:41], s[0:1], {KA["out"]}\ns_load_dwordx2 s[42:43], s[0:1], {KA["bsp"]}')
    k0calc(45, False)
    a(f's_lshl_b32 s31, s26, 7\ns_lshl_b32 s3, s18, 6\ns_add_u32 s31, s31, s3\nv_lshrrev_b32 v29, {lg}, v0\nv_add_u32 v29, s31, v29\nv_lshlrev_b32 v29, 5, v29\nv_and_b32 v1, {gs-1}, v0\nv_add_lshl_u32 v29, v29, v1, 7')
    ng = 16 // gs; tp_ = opt.get('tpace', 2); te = opt.get('te', 4) // gs
    a(tagmake + '\nv_mov_b32 v35, s24')
    if opt.get('tlbs'):
        st = opt['tlbs'] << 10
        a('s_lshl_b32 s31, s26, 19\ns_load_dword s46, s[20:21], s31')
        for o in range(0, 12 << 20, st): a(f's_mov_b32 s31, {o}\ns_load_dword s46, s[12:13], s31')
        a('s_load_dword s46, s[42:43], 0\ns_load_dword s46, s[36:37], 0\ns_load_dword s46, s[40:41], 0')
    a('s_waitcnt vmcnt(0)')
    stamp(1)
    a('s_barrier')
    te = opt.get('te', 0) // gs
    wtouch(range(te), 0, None)
    a('s_barrier')
    tm = opt.get('tm', 2) // gs; tn = opt.get('tn', 8) // gs
    wtouch(range(te, max(te, tm)), 0, None); tm = max(te, tm)
    a('s_barrier')
    wtouch(range(tm, min(tn, ng - 3*gt)), 0, None)
    a('s_barrier')
    a('s_barrier')
    lspin('s59', 'v32')
    stream_emit(a, rawg(0), 1, 0)
    stamp(5)
    wtouch(range(tn, ng - 3*gt), 0, None)
    a('s_barrier')
    stamp(2)
    if hcl == 't':
        cl_ = a.newlab('hclr')
        a(f's_lshl_b32 s41, s32, 1\ns_add_u32 s41, s41, s18\ns_mul_i32 s31, s41, 57344\ns_sub_u32 s31, s31, s19\ns_add_u32 s31, s31, {WS_HF}\ns_mov_b32 s3, 14\n{cl_}:')
        for q in range(4): a.L.append(f'buffer_store_dwordx4 v[36:39], v14, s[12:15], s31 offen offset:{1024*q} sc1')
        a(f's_add_u32 s31, s31, 4096\ns_sub_u32 s3, s3, 1\ns_cmp_lg_u32 s3, 0\ns_cbranch_scc1 {cl_}')
        a(f's_waitcnt vmcnt(0)\ns_lshl_b32 s31, s41, 7\ns_add_u32 s31, s31, {FH}')
        lflag('s31')
    stamp(3)
    a('s_barrier')
    wtouch(range(opt.get('tskip', 16) // gs, ng), 1, tp_)
    nwo = opt.get('nwo', 14)
    a(f's_lshl_b32 s41, s25, 1\ns_add_u32 s41, s41, s18\ns_mul_i32 s41, s41, {14*8192}\ns_and_b32 s40, s2, 7\ns_mul_i32 s40, s40, 7\ns_lshr_b32 s40, s40, 2')
    for i in range(nwo):
        a('s_lshl_b32 s31, s40, 13\ns_add_u32 s31, s31, s41')
        a.L.append('buffer_load_dword v30, v15, s[36:39], s31 offen')
        a('\n'.join(adv(40)))
    paced(x3() + sum([w3(j) for j in range(w3m)], []), 60)
    stamp(6)
    if hcl != 't': lspin('0', 'v33')
    stamp(12)
    a(f's_lshl_b32 s3, s32, 7\ns_add_u32 s3, s3, {FT}')
    lspin('s3', 'v34')
    a('s_barrier\ns_barrier')
    stamp(13)
    s3tail()
    nb['tl'] = count_bars(st0)
    g.prof_store()
    a('s_endpgm')

    a('.p2align 12')
    a(f'{lab("comp")}:')
    g.comp = True
    a.vm = ['prm'] * 6 + (['hcl'] * 4 if hcl == 'g' else []); a.lg = []
    def cprologue():
        a(srdc)
        a('s_mov_b32 s33, 0xffff0000\ns_mov_b32 s34, 0x3f803f80\ns_mov_b32 s22, 0x200000\ns_mov_b32 s23, 0x20000')
        a('s_and_b32 s5, s5, 0xffff\ns_and_b32 s13, s13, 0xffff\ns_and_b32 s21, s21, 0xffff')
        a('v_lshlrev_b32 v7, 4, v0\nv_lshlrev_b32 v6, 2, v0')
    cprologue()
    a(f's_lshl_b32 s35, s26, 2\ns_add_u32 s35, s35, s29\ns_lshl_b32 s31, s35, 13\ns_add_u32 s37, s31, {WS_STATS}\ns_add_u32 s60, s37, 4096\ns_lshl_b32 s3, s28, 8\ns_add_u32 s38, s37, s3')
    a.emit(ssm.kaddr())
    X = 128; A2 = 64; A1 = 96; WF = 32
    XR = A1; ST = A1 + 4; T = A1 + 8; SD = A1 + 16; CC = A1 + 18; NM = A1 + 20; FL = A1 + 22
    WR = 8; SEL = 16; CS = 24; NEG = 28
    a('s_lshl_b32 s32, s29, 12\ns_add_u32 s32, s32, 131072')
    a.emit(rowread_list(1, 2, 's32') + trread_list(3, 2))
    for i in range(4):
        a(f's_add_u32 s31, s29, {i}\ns_and_b32 s31, s31, 3\ns_lshl_b32 s3, s31, 5\nv_xor_b32 v{XR+i}, s3, v1\ns_lshl_b32 s3, s31, 11\nv_add_u32 v{WR+2*i}, s3, v3\nv_xor_b32 v{WR+1+2*i}, 64, v{WR+2*i}')
    a(f'''v_bfe_u32 v1, v0, 4, 1
v_lshlrev_b32 v1, 2, v1
v_and_b32 v2, 15, v0
v_cmp_eq_u32 vcc, v1, v2
v_mov_b32 v3, s34
v_add_u32 v1, 8, v1
v_cndmask_b32 v{SEL}, 0, v3, vcc
v_cmp_eq_u32 vcc, v1, v2
s_lshl_b32 s31, s29, 2
s_add_u32 s31, s31, {L_CS}
v_cndmask_b32 v{SEL+4}, 0, v3, vcc
v_add_u32 v1, s31, v7
v_and_b32 v2, 511, v7
v_add_u32 v2, {L_CS}, v2''')
    for i in range(1, 4): a(f'v_mov_b32 v{SEL+i}, v{SEL}\nv_mov_b32 v{SEL+4+i}, v{SEL+4}')
    a(f's_lshl_b32 s31, s35, 12\ns_lshl_b32 s3, s28, 8')
    a(f's_lshl_b32 s52, s28, 18\ns_add_u32 s52, s52, s31')
    a(f's_lshl_b32 s31, s35, 2\ns_add_u32 s53, s31, s3\ns_lshl_b32 s53, s53, 5\ns_add_u32 s53, s53, {FZ}')
    a(tagmake); a.lg = []
    a(f'{lab("kgen")}:')
    emit_plain(a, ssm.kgen())
    stamp(1)
    a(f's_cmp_eq_u32 s27, 7\ns_cbranch_scc1 {lab("tcomp2")}')
    lg_split = list(a.lg)
    st0 = len(a.L)
    def xreads(c, base, off): return [(f'ds_read_b128 {vr(X+16*c+4*i,4)}, v{base+i} offset:{off}', f'xr{c}') for i in range(4)]
    XB = [131072, 49152, 49152, 49152, 49152, 114688, 114688, 0]
    def gx(c):
        L = []
        if c and XB[c] != XB[c-1]: L += [f'v_add_u32 v{XR+i}, {hex((XB[c] - XB[c-1]) & 0xffffffff)}, v{XR+i}' for i in range(4)]
        return L, xreads(c, XR, XO[c] - XB[c])
    def dots(c, S):
        for i in range(16):
            r = X + 16*c + i
            a(f'v_dot2c_f32_bf16 v{S + 2*(i&1)}, s34, v{r}\nv_dot2c_f32_bf16 v{S + 1 + 2*(i&1)}, v{r}, v{r}')
    def redux(S): return [f'v_add_f32 v{S}, v{S}, v{S+2}', f'v_add_f32 v{S+1}, v{S+1}, v{S+3}', f'v_mov_b32 v{S+2}, v{S}', f'v_mov_b32 v{S+3}, v{S+1}',
             f'v_permlane32_swap_b32 v{S}, v{S+2}', f'v_permlane32_swap_b32 v{S+1}, v{S+3}', f'v_add_f32 v{S}, v{S}, v{S+2}', f'v_add_f32 v{S+1}, v{S+1}, v{S+3}']
    def wreads(t):
        n, i = divmod(t, 4)
        L = []
        for fb in range(2):
            d = WF + 8*i + 4*fb
            L.append((f'ds_read_b64_tr_b16 {vr(d,2)}, v{WR+2*i+fb} offset:{(n%8)*8192}', f'wr{t}'))
            L.append((f'ds_read_b64_tr_b16 {vr(d+2,2)}, v{WR+2*i+fb} offset:{(n%8)*8192+512}', f'wr{t}'))
        return L
    def mfmas(t):
        n, i = divmod(t, 4); acc = A2 if n < 8 else A1; f = t % 32
        L = []
        for fb in range(2):
            c = '0' if f == 0 else vr(acc+16*fb, 16)
            L.append(f'v_mfma_f32_32x32x16_bf16 {vr(acc+16*fb,16)}, {vr(WF+8*i+4*fb,4)}, {vr(X+4*f,4)}, {c}')
        if i == 0:
            cs = [f'v_mfma_f32_16x16x32_bf16 {vr(CS,4)}, {vr(SEL+4*fb,4)}, {vr(WF+4*fb,4)}, {"0" if (f == 0 and fb == 0) else vr(CS,4)}' for fb in range(2)]
            L = ['\n'.join(cs + L[:1]), L[1]]
        return L
    def cs_write(part, T):
        return [f'v_cvt_pk_bf16_f32 v{T}, v{CS}, v{CS}', f'v_lshlrev_b32 v{T}, 16, v{T}', f'v_sub_f32 v{T}, v{CS}, v{T}', f'v_cvt_pk_bf16_f32 v{T}, v{CS}, v{T}',
                (f'ds_write_b32 v1, v{T} offset:{part*1024}', 'csw')]
    def cs_read(part, T):
        return [lambda: a.waitall(vm=False), 's_barrier'] + [(f'ds_read_b128 {vr(T+4*fb,4)}, v2 offset:{part*1024 + 512*fb}', 'csr') for fb in range(2)]
    def cs_apply(acc, T):
        return [lambda: a.waitlg('csr')] + [f'v_mfma_f32_32x32x16_bf16 {vr(acc+16*fb,16)}, {vr(T+4*fb,4)}, {vr(NEG,4)}, {vr(acc+16*fb,16)}' for fb in range(2)]
    def gconst(cc, r): return [f'v_mul_f32 v{cc+1}, {fbits(C0)}, v{r}', f'v_mul_f32 v{cc}, v{r}, v{r}', f'v_mul_f32 v{cc}, v{cc}, v{cc+1}', f'v_mul_f32 v{cc}, {fbits(0.044715)}, v{cc}']
    def halves(S, Q): return [f'v_permlane32_swap_b32 v{S}, v{Q}', f'v_add_f32 v{S}, v{S}, v{Q}', f'v_mov_b32 v{S+1}, v{S}', f'v_permlane32_swap_b32 v{S}, v{S+1}']
    fin1 = halves(ST, ST+2) + ln_list(ST, ST+1, 512, ST+2, NM, 4, SD) + [
        'v_cmp_gt_u32 vcc, 32, v0', f'v_lshrrev_b32 v{NEG}, 16, v{NM}', f'v_or_b32 v{NEG}, v{NEG}, v{NM}', f'v_cndmask_b32 v{NEG}, 0, v{NEG}, vcc'] + \
        [f'v_mov_b32 v{NEG+i}, v{NEG}' for i in range(1, 4)] + gconst(CC, 4)
    sload = f'buffer_load_dwordx4 {vr(ST,4)}, v7, s[12:15], s60 offen offset:3072 sc1'
    a.waitall(vm=False)
    a('s_barrier'); a.emit(gx(0)[1] + wreads(0) + wreads(1) + wreads(2))
    ts = opt.get('ts', 10); tk = opt.get('tk', 29)
    for c in range(8):
        fi = opt.get('fine') == 'p1' and c in (3, 4)
        if fi: stamp(3 + 6*(c-3), True)
        if c < 7:
            pre, xr = gx(c+1)
            last = [] if c == 0 else [xlast]
            fills = {0: last + wreads(4*c+3) + pre + ['s_barrier'], 1: xr[:1] + wreads(4*c+4), 2: xr[1:2] + wreads(4*c+5), 3: xr[2:3] + wreads(4*c+6)}
            xlast = xr[3]
        else:
            fills = {0: [xlast] + wreads(4*c+3), 1: cs_write(0, T), 2: [], 3: cs_read(0, T)}
            n = 32 - tk
            for j in range(n): fills[tk - 28 + j] += fin1[j*len(fin1)//n:(j+1)*len(fin1)//n]
        for i in range(4):
            t = 4*c + i
            if opt.get('fine') == 'p1e' and t >= 19 and t != 22: stamp(3 + t - 19 - (t > 22), True)
            if t == ts: a(sload, 'st1')
            if t == tk:
                a.waitvm('st1'); g.spin([sload], [ST+1, ST+3], FL)
            if opt.get('fine') == 'p1e' and t == tk: stamp(15, True)
            a.waitlg(f'wr{t}')
            a.emit(merge(mfmas(t), fills[i]))
            if fi: stamp(5 + i + 6*(c-3), True)
    stamp(2)
    a.emit(cs_apply(A2, T))
    for i in range(8): a(f'v_add_u32 v{WR+i}, 65536, v{WR+i}')
    a(f'v_and_b32 v{FL}, 15, v0\nv_lshrrev_b32 v{FL+1}, 4, v0\nv_lshlrev_b32 v{FL}, 4, v{FL}\nv_lshl_add_u32 v{FL}, v{FL+1}, 2, v{FL}')
    a.emit(gelu_pk(A2, 32, CC, SD, T))
    AH = 3
    rd = sum([wreads(t) for t in range(32, 32 + AH)], [])
    st = []
    for i in range(16):
        p = A2 + 2*i
        if i == 0: st.append(f'v_pk_mul_f32 {vr(ST+2,2)}, {vr(p,2)}, {vr(p,2)}')
        else: st += [f'v_pk_add_f32 {vr(ST,2)}, {vr(p-2,2) if i == 1 else vr(ST,2)}, {vr(p,2)}', f'v_pk_fma_f32 {vr(ST+2,2)}, {vr(p,2)}, {vr(p,2)}, {vr(ST+2,2)}']
    st += [f'v_add_f32 v{ST}, v{ST}, v{ST+1}', f'v_add_f32 v{ST+2}, v{ST+2}, v{ST+3}']
    a.emit(st)
    a(f'v_permlane32_swap_b32 v{ST}, v{ST+2}')
    a(f'v_add_f32 v3, v{ST}, v{ST+2}\nv_min_u32 v3, 0xfffffffe, v3')
    a.waitall(lg=False)
    a(f'buffer_store_dword v3, v{FL}, s[12:15], s38 offen sc1', 'pub')
    stamp(3)
    a('s_barrier')
    a.emit(rd)
    TA = X; P = X + 8; T2 = A2 + 16; U = X + 16; Q = X + 6; RA = A2 + 24
    pl = [f'buffer_load_dwordx4 {vr(P+4*j,4)}, v{7 if j < 3 else TA+7}, s[12:15], s37 offen offset:{1024*j} sc1' for j in range(4)]
    taddr = f"""v_and_b32 v{TA+6}, 7, v0
v_lshrrev_b32 v{TA+7}, 5, v0
v_xor_b32 v{TA+6}, v{TA+6}, v{TA+7}
v_lshlrev_b32 v{TA+6}, 4, v{TA+6}
v_and_b32 v{TA}, 31, v0
v_lshl_add_u32 v{TA}, v{TA}, 7, v{TA+6}
v_add_u32 v{TA}, s32, v{TA}
v_xor_b32 v{TA+1}, 32, v{TA}
v_xor_b32 v{TA+2}, 64, v{TA}
v_xor_b32 v{TA+3}, 96, v{TA}
v_bfe_u32 v{TA+6}, v0, 2, 2
v_lshl_add_u32 v{TA+7}, v{TA+7}, 3, v{TA+6}
v_lshlrev_b32 v{TA+6}, 4, v{TA+6}
v_and_b32 v{TA+4}, 56, v{WR}
v_xor_b32 v{TA+4}, v{TA+4}, v{TA+6}
v_lshl_add_u32 v{TA+4}, v{TA+7}, 7, v{TA+4}
v_add_u32 v{TA+4}, s32, v{TA+4}
v_xor_b32 v{TA+5}, 64, v{TA+4}
v_lshlrev_b32 v{TA+7}, 25, v0
v_and_b32 v{TA+7}, 0x40000000, v{TA+7}
v_add_u32 v{TA+7}, v{TA+7}, v7""".split('\n')
    fin2 = [f'v_pk_add_f32 {vr(P+j,2)}, {vr(P+j,2)}, {vr(P+j+8,2)}' for j in range(0, 8, 2)] + [f'v_pk_add_f32 {vr(P+j,2)}, {vr(P+j,2)}, {vr(P+j+4,2)}' for j in range(0, 4, 2)] + \
           [f'v_permlane16_swap_b32 v{P}, v{P+1}', f'v_permlane16_swap_b32 v{P+2}, v{P+3}', f'v_add_f32 v{P}, v{P}, v{P+1}', f'v_add_f32 v{P+2}, v{P+2}, v{P+3}']
    fin2 += halves(P, P+2) + ln_list(P, P+1, 896, P+2, P+5, P+4) + [f'v_mul_f32 v{P+5}, v{P+5}, v{P+4}']
    for q in range(4):
        for i in range(4): fin2.append(f'v_pk_fma_f32 {vr(A2+8*q+2*i,2)}, {vr(A2+8*q+2*i,2)}, {vr(P+4,2)}, {vr(P+4,2)} op_sel:[0,0,1] op_sel_hi:[1,0,1]')
        for i in range(4): fin2.append(f'v_cvt_pk_bf16_f32 v{U+4*q+i}, v{A2+8*q+2*i}, v{A2+8*q+2*i+1}')
        fin2.append((f'ds_write_b128 v{TA+q}, {vr(U+4*q,4)}', 'tw'))
    for q in range(4):
        ks2, fb = divmod(q, 2)
        fin2.append((f'ds_read_b64_tr_b16 {vr(A2+4*q,2)}, v{TA+4+fb} offset:{ks2*2048}', f'tr{q}'))
        fin2.append((f'ds_read_b64_tr_b16 {vr(A2+2+4*q,2)}, v{TA+5-fb} offset:{ks2*2048 + 512}', f'tr{q}'))
    fin4 = []
    for q in range(4): fin4 += [lambda q=q: a.waitlg(f'tr{q}'), (f'buffer_store_dwordx4 {vr(A2+4*q,4)}, v7, s[12:15], s52 offen offset:{1024*q} sc1', 'z2st')]
    tp = opt.get('tp', 38); tc = opt.get('tc', 45)
    assert tp >= 37 and tc >= 41
    fills = {t: [] for t in range(32, 70)}
    fills[34] += taddr[:7]; fills[35] += taddr[7:14]; fills[36] += taddr[14:]
    fills[33] += ['s_lshl_b32 s31, s35, 5', 'v_and_b32 v3, 31, v0', 'v_add_lshl_u32 v3, v3, s31, 1', ('global_load_ushort v3, v3, s[18:19]', 'bsp')]
    for j in range(4): fills[tp + j//2].append((pl[j], 'pl'))
    if pre2 < 4: fills[tp + 1].append('s_barrier')
    def waddr(d): return ['s_lshl_b32 s31, s29, 12'] + rowread_list(d, d+1, 's31') + [f'v_xor_b32 v{d+i}, {32*i}, v{d}' for i in range(1, 4)]
    def rreads(r, base): return [(f'ds_read_b128 {vr(X+16*r+4*ks,4)}, v{base+ks} offset:{(r%4)*16384}', f'res{r}') for ks in range(4)]
    t0 = tc + 1
    if hcl == 'z':
        fills[tc] += [f'v_mov_b32 v{T2+4+i}, -1' for i in range(4)] + [(f'buffer_store_dwordx4 {vr(T2+4,4)}, v7, s[12:15], s54 offen offset:{1024*q} sc1', 'hcl') for q in range(4)]
    if NR >= 4:
        fills[t0] += waddr(RA) + ['s_barrier']
        rr = sum([rreads(r, RA) for r in range(4)], [])
        rper = opt.get('rper', 3)
        for j in range(16):
            t = max(t0 + 1 + j // rper, 33 + j)
            fills[t].append(rr[j])
    fills[max(56, t0 + 3 + 15 // opt.get('rper', 3))] += [lambda: a.waitlg('res3'), 's_barrier']
    fills[61] = fills[61] + cs_write(1, T2)
    tf = opt.get('tf', 53)
    flagz = g.setflag('s53', T2+1) + [lambda: stamp(7)]
    fills[tf] += flagz
    fp = lambda i: stamp(i, True) if opt.get('fine') == 'p3' else None
    for t in range(32, 64):
        if t in (32, tp, tp + 4, tc): fp({32: 3, tp: 4, tp + 4: 5, tc: 6}[t])
        if t in (tc + 1, tc + 2, tc + 6, tc + 10, tf, tf + 1): fp({tc + 1: 10, tc + 2: 11, tc + 6: 12, tc + 10: 13, tf: 14, tf + 1: 15}[t])
        if t == tc:
            a.waitvm('pl'); fp(7)
            g.spin(pl, range(P, P+16), Q, True); stamp(4); fp(8)
            a.emit(fin2); fp(9)
        a.waitlg(f'wr{t}')
        rd = wreads(t + AH) if t + AH < 64 else []
        if t == tc:
            m = mfmas(t); a.emit(m + fin4 + rd + fills[t]); stamp(5)
        else: a.emit(merge(mfmas(t), rd + fills[t]))
    a.emit(fills[64])
    stamp(6)
    ub = ssm.ubuild()
    ib = ub.index(BAR)
    a.emit(cs_read(1, T2))
    gw = opt.get('gw', 1)
    if gw: a('v_rcp_f32 v24, v4')
    a.emit(waddr(8) + (gconst(26, 4) if gw else []))
    a.emit(cs_apply(A1, T2))
    a.emit(ub[:ib] + ub[ib+1:ib+4])
    Z1 = 112
    if gw: a.emit(gelu_pk(A1, 32, 26, 24, 16))
    else:
        for i in range(16): a(f'v_pk_mul_f32 {vr(A1+2*i,2)}, {vr(A1+2*i,2)}, v[4:5] op_sel_hi:[1,0]')
    for i in range(15, -1, -1): a(f'v_cvt_pk_bf16_f32 v{Z1+i}, v{A1+2*i}, v{A1+2*i+1}')
    a(f'v_add_u32 v12, {L_Z}, v7\nv_lshlrev_b32 v4, 16, v3\nv_mov_b32 v14, {fbits(C1)}')
    a.emit(ub[ib+4:-1])
    cpre, cg = ssm.conv()
    if npre:
        emit_plain(a, [BAR] + cpre + sum(cg[:10*npre], [])); cg = cg[10*npre:]; cpre = []
    stamp(8)
    assert NR <= 4
    ACC = 32; F = [64, 88]
    def rd2(k, half):
        L = []
        for j in range(2):
            ks = 2*half + j
            if k in SIDX: L.append((f'ds_read_b128 {vr(F[half]+12*j,4)}, v{8+ks} offset:{(SIDX[k]%4)*16384}', f'g{k}_{ks}'))
            for fb in range(2): L.append((f'ds_read_b128 {vr(F[half]+12*j+4+4*fb,4)}, v12 offset:{(k%4)*8192+ks*2048+fb*1024}', f'g{k}_{ks}'))
        return L
    def mm2(k, half):
        L = []
        for j in range(2):
            wreg = F[half]+12*j if k in SIDX else X + 16*MEM[k] + 4*(2*half+j)
            for fb in range(2):
                c = '0' if (k == 0 and half == 0 and j == 0) else vr(ACC+16*fb, 16)
                L.append((f'g{k}_{2*half+j}', f'v_mfma_f32_32x32x16_bf16 {vr(ACC+16*fb,16)}, {vr(F[half]+12*j+4+4*fb,4)}, {vr(wreg,4)}, {c}'))
        return L
    kf = 0
    c0, c1 = opt.get('c0', 2), opt.get('c1', 26)
    plan = {}
    def spread(groups, slots, wts):
        cum = 0; tot = sum(int(wts[s[2]]) for s in slots); done = 0
        for s in slots:
            cum += int(wts[s[2]]); n = cum * len(groups) // tot
            plan.setdefault(s, []).extend(groups[done:n]); done = n
    allslots = [(k, ph, i) for k in range(32) for ph in range(2) for i in range(4) if (k, ph) != (0, 0)]
    if cg and not opt.get('noconv'): spread(cg, [s for s in allslots if c0 <= s[0] <= c1], opt.get('cw', '0013'))
    if cpre: spread([[x] for x in cpre], [s for s in allslots if (kf, 1) <= s[:2] and s[0] < c0], '1113')
    if not gw: spread([[x] for x in gelu_packed(Z1, 16, 128, 14)], [s for s in allslots if opt.get('g0', 8) <= s[0] < opt.get('ge', 30)], '2223')
    fin, fflag = ssm.finish()
    sst = [x for x in fin if isinstance(x, tuple) and x[1] == 'sst']
    spread([[x] for x in fin if x not in sst], [s for s in allslots if c1 + 1 <= s[0] <= c1 + 2], '2223')
    plan.setdefault((opt.get('sk', c1 + 2), 1, 3), []).append(sst)
    assert c1 + 2 <= 30
    for k in range(33):
        if k in (0, 31): a.waitall(vm=False)
        else: a.waitlg(f'g{k-1}_3')
        a('s_barrier')
        if k == 0: stamp(9)
        if str(opt.get('fine')).startswith('g2'):
            k0 = int(opt['fine'][2:])
            if k0 <= k < k0 + 13: stamp(3 + k - k0, True)
        for ph in range(2):
            m = (mm2(k-1, 1) if k > 0 else []) if ph == 0 else (mm2(k, 0) if k < 32 else [])
            r = rd2(k, ph) if k < 32 else []
            if not m:
                a.emit(r); continue
            for i, (tg, ins) in enumerate(m):
                a.waitlg(tg)
                a(ins)
                a.emit(r[2*i:2*i+2])
                for x in plan.get((k, ph, i), []): a.emit(x)
                if k == 31:
                    for j in range(2):
                        z = 8*ph + 2*i + j
                        a(f'v_lshlrev_b32 v{128+2*z}, 16, v{Z1+z}\nv_and_b32 v{129+2*z}, s33, v{Z1+z}')
    stamp(10)
    a.emit(fflag[:2])
    for q in range(4):
        for i in range(4):
            p = ACC + 8*q + 2*i
            a(f'v_pk_add_f32 {vr(p,2)}, {vr(p,2)}, v[4:5] op_sel_hi:[1,0]')
        for i in range(4):
            p = ACC + 8*q + 2*i
            a(f'v_pk_mul_f32 {vr(p,2)}, {vr(p,2)}, {vr(128+8*q+2*i,2)}')
        for i in range(4): a(f'v_cvt_pk_bf16_f32 v{F[0]+4*q+i}, v{ACC+8*q+2*i}, v{ACC+8*q+2*i+1}')
        a(f'buffer_store_dwordx4 {vr(F[0]+4*q,4)}, v7, s[12:15], s54 offen offset:{1024*q} sc1', 'hst')
    a.emit(fflag[2:])
    if hb: a('s_barrier')
    stamp(11)
    nb['gc'] = count_bars(st0) + 2 + (w3m < 14)

    a(f'{lab("g3comp")}:')
    HB = 16; ACC = 160; WB = [224, 240]; SR = 192; SF = 200; XR = 216; XF = 136; T = 152
    a('s_and_b32 s36, s29, 1\ns_lshr_b32 s37, s29, 1\ns_lshl_b32 s32, s26, 1\ns_add_u32 s32, s32, s30')
    a.emit(trread_list(1, 2))
    a(f'''s_lshl_b32 s55, s37, 6
s_lshl_b32 s31, s37, 12
v_xor_b32 v1, s55, v1
v_add_u32 v1, s31, v1
v_xor_b32 v2, 64, v1
v_add_u32 v3, {L_Z}, v1
v_add_u32 v4, {L_Z}, v2
s_lshl_b32 s3, s36, 12
s_add_u32 s3, s3, {L_X3}''')
    a.emit(rowread_list(9, 10, 's3'))
    a(f'''v_xor_b32 v9, s55, v9
v_xor_b32 v10, 32, v9
v_lshrrev_b32 v11, 2, v0
v_and_b32 v12, 3, v0
v_lshlrev_b32 v13, 4, v12
v_lshl_add_u32 v15, v11, 10, v13
v_bfe_u32 v13, v0, 3, 3
v_xor_b32 v12, v12, v13
v_lshlrev_b32 v12, 4, v12
v_xor_b32 v12, s55, v12
v_lshl_add_u32 v12, v11, 7, v12
v_add_u32 v14, s3, v12
v_lshrrev_b32 v11, 5, v0
v_bfe_u32 v13, v0, 2, 2
v_lshl_add_u32 v11, v11, 3, v13
v_lshlrev_b32 v11, 7, v11
v_bfe_u32 v13, v0, 3, 1
v_xor_b32 v13, s36, v13
v_lshl_add_u32 v11, v13, 6, v11
v_bfe_u32 v13, v0, 4, 1
v_lshl_add_u32 v11, v13, 5, v11
v_and_b32 v13, 3, v0
v_lshl_add_u32 v11, v13, 3, v11
s_add_u32 s31, s31, {L_S3}
v_add_u32 v11, s31, v11
s_lshl_b32 s3, s32, 1
s_add_u32 s3, s3, s36
s_lshl_b32 s61, s3, 15
s_mul_i32 s38, s3, 57344
s_lshl_b32 s3, s27, 7
s_add_u32 s61, s61, s3
s_add_u32 s61, s61, s55
s_lshl_b32 s3, s37, 11
s_add_u32 s38, s38, s3
s_add_u32 s38, s38, {WS_HF}
s_lshl_b32 s3, s29, 12
s_add_u32 s3, s3, {L_U}
v_add_u32 v8, s3, v7
v_xor_b32 v13, 8192, v8
v_mov_b32 v12, {fbits(-LOG2E)}''')
    rot3(35)
    for j in range(14):
        a(f's_lshl_b32 s31, s35, 12\ns_add_u32 s{40+j}, s31, s38')
        if j < 13: a('\n'.join(adv(35)))
    a(f's_mov_b32 s39, {SPIN >> 3}')
    aw = opt.get('aw', 0)
    if aw: a(f's_waitcnt vmcnt({aw})')
    else: a.waitall(lg=False)
    stamp(12)
    NI = opt.get('ni', 5)
    def hl(j): return [f'buffer_load_dwordx4 {vr(HB+8*j+4*p,4)}, v7, s[12:15], s{40+(j if not opt.get("hfix") else 0)} offen offset:{1024*p} sc1' for p in range(2)]
    def rdw(j, ks):
        w = W3LOC[j]; hi = w >= L_Z; w -= L_Z * hi
        return [(f'ds_read_b64_tr_b16 {vr(WB[j&1]+8*ks+4*b+2*p,2)}, v{1+b+2*hi} offset:{w+ks*2048+512*p}', f'w{j}_{ks}') for b in (1, 0) for p in range(2)]
    for j in range(NI): a.emit([(x, f'h{j}') for x in hl(j)])
    a('s_barrier')
    stamp(13)
    a.emit(rdw(0, 0) + rdw(0, 1))
    es = opt.get('es', 8)
    xs = [(f'ds_read_b128 {vr(XR+4*p,4)}, v{9+p}', 'xr') for p in range(2)]
    un = sum([[f'v_lshlrev_b32 v{XF+2*i}, 16, v{XR+i}', f'v_and_b32 v{XF+2*i+1}, s33, v{XR+i}'] for i in range(8)], [])
    retry = []
    def check(j):
        lc = a.newlab('hchk'); lr = a.newlab('hretry')
        a.waitvm(f'h{j}')
        H = HB + 8*j
        a(f'{lc}:\nv_max3_u32 v{T}, v{H}, v{H+1}, v{H+2}\nv_max3_u32 v{T+1}, v{H+3}, v{H+4}, v{H+5}\nv_max3_u32 v{T}, v{T}, v{H+6}, v{H+7}\nv_max_u32 v{T}, v{T}, v{T+1}')
        a(f'v_cmp_eq_u32 vcc, -1, v{T}')
        return lc, lr
    def cbr(j, lc, lr, mid=None):
        a(f's_cbranch_vccnz {lr}\n{lc}x:')
        retry.append((lr, lc, j, sum([hl(i) for i in range(j, min(14, j + NI))], [])))
    lc, lr = check(0); cbr(0, lc, lr)
    stamp(14)
    for j in range(14):
        if opt.get('fine') == 'g3' and j % 2 == 0: stamp(3 + j // 2, True)
        seq = []
        for ks in range(2):
            for b in (1, 0):
                seq.append((ks, f'v_mfma_f32_32x32x16_bf16 {vr(ACC+16*b,16)}, {vr(WB[j&1]+8*ks+4*b,4)}, {vr(HB+8*j+4*ks,4)}, {"0" if (j == 0 and ks == 0) else vr(ACC+16*b,16)}'))
        if j == 13: seq = [seq[0], seq[2], seq[1], seq[3]]
        nxt = (rdw(j+1, 0) + rdw(j+1, 1)) if j < 13 else []
        for i, (ks, ins) in enumerate(seq):
            a.waitlg(f'w{j}_{ks}')
            a(ins)
            if j == w3m - 1 and i == 0 and w3m < 14: a('s_barrier')
            if i < 2:
                a.emit(nxt[3*i:3*i+3])
                if j + NI < 14: a(hl(j + NI)[i], f'h{j+NI}')
            if j == es and i in (0, 1): a.emit(xs[3*i:3*i+3])
            if j > es and i in (0, 1, 3):
                a.waitlg('xr'); a.emit(un[:4]); un = un[4:]
            if i == 2 and j < 13: lc, lr = check(j + 1)
            if i == 3 and j < 13:
                a.emit(nxt[6:]); cbr(j + 1, lc, lr)
    stamp(15)
    if opt.get('prof'): a(f's_sub_u32 s100, {SPIN >> 3}, s39\ns_mul_i32 s100, s100, 10\ns_add_u32 s100, s100, s66')
    ft_ = lambda i: stamp(i, True) if opt.get('fine') == 'g3' else None
    ft_(10)
    for q in range(4): a(f'ds_write_b128 v8, {vr(ACC+16+4*q,4)} offset:{1024*q}', 'rw')
    a.waitall(vm=False); ft_(11); a('s_barrier'); ft_(12)
    assert not un
    for q in range(2): a(f'ds_read_b128 {vr(WB[0]+4*q,4)}, v13 offset:{1024*q}', f'rr0')
    for q in range(4): a(f'ds_read_b64_tr_b16 {vr(SR+2*q,2)}, v11 offset:{2048*(q//2)+512*(q%2)}', 'sr')
    for q in range(2, 4): a(f'ds_read_b128 {vr(WB[0]+4*q,4)}, v13 offset:{1024*q}', f'rr1')
    for p in range(2):
        B = ACC + 8*p
        a.waitlg(f'rr{p}')
        if p == 0: ft_(13)
        for i in range(4): a(f'v_pk_add_f32 {vr(B+2*i,2)}, {vr(B+2*i,2)}, {vr(WB[0]+8*p+2*i,2)}')
        for i in range(4): a(f'v_pk_mul_f32 {vr(T+2*i,2)}, {vr(B+2*i,2)}, v[12:13] op_sel_hi:[1,0]')
        for i in range(8): a(f'v_exp_f32 v{T+i}, v{T+i}')
        a.waitlg('sr')
        for i in range(4): a(f'v_lshlrev_b32 v{SF+8*p+2*i}, 16, v{SR+4*p+i}\nv_and_b32 v{SF+8*p+2*i+1}, s33, v{SR+4*p+i}')
        for i in range(4): a(f'v_pk_mul_f32 {vr(B+2*i,2)}, {vr(B+2*i,2)}, {vr(SF+8*p+2*i,2)}')
        for i in range(4): a(f'v_pk_add_f32 {vr(T+2*i,2)}, {vr(T+2*i,2)}, 1.0 op_sel_hi:[1,0]')
        for i in range(8): a(f'v_rcp_f32 v{T+i}, v{T+i}')
        for i in range(4): a(f'v_pk_fma_f32 {vr(B+2*i,2)}, {vr(B+2*i,2)}, {vr(T+2*i,2)}, {vr(XF+8*p+2*i,2)}')
        for i in range(4): a(f'v_cvt_pk_bf16_f32 v{HB+4*p+i}, v{B+2*i}, v{B+2*i+1}')
        a(f'ds_write_b128 v{9+p}, {vr(HB+4*p,4)}', 'ow')
    ft_(14)
    for p in range(2): a(f'ds_read_b128 {vr(HB+8+4*p,4)}, v14 offset:{2048*p}', f'or{p}')
    for p in range(2):
        a.waitlg(f'or{p}')
        if p: a('s_add_u32 s61, s61, 16384')
        a(f'buffer_store_dwordx4 {vr(HB+8+4*p,4)}, v15, s[20:23], s61 offen {opt.get("outflag","sc1")}', 'ost')
    stamp(16)
    sk = a.newlab('noepoch')
    a(f's_or_b32 s3, s2, s29\ns_cmp_lg_u32 s3, 0\ns_cbranch_scc1 {sk}\nv_mov_b32 v1, s24\ns_mov_b32 s3, {WS_EPOCH}\ns_mov_b64 exec, 1')
    a('buffer_store_dword v1, off, s[12:15], s3 sc1')
    a(f's_mov_b64 exec, -1\n{sk}:')
    g.prof_store()
    a('s_endpgm')
    for x in g.cold: a.L.append(x)
    g.cold = []
    for lr, lc, j, lds_ in retry:
        H = HB + 8*j
        a(f'{lr}:\ns_sub_u32 s39, s39, 1\ns_cmp_lt_i32 s39, 0\ns_cbranch_scc1 {lc}x')
        for x in lds_: a.L.append(x)
        a(f's_waitcnt vmcnt(0)\nv_max3_u32 v{T}, v{H}, v{H+1}, v{H+2}\nv_max3_u32 v{T+1}, v{H+3}, v{H+4}, v{H+5}\nv_max3_u32 v{T}, v{T}, v{H+6}, v{H+7}\nv_max_u32 v{T}, v{T}, v{T+1}')
        a(f'v_cmp_eq_u32 vcc, -1, v{T}\ns_cbranch_vccnz {lr}\ns_branch {lc}x')

    a(f'{lab("tcomp")}:')
    st0 = len(a.L)
    a.vm = ['prm'] * 6; a.lg = []
    T = 24; X = 64
    a('s_mov_b32 s6, 0x200000\ns_mov_b32 s7, 0x20000\ns_and_b32 s5, s5, 0xffff')
    a('s_lshl_b32 s32, s29, 14\ns_lshl_b32 s35, s26, 1\ns_add_u32 s35, s35, s30\ns_lshl_b32 s35, s35, 1\ns_and_b32 s3, s29, 1\ns_add_u32 s35, s35, s3\ns_lshl_b32 s3, s35, 5\ns_lshr_b32 s61, s29, 1\ns_lshl_b32 s38, s61, 9')
    rowoffs(a, 32, 's3', 10)
    for c in range(4):
        a.emit([f's_add_u32 m0, s32, {4096*c}', f's_add_u32 s31, s38, {128*c}'] + [(f'buffer_load_dwordx4 v{32+i}, s[4:7], s31 offen offset:{1024*i} lds', f'x{c}') for i in range(4)])
    cprologue()
    a.emit(rowread_list(8, 9, 's32'))
    a('v_xor_b32 v9, 32, v8\nv_xor_b32 v10, 64, v8\nv_xor_b32 v11, 96, v8')
    a('s_mov_b32 s36, 0x00003f80\ns_mov_b32 s37, 0x3f800000')
    for i in range(4): a(f'v_mov_b32 v{20+i}, 0')
    a('v_lshrrev_b32 v13, 5, v0\nv_lshlrev_b32 v13, 15, v13\nv_and_b32 v16, 31, v0\nv_lshl_add_u32 v12, v16, 2, v13')
    for i in range(1, 4): a(f'v_add_u32 v{12+i}, {8192*i}, v12')
    a(f's_lshl_b32 s31, s35, 7\ns_add_u32 s52, s31, {WS_XNT}\ns_lshl_b32 s3, s61, 20\ns_add_u32 s52, s52, s3')
    a(f's_lshl_b32 s53, s61, 13\ns_add_u32 s53, s53, s31\ns_add_u32 s53, s53, {FX}')
    a(f's_lshl_b32 s31, s35, 13\ns_add_u32 s60, s31, s38\ns_add_u32 s60, s60, {WS_STATS + 14*512}')
    a(f's_lshl_b32 s31, s29, 8\ns_add_u32 s31, s31, {L_CS}\nv_lshl_add_u32 v16, v0, 2, s31\nv_xor_b32 v17, 512, v16')
    a(tagmake)
    for c in range(4):
        a.waitvm(f'x{c}')
        a.emit(xreads(c, 8, 4096*c))
        if c == opt.get('tb', 1): a('s_barrier')
        if c > 0: dots(c-1, 20)
        a.waitlg(f'xr{c}')
    dots(3, 20)
    a('v_add_f32 v20, v20, v22\nv_add_f32 v21, v21, v23\nv_mov_b32 v41, s24\nv_mov_b32 v43, s24\nv_permlane32_swap_b32 v20, v21\nv_add_f32 v22, v20, v21\nv_add_f32 v40, v20, v21\nv_permlane32_swap_b32 v40, v42\ns_mov_b32 exec_hi, 0')
    a(f'buffer_store_dwordx4 v[40:43], v7, s[12:15], s60 offen sc1', 'pub')
    a('s_mov_b64 exec, -1')
    a('ds_write_b32 v16, v22')
    a.waitall(vm=False); a('s_barrier')
    a('ds_read_b32 v20, v17')
    a.waitall(vm=False)
    a('v_add_f32 v20, v20, v22\nv_mov_b32 v21, v20\nv_permlane32_swap_b32 v20, v21')
    a.emit(ln_list(20, 21, 512, 22, 19, 18))
    stamp(2)
    for f in range(16):
        for i in range(4):
            a(f'v_dot2_f32_bf16 v{T+2*i}, v{X+4*f+i}, s36, v19\nv_dot2_f32_bf16 v{T+2*i+1}, v{X+4*f+i}, s37, v19')
        for i in range(4): a(f'v_cvt_pk_bf16_f32 v{X+4*f+i}, v{T+2*i}, v{T+2*i+1}')
        for i in range(4): a(f'v_lshlrev_b32 v{T+2*i}, 16, v{X+4*f+i}\nv_and_b32 v{T+2*i+1}, s33, v{X+4*f+i}')
        for i in range(4): a(f'v_pk_mul_f32 {vr(T+2*i,2)}, {vr(T+2*i,2)}, v[18:19] op_sel_hi:[1,0]')
        for i in range(4): a(f'v_cvt_pk_bf16_f32 v{X+4*f+i}, v{T+2*i}, v{T+2*i+1}')
        for i in range(4): a(f'buffer_store_dword v{X+4*f+i}, v{12+i}, s[12:15], s52 offen sc1', 'xst')
        a('s_add_u32 s52, s52, 65536')
    stamp(3)
    a.emit(ssm.kaddr())
    a.emit(g.setflag('s53', 16))
    stamp(7)
    a('s_barrier')
    a(f's_branch {lab("kgen")}')
    a(f'{lab("tcomp2")}:')
    a.vm = []; a.lg = list(lg_split)
    a.waitall(vm=False); a('s_barrier')
    emit_plain(a, ssm.ubuild()); stamp(9)
    cpre, cg = ssm.conv()
    fin, fflag = ssm.finish()
    emit_plain(a, cpre + sum(cg, []) + fin + fflag + [BAR]); stamp(10)
    a('s_barrier')
    nb['tc'] = count_bars(st0) + 2 + (w3m < 14)
    a(f's_branch {lab("g3comp")}')
    a(f'{lab("done")}:\ns_endpgm')
    assert nb['gl'] == nb['gc'] and nb['tl'] == nb['tc'], nb
    kernel_desc(a, name, 256, 102)
    return finalize(a, name, opt)

NAME = 'recurrent_scan__ssm_conv_s4d__mixer_gmlp__prompt_kernel'
def write(path, args):
    opt = {}
    for kv in args:
        k, _, v = kv.partition('=')
        opt[k] = (int(v) if v.lstrip('-').isdigit() and k != 'cw' else v) if v else True
    try: HDR = open('recurrent_scan__ssm_conv_s4d__mixer_gmlp__prompt.s.ref').read().split('; Override launch')[0]
    except OSError: HDR = ''
    txt = HDR + '; @launch grid=(256,1,1) block=(384,1,1) lds=163840\n.amdgcn_target "amdgcn-amd-amdhsa--gfx950"\n' + fused(NAME, opt)
    open(path, 'w').write(txt)

if __name__ == '__main__':
    import sys
    sys.path.insert(0, 'work')
    write(sys.argv[1], sys.argv[2:])
    from hx import build
    import cdna_launch as cl
    co, _ = build(sys.argv[1], 15, NAME)
    p = cl.address_register_problem(co, NAME)
    if p: print('CHECK PROBLEM:', p)
```

```python
from gen import *
import struct, math
def fbits(x): return hex(struct.unpack('<I', struct.pack('<f', x))[0])
def f32(x): return struct.unpack('<f', struct.pack('<f', x))[0]
WS_Z2F = 0; WS_XNT = 4 << 20; WS_HF = 6 << 20; WS_ST = 10 << 20; WS_STATS = 12 << 20; WS_FL = WS_STATS + (512 << 10)
WS_EPOCH = WS_FL + (384 << 10)
WS_PROF = 13 << 20; WS_BYTES = 14 << 20
FZ = WS_FL; FX = WS_FL + 896*128; FH = WS_FL + 1024*128; FT = WS_FL + 1536*128; FS = WS_FL + 2048*128
KA = dict(u=0, logA=8, Aim=16, Cre=24, Cim=32, logdt=40, Dskip=48, bx=56, win=64, wsp=72, bsp=80, wout=88, out=96, dbg=104, ws=112)
LOG2E = math.log2(math.e)
C0 = -2 * LOG2E * math.sqrt(2 / math.pi); C1 = C0 * 0.044715
BAR = ('BAR',)
SPIN = 0x20000
L_SSM = 65536; L_Z = 114688
USTR = 4640; UGRP = 3 * USTR + 4480; L_U = L_SSM; L_RAW = 102400 - 16; L_K = 147456
L_CS = 159744; L_TR = 131072
L_X3 = 81920; L_S3 = 90112; KSTR = 4736

class G:
    def __init__(self, name, opt):
        self.a = Asm(); self.name = name; self.opt = opt; self.comp = False; self.cold = []
    def stamp(self, idx, fine=False):
        if self.opt.get('fine') and not fine and 3 <= idx <= 15 and self.comp: return
        if self.opt.get('dbg') == idx: self.a(f's_memrealtime s[{66+2*idx}:{67+2*idx}]')
        if self.opt.get('prof'): self.a(f's_mem{"real" if self.opt.get("rt") else ""}time s[{66+2*idx}:{67+2*idx}]')
    def prof_store(self):
        if not self.opt.get('prof'): return
        a = self.a
        a('s_memrealtime s[64:65]\ns_memtime s[60:61]')
        a.waitall()
        a('v_mov_b32 v2, 0\ns_sub_u32 s31, s60, s66\nv_writelane_b32 v2, s31, 2')
        for i in range(1, 18):
            a(f's_sub_u32 s31, s{66+2*i}, s{62 if self.opt.get("rt") else 66}\nv_writelane_b32 v2, s31, {i+2}')
        a('v_writelane_b32 v2, s62, 0\nv_writelane_b32 v2, s64, 1')
        a(f's_lshl_b32 s3, s2, 3\ns_add_u32 s3, s3, s29\ns_lshl_b32 s3, s3, 7\ns_add_u32 s3, s3, {WS_PROF}')
        a('v_lshlrev_b32 v1, 2, v0\ns_mov_b32 exec_hi, 0')
        a('buffer_store_dword v2, v1, s[12:15], s3 offen')
    def spin(self, loads, tags, tmp, sentinel=False):
        a = self.a
        lp = a.newlab('sp'); lc = a.newlab('spc'); lo = a.newlab('spo')
        chk = []
        r = list(tags)
        if sentinel:
            cur = r.pop(0)
            while r:
                if len(r) >= 2: chk.append(f'v_max3_u32 v{tmp}, v{cur}, v{r[0]}, v{r[1]}'); r = r[2:]
                else: chk.append(f'v_max_u32 v{tmp}, v{cur}, v{r[0]}'); r = []
                cur = tmp
            chk.append(f'v_cmp_eq_u32 vcc, -1, v{tmp}')
        elif len(r) == 1: chk.append(f'v_cmp_ne_u32 vcc, s24, v{r[0]}')
        else:
            chk.append(f'v_xor_b32 v{tmp}, s24, v{r[0]}')
            for x in r[1:]: chk.append(f'v_bitop3_b32 v{tmp}, v{tmp}, v{x}, s24 bitop3:0xf6')
            chk.append(f'v_cmp_ne_u32 vcc, 0, v{tmp}')
        for x in chk: a(x)
        a(f's_cbranch_vccnz {lp}\n{lo}:')
        self.cold += [f'{lp}:', f's_mov_b32 s39, {SPIN}', f'{lc}:'] + list(loads) + ['s_waitcnt vmcnt(0)'] + chk + \
            [f's_cbranch_vccz {lo}', 's_sub_u32 s39, s39, 1', 's_cmp_lg_u32 s39, 0', f's_cbranch_scc1 {lc}', f's_branch {lo}']
    def setflag(self, soff, vtmp):
        return [f'v_mov_b32 v{vtmp}, s24', lambda: self.a.waitall(lg=False), (f's_mov_b32 exec_hi, 0\nbuffer_store_dword v{vtmp}, v6, s[12:15], {soff} offen sc1\ns_mov_b64 exec, -1', 'flag')]

def ln_list(vS, vQ, n, vT, out_negm, out_r, out_sd=None):
    L = [f'v_mul_f32 v{vS}, {fbits(1.0/n)}, v{vS}', f'v_mul_f32 v{vQ}, {fbits(1.0/n)}, v{vQ}', f'v_fma_f32 v{vQ}, -v{vS}, v{vS}, v{vQ}',
         f'v_max_f32 v{vQ}, 0, v{vQ}', f'v_cvt_pk_bf16_f32 v{vT}, v{vQ}, v{vS}', f'v_lshlrev_b32 v{vQ}, 16, v{vT}', f'v_and_b32 v{vT}, 0xffff0000, v{vT}',
         f'v_add_f32 v{vQ}, {fbits(1e-5)}, v{vQ}', f'v_xor_b32 v{out_negm}, 0x80000000, v{vT}', f'v_cvt_pk_bf16_f32 v{vQ}, v{vQ}, v{vQ}',
         f'v_lshlrev_b32 v{vQ}, 16, v{vQ}', f'v_sqrt_f32 v{vQ}, v{vQ}', f'v_cvt_pk_bf16_f32 v{vQ}, v{vQ}, v{vQ}']
    sd = vQ if out_sd is None else out_sd
    L += [f'v_lshlrev_b32 v{sd}, 16, v{vQ}', f'v_rcp_f32 v{out_r}, v{sd}']
    return L

def gelu_pk(A, n, vC, vSD, T):
    L = []
    for b in range(0, n, 8):
        P = [A + b + 2*i for i in range(4)]; Q = [T + 2*i for i in range(4)]
        for p, q in zip(P, Q): L.append(f'v_pk_mul_f32 {vr(q,2)}, {vr(p,2)}, {vr(p,2)}')
        for q in Q: L.append(f'v_pk_fma_f32 {vr(q,2)}, {vr(q,2)}, {vr(vC,2)}, {vr(vC,2)} op_sel:[0,0,1] op_sel_hi:[1,0,1]')
        for p, q in zip(P, Q): L.append(f'v_pk_mul_f32 {vr(q,2)}, {vr(q,2)}, {vr(p,2)}')
        for i in range(8): L.append(f'v_exp_f32 v{T+i}, v{T+i}')
        for q in Q: L.append(f'v_pk_fma_f32 {vr(q,2)}, {vr(q,2)}, {vr(vSD,2)}, {vr(vSD,2)} op_sel_hi:[1,0,0]')
        for i in range(8): L.append(f'v_rcp_f32 v{T+i}, v{T+i}')
        for p, q in zip(P, Q): L.append(f'v_pk_mul_f32 {vr(p,2)}, {vr(p,2)}, {vr(q,2)}')
    return L

def gelu_packed(Z, n, T, vC1):
    L = []
    for b in range(0, n, 2):
        for i in range(2): L += [f'v_lshlrev_b32 v{T+2*i}, 16, v{Z+b+i}', f'v_and_b32 v{T+2*i+1}, s33, v{Z+b+i}']
        for i in range(4): L.append(f'v_mul_f32 v{T+4+i}, v{T+i}, v{T+i}')
        for i in range(4): L.append(f'v_fmaak_f32 v{T+4+i}, v{vC1}, v{T+4+i}, {fbits(C0)}')
        for i in range(4): L.append(f'v_mul_f32 v{T+4+i}, v{T+i}, v{T+4+i}')
        for i in range(4): L.append(f'v_exp_f32 v{T+4+i}, v{T+4+i}')
        for i in range(4): L.append(f'v_add_f32 v{T+4+i}, 1.0, v{T+4+i}')
        for i in range(4): L.append(f'v_rcp_f32 v{T+4+i}, v{T+4+i}')
        for i in range(4): L.append(f'v_mul_f32 v{T+i}, v{T+i}, v{T+4+i}')
        for i in range(2): L.append(f'v_cvt_pk_bf16_f32 v{Z+b+i}, v{T+2*i}, v{T+2*i+1}')
    return L

def stream_emit(a, items, nbar, D, hook=None):
    comp = {}
    for i, it in enumerate(items):
        if it[2] is not None: comp[it[2]] = i + 1
    DD = D if callable(D) else (lambda b: D)
    nb = 0
    def bar(n):
        nonlocal nb
        c = max([comp.get(b, 0) for b in range(nb + 1)])
        assert c <= n, (nb, c, n)
        if hook: hook(nb, -1)
        if c: a.L.append(f's_waitcnt vmcnt({min(63, n - c)})')
        if hook: hook(nb, 0)
        a.L.append('s_barrier')
        if hook: hook(nb, 1)
        nb += 1
    for i, (setup, ld, cb, need) in enumerate(items):
        while need is not None and nb <= need: bar(i)
        for x in setup:
            if callable(x): x()
            else: a.L.append(x)
        a.L.append(ld)
        while nb < nbar and nb in comp and i + 1 >= comp[nb] + DD(nb): bar(i + 1)
    while nb < nbar: bar(len(items))

def grp(m0, soff_setup, vbase, srd_, soff, same=False, cb=None, need=None, fl='', mreg='s19'):
    L = []
    for i in range(4):
        su = ([f's_add_u32 m0, {mreg}, {m0}'] + (soff_setup or ['s_nop 0'])) if i == 0 else []
        L.append((su, f'buffer_load_dwordx4 v{vbase if same else vbase+i}, {srd_}, {soff} offen offset:{1024*i} {fl} lds', cb, need if i == 0 else None))
    return L

def rowoffs(a, d, rowbase, sh, colbase=None):
    st = 1 << sh
    a(f"""v_lshrrev_b32 v24, 3, v0
v_add_u32 v24, {rowbase}, v24
v_lshlrev_b32 v24, {sh}, v24
v_and_b32 v25, 7, v0
v_lshrrev_b32 v26, 4, v0
v_xor_b32 v25, v25, v26
v_lshl_add_u32 v{d}, v25, 4, v24""")
    if colbase: a(f'v_add_u32 v{d}, {colbase}, v{d}')
    a(f'v_xor_b32 v{d+1}, 64, v{d}\nv_add_u32 v{d+1}, {8*st-1024}, v{d+1}\nv_add_u32 v{d+2}, {16*st-2048}, v{d}\nv_add_u32 v{d+3}, {16*st-2048}, v{d+1}')

def troffs(a, d, stride, colbase):
    a(f"""v_lshrrev_b32 v24, 3, v0
v_mul_u32_u24 v24, {stride}, v24
v_bfe_u32 v25, v0, 4, 1
v_lshlrev_b32 v25, 2, v25
v_and_b32 v26, 7, v0
v_xor_b32 v25, v25, v26
v_lshl_add_u32 v24, v25, 4, v24
v_add_u32 v{d}, {colbase}, v24""")
    for i in range(1, 4): a(f'v_add_u32 v{d+i}, {8*stride-1024}, v{d+i-1}')

def rowread_list(d, t, base):
    return [f'v_lshrrev_b32 v{t}, 5, v0', f'v_bfe_u32 v{d}, v0, 1, 3', f'v_xor_b32 v{d}, v{d}, v{t}', f'v_lshlrev_b32 v{d}, 4, v{d}',
            f'v_and_b32 v{t}, 31, v0', f'v_lshl_add_u32 v{d}, v{t}, 7, v{d}', f'v_add_u32 v{d}, {base}, v{d}']
def trread_list(d, t):
    return [f'v_lshrrev_b32 v{d}, 5, v0', f'v_bfe_u32 v{t}, v0, 2, 2', f'v_lshl_add_u32 v{d}, v{d}, 3, v{t}', f'v_lshlrev_b32 v{d}, 7, v{d}',
            f'v_bfe_u32 v{t}, v0, 3, 1', f'v_lshl_add_u32 v{d}, v{t}, 6, v{d}', f'v_bfe_u32 v{t}, v0, 4, 1', f'v_lshl_add_u32 v{d}, v{t}, 5, v{d}',
            f'v_and_b32 v{t}, 1, v0', f'v_lshl_add_u32 v{d}, v{t}, 4, v{d}', f'v_bfe_u32 v{t}, v0, 1, 1', f'v_lshl_add_u32 v{d}, v{t}, 3, v{d}']

def cost(x):
    if callable(x): return 4
    t = x[0] if isinstance(x, tuple) else x
    if t.startswith(TRANS): return 8
    if t.startswith('v_mfma_f32_32'): return 32
    if t.startswith('v_mfma'): return 12
    return 4

class SSM:
    CA = 16; PR = 208; DS = 5
    def __init__(self, g): self.g = g; self.a = g.a
    def param_addr(self):
        P = self.PR
        return ['s_lshl_b32 s31, s2, 9', 's_lshl_b32 s3, s29, 7', 's_add_u32 s31, s31, s3', f'v_lshl_add_u32 v{P+6}, v0, 1, s31',
                's_lshl_b32 s31, s2, 2', f'v_mov_b32 v{P+7}, s31']
    def param_loads(self):
        P = self.PR
        L = [(f'global_load_dword v{P+4}, v{P+7}, s[48:49]', 'prm')]
        for i in range(4): L.append((f'global_load_ushort v{P+i}, v{P+6}, s[{40+2*i}:{41+2*i}]', 'prm'))
        L.append((f'global_load_dword v{self.DS}, v{P+7}, s[50:51]', 'prm'))
        return L
    def kaddr(self):
        A = 216
        L = ['s_lshl_b32 s31, s29, 14', f's_add_u32 s31, s31, {L_SSM}', f'v_bfe_u32 v{A+4}, v0, 1, 2', f'v_lshlrev_b32 v{A+4}, 4, v{A+4}', f'v_lshl_add_u32 v{A+4}, v0, 6, v{A+4}', f'v_add_u32 v{A}, s31, v{A+4}']
        for b in range(1, 4): L.append(f'v_xor_b32 v{A+b}, {16*b}, v{A}')
        R, t, u = A+4, A+6, A+7
        L += ['s_and_b32 s3, s31, 0xffff8000', f'v_bfe_u32 v{t}, v0, 3, 2', f'v_bfe_u32 v{R}, v0, 1, 1', f'v_xor_b32 v{R}, v{R}, v{t}', f'v_lshlrev_b32 v{R}, 4, v{R}',
              f'v_lshrrev_b32 v{t}, 2, v0', f'v_lshl_add_u32 v{R}, v{t}, 6, v{R}', f'v_and_b32 v{u}, 1, v0', f'v_lshl_add_u32 v{R}, v{u}, 3, v{R}', f'v_add_u32 v{R}, s3, v{R}',
              f'v_xor_b32 v{A+5}, 32, v{R}', 's_and_b32 s3, s29, 1', 's_lshl_b32 s31, s3, 5', f'v_xor_b32 v{A+6}, s31, v{R}',
              f'v_cmp_eq_u32 s[58:59], 0, v{u}', f'v_and_b32 v{u}, 16, v0', f'v_cmp_eq_u32 s[46:47], 0, v{u}']
        L += ['s_lshr_b32 s31, s29, 1', f's_mul_i32 s57, s31, {KSTR}', f's_add_u32 s57, s57, {L_K}', 's_lshl_b32 s3, s3, 8', 's_sub_u32 s3, s57, s3',
              f'v_and_b32 v{A+9}, 255, v7', f'v_sub_u32 v{A+9}, s3, v{A+9}', f'v_lshrrev_b32 v{A+10}, 4, v0',
              f'v_lshlrev_b32 v{A+11}, 2, v{A+10}', f'v_sub_u32 v{A+7}, v{A+9}, v{A+11}', f'v_lshlrev_b32 v{A+11}, 9, v{A+10}', f'v_sub_u32 v{A+14}, v{A+9}, v{A+11}',
              f'v_lshrrev_b32 v{A+11}, 5, v0', f'v_lshlrev_b32 v{A+11}, 9, v{A+11}', f'v_sub_u32 v{A+8}, v{A+9}, v{A+11}', f'v_bfe_u32 v{A+11}, v0, 4, 1', f'v_lshlrev_b32 v{A+11}, 3, v{A+11}', f'v_sub_u32 v{A+8}, v{A+8}, v{A+11}',
              f'v_min_u32 v{A+9}, 39, v0', f'v_lshl_add_u32 v{A+9}, v{A+9}, 4, s57'] + [f'v_mov_b32 v{A+10+i}, 0' for i in range(4)]
        L.append((f'ds_write_b128 v{A+9}, {vr(A+10,4)} offset:4096', 'kt'))
        return L
    def kgen(self):
        a = self.a; P = self.PR; A = 216
        E1, E8, E64, E256, Cc, E2 = 128, 130, 132, 134, 136, 138
        t = 140
        Lhi = f32(LOG2E); Llo = LOG2E - Lhi
        def exp_acc(d, x, t0, t1):
            return [f'v_mul_f32 v{t0}, s40, v{x}', f'v_fma_f32 v{t1}, v{x}, s40, -v{t0}', f'v_fma_f32 v{t1}, v{x}, s41, v{t1}',
                    f'v_exp_f32 v{t0}, v{t0}', f'v_mul_f32 v{t1}, s42, v{t1}', f'v_fma_f32 v{d}, v{t0}, v{t1}, v{t0}']
        L = [f's_mov_b32 s40, {fbits(Lhi)}', f's_mov_b32 s41, {fbits(Llo)}', f's_mov_b32 s42, {fbits(math.log(2))}',
             's_lshr_b32 s31, s29, 1', 's_lshl_b32 s31, s31, 4', lambda: a.waitvm('prm'), lambda: self.g.stamp(17), f'v_lshrrev_b32 v{P+4}, s31, v{P+4}']
        for i in range(5): L.append(f'v_lshlrev_b32 v{P+i}, 16, v{P+i}')
        for x, y in zip(exp_acc(P+4, P+4, t, t+1), exp_acc(P, P, t+2, t+3)): L += [x, y]
        L += [f'v_cvt_pk_bf16_f32 v{P+4}, v{P}, v{P+4}', f'v_lshlrev_b32 v{P}, 16, v{P+4}', f'v_and_b32 v{P+4}, s33, v{P+4}']
        for i in range(4): L.append(f'v_mul_f32 v{P+i}, v{P+i}, v{P+4}')
        L += [f'v_mul_f32 v{t}, {fbits(-LOG2E)}, v{P}', f'v_mul_f32 v{t+4}, 0.15915494, v{P+1}', f'v_add_f32 v{Cc}, v{P+2}, v{P+2}', f'v_add_f32 v{Cc+1}, v{P+3}, v{P+3}']
        for k, p in enumerate([8.0, 64.0, 256.0]): L += [f'v_mul_f32 v{t+1+k}, {fbits(p)}, v{t}', f'v_mul_f32 v{t+5+k}, {fbits(p)}, v{t+4}']
        for k in range(4): L += [f'v_exp_f32 v{t+k}, v{t+k}', f'v_fract_f32 v{t+4+k}, v{t+4+k}']
        for k in range(4): L += [f'v_cos_f32 v{E1+2*k}, v{t+4+k}', f'v_sin_f32 v{E1+1+2*k}, v{t+4+k}']
        for k in range(4): L += [f'v_mul_f32 v{E1+2*k}, v{t+k}, v{E1+2*k}', f'v_mul_f32 v{E1+1+2*k}, v{t+k}, v{E1+1+2*k}']
        fk = lambda i: (lambda: self.g.stamp(i, True) if self.g.opt.get('fine') == 'kg' else None)
        L.append(fk(3))
        O = 140
        def cm(jobs):
            R = []
            for d, x, y in jobs: R.append(f'v_pk_mul_f32 {vr(d,2)}, {vr(x,2)}, {vr(y,2)} op_sel_hi:[1,0]')
            for d, x, y in jobs: R.append(f'v_pk_fma_f32 {vr(d,2)}, {vr(x,2)}, {vr(y,2)}, {vr(d,2)} op_sel:[1,1,0] op_sel_hi:[0,1,1] neg_lo:[1,0,0]')
            return R
        cnt = [0]
        def pack(vals, blk, plane, neg):
            o = O + 8 * (cnt[0] & 1); cnt[0] += 1
            R = []
            for i in range(4): R.append(f'v_cvt_pk_bf16_f32 v{o+i}, v{vals[2*i]}, v{vals[2*i+1]}')
            R.append((f'ds_write_b128 v{A+blk}, {vr(o,4)} offset:{plane*4096}', 'kt'))
            s = '-' if neg else ''
            for i in range(4): R.append(f'v_cvt_pk_bf16_f32 v{o+4+i}, {s}v{vals[2*i]+1}, {s}v{vals[2*i+1]+1}')
            R.append((f'ds_write_b128 v{A+blk}, {vr(o+4,4)} offset:{plane*4096+4096}', 'kt'))
            return R
        B = [156 + 2*i for i in range(26)]
        fa = B[0:8]; fb = B[8:16]; g = [Cc] + B[16:24]
        fa0 = [fa[0], E8] + fa[2:]
        L += [f'v_mov_b32 v{fa[0]}, 1.0', f'v_mov_b32 v{fa[0]+1}, 0']
        L += cm([(fa[2], E8, E8), (g[1], Cc, E1), (E2, E1, E1), (g[8], Cc, E8)])
        L += cm([(fa[3], fa[2], E8), (fa[4], fa[2], fa[2]), (g[2], Cc, E2), (g[3], g[1], E2)])
        L += cm([(fa[5], fa[4], E8), (fa[6], fa[4], fa[2]), (fa[7], fa[4], fa[3]), (g[4], g[2], E2), (g[5], g[3], E2)])
        L += pack(fa0, 0, 2, False)
        fb0 = [E64] + fb[1:]
        L += cm([(g[6], g[4], E2), (g[7], g[5], E2)] + [(fb[i], fa0[i], E64) for i in range(1, 8)])
        L += cm([(fa[i], fb0[i], E64) for i in range(8)])
        L += pack(fb0, 1, 2, False)
        L += cm([(fb[i], fa[i], E64) for i in range(8)])
        L += pack(fa, 2, 2, False)
        h0, h2, h4, h6, h8, i0, i4, i8 = B[0:8]
        j0, j4, j8, k0, k8, l0, l8 = B[8:15]
        L += cm([(h0, g[0], E256), (h2, g[2], E256), (h4, g[4], E256), (h6, g[6], E256), (h8, g[8], E256), (E2, E256, E256)])
        L += pack(fb, 3, 2, False)
        L += cm([(i0, g[0], E2), (i4, g[4], E2), (i8, g[8], E2), (j0, h0, E2), (j4, h4, E2), (j8, h8, E2)])
        L += pack([g[0], g[1], h0, h0, g[2], g[3], h2, h4], 0, 0, True)
        m0, m8, n0, n8 = g[1], g[2], g[3], B[15]
        L += cm([(k0, i0, E2), (k8, i8, E2), (l0, j0, E2), (l8, j8, E2)])
        L += pack([g[4], g[5], h4, h4, g[6], g[7], h6, h8], 1, 0, True)
        L += cm([(m0, k0, E2), (m8, k8, E2), (n0, l0, E2), (n8, l8, E2)])
        L += pack([i0, i4, k0, k8, i4, i8, l0, l8], 2, 0, True)
        L += pack([j0, j4, m0, m8, j4, j8, n0, n8], 3, 0, True)
        L.append(fk(4))
        L.append(BAR)
        L.append(fk(5))
        D = 128; FR = 136
        def rd(j):
            o = 16384 * (j // 4) + 1024 * (j % 4); b = FR + 12 * (j % 5)
            return [(f'ds_read_b64_tr_b16 {vr(b+4*k+2*p,2)}, v{A+(6,4,5)[k]} offset:{o + 4096*p + (8192 if k == 0 else 0)}', f'kr{j}') for k in range(3) for p in range(2)]
        for j in range(2): L += rd(j)
        for j in range(8):
            b = FR + 12 * (j % 5); nx = rd(j+2) if j + 2 < 8 else []
            L += nx[:3]
            L.append(lambda j=j: a.waitlg(f'kr{j}'))
            L.append(f'v_mfma_f32_16x16x32_bf16 {vr(D,4)}, {vr(b+4,4)}, {vr(b,4)}, {"0" if j == 0 else vr(D,4)}')
            L += nx[3:]
            L.append(f'v_mfma_f32_16x16x32_bf16 {vr(D+4,4)}, {vr(b+8,4)}, {vr(b,4)}, {"0" if j == 0 else vr(D+4,4)}')
        L.append(fk(6))
        O = 196
        L += [f'v_cvt_pk_bf16_f32 v{O}, v{D+1}, v{D}', f'v_cvt_pk_bf16_f32 v{O+1}, v{D+3}, v{D+2}',
              f'v_cndmask_b32 v{O+2}, v{D+5}, v{D+4}, s[46:47]', f'v_cndmask_b32 v{O+5}, v{D+7}, v{D+6}, s[58:59]',
              f'v_cvt_pk_bf16_f32 v{O+4}, v{D+7}, v{D+7}', f'v_cvt_pk_bf16_f32 v{O+5}, v{D+7}, v{O+5}', f'v_cvt_pk_bf16_f32 v{O+6}, v{D+6}, v{D+6}', f'v_cvt_pk_bf16_f32 v{O+7}, v{D+6}, v{D+6}',
              (f'ds_write_b128 v{A+14}, {vr(O+4,4)} offset:{4080-2048}', 'kw'),
              f'v_cvt_pk_bf16_f32 v{O+2}, v{D+5}, v{O+2}', f'v_cvt_pk_bf16_f32 v{O+3}, v{D+4}, v{D+4}',
              (f'ds_write_b64 v{A+8}, {vr(O+2,2)} offset:{4088-1024}', 'kw'),
              (f'ds_write_b32 v{A+7}, v{O} offset:4092', 'kw'), (f'ds_write_b32 v{A+7}, v{O+1} offset:{4092-512}', 'kw')]
        return L
    UA = 13; KA_ = 15
    def ubuild(self, T=244, R=232, O=200):
        a = self.a
        L = ['s_mov_b32 s44, 0x05040100', 's_mov_b32 s45, 0x07060302',
             's_lshl_b32 s31, s29, 11', f's_add_u32 s31, s31, {L_RAW}', f'v_lshl_add_u32 v{T+3}, v0, 5, s31']
        L += [f'v_mov_b32 v{T+4+k}, 0' for k in range(4)]
        L += ['s_lshr_b32 s31, s29, 1', f's_mul_i32 s46, s31, {UGRP}', f's_add_u32 s46, s46, {L_U}', 's_and_b32 s47, s29, 1', 's_lshl_b32 s3, s47, 9',
              f'v_and_b32 v{T}, 3, v0', f'v_mul_u32_u24 v{T}, {USTR}, v{T}', f'v_bfe_u32 v{T+2}, v0, 2, 2', f'v_lshl_add_u32 v{T}, v{T+2}, 7, v{T}',
              f'v_and_b32 v{T+2}, 48, v0', f'v_add3_u32 v{self.UA}, v{T}, v{T+2}, s46',
              's_sub_u32 s31, s57, s3', 's_add_u32 s31, s31, 632', f'v_and_b32 v{T}, 15, v0', f'v_lshlrev_b32 v{T}, 3, v{T}', f'v_sub_u32 v{T}, v{T+2}, v{T}', f'v_add_u32 v{self.KA_}, s31, v{T}']
        L += [f'v_lshrrev_b32 v{T+2}, 5, v0', f'v_mul_u32_u24 v{T+2}, {USTR}, v{T+2}', f'v_and_b32 v{T}, 31, v0', f'v_min_u32 v{T}, 23, v{T}',
              f's_mul_i32 s31, s47, {2*USTR}', 's_add_u32 s31, s31, s46', f'v_lshl_add_u32 v{T}, v{T}, 4, v{T+2}', f'v_add_u32 v{T}, s31, v{T}']
        L += ['s_lshl_b32 s31, s29, 10', f's_add_u32 s31, s31, {L_U + 384}', f'v_add_u32 v{T+1}, s31, v7',
              's_cmp_eq_u32 s29, 0', 's_cselect_b32 s31, 0, -1', f'v_cmp_eq_u32 s[58:59], s31, v0']
        L.append(BAR)
        for k in range(3): L.append((f'ds_read_b128 {vr(R+4*k,4)}, v{T+3} offset:{16*k}', 'rr'))
        L.append((f'ds_write_b128 v{T}, {vr(T+4,4)}', 'uw'))
        L.append(lambda: a.waitlg('rr'))
        for k in range(1, 4): L.append(f'v_cndmask_b32 v{R+k}, v{R+k}, v{T+4}, s[58:59]')
        for dl in range(2):
            for e in range(4):
                d = O + 4 * (4*dl + e)
                for k in range(4): L.append(f'v_perm_b32 v{d+k}, v{R+4+2*k+e-2}, v{R+4+2*k+e-3}, s{44+dl}')
                L.append((f'ds_write_b128 v{T+1}, {vr(d,4)} offset:{dl*UGRP+e*USTR}', 'uw'))
        L.append(BAR)
        return L
    def conv(self):
        a = self.a; CA = self.CA
        FB = [192, 224]
        def reads(n):
            r, par = divmod(n, 2)
            L = []
            for i in range(4):
                kk = 3 - i
                pp = 2*kk + 1 - par
                if i == 0: L.append((f'ds_read_b128 {vr(FB[n&1],4)}, v{self.UA} offset:{512*par+64*r}', f't{n}_0'))
                for h in range(2): L.append((f'ds_read_b64 {vr(FB[n&1]+16+4*kk+2*h,2)}, v{self.KA_} offset:{3584 - 512*pp + 64*r + 8*h}', f'k{n}_{kk}'))
            for i in range(1, 4): L.append((f'ds_read_b128 {vr(FB[n&1]+4*i,4)}, v{self.UA} offset:{512*(2*i+par)+64*r}', f't{n}_{i}'))
            return L
        G_ = []
        for n in range(16):
            nx = reads(n+1) if n < 15 else []
            m = 0
            for i in range(4):
                for kk in range(3 - i, -1, -1):
                    A = i + kk
                    tags = [f't{n}_{i}', f'k{n}_{kk}']
                    c = '0' if (n == 0 and i == 0) else vr(CA+4*A, 4)
                    g = [lambda tags=tags: a.waitlg(tags), f'v_mfma_f32_16x16x32_bf16 {vr(CA+4*A,4)}, {vr(FB[n&1]+4*i,4)}, {vr(FB[n&1]+16+4*kk,4)}, {c}']
                    k = 2 if m < 4 else (1 if m < 8 else 0)
                    g += nx[:k]; nx = nx[k:]; m += 1
                    G_.append(g)
            assert not nx
        return reads(0), G_
    def finish(self):
        a = self.a; CA = self.CA; R = 192; T = 224
        L = ['s_and_b32 s3, s29, 1', 's_lshl_b32 s31, s3, 10', f's_add_u32 s31, s31, {L_RAW+16}', f'v_add_u32 v{T}, s31, v7']
        for k in range(4): L.append((f'ds_read_b128 {vr(R+4*k,4)}, v{T} offset:{2048*k}', f'ur{k}'))
        L += ['s_lshr_b32 s31, s29, 1', 's_lshl_b32 s55, s2, 1', 's_add_u32 s55, s55, s31', 's_lshl_b32 s3, s3, 9', 's_lshl_b32 s56, s55, 12', 's_add_u32 s56, s56, s3', f's_add_u32 s56, s56, {WS_ST}',
              's_add_u32 s55, s55, s3', 's_lshl_b32 s55, s55, 7', f's_add_u32 s60, s55, {FS}',
              's_cmp_eq_u32 s31, 0', 's_cselect_b32 s3, 0x01000c0c, 0x03020c0c'.replace(', 0x03020c0c', ', s45x'), f'v_lshlrev_b32 v{T+1}, 3, v0']
        L[-2:-1] = ['s_mov_b32 s3, 0x03020c0c', 's_cselect_b32 s3, 0x01000c0c, s3']
        L.append(f'v_perm_b32 v{T+2}, v{self.DS}, v{self.DS}, s3')
        for k in range(4):
            L.append(lambda k=k: a.waitlg(f'ur{k}'))
            for j in range(4): L.append(f'v_perm_b32 v{R+4*k+j}, v{R+4*k+j}, v{R+4*k+j}, s3')
            for j in range(4): L.append(f'v_fmac_f32 v{CA+4*k+j}, v{R+4*k+j}, v{T+2}')
            for j in range(2): L.append(f'v_cvt_pk_bf16_f32 v{T+4+2*k+j}, v{CA+4*k+2*j}, v{CA+4*k+2*j+1}')
            L.append((f'buffer_store_dwordx2 {vr(T+4+2*k,2)}, v{T+1}, s[12:15], s56 offen offset:{1024*k} sc1', 'sst'))
        return L, self.g.setflag('s60', T+3)

def emit_plain(a, L):
    n = 0
    for x in L:
        if x is BAR:
            a.waitall(vm=False); a('s_barrier'); n += 1
        else: a.emit([x])
    return n


def sizes_of(lines):
    import subprocess, tempfile, os
    d = tempfile.mkdtemp()
    open(d + '/t.s', 'w').write('.amdgcn_target "amdgcn-amd-amdhsa--gfx950"\n' + '\n'.join(lines) + '\n')
    r = subprocess.run(['llvm-mc', '-triple=amdgcn-amd-amdhsa', '-mcpu=gfx950', '-show-encoding', d + '/t.s'], capture_output=True, text=True)
    assert r.returncode == 0, r.stderr[:2000]
    enc = [len(l.split('encoding: [')[1].split(']')[0].split(',')) for l in r.stdout.split('\n') if 'encoding: [' in l]
    idx = [i for i, l in enumerate(lines) if Ins(l).is_ins]
    assert len(enc) == len(idx), (len(enc), len(idx))
    return dict(zip(idx, enc))

def finalize(a, name, opt):
    L, _ = pad_hazards([x for x in a.L], opt.get('verbose'))
    warm = [i for i, x in enumerate(L) if x == '@WARM@']
    base = [x if x != '@WARM@' else '' for x in L]
    sz = sizes_of(base)
    start = base.index('.p2align 12')
    out = base[:start + 1]; addr = 0; pads = []
    stop = base.index(f'{name}_tcomp:')
    n = len(base); i = start + 1
    E64 = ('v_add_f32', 'v_mul_f32', 'v_sub_f32', 'v_lshlrev_b32', 'v_and_b32', 'v_xor_b32', 'v_or_b32', 'v_mov_b32', 'v_exp_f32', 'v_rcp_f32', 'v_add_u32', 'v_max_f32',
           'v_lshrrev_b32', 'v_sqrt_f32', 'v_fmac_f32', 'v_max_u32', 'v_min_u32', 'v_sin_f32', 'v_cos_f32', 'v_fract_f32')
    while i < n:
        ln = base[i]
        if i in sz:
            if addr >= 4096 * (len(pads) + 1) and i < stop and not opt.get('nopad'):
                lb = f'{name}_pad{len(pads)}'; pads.append(lb)
                out.append(f'{lb}:'); out.append(f'@PAD{len(pads)-1}@'); addr += 4
            s = sz[i]
            if s == 4 and not opt.get('noalign') and (addr + 4) % 8 == 4:
                j = i + 1; run = 0; mf = 0
                while j < n and (j not in sz or sz[j] == 8):
                    if j in sz:
                        run += 1; mf += base[j].startswith('v_mfma')
                    j += 1
                mn = ln.split()[0]
                if run >= 3 and mn in E64:
                    ln = ln.replace(mn, mn + '_e64', 1); s = 8
                elif run >= 10 and mf == 0:
                    out.append('s_nop 0'); addr += 4
            addr += s
        out.append(ln); i += 1
    res = []; wi = 0
    for k, x in enumerate(out):
        if x.startswith('@PAD'):
            p = int(x[4:-1])
            res.append(f's_cbranch_execz {name + "_warmret0" if p < 2 else pads[p+2] if p + 2 < len(pads) else name + "_warmret1"}')
        elif k in warm and pads:
            res += ['s_mov_b64 exec, 0', 's_cmp_eq_u32 s18, 0', f's_cbranch_scc1 {pads[2*wi]}', f's_branch {pads[2*wi+1]}', f'{name}_warmret{wi}:', 's_mov_b64 exec, -1']
            wi += 1
        else: res.append(x)
    return '\n'.join(res) + '\n'

def fused(name, opt):
    g = G(name, opt); a = g.a; ssm = SSM(g); stamp = g.stamp
    nb = {'gl': 0, 'gc': 0, 'tl': 0, 'tc': 0}
    NR = opt.get('nr', 4)
    rp = opt.get('rpat', 'SSSSSSR')
    pat = ''
    while len(pat) < 32:
        ch = rp[len(pat) % len(rp)]
        pat += ch if pat.count('R') < NR else 'S'
    RPOS = [k for k in range(32) if pat[k] == 'R']; SPOS = [k for k in range(32) if pat[k] == 'S']
    MEM = {k: r for r, k in enumerate(RPOS)}; MEM.update({k: NR + s for s, k in enumerate(SPOS)})
    SIDX = {k: s for s, k in enumerate(SPOS)}
    assert len(SPOS) % 4 == 0 and SPOS[-4:] == [28, 29, 30, 31]
    W3 = [(0, 29), (8192, 29), (L_Z, 29), (16384, 30), (24576, 30), (L_Z + 8192, 30), (32768, 31), (40960, 31), (L_Z + 16384, 31),
          (147456, 31), (155648, 31), (49152, 32), (57344, 32), (L_Z + 24576, 32)]
    W3LOC = [x[0] for x in W3]
    kernel_begin(a, name)
    lab = lambda s: f'{name}_{s}'
    a(f's_cmp_ge_u32 s2, 256\ns_cbranch_scc1 {lab("done")}')
    if opt.get('prof') or opt.get('dbg'): a('s_memrealtime s[62:63]\ns_memtime s[66:67]')
    a(f's_load_dwordx2 s[4:5], s[0:1], {KA["u"]}\ns_load_dwordx2 s[12:13], s[0:1], {KA["ws"]}')
    a('''v_lshrrev_b32 v1, 6, v0
s_and_b32 s24, s2, 7
s_bfe_u32 s25, s2, 0x20003
v_readfirstlane_b32 s29, v1
s_lshr_b32 s26, s24, 1
s_lshl_b32 s26, s26, 2
s_add_u32 s26, s26, s25
s_lshr_b32 s27, s2, 5
s_and_b32 s30, s24, 1
s_mul_i32 s28, s30, 7
s_add_u32 s28, s28, s27
v_and_b32 v0, 63, v0''')
    a(f's_cmp_ge_u32 s29, 4\ns_cbranch_scc1 {lab("help")}')
    a(f's_load_dwordx8 s[40:47], s[0:1], {KA["logA"]}\ns_load_dwordx4 s[48:51], s[0:1], {KA["logdt"]}')
    a(f's_load_dwordx2 s[18:19], s[0:1], {KA["bsp"]}\ns_load_dwordx2 s[20:21], s[0:1], {KA["out"]}')
    a.emit(ssm.param_addr())
    a(f's_lshl_b32 s35, s26, 2\ns_add_u32 s35, s35, s29\ns_mul_i32 s54, s35, 57344\ns_lshl_b32 s31, s28, 12\ns_add_u32 s54, s54, s31\ns_add_u32 s54, s54, {WS_HF}')
    a('v_lshlrev_b32 v7, 4, v0\nv_mov_b32 v8, -1\nv_mov_b32 v9, -1\nv_mov_b32 v10, -1\nv_mov_b32 v11, -1')
    a('s_waitcnt lgkmcnt(0)')
    tagload = f's_add_u32 s16, s12, {WS_EPOCH}\ns_addc_u32 s17, s13, 0\ns_load_dword s24, s[16:17], 0'
    tagmake = 's_waitcnt lgkmcnt(0)\ns_mul_i32 s24, s24, 0x19660d\ns_add_u32 s24, s24, 0x3c6ef35f'
    a.emit(ssm.param_loads())
    a(tagload)
    a(f's_cmp_eq_u32 s27, 7\ns_cbranch_scc1 {lab("tcomp")}')
    hcl = opt.get('hcl', 't')
    if hcl == 'g':
        a(f's_and_b32 s13, s13, 0xffff\ns_mov_b32 s14, {hex(WS_BYTES)}\ns_mov_b32 s15, 0x20000')
        for q in range(4): a(f'buffer_store_dwordx4 v[8:11], v7, s[12:15], s54 offen offset:{1024*q} sc1')
    a(f's_branch {lab("comp")}')
    a(f'{lab("help")}:')
    a(f's_load_dwordx2 s[8:9], s[0:1], {KA["win"]}\ns_load_dwordx2 s[20:21], s[0:1], {KA["wsp"]}\ns_load_dwordx2 s[36:37], s[0:1], {KA["wout"]}')
    a('s_and_b32 s18, s29, 1\ns_lshl_b32 s19, s18, 12')
    srdc = f's_mov_b32 s14, {hex(WS_BYTES)}\ns_mov_b32 s15, 0x20000\ns_mov_b32 s6, 0x200000\ns_mov_b32 s7, 0x20000'
    a(srdc)
    if not opt.get('nocpf'):
        a(f's_getpc_b64 s[56:57]\n{lab("pc")}:\ns_lshr_b32 s31, s2, 2\ns_and_b32 s31, s31, 62\ns_add_u32 s31, s31, s18\nv_and_b32 v1, 7, v0\nv_lshlrev_b32 v1, 6, v1\nv_add_lshl_u32 v1, v1, s31, 7\nv_min_u32 v1, {lab("done")}-{lab("pc")}, v1')
        a('global_load_dword v31, v1, s[56:57]')
    a(f's_cmp_eq_u32 s27, 7\ns_cbranch_scc1 {lab("thelp")}')

    def rot3(r):
        sm, sn = opt.get('sm3', 0), opt.get('sn3', 0)
        a(f's_mul_i32 s{r}, s25, {sm}\ns_mul_i32 s31, s27, {sn}\ns_add_u32 s{r}, s{r}, s31\ns_lshr_b32 s{r}, s{r}, 4\ns_sub_u32 s31, s{r}, 14\ns_cmp_ge_u32 s{r}, 14\ns_cselect_b32 s{r}, s31, s{r}')
    def late_loader_setup():
        a(f's_mov_b32 s22, 0x800000\ns_mov_b32 s23, 0x20000\ns_mov_b32 s38, {896*1024}\ns_mov_b32 s39, 0x20000')
        a('s_and_b32 s21, s21, 0xffff\ns_and_b32 s37, s37, 0xffff\ns_and_b32 s13, s13, 0xffff')
        a('v_lshl_add_u32 v14, v0, 4, s19\nv_lshlrev_b32 v15, 7, v0')
        a('s_lshl_b32 s31, s27, 7\ns_lshl_b32 s3, s18, 15\ns_add_u32 s31, s31, s3'); troffs(a, 16, 1024, 's31')
        a('s_lshl_b32 s32, s26, 1\ns_add_u32 s32, s32, s30\ns_lshl_b32 s3, s32, 6'); rowoffs(a, 20, 's3', 10, 's31')
        rot3(60)
        a(f's_lshl_b32 s35, s2, 13')
        a(f's_lshr_b32 s31, s2, 7\ns_lshl_b32 s31, s31, 13\ns_add_u32 s59, s31, s19\ns_add_u32 s59, s59, {FX}\nv_and_b32 v32, 0xfff, v15')
        if hcl == 't': a(f'v_min_u32 v33, {3*128}, v15\ns_lshl_b32 s31, s26, 9\ns_add_u32 s31, s31, {FH}')
        else:
            a(f'v_min_u32 v33, 13, v0\nv_lshlrev_b32 v33, 13, v33\ns_lshl_b32 s31, s32, 1\ns_add_u32 s31, s31, s18\ns_lshl_b32 s31, s31, 7\ns_add_u32 s31, s31, {FZ}')
        a(f"""v_add_u32 v33, s31, v33
s_lshl_b32 s31, s27, 13
s_bfe_u32 s3, s26, 0x10001
s_lshl_b32 s3, s3, 16
s_add_u32 s31, s31, s3
s_add_u32 s31, s31, s19
s_add_u32 s61, s31, {FS}
v_mov_b32 v36, -1
v_mov_b32 v37, -1
v_mov_b32 v38, -1
v_mov_b32 v39, -1
v_mov_b32 v34, 0
v_lshlrev_b32 v44, 2, v0
s_lshl_b32 s31, s27, 18
s_lshl_b32 s3, s18, 17
s_add_u32 s31, s31, s3
s_lshl_b32 s3, s32, 7
s_add_u32 s31, s31, s3
s_add_u32 s31, s31, {WS_ST}""")
        troffs(a, 40, 4096, 's31')
    def adv(r): return [f's_add_u32 s{r}, s{r}, 1', f's_cmp_eq_u32 s{r}, 14', f's_cselect_b32 s{r}, 0, s{r}']
    def w3(j, need=None): return grp(W3LOC[j], ['s_lshl_b32 s56, s60, 16'] + adv(60), 16, 's[36:39]', 's56', need=need)
    def x3(need=None): return grp(L_X3, None, 20, 's[4:7]', '0', need=need)
    w3m = opt.get('w3m', 14)
    fsload = 'buffer_load_dword v27, v32, s[12:15], s61 offen sc1'
    def s3tail():
        if w3m < 14:
            paced(sum([w3(j) for j in range(w3m, 14)], []), opt.get('thin4', 60))
            a.L.append(fsload)
            a('s_waitcnt vmcnt(1)\ns_barrier\ns_waitcnt vmcnt(0)')
        lspin('s61', 'v32', w3m < 14)
        stream_emit(a, grp(L_S3, None, 40, 's[12:15]', '0', fl='sc1'), 0, 0)
        a('s_waitcnt vmcnt(0)')
        stamp(15)
    def rawg(cb=None): return grp(L_RAW + 16, [f's_add_u32 s31, s35, {WS_XNT}'], 14, 's[12:15]', 's31', True, cb, None, 'sc1')
    def lspin(soff, voff, first=False):
        lp = a.newlab('lsp'); lo = a.newlab('lspo')
        a(f's_mov_b32 s58, {SPIN}')
        if first: a(f's_branch {lp}c')
        a(f'{lp}:')
        a.L.append(f'buffer_load_dword v27, {voff}, s[12:15], {soff} offen sc1'); a.L.append('s_waitcnt vmcnt(0)')
        a(f'{lp}c:\nv_cmp_ne_u32 vcc, s24, v27\ns_cbranch_vccz {lo}\ns_sub_u32 s58, s58, 1\ns_cmp_lg_u32 s58, 0\ns_cbranch_scc1 {lp}\n{lo}:')
    def lflag(soff):
        a('s_mov_b32 exec_hi, 0'); a.L.append(f'buffer_store_dword v35, v44, s[12:15], {soff} offen sc1'); a('s_mov_b64 exec, -1')
    def paced(items, thin):
        for i in range(0, len(items), 4):
            stream_emit(a, items[i:i+4], 0, 0)
            if thin < 60: a(f's_waitcnt vmcnt({thin})')
    ft = opt.get('ft', ''); gs = opt.get('gs', 2); lg = gs.bit_length() - 1
    prog = opt.get('prog', 8)
    RG = 32 if prog else opt.get('rg', 1)
    def k0calc(r, with_c):
        if prog: a(f's_lshr_b32 s{r}, s26, 2\ns_lshl_b32 s{r}, s{r}, 3\ns_add_u32 s{r}, s{r}, {(32 - NR) % 32}')
        else: a(f's_mul_i32 s{r}, s25, {RG // 4 if RG >= 4 else 0}')
    def memidx(d, r, idx): return [f's_add_u32 s{d}, s{r}, {idx}', f's_and_b32 s{d}, s{d}, {RG-1}', f's_or_b32 s{d}, s{d}, {idx & ~(RG-1)}']
    def wtouch(groups, other, pace):
        for gi in groups:
            assert RG == 1 or (RG // 4) % gs == 0
            a(f's_xor_b32 s31, s30, {other}\ns_add_u32 s31, s31, {2*gi}\ns_lshl_b32 s31, s31, {lg}\ns_and_b32 s3, s31, {31 & ~(RG-1)}\ns_add_u32 s31, s31, s45\ns_and_b32 s31, s31, {RG-1}\ns_or_b32 s31, s31, s3\ns_lshl_b32 s31, s31, 7')
            for i in range(gs):
                a.L.append(f'buffer_load_dword v30, v29, s[20:23], s31 offen {ft}')
                if i + 1 < gs: a(f's_add_u32 s31, s31, {(64 // gs) * 4096}')
                if pace is not None: a(f's_waitcnt vmcnt({pace})')
    def count_bars(start): return sum(1 for x in a.L[start:] if x.strip() == 's_barrier')

    st0 = len(a.L)
    XO = [131072, 49152, 65536, 81920, 98304, 114688, 131072, 0]
    a('s_lshl_b32 s34, s25, 1\ns_add_u32 s34, s34, s27\ns_and_b32 s34, s34, 7\ns_lshl_b32 s33, s26, 7\ns_lshl_b32 s3, s18, 5\ns_add_u32 s33, s33, s3')
    rowoffs(a, 2, 's33', 10)
    a(f's_lshl_b32 s31, s28, 7\ns_mul_i32 s3, s18, {32*3584}\ns_add_u32 s31, s31, s3'); troffs(a, 6, 3584, 's31')
    def so(c): a(f's_add_u32 s31, s34, {c}\ns_and_b32 s31, s31, 7\ns_lshl_b32 s{40+c}, s31, 7\ns_mul_i32 s{48+c}, s31, {64*3584}')
    for c in range(4): so(c)
    a(f's_mov_b32 s10, {512*3584}\ns_mov_b32 s11, 0x20000')
    a('s_waitcnt lgkmcnt(0)')
    a(tagload)
    a('s_and_b32 s5, s5, 0xffff\ns_and_b32 s9, s9, 0xffff')
    f1 = opt.get('f1', '')
    def wg(p, cb=None): return grp(p*8192, [f's_add_u32 s31, s{48+p%8}, {1792 if p < 8 else 0}'], 6, 's[8:11]', 's31', cb=cb, fl=f1)
    def xg(c, need=None):
        return sum([grp(XO[c] + k*8192, [f's_add_u32 s31, s{40+c}, {k*65536}'], 2, 's[4:7]', 's31', cb=c+1, need=need if k == 0 else None, fl=f1) for k in range(2)], [])
    we = opt.get('we', 3)
    items = xg(0) + wg(0, 1) + wg(1, 2) + xg(1) + sum([wg(p, p+1) for p in range(2, we + 1)], [])
    for c in range(2, 8):
        items += xg(c, 1)
        if c > we: items += wg(c, c+1)
    ncs = opt.get('ncs', 4)
    for p in range(8, 8 + ncs): items += wg(p)
    early = opt.get('early', 2)
    def setup2():
        for c in range(4, 8): so(c)
        late_loader_setup()
        rowoffs(a, 10, 's33', 12)
        k0calc(57, True)
    if early >= 1: setup2()
    if early >= 2: a('@WARM@')
    def hook1(b, k):
        if b == 0 and k == -1:
            if early < 1: setup2()
            if early < 2: a('@WARM@')
            a(tagmake + '\nv_mov_b32 v35, s24')
        if k == 1 and b in (1, 8): stamp({1: 1, 8: 2}[b])
    stream_emit(a, items, 9, opt.get('d1', 16), hook1)
    a(f's_lshl_b32 s34, s28, 18\ns_lshl_b32 s31, s28, 13\ns_lshl_b32 s3, s18, 7\ns_add_u32 s44, s31, s3\ns_add_u32 s44, s44, {FZ}\nv_lshlrev_b32 v28, 1, v32')
    a('s_barrier')
    stream_emit(a, sum([wg(p) for p in range(8 + ncs, 16)], []), 0, 0)
    fw = opt.get('fw', '')
    wcnt = [0]
    def wst(slot, half, cb=None, need=None):
        if half == 0:
            su = memidx(42, 57, wcnt[0] % opt.get('wfix', 32)) + ['s_lshl_b32 s42, s42, 7']; wcnt[0] += 1
        else: su = ['s_add_u32 s42, s42, 0x40000']
        return grp(slot * 16384 + half*8192, su, 10, 's[20:23]', 's42', cb=cb, need=need, fl=fw)
    def wfull(slot): return wst(slot, 0) + wst(slot, 1)
    def zst(k, cb=None, need=None):
        return grp(L_Z + (k % 4) * 8192, memidx(43, 57, MEM[k] % opt.get('zfix', 32)) + ['s_lshl_b32 s43, s43, 13', 's_add_u32 s43, s43, s34'], 14, 's[12:15]', 's43', True, cb, need, 'sc1')
    pre1 = opt.get('pre1', 2); thin = opt.get('thin', 12)
    for k in range(pre1): paced(wfull(k), thin)
    a(f's_waitcnt vmcnt({8*pre1})\ns_barrier')
    pre2 = opt.get('pre2', 4)
    for k in range(pre1, pre2): paced(wfull(k), thin)
    a('@WARM@')
    if pre2 < 4:
        a('s_barrier')
        for k in range(pre2, 4): paced(wfull(k), 60)
    stamp(3)
    spre = 4 if NR == 0 else opt.get('spre', 4)
    sp1 = min(spre, opt.get('sp1', 2))
    lspin('s59', 'v32')
    gt = opt.get('gt', 1)
    def gtouch():
        assert gs == 2 and RG == 32
        a('s_and_b32 s3, s27, 1\ns_lshl_b32 s3, s3, 6\ns_add_u32 s3, s3, s33\nv_lshrrev_b32 v29, 1, v0\nv_add_u32 v29, s3, v29\nv_lshlrev_b32 v29, 5, v29\nv_and_b32 v1, 1, v0\nv_add_lshl_u32 v29, v29, v1, 7')
        for i in range(gt):
            a(f's_lshr_b32 s31, s27, 1\ns_min_u32 s31, s31, 2\ns_add_u32 s31, s31, {8 - 3*gt + 3*i}\ns_lshl_b32 s31, s31, 1\ns_add_u32 s31, s31, s30\ns_lshl_b32 s31, s31, 1\ns_add_u32 s31, s31, s57\ns_and_b32 s31, s31, 31\ns_lshl_b32 s31, s31, 7')
            a.L.append('buffer_load_dword v30, v29, s[20:23], s31 offen')
    if NR >= 4: a('s_barrier')
    if gt: gtouch()
    a('s_barrier')
    stream_emit(a, rawg(0) + (sum([wfull(k) for k in range(sp1)], []) if NR >= 4 else []), 1, 64)
    if NR >= 4:
        for k in range(sp1, spre): paced(wfull(k), 60)
    npre = opt.get('npre', 0)
    if npre: a('s_barrier')
    stamp(4)
    if prog:
        assert all(pat[k] == 'S' for k in range(min(prog, 6)))
        pn = min(prog, pat.index('R') if 'R' in pat else 32)
        a(f's_lshr_b32 s31, s26, 2\ns_lshl_b32 s31, s31, 11\nv_min_u32 v45, {(pn-1)*256}, v28\nv_add_u32 v45, s31, v45')
        lspin('s44', 'v45')
    else: lspin('s44', 'v28')
    stamp(5)
    tiles = [(k, 0, lambda k=k: zst(k, k, k - 3 if k >= 4 else None)) for k in range(32)]
    last = -1
    for s in range(spre, len(SPOS)):
        need = SPOS[s-4] + 1 if s >= 4 else None
        for h in range(2):
            key = min(SPOS[s] - 0.5, max((need + 3 if need is not None else 0) - 0.5, last + opt.get('wgap', 10) / 10))
            last = key
            tiles.append((key, s*2 + h + 1, lambda s=s, h=h, need=need: wst(s % 4, h, SPOS[s], need)))
    hc = opt.get('hc', 28)
    if hcl != 'g': tiles.append((hc - 0.9, 0, lambda: [([], 'buffer_load_dword v27, v33, s[12:15], 0 offen sc1', hc, None)]))
    if prog:
        pb = pn - 3
        tiles.append((pb + 0.1, 0, lambda: [([], 'buffer_load_dword v27, v28, s[12:15], s44 offen sc1', pb, None)]))
    tiles.sort(key=lambda x: (x[0], x[1]))
    items = sum([t[2]() for t in tiles], [])
    w3e = opt.get('w3e', 6)
    for j in range(w3e): items += w3(j, W3[j][1])
    hk = {(0,1): 6, (4,1): 7, (8,1): 8, (16,1): 9, (24,1): 10, (31,1): 11, (16,0): 16, (24,0): 17, (32,1): 12}
    hintb = opt.get('hintb', 32)
    def hook2(b, k):
        if (b, k) in hk: stamp(hk[(b, k)])
        if prog and (b, k) == (pb, 1): lspin('s44', 'v28', True)
        if (b, k) == (hc, 1) and hcl != 'g': lspin('0', 'v33', True)
        if (b, k) == (hintb, 1):
            sk = a.newlab('nohint')
            a(f's_or_b32 s3, s27, s18\ns_cmp_lg_u32 s3, 0\ns_cbranch_scc1 {sk}\ns_lshl_b32 s3, s32, 7\ns_add_u32 s3, s3, {FT}')
            lflag('s3')
            a(f'{sk}:')
    stream_emit(a, items, 33, lambda b: opt.get('d2', 20) if b < 30 else opt.get('d2e', 12), hook2)
    hb = opt.get('hb', 7)
    if hb:
        paced(x3() + sum([w3(j) for j in range(w3e, hb)], []), 60)
        hook2(32.5, 1)
        a('s_barrier')
        paced(sum([w3(j) for j in range(max(hb, w3e), w3m)], []), 60)
    else: paced(x3() + sum([w3(j) for j in range(w3e, w3m)], []), 60)
    stamp(14)
    hook2(33, 1)
    a('s_waitcnt vmcnt(0)')
    hook2(34, 1)
    a('s_barrier')
    stamp(13)
    s3tail()
    nb['gl'] = count_bars(st0)
    g.prof_store()
    a('s_endpgm')

    a(f'{lab("thelp")}:')
    st0 = len(a.L)
    a('v_mov_b32 v36, -1\nv_mov_b32 v37, -1\nv_mov_b32 v38, -1\nv_mov_b32 v39, -1\nv_lshlrev_b32 v14, 4, v0')
    a(f's_lshl_b32 s31, s26, 1\ns_add_u32 s31, s31, s30\ns_lshl_b32 s31, s31, 1\ns_add_u32 s31, s31, s18\ns_lshl_b32 s31, s31, 13\ns_add_u32 s31, s31, {WS_STATS}')
    a('s_waitcnt lgkmcnt(0)')
    a(tagload)
    a('s_and_b32 s5, s5, 0xffff\ns_and_b32 s13, s13, 0xffff')
    for q in range(4): a.L.append(f'buffer_store_dwordx4 v[36:39], v14, s[12:15], s31 offen offset:{1024*q} sc1')
    late_loader_setup()
    if opt.get('tlbs'): a(f's_load_dwordx2 s[40:41], s[0:1], {KA["out"]}\ns_load_dwordx2 s[42:43], s[0:1], {KA["bsp"]}')
    k0calc(45, False)
    a(f's_lshl_b32 s31, s26, 7\ns_lshl_b32 s3, s18, 6\ns_add_u32 s31, s31, s3\nv_lshrrev_b32 v29, {lg}, v0\nv_add_u32 v29, s31, v29\nv_lshlrev_b32 v29, 5, v29\nv_and_b32 v1, {gs-1}, v0\nv_add_lshl_u32 v29, v29, v1, 7')
    ng = 16 // gs; tp_ = opt.get('tpace', 2); te = opt.get('te', 4) // gs
    a(tagmake + '\nv_mov_b32 v35, s24')
    if opt.get('tlbs'):
        st = opt['tlbs'] << 10
        a('s_lshl_b32 s31, s26, 19\ns_load_dword s46, s[20:21], s31')
        for o in range(0, 12 << 20, st): a(f's_mov_b32 s31, {o}\ns_load_dword s46, s[12:13], s31')
        a('s_load_dword s46, s[42:43], 0\ns_load_dword s46, s[36:37], 0\ns_load_dword s46, s[40:41], 0')
    a('s_waitcnt vmcnt(0)')
    stamp(1)
    a('s_barrier')
    te = opt.get('te', 0) // gs
    wtouch(range(te), 0, None)
    a('s_barrier')
    tm = opt.get('tm', 2) // gs; tn = opt.get('tn', 8) // gs
    wtouch(range(te, max(te, tm)), 0, None); tm = max(te, tm)
    a('s_barrier')
    wtouch(range(tm, min(tn, ng - 3*gt)), 0, None)
    a('s_barrier')
    a('s_barrier')
    lspin('s59', 'v32')
    stream_emit(a, rawg(0), 1, 0)
    stamp(5)
    wtouch(range(tn, ng - 3*gt), 0, None)
    a('s_barrier')
    stamp(2)
    if hcl == 't':
        cl_ = a.newlab('hclr')
        a(f's_lshl_b32 s41, s32, 1\ns_add_u32 s41, s41, s18\ns_mul_i32 s31, s41, 57344\ns_sub_u32 s31, s31, s19\ns_add_u32 s31, s31, {WS_HF}\ns_mov_b32 s3, 14\n{cl_}:')
        for q in range(4): a.L.append(f'buffer_store_dwordx4 v[36:39], v14, s[12:15], s31 offen offset:{1024*q} sc1')
        a(f's_add_u32 s31, s31, 4096\ns_sub_u32 s3, s3, 1\ns_cmp_lg_u32 s3, 0\ns_cbranch_scc1 {cl_}')
        a(f's_waitcnt vmcnt(0)\ns_lshl_b32 s31, s41, 7\ns_add_u32 s31, s31, {FH}')
        lflag('s31')
    stamp(3)
    a('s_barrier')
    wtouch(range(opt.get('tskip', 16) // gs, ng), 1, tp_)
    nwo = opt.get('nwo', 14)
    a(f's_lshl_b32 s41, s25, 1\ns_add_u32 s41, s41, s18\ns_mul_i32 s41, s41, {14*8192}\ns_and_b32 s40, s2, 7\ns_mul_i32 s40, s40, 7\ns_lshr_b32 s40, s40, 2')
    for i in range(nwo):
        a('s_lshl_b32 s31, s40, 13\ns_add_u32 s31, s31, s41')
        a.L.append('buffer_load_dword v30, v15, s[36:39], s31 offen')
        a('\n'.join(adv(40)))
    paced(x3() + sum([w3(j) for j in range(w3m)], []), 60)
    stamp(6)
    if hcl != 't': lspin('0', 'v33')
    stamp(12)
    a(f's_lshl_b32 s3, s32, 7\ns_add_u32 s3, s3, {FT}')
    lspin('s3', 'v34')
    a('s_barrier\ns_barrier')
    stamp(13)
    s3tail()
    nb['tl'] = count_bars(st0)
    g.prof_store()
    a('s_endpgm')

    a('.p2align 12')
    a(f'{lab("comp")}:')
    g.comp = True
    a.vm = ['prm'] * 6 + (['hcl'] * 4 if hcl == 'g' else []); a.lg = []
    def cprologue():
        a(srdc)
        a('s_mov_b32 s33, 0xffff0000\ns_mov_b32 s34, 0x3f803f80\ns_mov_b32 s22, 0x200000\ns_mov_b32 s23, 0x20000')
        a('s_and_b32 s5, s5, 0xffff\ns_and_b32 s13, s13, 0xffff\ns_and_b32 s21, s21, 0xffff')
        a('v_lshlrev_b32 v7, 4, v0\nv_lshlrev_b32 v6, 2, v0')
    cprologue()
    a(f's_lshl_b32 s35, s26, 2\ns_add_u32 s35, s35, s29\ns_lshl_b32 s31, s35, 13\ns_add_u32 s37, s31, {WS_STATS}\ns_add_u32 s60, s37, 4096\ns_lshl_b32 s3, s28, 8\ns_add_u32 s38, s37, s3')
    a.emit(ssm.kaddr())
    X = 128; A2 = 64; A1 = 96; WF = 32
    XR = A1; ST = A1 + 4; T = A1 + 8; SD = A1 + 16; CC = A1 + 18; NM = A1 + 20; FL = A1 + 22
    WR = 8; SEL = 16; CS = 24; NEG = 28
    a('s_lshl_b32 s32, s29, 12\ns_add_u32 s32, s32, 131072')
    a.emit(rowread_list(1, 2, 's32') + trread_list(3, 2))
    for i in range(4):
        a(f's_add_u32 s31, s29, {i}\ns_and_b32 s31, s31, 3\ns_lshl_b32 s3, s31, 5\nv_xor_b32 v{XR+i}, s3, v1\ns_lshl_b32 s3, s31, 11\nv_add_u32 v{WR+2*i}, s3, v3\nv_xor_b32 v{WR+1+2*i}, 64, v{WR+2*i}')
    a(f'''v_bfe_u32 v1, v0, 4, 1
v_lshlrev_b32 v1, 2, v1
v_and_b32 v2, 15, v0
v_cmp_eq_u32 vcc, v1, v2
v_mov_b32 v3, s34
v_add_u32 v1, 8, v1
v_cndmask_b32 v{SEL}, 0, v3, vcc
v_cmp_eq_u32 vcc, v1, v2
s_lshl_b32 s31, s29, 2
s_add_u32 s31, s31, {L_CS}
v_cndmask_b32 v{SEL+4}, 0, v3, vcc
v_add_u32 v1, s31, v7
v_and_b32 v2, 511, v7
v_add_u32 v2, {L_CS}, v2''')
    for i in range(1, 4): a(f'v_mov_b32 v{SEL+i}, v{SEL}\nv_mov_b32 v{SEL+4+i}, v{SEL+4}')
    a(f's_lshl_b32 s31, s35, 12\ns_lshl_b32 s3, s28, 8')
    a(f's_lshl_b32 s52, s28, 18\ns_add_u32 s52, s52, s31')
    a(f's_lshl_b32 s31, s35, 2\ns_add_u32 s53, s31, s3\ns_lshl_b32 s53, s53, 5\ns_add_u32 s53, s53, {FZ}')
    a(tagmake); a.lg = []
    a(f'{lab("kgen")}:')
    emit_plain(a, ssm.kgen())
    stamp(1)
    a(f's_cmp_eq_u32 s27, 7\ns_cbranch_scc1 {lab("tcomp2")}')
    lg_split = list(a.lg)
    st0 = len(a.L)
    def xreads(c, base, off): return [(f'ds_read_b128 {vr(X+16*c+4*i,4)}, v{base+i} offset:{off}', f'xr{c}') for i in range(4)]
    XB = [131072, 49152, 49152, 49152, 49152, 114688, 114688, 0]
    def gx(c):
        L = []
        if c and XB[c] != XB[c-1]: L += [f'v_add_u32 v{XR+i}, {hex((XB[c] - XB[c-1]) & 0xffffffff)}, v{XR+i}' for i in range(4)]
        return L, xreads(c, XR, XO[c] - XB[c])
    def dots(c, S):
        for i in range(16):
            r = X + 16*c + i
            a(f'v_dot2c_f32_bf16 v{S + 2*(i&1)}, s34, v{r}\nv_dot2c_f32_bf16 v{S + 1 + 2*(i&1)}, v{r}, v{r}')
    def redux(S): return [f'v_add_f32 v{S}, v{S}, v{S+2}', f'v_add_f32 v{S+1}, v{S+1}, v{S+3}', f'v_mov_b32 v{S+2}, v{S}', f'v_mov_b32 v{S+3}, v{S+1}',
             f'v_permlane32_swap_b32 v{S}, v{S+2}', f'v_permlane32_swap_b32 v{S+1}, v{S+3}', f'v_add_f32 v{S}, v{S}, v{S+2}', f'v_add_f32 v{S+1}, v{S+1}, v{S+3}']
    def wreads(t):
        n, i = divmod(t, 4)
        L = []
        for fb in range(2):
            d = WF + 8*i + 4*fb
            L.append((f'ds_read_b64_tr_b16 {vr(d,2)}, v{WR+2*i+fb} offset:{(n%8)*8192}', f'wr{t}'))
            L.append((f'ds_read_b64_tr_b16 {vr(d+2,2)}, v{WR+2*i+fb} offset:{(n%8)*8192+512}', f'wr{t}'))
        return L
    def mfmas(t):
        n, i = divmod(t, 4); acc = A2 if n < 8 else A1; f = t % 32
        L = []
        for fb in range(2):
            c = '0' if f == 0 else vr(acc+16*fb, 16)
            L.append(f'v_mfma_f32_32x32x16_bf16 {vr(acc+16*fb,16)}, {vr(WF+8*i+4*fb,4)}, {vr(X+4*f,4)}, {c}')
        if i == 0:
            cs = [f'v_mfma_f32_16x16x32_bf16 {vr(CS,4)}, {vr(SEL+4*fb,4)}, {vr(WF+4*fb,4)}, {"0" if (f == 0 and fb == 0) else vr(CS,4)}' for fb in range(2)]
            L = ['\n'.join(cs + L[:1]), L[1]]
        return L
    def cs_write(part, T):
        return [f'v_cvt_pk_bf16_f32 v{T}, v{CS}, v{CS}', f'v_lshlrev_b32 v{T}, 16, v{T}', f'v_sub_f32 v{T}, v{CS}, v{T}', f'v_cvt_pk_bf16_f32 v{T}, v{CS}, v{T}',
                (f'ds_write_b32 v1, v{T} offset:{part*1024}', 'csw')]
    def cs_read(part, T):
        return [lambda: a.waitall(vm=False), 's_barrier'] + [(f'ds_read_b128 {vr(T+4*fb,4)}, v2 offset:{part*1024 + 512*fb}', 'csr') for fb in range(2)]
    def cs_apply(acc, T):
        return [lambda: a.waitlg('csr')] + [f'v_mfma_f32_32x32x16_bf16 {vr(acc+16*fb,16)}, {vr(T+4*fb,4)}, {vr(NEG,4)}, {vr(acc+16*fb,16)}' for fb in range(2)]
    def gconst(cc, r): return [f'v_mul_f32 v{cc+1}, {fbits(C0)}, v{r}', f'v_mul_f32 v{cc}, v{r}, v{r}', f'v_mul_f32 v{cc}, v{cc}, v{cc+1}', f'v_mul_f32 v{cc}, {fbits(0.044715)}, v{cc}']
    def halves(S, Q): return [f'v_permlane32_swap_b32 v{S}, v{Q}', f'v_add_f32 v{S}, v{S}, v{Q}', f'v_mov_b32 v{S+1}, v{S}', f'v_permlane32_swap_b32 v{S}, v{S+1}']
    fin1 = halves(ST, ST+2) + ln_list(ST, ST+1, 512, ST+2, NM, 4, SD) + [
        'v_cmp_gt_u32 vcc, 32, v0', f'v_lshrrev_b32 v{NEG}, 16, v{NM}', f'v_or_b32 v{NEG}, v{NEG}, v{NM}', f'v_cndmask_b32 v{NEG}, 0, v{NEG}, vcc'] + \
        [f'v_mov_b32 v{NEG+i}, v{NEG}' for i in range(1, 4)] + gconst(CC, 4)
    sload = f'buffer_load_dwordx4 {vr(ST,4)}, v7, s[12:15], s60 offen offset:3072 sc1'
    a.waitall(vm=False)
    a('s_barrier'); a.emit(gx(0)[1] + wreads(0) + wreads(1) + wreads(2))
    ts = opt.get('ts', 10); tk = opt.get('tk', 29)
    for c in range(8):
        fi = opt.get('fine') == 'p1' and c in (3, 4)
        if fi: stamp(3 + 6*(c-3), True)
        if c < 7:
            pre, xr = gx(c+1)
            last = [] if c == 0 else [xlast]
            fills = {0: last + wreads(4*c+3) + pre + ['s_barrier'], 1: xr[:1] + wreads(4*c+4), 2: xr[1:2] + wreads(4*c+5), 3: xr[2:3] + wreads(4*c+6)}
            xlast = xr[3]
        else:
            fills = {0: [xlast] + wreads(4*c+3), 1: cs_write(0, T), 2: [], 3: cs_read(0, T)}
            n = 32 - tk
            for j in range(n): fills[tk - 28 + j] += fin1[j*len(fin1)//n:(j+1)*len(fin1)//n]
        for i in range(4):
            t = 4*c + i
            if opt.get('fine') == 'p1e' and t >= 19 and t != 22: stamp(3 + t - 19 - (t > 22), True)
            if t == ts: a(sload, 'st1')
            if t == tk:
                a.waitvm('st1'); g.spin([sload], [ST+1, ST+3], FL)
            if opt.get('fine') == 'p1e' and t == tk: stamp(15, True)
            a.waitlg(f'wr{t}')
            a.emit(merge(mfmas(t), fills[i]))
            if fi: stamp(5 + i + 6*(c-3), True)
    stamp(2)
    a.emit(cs_apply(A2, T))
    for i in range(8): a(f'v_add_u32 v{WR+i}, 65536, v{WR+i}')
    a(f'v_and_b32 v{FL}, 15, v0\nv_lshrrev_b32 v{FL+1}, 4, v0\nv_lshlrev_b32 v{FL}, 4, v{FL}\nv_lshl_add_u32 v{FL}, v{FL+1}, 2, v{FL}')
    a.emit(gelu_pk(A2, 32, CC, SD, T))
    AH = 3
    rd = sum([wreads(t) for t in range(32, 32 + AH)], [])
    st = []
    for i in range(16):
        p = A2 + 2*i
        if i == 0: st.append(f'v_pk_mul_f32 {vr(ST+2,2)}, {vr(p,2)}, {vr(p,2)}')
        else: st += [f'v_pk_add_f32 {vr(ST,2)}, {vr(p-2,2) if i == 1 else vr(ST,2)}, {vr(p,2)}', f'v_pk_fma_f32 {vr(ST+2,2)}, {vr(p,2)}, {vr(p,2)}, {vr(ST+2,2)}']
    st += [f'v_add_f32 v{ST}, v{ST}, v{ST+1}', f'v_add_f32 v{ST+2}, v{ST+2}, v{ST+3}']
    a.emit(st)
    a(f'v_permlane32_swap_b32 v{ST}, v{ST+2}')
    a(f'v_add_f32 v3, v{ST}, v{ST+2}\nv_min_u32 v3, 0xfffffffe, v3')
    a.waitall(lg=False)
    a(f'buffer_store_dword v3, v{FL}, s[12:15], s38 offen sc1', 'pub')
    stamp(3)
    a('s_barrier')
    a.emit(rd)
    TA = X; P = X + 8; T2 = A2 + 16; U = X + 16; Q = X + 6; RA = A2 + 24
    pl = [f'buffer_load_dwordx4 {vr(P+4*j,4)}, v{7 if j < 3 else TA+7}, s[12:15], s37 offen offset:{1024*j} sc1' for j in range(4)]
    taddr = f"""v_and_b32 v{TA+6}, 7, v0
v_lshrrev_b32 v{TA+7}, 5, v0
v_xor_b32 v{TA+6}, v{TA+6}, v{TA+7}
v_lshlrev_b32 v{TA+6}, 4, v{TA+6}
v_and_b32 v{TA}, 31, v0
v_lshl_add_u32 v{TA}, v{TA}, 7, v{TA+6}
v_add_u32 v{TA}, s32, v{TA}
v_xor_b32 v{TA+1}, 32, v{TA}
v_xor_b32 v{TA+2}, 64, v{TA}
v_xor_b32 v{TA+3}, 96, v{TA}
v_bfe_u32 v{TA+6}, v0, 2, 2
v_lshl_add_u32 v{TA+7}, v{TA+7}, 3, v{TA+6}
v_lshlrev_b32 v{TA+6}, 4, v{TA+6}
v_and_b32 v{TA+4}, 56, v{WR}
v_xor_b32 v{TA+4}, v{TA+4}, v{TA+6}
v_lshl_add_u32 v{TA+4}, v{TA+7}, 7, v{TA+4}
v_add_u32 v{TA+4}, s32, v{TA+4}
v_xor_b32 v{TA+5}, 64, v{TA+4}
v_lshlrev_b32 v{TA+7}, 25, v0
v_and_b32 v{TA+7}, 0x40000000, v{TA+7}
v_add_u32 v{TA+7}, v{TA+7}, v7""".split('\n')
    fin2 = [f'v_pk_add_f32 {vr(P+j,2)}, {vr(P+j,2)}, {vr(P+j+8,2)}' for j in range(0, 8, 2)] + [f'v_pk_add_f32 {vr(P+j,2)}, {vr(P+j,2)}, {vr(P+j+4,2)}' for j in range(0, 4, 2)] + \
           [f'v_permlane16_swap_b32 v{P}, v{P+1}', f'v_permlane16_swap_b32 v{P+2}, v{P+3}', f'v_add_f32 v{P}, v{P}, v{P+1}', f'v_add_f32 v{P+2}, v{P+2}, v{P+3}']
    fin2 += halves(P, P+2) + ln_list(P, P+1, 896, P+2, P+5, P+4) + [f'v_mul_f32 v{P+5}, v{P+5}, v{P+4}']
    for q in range(4):
        for i in range(4): fin2.append(f'v_pk_fma_f32 {vr(A2+8*q+2*i,2)}, {vr(A2+8*q+2*i,2)}, {vr(P+4,2)}, {vr(P+4,2)} op_sel:[0,0,1] op_sel_hi:[1,0,1]')
        for i in range(4): fin2.append(f'v_cvt_pk_bf16_f32 v{U+4*q+i}, v{A2+8*q+2*i}, v{A2+8*q+2*i+1}')
        fin2.append((f'ds_write_b128 v{TA+q}, {vr(U+4*q,4)}', 'tw'))
    for q in range(4):
        ks2, fb = divmod(q, 2)
        fin2.append((f'ds_read_b64_tr_b16 {vr(A2+4*q,2)}, v{TA+4+fb} offset:{ks2*2048}', f'tr{q}'))
        fin2.append((f'ds_read_b64_tr_b16 {vr(A2+2+4*q,2)}, v{TA+5-fb} offset:{ks2*2048 + 512}', f'tr{q}'))
    fin4 = []
    for q in range(4): fin4 += [lambda q=q: a.waitlg(f'tr{q}'), (f'buffer_store_dwordx4 {vr(A2+4*q,4)}, v7, s[12:15], s52 offen offset:{1024*q} sc1', 'z2st')]
    tp = opt.get('tp', 38); tc = opt.get('tc', 45)
    assert tp >= 37 and tc >= 41
    fills = {t: [] for t in range(32, 70)}
    fills[34] += taddr[:7]; fills[35] += taddr[7:14]; fills[36] += taddr[14:]
    fills[33] += ['s_lshl_b32 s31, s35, 5', 'v_and_b32 v3, 31, v0', 'v_add_lshl_u32 v3, v3, s31, 1', ('global_load_ushort v3, v3, s[18:19]', 'bsp')]
    for j in range(4): fills[tp + j//2].append((pl[j], 'pl'))
    if pre2 < 4: fills[tp + 1].append('s_barrier')
    def waddr(d): return ['s_lshl_b32 s31, s29, 12'] + rowread_list(d, d+1, 's31') + [f'v_xor_b32 v{d+i}, {32*i}, v{d}' for i in range(1, 4)]
    def rreads(r, base): return [(f'ds_read_b128 {vr(X+16*r+4*ks,4)}, v{base+ks} offset:{(r%4)*16384}', f'res{r}') for ks in range(4)]
    t0 = tc + 1
    if hcl == 'z':
        fills[tc] += [f'v_mov_b32 v{T2+4+i}, -1' for i in range(4)] + [(f'buffer_store_dwordx4 {vr(T2+4,4)}, v7, s[12:15], s54 offen offset:{1024*q} sc1', 'hcl') for q in range(4)]
    if NR >= 4:
        fills[t0] += waddr(RA) + ['s_barrier']
        rr = sum([rreads(r, RA) for r in range(4)], [])
        rper = opt.get('rper', 3)
        for j in range(16):
            t = max(t0 + 1 + j // rper, 33 + j)
            fills[t].append(rr[j])
    fills[max(56, t0 + 3 + 15 // opt.get('rper', 3))] += [lambda: a.waitlg('res3'), 's_barrier']
    fills[61] = fills[61] + cs_write(1, T2)
    tf = opt.get('tf', 53)
    flagz = g.setflag('s53', T2+1) + [lambda: stamp(7)]
    fills[tf] += flagz
    fp = lambda i: stamp(i, True) if opt.get('fine') == 'p3' else None
    for t in range(32, 64):
        if t in (32, tp, tp + 4, tc): fp({32: 3, tp: 4, tp + 4: 5, tc: 6}[t])
        if t in (tc + 1, tc + 2, tc + 6, tc + 10, tf, tf + 1): fp({tc + 1: 10, tc + 2: 11, tc + 6: 12, tc + 10: 13, tf: 14, tf + 1: 15}[t])
        if t == tc:
            a.waitvm('pl'); fp(7)
            g.spin(pl, range(P, P+16), Q, True); stamp(4); fp(8)
            a.emit(fin2); fp(9)
        a.waitlg(f'wr{t}')
        rd = wreads(t + AH) if t + AH < 64 else []
        if t == tc:
            m = mfmas(t); a.emit(m + fin4 + rd + fills[t]); stamp(5)
        else: a.emit(merge(mfmas(t), rd + fills[t]))
    a.emit(fills[64])
    stamp(6)
    ub = ssm.ubuild()
    ib = ub.index(BAR)
    a.emit(cs_read(1, T2))
    gw = opt.get('gw', 1)
    if gw: a('v_rcp_f32 v24, v4')
    a.emit(waddr(8) + (gconst(26, 4) if gw else []))
    a.emit(cs_apply(A1, T2))
    a.emit(ub[:ib] + ub[ib+1:ib+4])
    Z1 = 112
    if gw: a.emit(gelu_pk(A1, 32, 26, 24, 16))
    else:
        for i in range(16): a(f'v_pk_mul_f32 {vr(A1+2*i,2)}, {vr(A1+2*i,2)}, v[4:5] op_sel_hi:[1,0]')
    for i in range(15, -1, -1): a(f'v_cvt_pk_bf16_f32 v{Z1+i}, v{A1+2*i}, v{A1+2*i+1}')
    a(f'v_add_u32 v12, {L_Z}, v7\nv_lshlrev_b32 v4, 16, v3\nv_mov_b32 v14, {fbits(C1)}')
    a.emit(ub[ib+4:-1])
    cpre, cg = ssm.conv()
    if npre:
        emit_plain(a, [BAR] + cpre + sum(cg[:10*npre], [])); cg = cg[10*npre:]; cpre = []
    stamp(8)
    assert NR <= 4
    ACC = 32; F = [64, 88]
    def rd2(k, half):
        L = []
        for j in range(2):
            ks = 2*half + j
            if k in SIDX: L.append((f'ds_read_b128 {vr(F[half]+12*j,4)}, v{8+ks} offset:{(SIDX[k]%4)*16384}', f'g{k}_{ks}'))
            for fb in range(2): L.append((f'ds_read_b128 {vr(F[half]+12*j+4+4*fb,4)}, v12 offset:{(k%4)*8192+ks*2048+fb*1024}', f'g{k}_{ks}'))
        return L
    def mm2(k, half):
        L = []
        for j in range(2):
            wreg = F[half]+12*j if k in SIDX else X + 16*MEM[k] + 4*(2*half+j)
            for fb in range(2):
                c = '0' if (k == 0 and half == 0 and j == 0) else vr(ACC+16*fb, 16)
                L.append((f'g{k}_{2*half+j}', f'v_mfma_f32_32x32x16_bf16 {vr(ACC+16*fb,16)}, {vr(F[half]+12*j+4+4*fb,4)}, {vr(wreg,4)}, {c}'))
        return L
    kf = 0
    c0, c1 = opt.get('c0', 2), opt.get('c1', 26)
    plan = {}
    def spread(groups, slots, wts):
        cum = 0; tot = sum(int(wts[s[2]]) for s in slots); done = 0
        for s in slots:
            cum += int(wts[s[2]]); n = cum * len(groups) // tot
            plan.setdefault(s, []).extend(groups[done:n]); done = n
    allslots = [(k, ph, i) for k in range(32) for ph in range(2) for i in range(4) if (k, ph) != (0, 0)]
    if cg and not opt.get('noconv'): spread(cg, [s for s in allslots if c0 <= s[0] <= c1], opt.get('cw', '0013'))
    if cpre: spread([[x] for x in cpre], [s for s in allslots if (kf, 1) <= s[:2] and s[0] < c0], '1113')
    if not gw: spread([[x] for x in gelu_packed(Z1, 16, 128, 14)], [s for s in allslots if opt.get('g0', 8) <= s[0] < opt.get('ge', 30)], '2223')
    fin, fflag = ssm.finish()
    sst = [x for x in fin if isinstance(x, tuple) and x[1] == 'sst']
    spread([[x] for x in fin if x not in sst], [s for s in allslots if c1 + 1 <= s[0] <= c1 + 2], '2223')
    plan.setdefault((opt.get('sk', c1 + 2), 1, 3), []).append(sst)
    assert c1 + 2 <= 30
    for k in range(33):
        if k in (0, 31): a.waitall(vm=False)
        else: a.waitlg(f'g{k-1}_3')
        a('s_barrier')
        if k == 0: stamp(9)
        if str(opt.get('fine')).startswith('g2'):
            k0 = int(opt['fine'][2:])
            if k0 <= k < k0 + 13: stamp(3 + k - k0, True)
        for ph in range(2):
            m = (mm2(k-1, 1) if k > 0 else []) if ph == 0 else (mm2(k, 0) if k < 32 else [])
            r = rd2(k, ph) if k < 32 else []
            if not m:
                a.emit(r); continue
            for i, (tg, ins) in enumerate(m):
                a.waitlg(tg)
                a(ins)
                a.emit(r[2*i:2*i+2])
                for x in plan.get((k, ph, i), []): a.emit(x)
                if k == 31:
                    for j in range(2):
                        z = 8*ph + 2*i + j
                        a(f'v_lshlrev_b32 v{128+2*z}, 16, v{Z1+z}\nv_and_b32 v{129+2*z}, s33, v{Z1+z}')
    stamp(10)
    a.emit(fflag[:2])
    for q in range(4):
        for i in range(4):
            p = ACC + 8*q + 2*i
            a(f'v_pk_add_f32 {vr(p,2)}, {vr(p,2)}, v[4:5] op_sel_hi:[1,0]')
        for i in range(4):
            p = ACC + 8*q + 2*i
            a(f'v_pk_mul_f32 {vr(p,2)}, {vr(p,2)}, {vr(128+8*q+2*i,2)}')
        for i in range(4): a(f'v_cvt_pk_bf16_f32 v{F[0]+4*q+i}, v{ACC+8*q+2*i}, v{ACC+8*q+2*i+1}')
        a(f'buffer_store_dwordx4 {vr(F[0]+4*q,4)}, v7, s[12:15], s54 offen offset:{1024*q} sc1', 'hst')
    a.emit(fflag[2:])
    if hb: a('s_barrier')
    stamp(11)
    nb['gc'] = count_bars(st0) + 2 + (w3m < 14)

    a(f'{lab("g3comp")}:')
    HB = 16; ACC = 160; WB = [224, 240]; SR = 192; SF = 200; XR = 216; XF = 136; T = 152
    a('s_and_b32 s36, s29, 1\ns_lshr_b32 s37, s29, 1\ns_lshl_b32 s32, s26, 1\ns_add_u32 s32, s32, s30')
    a.emit(trread_list(1, 2))
    a(f'''s_lshl_b32 s55, s37, 6
s_lshl_b32 s31, s37, 12
v_xor_b32 v1, s55, v1
v_add_u32 v1, s31, v1
v_xor_b32 v2, 64, v1
v_add_u32 v3, {L_Z}, v1
v_add_u32 v4, {L_Z}, v2
s_lshl_b32 s3, s36, 12
s_add_u32 s3, s3, {L_X3}''')
    a.emit(rowread_list(9, 10, 's3'))
    a(f'''v_xor_b32 v9, s55, v9
v_xor_b32 v10, 32, v9
v_lshrrev_b32 v11, 2, v0
v_and_b32 v12, 3, v0
v_lshlrev_b32 v13, 4, v12
v_lshl_add_u32 v15, v11, 10, v13
v_bfe_u32 v13, v0, 3, 3
v_xor_b32 v12, v12, v13
v_lshlrev_b32 v12, 4, v12
v_xor_b32 v12, s55, v12
v_lshl_add_u32 v12, v11, 7, v12
v_add_u32 v14, s3, v12
v_lshrrev_b32 v11, 5, v0
v_bfe_u32 v13, v0, 2, 2
v_lshl_add_u32 v11, v11, 3, v13
v_lshlrev_b32 v11, 7, v11
v_bfe_u32 v13, v0, 3, 1
v_xor_b32 v13, s36, v13
v_lshl_add_u32 v11, v13, 6, v11
v_bfe_u32 v13, v0, 4, 1
v_lshl_add_u32 v11, v13, 5, v11
v_and_b32 v13, 3, v0
v_lshl_add_u32 v11, v13, 3, v11
s_add_u32 s31, s31, {L_S3}
v_add_u32 v11, s31, v11
s_lshl_b32 s3, s32, 1
s_add_u32 s3, s3, s36
s_lshl_b32 s61, s3, 15
s_mul_i32 s38, s3, 57344
s_lshl_b32 s3, s27, 7
s_add_u32 s61, s61, s3
s_add_u32 s61, s61, s55
s_lshl_b32 s3, s37, 11
s_add_u32 s38, s38, s3
s_add_u32 s38, s38, {WS_HF}
s_lshl_b32 s3, s29, 12
s_add_u32 s3, s3, {L_U}
v_add_u32 v8, s3, v7
v_xor_b32 v13, 8192, v8
v_mov_b32 v12, {fbits(-LOG2E)}''')
    rot3(35)
    for j in range(14):
        a(f's_lshl_b32 s31, s35, 12\ns_add_u32 s{40+j}, s31, s38')
        if j < 13: a('\n'.join(adv(35)))
    a(f's_mov_b32 s39, {SPIN >> 3}')
    aw = opt.get('aw', 0)
    if aw: a(f's_waitcnt vmcnt({aw})')
    else: a.waitall(lg=False)
    stamp(12)
    NI = opt.get('ni', 5)
    def hl(j): return [f'buffer_load_dwordx4 {vr(HB+8*j+4*p,4)}, v7, s[12:15], s{40+(j if not opt.get("hfix") else 0)} offen offset:{1024*p} sc1' for p in range(2)]
    def rdw(j, ks):
        w = W3LOC[j]; hi = w >= L_Z; w -= L_Z * hi
        return [(f'ds_read_b64_tr_b16 {vr(WB[j&1]+8*ks+4*b+2*p,2)}, v{1+b+2*hi} offset:{w+ks*2048+512*p}', f'w{j}_{ks}') for b in (1, 0) for p in range(2)]
    for j in range(NI): a.emit([(x, f'h{j}') for x in hl(j)])
    a('s_barrier')
    stamp(13)
    a.emit(rdw(0, 0) + rdw(0, 1))
    es = opt.get('es', 8)
    xs = [(f'ds_read_b128 {vr(XR+4*p,4)}, v{9+p}', 'xr') for p in range(2)]
    un = sum([[f'v_lshlrev_b32 v{XF+2*i}, 16, v{XR+i}', f'v_and_b32 v{XF+2*i+1}, s33, v{XR+i}'] for i in range(8)], [])
    retry = []
    def check(j):
        lc = a.newlab('hchk'); lr = a.newlab('hretry')
        a.waitvm(f'h{j}')
        H = HB + 8*j
        a(f'{lc}:\nv_max3_u32 v{T}, v{H}, v{H+1}, v{H+2}\nv_max3_u32 v{T+1}, v{H+3}, v{H+4}, v{H+5}\nv_max3_u32 v{T}, v{T}, v{H+6}, v{H+7}\nv_max_u32 v{T}, v{T}, v{T+1}')
        a(f'v_cmp_eq_u32 vcc, -1, v{T}')
        return lc, lr
    def cbr(j, lc, lr, mid=None):
        a(f's_cbranch_vccnz {lr}\n{lc}x:')
        retry.append((lr, lc, j, sum([hl(i) for i in range(j, min(14, j + NI))], [])))
    lc, lr = check(0); cbr(0, lc, lr)
    stamp(14)
    for j in range(14):
        if opt.get('fine') == 'g3' and j % 2 == 0: stamp(3 + j // 2, True)
        seq = []
        for ks in range(2):
            for b in (1, 0):
                seq.append((ks, f'v_mfma_f32_32x32x16_bf16 {vr(ACC+16*b,16)}, {vr(WB[j&1]+8*ks+4*b,4)}, {vr(HB+8*j+4*ks,4)}, {"0" if (j == 0 and ks == 0) else vr(ACC+16*b,16)}'))
        if j == 13: seq = [seq[0], seq[2], seq[1], seq[3]]
        nxt = (rdw(j+1, 0) + rdw(j+1, 1)) if j < 13 else []
        for i, (ks, ins) in enumerate(seq):
            a.waitlg(f'w{j}_{ks}')
            a(ins)
            if j == w3m - 1 and i == 0 and w3m < 14: a('s_barrier')
            if i < 2:
                a.emit(nxt[3*i:3*i+3])
                if j + NI < 14: a(hl(j + NI)[i], f'h{j+NI}')
            if j == es and i in (0, 1): a.emit(xs[3*i:3*i+3])
            if j > es and i in (0, 1, 3):
                a.waitlg('xr'); a.emit(un[:4]); un = un[4:]
            if i == 2 and j < 13: lc, lr = check(j + 1)
            if i == 3 and j < 13:
                a.emit(nxt[6:]); cbr(j + 1, lc, lr)
    stamp(15)
    if opt.get('prof'): a(f's_sub_u32 s100, {SPIN >> 3}, s39\ns_mul_i32 s100, s100, 10\ns_add_u32 s100, s100, s66')
    ft_ = lambda i: stamp(i, True) if opt.get('fine') == 'g3' else None
    ft_(10)
    for q in range(4): a(f'ds_write_b128 v8, {vr(ACC+16+4*q,4)} offset:{1024*q}', 'rw')
    a.waitall(vm=False); ft_(11); a('s_barrier'); ft_(12)
    assert not un
    for q in range(2): a(f'ds_read_b128 {vr(WB[0]+4*q,4)}, v13 offset:{1024*q}', f'rr0')
    for q in range(4): a(f'ds_read_b64_tr_b16 {vr(SR+2*q,2)}, v11 offset:{2048*(q//2)+512*(q%2)}', 'sr')
    for q in range(2, 4): a(f'ds_read_b128 {vr(WB[0]+4*q,4)}, v13 offset:{1024*q}', f'rr1')
    for p in range(2):
        B = ACC + 8*p
        a.waitlg(f'rr{p}')
        if p == 0: ft_(13)
        for i in range(4): a(f'v_pk_add_f32 {vr(B+2*i,2)}, {vr(B+2*i,2)}, {vr(WB[0]+8*p+2*i,2)}')
        for i in range(4): a(f'v_pk_mul_f32 {vr(T+2*i,2)}, {vr(B+2*i,2)}, v[12:13] op_sel_hi:[1,0]')
        for i in range(8): a(f'v_exp_f32 v{T+i}, v{T+i}')
        a.waitlg('sr')
        for i in range(4): a(f'v_lshlrev_b32 v{SF+8*p+2*i}, 16, v{SR+4*p+i}\nv_and_b32 v{SF+8*p+2*i+1}, s33, v{SR+4*p+i}')
        for i in range(4): a(f'v_pk_mul_f32 {vr(B+2*i,2)}, {vr(B+2*i,2)}, {vr(SF+8*p+2*i,2)}')
        for i in range(4): a(f'v_pk_add_f32 {vr(T+2*i,2)}, {vr(T+2*i,2)}, 1.0 op_sel_hi:[1,0]')
        for i in range(8): a(f'v_rcp_f32 v{T+i}, v{T+i}')
        for i in range(4): a(f'v_pk_fma_f32 {vr(B+2*i,2)}, {vr(B+2*i,2)}, {vr(T+2*i,2)}, {vr(XF+8*p+2*i,2)}')
        for i in range(4): a(f'v_cvt_pk_bf16_f32 v{HB+4*p+i}, v{B+2*i}, v{B+2*i+1}')
        a(f'ds_write_b128 v{9+p}, {vr(HB+4*p,4)}', 'ow')
    ft_(14)
    for p in range(2): a(f'ds_read_b128 {vr(HB+8+4*p,4)}, v14 offset:{2048*p}', f'or{p}')
    for p in range(2):
        a.waitlg(f'or{p}')
        if p: a('s_add_u32 s61, s61, 16384')
        a(f'buffer_store_dwordx4 {vr(HB+8+4*p,4)}, v15, s[20:23], s61 offen {opt.get("outflag","sc1")}', 'ost')
    stamp(16)
    sk = a.newlab('noepoch')
    a(f's_or_b32 s3, s2, s29\ns_cmp_lg_u32 s3, 0\ns_cbranch_scc1 {sk}\nv_mov_b32 v1, s24\ns_mov_b32 s3, {WS_EPOCH}\ns_mov_b64 exec, 1')
    a('buffer_store_dword v1, off, s[12:15], s3 sc1')
    a(f's_mov_b64 exec, -1\n{sk}:')
    if opt.get('dbg'):
        sk = a.newlab('nodbg')
        a(f's_lshr_b32 s3, s2, 3\ns_or_b32 s3, s3, s29\ns_cmp_lg_u32 s3, 0\ns_cbranch_scc1 {sk}\ns_load_dwordx2 s[16:17], s[0:1], {KA["dbg"]}\ns_memrealtime s[64:65]\ns_waitcnt lgkmcnt(0)')
        a(f's_and_b32 s62, s62, 0xfffff\ns_and_b32 s64, s{66 + 2*opt["dbg"] if opt["dbg"] > 0 else 64}, 0xfffff\nv_mov_b32 v1, s62\nv_mov_b32 v2, s64\ns_lshl_b32 s3, s2, 2\nv_mov_b32 v3, s3')
        a('global_store_dword v3, v1, s[16:17]\nglobal_store_dword v3, v2, s[16:17] offset:32')
        a(f'{sk}:')
    g.prof_store()
    a('s_endpgm')
    for x in g.cold: a.L.append(x)
    g.cold = []
    for lr, lc, j, lds_ in retry:
        H = HB + 8*j
        a(f'{lr}:\ns_sub_u32 s39, s39, 1\ns_cmp_lt_i32 s39, 0\ns_cbranch_scc1 {lc}x')
        for x in lds_: a.L.append(x)
        a(f's_waitcnt vmcnt(0)\nv_max3_u32 v{T}, v{H}, v{H+1}, v{H+2}\nv_max3_u32 v{T+1}, v{H+3}, v{H+4}, v{H+5}\nv_max3_u32 v{T}, v{T}, v{H+6}, v{H+7}\nv_max_u32 v{T}, v{T}, v{T+1}')
        a(f'v_cmp_eq_u32 vcc, -1, v{T}\ns_cbranch_vccnz {lr}\ns_branch {lc}x')

    a(f'{lab("tcomp")}:')
    st0 = len(a.L)
    a.vm = ['prm'] * 6; a.lg = []
    T = 24; X = 64
    a('s_mov_b32 s6, 0x200000\ns_mov_b32 s7, 0x20000\ns_and_b32 s5, s5, 0xffff')
    a('s_lshl_b32 s32, s29, 14\ns_lshl_b32 s35, s26, 1\ns_add_u32 s35, s35, s30\ns_lshl_b32 s35, s35, 1\ns_and_b32 s3, s29, 1\ns_add_u32 s35, s35, s3\ns_lshl_b32 s3, s35, 5\ns_lshr_b32 s61, s29, 1\ns_lshl_b32 s38, s61, 9')
    rowoffs(a, 32, 's3', 10)
    for c in range(4):
        a.emit([f's_add_u32 m0, s32, {4096*c}', f's_add_u32 s31, s38, {128*c}'] + [(f'buffer_load_dwordx4 v{32+i}, s[4:7], s31 offen offset:{1024*i} lds', f'x{c}') for i in range(4)])
    cprologue()
    a.emit(rowread_list(8, 9, 's32'))
    a('v_xor_b32 v9, 32, v8\nv_xor_b32 v10, 64, v8\nv_xor_b32 v11, 96, v8')
    a('s_mov_b32 s36, 0x00003f80\ns_mov_b32 s37, 0x3f800000')
    for i in range(4): a(f'v_mov_b32 v{20+i}, 0')
    a('v_lshrrev_b32 v13, 5, v0\nv_lshlrev_b32 v13, 15, v13\nv_and_b32 v16, 31, v0\nv_lshl_add_u32 v12, v16, 2, v13')
    for i in range(1, 4): a(f'v_add_u32 v{12+i}, {8192*i}, v12')
    a(f's_lshl_b32 s31, s35, 7\ns_add_u32 s52, s31, {WS_XNT}\ns_lshl_b32 s3, s61, 20\ns_add_u32 s52, s52, s3')
    a(f's_lshl_b32 s53, s61, 13\ns_add_u32 s53, s53, s31\ns_add_u32 s53, s53, {FX}')
    a(f's_lshl_b32 s31, s35, 13\ns_add_u32 s60, s31, s38\ns_add_u32 s60, s60, {WS_STATS + 14*512}')
    a(f's_lshl_b32 s31, s29, 8\ns_add_u32 s31, s31, {L_CS}\nv_lshl_add_u32 v16, v0, 2, s31\nv_xor_b32 v17, 512, v16')
    a(tagmake)
    for c in range(4):
        a.waitvm(f'x{c}')
        a.emit(xreads(c, 8, 4096*c))
        if c == opt.get('tb', 1): a('s_barrier')
        if c > 0: dots(c-1, 20)
        a.waitlg(f'xr{c}')
    dots(3, 20)
    a('v_add_f32 v20, v20, v22\nv_add_f32 v21, v21, v23\nv_mov_b32 v41, s24\nv_mov_b32 v43, s24\nv_permlane32_swap_b32 v20, v21\nv_add_f32 v22, v20, v21\nv_add_f32 v40, v20, v21\nv_permlane32_swap_b32 v40, v42\ns_mov_b32 exec_hi, 0')
    a(f'buffer_store_dwordx4 v[40:43], v7, s[12:15], s60 offen sc1', 'pub')
    a('s_mov_b64 exec, -1')
    a('ds_write_b32 v16, v22')
    a.waitall(vm=False); a('s_barrier')
    a('ds_read_b32 v20, v17')
    a.waitall(vm=False)
    a('v_add_f32 v20, v20, v22\nv_mov_b32 v21, v20\nv_permlane32_swap_b32 v20, v21')
    a.emit(ln_list(20, 21, 512, 22, 19, 18))
    stamp(2)
    for f in range(16):
        for i in range(4):
            a(f'v_dot2_f32_bf16 v{T+2*i}, v{X+4*f+i}, s36, v19\nv_dot2_f32_bf16 v{T+2*i+1}, v{X+4*f+i}, s37, v19')
        for i in range(4): a(f'v_cvt_pk_bf16_f32 v{X+4*f+i}, v{T+2*i}, v{T+2*i+1}')
        for i in range(4): a(f'v_lshlrev_b32 v{T+2*i}, 16, v{X+4*f+i}\nv_and_b32 v{T+2*i+1}, s33, v{X+4*f+i}')
        for i in range(4): a(f'v_pk_mul_f32 {vr(T+2*i,2)}, {vr(T+2*i,2)}, v[18:19] op_sel_hi:[1,0]')
        for i in range(4): a(f'v_cvt_pk_bf16_f32 v{X+4*f+i}, v{T+2*i}, v{T+2*i+1}')
        for i in range(4): a(f'buffer_store_dword v{X+4*f+i}, v{12+i}, s[12:15], s52 offen sc1', 'xst')
        a('s_add_u32 s52, s52, 65536')
    stamp(3)
    a.emit(ssm.kaddr())
    a.emit(g.setflag('s53', 16))
    stamp(7)
    a('s_barrier')
    a(f's_branch {lab("kgen")}')
    a(f'{lab("tcomp2")}:')
    a.vm = []; a.lg = list(lg_split)
    a.waitall(vm=False); a('s_barrier')
    emit_plain(a, ssm.ubuild()); stamp(9)
    cpre, cg = ssm.conv()
    fin, fflag = ssm.finish()
    emit_plain(a, cpre + sum(cg, []) + fin + fflag + [BAR]); stamp(10)
    a('s_barrier')
    nb['tc'] = count_bars(st0) + 2 + (w3m < 14)
    a(f's_branch {lab("g3comp")}')
    a(f'{lab("done")}:\ns_endpgm')
    assert nb['gl'] == nb['gc'] and nb['tl'] == nb['tc'], nb
    kernel_desc(a, name, 256, 102)
    return finalize(a, name, opt)

NAME = 'recurrent_scan__ssm_conv_s4d__mixer_gmlp__prompt_kernel'
def write(path, args):
    opt = {}
    for kv in args:
        k, _, v = kv.partition('=')
        opt[k] = (int(v) if v.lstrip('-').isdigit() and k != 'cw' else v) if v else True
    try: HDR = open('recurrent_scan__ssm_conv_s4d__mixer_gmlp__prompt.s.ref').read().split('; Override launch')[0]
    except OSError: HDR = ''
    txt = HDR + '; @launch grid=(256,1,1) block=(384,1,1) lds=163840\n.amdgcn_target "amdgcn-amd-amdhsa--gfx950"\n' + fused(NAME, opt)
    open(path, 'w').write(txt)

if __name__ == '__main__':
    import sys
    sys.path.insert(0, 'work')
    write(sys.argv[1], sys.argv[2:])
    from hx import build
    import cdna_launch as cl
    co, _ = build(sys.argv[1], 15, NAME)
    p = cl.address_register_problem(co, NAME)
    if p: print('CHECK PROBLEM:', p)
```

```python
from gen import *
import struct, math
def fbits(x): return hex(struct.unpack('<I', struct.pack('<f', x))[0])
def f32(x): return struct.unpack('<f', struct.pack('<f', x))[0]
WS_Z2F = 0; WS_XNT = 4 << 20; WS_HF = 6 << 20; WS_ST = 10 << 20; WS_STATS = 12 << 20; WS_FL = WS_STATS + (512 << 10)
WS_EPOCH = WS_FL + (384 << 10)
WS_PROF = 13 << 20; WS_BYTES = 14 << 20
FZ = WS_FL; FX = WS_FL + 896*128; FH = WS_FL + 1024*128; FT = WS_FL + 1536*128; FS = WS_FL + 2048*128
KA = dict(u=0, logA=8, Aim=16, Cre=24, Cim=32, logdt=40, Dskip=48, bx=56, win=64, wsp=72, bsp=80, wout=88, out=96, dbg=104, ws=112)
LOG2E = math.log2(math.e)
C0 = -2 * LOG2E * math.sqrt(2 / math.pi); C1 = C0 * 0.044715
BAR = ('BAR',)
SPIN = 0x20000
L_SSM = 65536; L_Z = 114688
USTR = 4640; UGRP = 3 * USTR + 4480; L_U = L_SSM; L_RAW = 102400 - 16; L_K = 147456
L_CS = 159744; L_TR = 131072
L_X3 = 81920; L_S3 = 90112; KSTR = 4736

class G:
    def __init__(self, name, opt):
        self.a = Asm(); self.name = name; self.opt = opt; self.comp = False; self.cold = []
    def stamp(self, idx, fine=False):
        if self.opt.get('fine') and not fine and 3 <= idx <= 15 and self.comp: return
        if self.opt.get('dbg') == idx: self.a(f's_memrealtime s[{66+2*idx}:{67+2*idx}]')
        if self.opt.get('prof'): self.a(f's_mem{"real" if self.opt.get("rt") else ""}time s[{66+2*idx}:{67+2*idx}]')
    def prof_store(self):
        if not self.opt.get('prof'): return
        a = self.a
        a('s_memrealtime s[64:65]\ns_memtime s[60:61]')
        a.waitall()
        a('v_mov_b32 v2, 0\ns_sub_u32 s31, s60, s66\nv_writelane_b32 v2, s31, 2')
        for i in range(1, 18):
            a(f's_sub_u32 s31, s{66+2*i}, s{62 if self.opt.get("rt") else 66}\nv_writelane_b32 v2, s31, {i+2}')
        a('v_writelane_b32 v2, s62, 0\nv_writelane_b32 v2, s64, 1')
        a(f's_lshl_b32 s3, s2, 3\ns_add_u32 s3, s3, s29\ns_lshl_b32 s3, s3, 7\ns_add_u32 s3, s3, {WS_PROF}')
        a('v_lshlrev_b32 v1, 2, v0\ns_mov_b32 exec_hi, 0')
        a('buffer_store_dword v2, v1, s[12:15], s3 offen')
    def spin(self, loads, tags, tmp, sentinel=False):
        a = self.a
        lp = a.newlab('sp'); lc = a.newlab('spc'); lo = a.newlab('spo')
        chk = []
        r = list(tags)
        if sentinel:
            cur = r.pop(0)
            while r:
                if len(r) >= 2: chk.append(f'v_max3_u32 v{tmp}, v{cur}, v{r[0]}, v{r[1]}'); r = r[2:]
                else: chk.append(f'v_max_u32 v{tmp}, v{cur}, v{r[0]}'); r = []
                cur = tmp
            chk.append(f'v_cmp_eq_u32 vcc, -1, v{tmp}')
        elif len(r) == 1: chk.append(f'v_cmp_ne_u32 vcc, s24, v{r[0]}')
        else:
            chk.append(f'v_xor_b32 v{tmp}, s24, v{r[0]}')
            for x in r[1:]: chk.append(f'v_bitop3_b32 v{tmp}, v{tmp}, v{x}, s24 bitop3:0xf6')
            chk.append(f'v_cmp_ne_u32 vcc, 0, v{tmp}')
        for x in chk: a(x)
        a(f's_cbranch_vccnz {lp}\n{lo}:')
        self.cold += [f'{lp}:', f's_mov_b32 s39, {SPIN}', f'{lc}:'] + list(loads) + ['s_waitcnt vmcnt(0)'] + chk + \
            [f's_cbranch_vccz {lo}', 's_sub_u32 s39, s39, 1', 's_cmp_lg_u32 s39, 0', f's_cbranch_scc1 {lc}', f's_branch {lo}']
    def setflag(self, soff, vtmp):
        return [f'v_mov_b32 v{vtmp}, s24', lambda: self.a.waitall(lg=False), (f's_mov_b32 exec_hi, 0\nbuffer_store_dword v{vtmp}, v6, s[12:15], {soff} offen sc1\ns_mov_b64 exec, -1', 'flag')]

def ln_list(vS, vQ, n, vT, out_negm, out_r, out_sd=None):
    L = [f'v_mul_f32 v{vS}, {fbits(1.0/n)}, v{vS}', f'v_mul_f32 v{vQ}, {fbits(1.0/n)}, v{vQ}', f'v_fma_f32 v{vQ}, -v{vS}, v{vS}, v{vQ}',
         f'v_max_f32 v{vQ}, 0, v{vQ}', f'v_cvt_pk_bf16_f32 v{vT}, v{vQ}, v{vS}', f'v_lshlrev_b32 v{vQ}, 16, v{vT}', f'v_and_b32 v{vT}, 0xffff0000, v{vT}',
         f'v_add_f32 v{vQ}, {fbits(1e-5)}, v{vQ}', f'v_xor_b32 v{out_negm}, 0x80000000, v{vT}', f'v_cvt_pk_bf16_f32 v{vQ}, v{vQ}, v{vQ}',
         f'v_lshlrev_b32 v{vQ}, 16, v{vQ}', f'v_sqrt_f32 v{vQ}, v{vQ}', f'v_cvt_pk_bf16_f32 v{vQ}, v{vQ}, v{vQ}']
    sd = vQ if out_sd is None else out_sd
    L += [f'v_lshlrev_b32 v{sd}, 16, v{vQ}', f'v_rcp_f32 v{out_r}, v{sd}']
    return L

def gelu_pk(A, n, vC, vSD, T):
    L = []
    for b in range(0, n, 8):
        P = [A + b + 2*i for i in range(4)]; Q = [T + 2*i for i in range(4)]
        for p, q in zip(P, Q): L.append(f'v_pk_mul_f32 {vr(q,2)}, {vr(p,2)}, {vr(p,2)}')
        for q in Q: L.append(f'v_pk_fma_f32 {vr(q,2)}, {vr(q,2)}, {vr(vC,2)}, {vr(vC,2)} op_sel:[0,0,1] op_sel_hi:[1,0,1]')
        for p, q in zip(P, Q): L.append(f'v_pk_mul_f32 {vr(q,2)}, {vr(q,2)}, {vr(p,2)}')
        for i in range(8): L.append(f'v_exp_f32 v{T+i}, v{T+i}')
        for q in Q: L.append(f'v_pk_fma_f32 {vr(q,2)}, {vr(q,2)}, {vr(vSD,2)}, {vr(vSD,2)} op_sel_hi:[1,0,0]')
        for i in range(8): L.append(f'v_rcp_f32 v{T+i}, v{T+i}')
        for p, q in zip(P, Q): L.append(f'v_pk_mul_f32 {vr(p,2)}, {vr(p,2)}, {vr(q,2)}')
    return L

def gelu_packed(Z, n, T, vC1):
    L = []
    for b in range(0, n, 2):
        for i in range(2): L += [f'v_lshlrev_b32 v{T+2*i}, 16, v{Z+b+i}', f'v_and_b32 v{T+2*i+1}, s33, v{Z+b+i}']
        for i in range(4): L.append(f'v_mul_f32 v{T+4+i}, v{T+i}, v{T+i}')
        for i in range(4): L.append(f'v_fmaak_f32 v{T+4+i}, v{vC1}, v{T+4+i}, {fbits(C0)}')
        for i in range(4): L.append(f'v_mul_f32 v{T+4+i}, v{T+i}, v{T+4+i}')
        for i in range(4): L.append(f'v_exp_f32 v{T+4+i}, v{T+4+i}')
        for i in range(4): L.append(f'v_add_f32 v{T+4+i}, 1.0, v{T+4+i}')
        for i in range(4): L.append(f'v_rcp_f32 v{T+4+i}, v{T+4+i}')
        for i in range(4): L.append(f'v_mul_f32 v{T+i}, v{T+i}, v{T+4+i}')
        for i in range(2): L.append(f'v_cvt_pk_bf16_f32 v{Z+b+i}, v{T+2*i}, v{T+2*i+1}')
    return L

def stream_emit(a, items, nbar, D, hook=None):
    comp = {}
    for i, it in enumerate(items):
        if it[2] is not None: comp[it[2]] = i + 1
    DD = D if callable(D) else (lambda b: D)
    nb = 0
    def bar(n):
        nonlocal nb
        c = max([comp.get(b, 0) for b in range(nb + 1)])
        assert c <= n, (nb, c, n)
        if hook: hook(nb, -1)
        if c: a.L.append(f's_waitcnt vmcnt({min(63, n - c)})')
        if hook: hook(nb, 0)
        a.L.append('s_barrier')
        if hook: hook(nb, 1)
        nb += 1
    for i, (setup, ld, cb, need) in enumerate(items):
        while need is not None and nb <= need: bar(i)
        for x in setup:
            if callable(x): x()
            else: a.L.append(x)
        a.L.append(ld)
        while nb < nbar and nb in comp and i + 1 >= comp[nb] + DD(nb): bar(i + 1)
    while nb < nbar: bar(len(items))

def grp(m0, soff_setup, vbase, srd_, soff, same=False, cb=None, need=None, fl='', mreg='s19'):
    L = []
    for i in range(4):
        su = ([f's_add_u32 m0, {mreg}, {m0}'] + (soff_setup or ['s_nop 0'])) if i == 0 else []
        L.append((su, f'buffer_load_dwordx4 v{vbase if same else vbase+i}, {srd_}, {soff} offen offset:{1024*i} {fl} lds', cb, need if i == 0 else None))
    return L

def rowoffs(a, d, rowbase, sh, colbase=None):
    st = 1 << sh
    a(f"""v_lshrrev_b32 v24, 3, v0
v_add_u32 v24, {rowbase}, v24
v_lshlrev_b32 v24, {sh}, v24
v_and_b32 v25, 7, v0
v_lshrrev_b32 v26, 4, v0
v_xor_b32 v25, v25, v26
v_lshl_add_u32 v{d}, v25, 4, v24""")
    if colbase: a(f'v_add_u32 v{d}, {colbase}, v{d}')
    a(f'v_xor_b32 v{d+1}, 64, v{d}\nv_add_u32 v{d+1}, {8*st-1024}, v{d+1}\nv_add_u32 v{d+2}, {16*st-2048}, v{d}\nv_add_u32 v{d+3}, {16*st-2048}, v{d+1}')

def troffs(a, d, stride, colbase):
    a(f"""v_lshrrev_b32 v24, 3, v0
v_mul_u32_u24 v24, {stride}, v24
v_bfe_u32 v25, v0, 4, 1
v_lshlrev_b32 v25, 2, v25
v_and_b32 v26, 7, v0
v_xor_b32 v25, v25, v26
v_lshl_add_u32 v24, v25, 4, v24
v_add_u32 v{d}, {colbase}, v24""")
    for i in range(1, 4): a(f'v_add_u32 v{d+i}, {8*stride-1024}, v{d+i-1}')

def rowread_list(d, t, base):
    return [f'v_lshrrev_b32 v{t}, 5, v0', f'v_bfe_u32 v{d}, v0, 1, 3', f'v_xor_b32 v{d}, v{d}, v{t}', f'v_lshlrev_b32 v{d}, 4, v{d}',
            f'v_and_b32 v{t}, 31, v0', f'v_lshl_add_u32 v{d}, v{t}, 7, v{d}', f'v_add_u32 v{d}, {base}, v{d}']
def trread_list(d, t):
    return [f'v_lshrrev_b32 v{d}, 5, v0', f'v_bfe_u32 v{t}, v0, 2, 2', f'v_lshl_add_u32 v{d}, v{d}, 3, v{t}', f'v_lshlrev_b32 v{d}, 7, v{d}',
            f'v_bfe_u32 v{t}, v0, 3, 1', f'v_lshl_add_u32 v{d}, v{t}, 6, v{d}', f'v_bfe_u32 v{t}, v0, 4, 1', f'v_lshl_add_u32 v{d}, v{t}, 5, v{d}',
            f'v_and_b32 v{t}, 1, v0', f'v_lshl_add_u32 v{d}, v{t}, 4, v{d}', f'v_bfe_u32 v{t}, v0, 1, 1', f'v_lshl_add_u32 v{d}, v{t}, 3, v{d}']

def cost(x):
    if callable(x): return 4
    t = x[0] if isinstance(x, tuple) else x
    if t.startswith(TRANS): return 8
    if t.startswith('v_mfma_f32_32'): return 32
    if t.startswith('v_mfma'): return 12
    return 4

class SSM:
    CA = 16; PR = 208; DS = 5
    def __init__(self, g): self.g = g; self.a = g.a
    def param_addr(self):
        P = self.PR
        return ['s_lshl_b32 s31, s2, 9', 's_lshl_b32 s3, s29, 7', 's_add_u32 s31, s31, s3', f'v_lshl_add_u32 v{P+6}, v0, 1, s31',
                's_lshl_b32 s31, s2, 2', f'v_mov_b32 v{P+7}, s31']
    def param_loads(self):
        P = self.PR
        L = [(f'global_load_dword v{P+4}, v{P+7}, s[48:49]', 'prm')]
        for i in range(4): L.append((f'global_load_ushort v{P+i}, v{P+6}, s[{40+2*i}:{41+2*i}]', 'prm'))
        L.append((f'global_load_dword v{self.DS}, v{P+7}, s[50:51]', 'prm'))
        return L
    def kaddr(self):
        A = 216
        L = ['s_lshl_b32 s31, s29, 14', f's_add_u32 s31, s31, {L_SSM}', f'v_bfe_u32 v{A+4}, v0, 1, 2', f'v_lshlrev_b32 v{A+4}, 4, v{A+4}', f'v_lshl_add_u32 v{A+4}, v0, 6, v{A+4}', f'v_add_u32 v{A}, s31, v{A+4}']
        for b in range(1, 4): L.append(f'v_xor_b32 v{A+b}, {16*b}, v{A}')
        R, t, u = A+4, A+6, A+7
        L += ['s_and_b32 s3, s31, 0xffff8000', f'v_bfe_u32 v{t}, v0, 3, 2', f'v_bfe_u32 v{R}, v0, 1, 1', f'v_xor_b32 v{R}, v{R}, v{t}', f'v_lshlrev_b32 v{R}, 4, v{R}',
              f'v_lshrrev_b32 v{t}, 2, v0', f'v_lshl_add_u32 v{R}, v{t}, 6, v{R}', f'v_and_b32 v{u}, 1, v0', f'v_lshl_add_u32 v{R}, v{u}, 3, v{R}', f'v_add_u32 v{R}, s3, v{R}',
              f'v_xor_b32 v{A+5}, 32, v{R}', 's_and_b32 s3, s29, 1', 's_lshl_b32 s31, s3, 5', f'v_xor_b32 v{A+6}, s31, v{R}',
              f'v_cmp_eq_u32 s[58:59], 0, v{u}', f'v_and_b32 v{u}, 16, v0', f'v_cmp_eq_u32 s[46:47], 0, v{u}']
        L += ['s_lshr_b32 s31, s29, 1', f's_mul_i32 s57, s31, {KSTR}', f's_add_u32 s57, s57, {L_K}', 's_lshl_b32 s3, s3, 8', 's_sub_u32 s3, s57, s3',
              f'v_and_b32 v{A+9}, 255, v7', f'v_sub_u32 v{A+9}, s3, v{A+9}', f'v_lshrrev_b32 v{A+10}, 4, v0',
              f'v_lshlrev_b32 v{A+11}, 2, v{A+10}', f'v_sub_u32 v{A+7}, v{A+9}, v{A+11}', f'v_lshlrev_b32 v{A+11}, 9, v{A+10}', f'v_sub_u32 v{A+14}, v{A+9}, v{A+11}',
              f'v_lshrrev_b32 v{A+11}, 5, v0', f'v_lshlrev_b32 v{A+11}, 9, v{A+11}', f'v_sub_u32 v{A+8}, v{A+9}, v{A+11}', f'v_bfe_u32 v{A+11}, v0, 4, 1', f'v_lshlrev_b32 v{A+11}, 3, v{A+11}', f'v_sub_u32 v{A+8}, v{A+8}, v{A+11}',
              f'v_min_u32 v{A+9}, 39, v0', f'v_lshl_add_u32 v{A+9}, v{A+9}, 4, s57'] + [f'v_mov_b32 v{A+10+i}, 0' for i in range(4)]
        L.append((f'ds_write_b128 v{A+9}, {vr(A+10,4)} offset:4096', 'kt'))
        return L
    def kgen(self):
        a = self.a; P = self.PR; A = 216
        E1, E8, E64, E256, Cc, E2 = 128, 130, 132, 134, 136, 138
        t = 140
        Lhi = f32(LOG2E); Llo = LOG2E - Lhi
        def exp_acc(d, x, t0, t1):
            return [f'v_mul_f32 v{t0}, s40, v{x}', f'v_fma_f32 v{t1}, v{x}, s40, -v{t0}', f'v_fma_f32 v{t1}, v{x}, s41, v{t1}',
                    f'v_exp_f32 v{t0}, v{t0}', f'v_mul_f32 v{t1}, s42, v{t1}', f'v_fma_f32 v{d}, v{t0}, v{t1}, v{t0}']
        L = [f's_mov_b32 s40, {fbits(Lhi)}', f's_mov_b32 s41, {fbits(Llo)}', f's_mov_b32 s42, {fbits(math.log(2))}',
             's_lshr_b32 s31, s29, 1', 's_lshl_b32 s31, s31, 4', lambda: a.waitvm('prm'), lambda: self.g.stamp(17), f'v_lshrrev_b32 v{P+4}, s31, v{P+4}']
        for i in range(5): L.append(f'v_lshlrev_b32 v{P+i}, 16, v{P+i}')
        for x, y in zip(exp_acc(P+4, P+4, t, t+1), exp_acc(P, P, t+2, t+3)): L += [x, y]
        L += [f'v_cvt_pk_bf16_f32 v{P+4}, v{P}, v{P+4}', f'v_lshlrev_b32 v{P}, 16, v{P+4}', f'v_and_b32 v{P+4}, s33, v{P+4}']
        for i in range(4): L.append(f'v_mul_f32 v{P+i}, v{P+i}, v{P+4}')
        L += [f'v_mul_f32 v{t}, {fbits(-LOG2E)}, v{P}', f'v_mul_f32 v{t+4}, 0.15915494, v{P+1}', f'v_add_f32 v{Cc}, v{P+2}, v{P+2}', f'v_add_f32 v{Cc+1}, v{P+3}, v{P+3}']
        for k, p in enumerate([8.0, 64.0, 256.0]): L += [f'v_mul_f32 v{t+1+k}, {fbits(p)}, v{t}', f'v_mul_f32 v{t+5+k}, {fbits(p)}, v{t+4}']
        for k in range(4): L += [f'v_exp_f32 v{t+k}, v{t+k}', f'v_fract_f32 v{t+4+k}, v{t+4+k}']
        for k in range(4): L += [f'v_cos_f32 v{E1+2*k}, v{t+4+k}', f'v_sin_f32 v{E1+1+2*k}, v{t+4+k}']
        for k in range(4): L += [f'v_mul_f32 v{E1+2*k}, v{t+k}, v{E1+2*k}', f'v_mul_f32 v{E1+1+2*k}, v{t+k}, v{E1+1+2*k}']
        fk = lambda i: (lambda: self.g.stamp(i, True) if self.g.opt.get('fine') == 'kg' else None)
        L.append(fk(3))
        O = 140
        def cm(jobs):
            R = []
            for d, x, y in jobs: R.append(f'v_pk_mul_f32 {vr(d,2)}, {vr(x,2)}, {vr(y,2)} op_sel_hi:[1,0]')
            for d, x, y in jobs: R.append(f'v_pk_fma_f32 {vr(d,2)}, {vr(x,2)}, {vr(y,2)}, {vr(d,2)} op_sel:[1,1,0] op_sel_hi:[0,1,1] neg_lo:[1,0,0]')
            return R
        cnt = [0]
        def pack(vals, blk, plane, neg):
            o = O + 8 * (cnt[0] & 1); cnt[0] += 1
            R = []
            for i in range(4): R.append(f'v_cvt_pk_bf16_f32 v{o+i}, v{vals[2*i]}, v{vals[2*i+1]}')
            R.append((f'ds_write_b128 v{A+blk}, {vr(o,4)} offset:{plane*4096}', 'kt'))
            s = '-' if neg else ''
            for i in range(4): R.append(f'v_cvt_pk_bf16_f32 v{o+4+i}, {s}v{vals[2*i]+1}, {s}v{vals[2*i+1]+1}')
            R.append((f'ds_write_b128 v{A+blk}, {vr(o+4,4)} offset:{plane*4096+4096}', 'kt'))
            return R
        B = [156 + 2*i for i in range(26)]
        fa = B[0:8]; fb = B[8:16]; g = [Cc] + B[16:24]
        fa0 = [fa[0], E8] + fa[2:]
        L += [f'v_mov_b32 v{fa[0]}, 1.0', f'v_mov_b32 v{fa[0]+1}, 0']
        L += cm([(fa[2], E8, E8), (g[1], Cc, E1), (E2, E1, E1), (g[8], Cc, E8)])
        L += cm([(fa[3], fa[2], E8), (fa[4], fa[2], fa[2]), (g[2], Cc, E2), (g[3], g[1], E2)])
        L += cm([(fa[5], fa[4], E8), (fa[6], fa[4], fa[2]), (fa[7], fa[4], fa[3]), (g[4], g[2], E2), (g[5], g[3], E2)])
        L += pack(fa0, 0, 2, False)
        fb0 = [E64] + fb[1:]
        L += cm([(g[6], g[4], E2), (g[7], g[5], E2)] + [(fb[i], fa0[i], E64) for i in range(1, 8)])
        L += cm([(fa[i], fb0[i], E64) for i in range(8)])
        L += pack(fb0, 1, 2, False)
        L += cm([(fb[i], fa[i], E64) for i in range(8)])
        L += pack(fa, 2, 2, False)
        h0, h2, h4, h6, h8, i0, i4, i8 = B[0:8]
        j0, j4, j8, k0, k8, l0, l8 = B[8:15]
        L += cm([(h0, g[0], E256), (h2, g[2], E256), (h4, g[4], E256), (h6, g[6], E256), (h8, g[8], E256), (E2, E256, E256)])
        L += pack(fb, 3, 2, False)
        L += cm([(i0, g[0], E2), (i4, g[4], E2), (i8, g[8], E2), (j0, h0, E2), (j4, h4, E2), (j8, h8, E2)])
        L += pack([g[0], g[1], h0, h0, g[2], g[3], h2, h4], 0, 0, True)
        m0, m8, n0, n8 = g[1], g[2], g[3], B[15]
        L += cm([(k0, i0, E2), (k8, i8, E2), (l0, j0, E2), (l8, j8, E2)])
        L += pack([g[4], g[5], h4, h4, g[6], g[7], h6, h8], 1, 0, True)
        L += cm([(m0, k0, E2), (m8, k8, E2), (n0, l0, E2), (n8, l8, E2)])
        L += pack([i0, i4, k0, k8, i4, i8, l0, l8], 2, 0, True)
        L += pack([j0, j4, m0, m8, j4, j8, n0, n8], 3, 0, True)
        L.append(fk(4))
        L.append(BAR)
        L.append(fk(5))
        D = 128; FR = 136
        def rd(j):
            o = 16384 * (j // 4) + 1024 * (j % 4); b = FR + 12 * (j % 5)
            return [(f'ds_read_b64_tr_b16 {vr(b+4*k+2*p,2)}, v{A+(6,4,5)[k]} offset:{o + 4096*p + (8192 if k == 0 else 0)}', f'kr{j}') for k in range(3) for p in range(2)]
        for j in range(2): L += rd(j)
        for j in range(8):
            b = FR + 12 * (j % 5); nx = rd(j+2) if j + 2 < 8 else []
            L += nx[:3]
            L.append(lambda j=j: a.waitlg(f'kr{j}'))
            L.append(f'v_mfma_f32_16x16x32_bf16 {vr(D,4)}, {vr(b+4,4)}, {vr(b,4)}, {"0" if j == 0 else vr(D,4)}')
            L += nx[3:]
            L.append(f'v_mfma_f32_16x16x32_bf16 {vr(D+4,4)}, {vr(b+8,4)}, {vr(b,4)}, {"0" if j == 0 else vr(D+4,4)}')
        L.append(fk(6))
        O = 196
        L += [f'v_cvt_pk_bf16_f32 v{O}, v{D+1}, v{D}', f'v_cvt_pk_bf16_f32 v{O+1}, v{D+3}, v{D+2}',
              f'v_cndmask_b32 v{O+2}, v{D+5}, v{D+4}, s[46:47]', f'v_cndmask_b32 v{O+5}, v{D+7}, v{D+6}, s[58:59]',
              f'v_cvt_pk_bf16_f32 v{O+4}, v{D+7}, v{D+7}', f'v_cvt_pk_bf16_f32 v{O+5}, v{D+7}, v{O+5}', f'v_cvt_pk_bf16_f32 v{O+6}, v{D+6}, v{D+6}', f'v_cvt_pk_bf16_f32 v{O+7}, v{D+6}, v{D+6}',
              (f'ds_write_b128 v{A+14}, {vr(O+4,4)} offset:{4080-2048}', 'kw'),
              f'v_cvt_pk_bf16_f32 v{O+2}, v{D+5}, v{O+2}', f'v_cvt_pk_bf16_f32 v{O+3}, v{D+4}, v{D+4}',
              (f'ds_write_b64 v{A+8}, {vr(O+2,2)} offset:{4088-1024}', 'kw'),
              (f'ds_write_b32 v{A+7}, v{O} offset:4092', 'kw'), (f'ds_write_b32 v{A+7}, v{O+1} offset:{4092-512}', 'kw')]
        return L
    UA = 13; KA_ = 15
    def ubuild(self, T=244, R=232, O=200):
        a = self.a
        L = ['s_mov_b32 s44, 0x05040100', 's_mov_b32 s45, 0x07060302',
             's_lshl_b32 s31, s29, 11', f's_add_u32 s31, s31, {L_RAW}', f'v_lshl_add_u32 v{T+3}, v0, 5, s31']
        L += [f'v_mov_b32 v{T+4+k}, 0' for k in range(4)]
        L += ['s_lshr_b32 s31, s29, 1', f's_mul_i32 s46, s31, {UGRP}', f's_add_u32 s46, s46, {L_U}', 's_and_b32 s47, s29, 1', 's_lshl_b32 s3, s47, 9',
              f'v_and_b32 v{T}, 3, v0', f'v_mul_u32_u24 v{T}, {USTR}, v{T}', f'v_bfe_u32 v{T+2}, v0, 2, 2', f'v_lshl_add_u32 v{T}, v{T+2}, 7, v{T}',
              f'v_and_b32 v{T+2}, 48, v0', f'v_add3_u32 v{self.UA}, v{T}, v{T+2}, s46',
              's_sub_u32 s31, s57, s3', 's_add_u32 s31, s31, 632', f'v_and_b32 v{T}, 15, v0', f'v_lshlrev_b32 v{T}, 3, v{T}', f'v_sub_u32 v{T}, v{T+2}, v{T}', f'v_add_u32 v{self.KA_}, s31, v{T}']
        L += [f'v_lshrrev_b32 v{T+2}, 5, v0', f'v_mul_u32_u24 v{T+2}, {USTR}, v{T+2}', f'v_and_b32 v{T}, 31, v0', f'v_min_u32 v{T}, 23, v{T}',
              f's_mul_i32 s31, s47, {2*USTR}', 's_add_u32 s31, s31, s46', f'v_lshl_add_u32 v{T}, v{T}, 4, v{T+2}', f'v_add_u32 v{T}, s31, v{T}']
        L += ['s_lshl_b32 s31, s29, 10', f's_add_u32 s31, s31, {L_U + 384}', f'v_add_u32 v{T+1}, s31, v7',
              's_cmp_eq_u32 s29, 0', 's_cselect_b32 s31, 0, -1', f'v_cmp_eq_u32 s[58:59], s31, v0']
        L.append(BAR)
        for k in range(3): L.append((f'ds_read_b128 {vr(R+4*k,4)}, v{T+3} offset:{16*k}', 'rr'))
        L.append((f'ds_write_b128 v{T}, {vr(T+4,4)}', 'uw'))
        L.append(lambda: a.waitlg('rr'))
        for k in range(1, 4): L.append(f'v_cndmask_b32 v{R+k}, v{R+k}, v{T+4}, s[58:59]')
        for dl in range(2):
            for e in range(4):
                d = O + 4 * (4*dl + e)
                for k in range(4): L.append(f'v_perm_b32 v{d+k}, v{R+4+2*k+e-2}, v{R+4+2*k+e-3}, s{44+dl}')
                L.append((f'ds_write_b128 v{T+1}, {vr(d,4)} offset:{dl*UGRP+e*USTR}', 'uw'))
        L.append(BAR)
        return L
    def conv(self):
        a = self.a; CA = self.CA
        FB = [192, 224]
        def reads(n):
            r, par = divmod(n, 2)
            L = []
            for i in range(4):
                kk = 3 - i
                pp = 2*kk + 1 - par
                if i == 0: L.append((f'ds_read_b128 {vr(FB[n&1],4)}, v{self.UA} offset:{512*par+64*r}', f't{n}_0'))
                for h in range(2): L.append((f'ds_read_b64 {vr(FB[n&1]+16+4*kk+2*h,2)}, v{self.KA_} offset:{3584 - 512*pp + 64*r + 8*h}', f'k{n}_{kk}'))
            for i in range(1, 4): L.append((f'ds_read_b128 {vr(FB[n&1]+4*i,4)}, v{self.UA} offset:{512*(2*i+par)+64*r}', f't{n}_{i}'))
            return L
        G_ = []
        for n in range(16):
            nx = reads(n+1) if n < 15 else []
            m = 0
            for i in range(4):
                for kk in range(3 - i, -1, -1):
                    A = i + kk
                    tags = [f't{n}_{i}', f'k{n}_{kk}']
                    c = '0' if (n == 0 and i == 0) else vr(CA+4*A, 4)
                    g = [lambda tags=tags: a.waitlg(tags), f'v_mfma_f32_16x16x32_bf16 {vr(CA+4*A,4)}, {vr(FB[n&1]+4*i,4)}, {vr(FB[n&1]+16+4*kk,4)}, {c}']
                    k = 2 if m < 4 else (1 if m < 8 else 0)
                    g += nx[:k]; nx = nx[k:]; m += 1
                    G_.append(g)
            assert not nx
        return reads(0), G_
    def finish(self):
        a = self.a; CA = self.CA; R = 192; T = 224
        L = ['s_and_b32 s3, s29, 1', 's_lshl_b32 s31, s3, 10', f's_add_u32 s31, s31, {L_RAW+16}', f'v_add_u32 v{T}, s31, v7']
        for k in range(4): L.append((f'ds_read_b128 {vr(R+4*k,4)}, v{T} offset:{2048*k}', f'ur{k}'))
        L += ['s_lshr_b32 s31, s29, 1', 's_lshl_b32 s55, s2, 1', 's_add_u32 s55, s55, s31', 's_lshl_b32 s3, s3, 9', 's_lshl_b32 s56, s55, 12', 's_add_u32 s56, s56, s3', f's_add_u32 s56, s56, {WS_ST}',
              's_add_u32 s55, s55, s3', 's_lshl_b32 s55, s55, 7', f's_add_u32 s60, s55, {FS}',
              's_cmp_eq_u32 s31, 0', 's_cselect_b32 s3, 0x01000c0c, 0x03020c0c'.replace(', 0x03020c0c', ', s45x'), f'v_lshlrev_b32 v{T+1}, 3, v0']
        L[-2:-1] = ['s_mov_b32 s3, 0x03020c0c', 's_cselect_b32 s3, 0x01000c0c, s3']
        L.append(f'v_perm_b32 v{T+2}, v{self.DS}, v{self.DS}, s3')
        for k in range(4):
            L.append(lambda k=k: a.waitlg(f'ur{k}'))
            for j in range(4): L.append(f'v_perm_b32 v{R+4*k+j}, v{R+4*k+j}, v{R+4*k+j}, s3')
            for j in range(4): L.append(f'v_fmac_f32 v{CA+4*k+j}, v{R+4*k+j}, v{T+2}')
            for j in range(2): L.append(f'v_cvt_pk_bf16_f32 v{T+4+2*k+j}, v{CA+4*k+2*j}, v{CA+4*k+2*j+1}')
            L.append((f'buffer_store_dwordx2 {vr(T+4+2*k,2)}, v{T+1}, s[12:15], s56 offen offset:{1024*k} sc1', 'sst'))
        return L, self.g.setflag('s60', T+3)

def emit_plain(a, L):
    n = 0
    for x in L:
        if x is BAR:
            a.waitall(vm=False); a('s_barrier'); n += 1
        else: a.emit([x])
    return n


def sizes_of(lines):
    import subprocess, tempfile, os
    d = tempfile.mkdtemp()
    open(d + '/t.s', 'w').write('.amdgcn_target "amdgcn-amd-amdhsa--gfx950"\n' + '\n'.join(lines) + '\n')
    r = subprocess.run(['llvm-mc', '-triple=amdgcn-amd-amdhsa', '-mcpu=gfx950', '-show-encoding', d + '/t.s'], capture_output=True, text=True)
    assert r.returncode == 0, r.stderr[:2000]
    enc = [len(l.split('encoding: [')[1].split(']')[0].split(',')) for l in r.stdout.split('\n') if 'encoding: [' in l]
    idx = [i for i, l in enumerate(lines) if Ins(l).is_ins]
    assert len(enc) == len(idx), (len(enc), len(idx))
    return dict(zip(idx, enc))

def finalize(a, name, opt):
    L, _ = pad_hazards([x for x in a.L], opt.get('verbose'))
    warm = [i for i, x in enumerate(L) if x == '@WARM@']
    base = [x if x != '@WARM@' else '' for x in L]
    sz = sizes_of(base)
    start = base.index('.p2align 12')
    out = base[:start + 1]; addr = 0; pads = []
    stop = base.index(f'{name}_tcomp:')
    n = len(base); i = start + 1
    E64 = ('v_add_f32', 'v_mul_f32', 'v_sub_f32', 'v_lshlrev_b32', 'v_and_b32', 'v_xor_b32', 'v_or_b32', 'v_mov_b32', 'v_exp_f32', 'v_rcp_f32', 'v_add_u32', 'v_max_f32',
           'v_lshrrev_b32', 'v_sqrt_f32', 'v_fmac_f32', 'v_max_u32', 'v_min_u32', 'v_sin_f32', 'v_cos_f32', 'v_fract_f32')
    while i < n:
        ln = base[i]
        if i in sz:
            if addr >= 4096 * (len(pads) + 1) and i < stop and not opt.get('nopad'):
                lb = f'{name}_pad{len(pads)}'; pads.append(lb)
                out.append(f'{lb}:'); out.append(f'@PAD{len(pads)-1}@'); addr += 4
            s = sz[i]
            if s == 4 and not opt.get('noalign') and (addr + 4) % 8 == 4:
                j = i + 1; run = 0; mf = 0
                while j < n and (j not in sz or sz[j] == 8):
                    if j in sz:
                        run += 1; mf += base[j].startswith('v_mfma')
                    j += 1
                mn = ln.split()[0]
                if run >= 3 and mn in E64:
                    ln = ln.replace(mn, mn + '_e64', 1); s = 8
                elif run >= 10 and mf == 0:
                    out.append('s_nop 0'); addr += 4
            addr += s
        out.append(ln); i += 1
    res = []; wi = 0
    for k, x in enumerate(out):
        if x.startswith('@PAD'):
            p = int(x[4:-1])
            res.append(f's_cbranch_execz {name + "_warmret0" if p < 2 else pads[p+2] if p + 2 < len(pads) else name + "_warmret1"}')
        elif k in warm and pads:
            res += ['s_mov_b64 exec, 0', 's_cmp_eq_u32 s18, 0', f's_cbranch_scc1 {pads[2*wi]}', f's_branch {pads[2*wi+1]}', f'{name}_warmret{wi}:', 's_mov_b64 exec, -1']
            wi += 1
        else: res.append(x)
    return '\n'.join(res) + '\n'

def fused(name, opt):
    g = G(name, opt); a = g.a; ssm = SSM(g); stamp = g.stamp
    nb = {'gl': 0, 'gc': 0, 'tl': 0, 'tc': 0}
    NR = opt.get('nr', 4)
    rp = opt.get('rpat', 'SSSSSSR')
    pat = ''
    while len(pat) < 32:
        ch = rp[len(pat) % len(rp)]
        pat += ch if pat.count('R') < NR else 'S'
    RPOS = [k for k in range(32) if pat[k] == 'R']; SPOS = [k for k in range(32) if pat[k] == 'S']
    MEM = {k: r for r, k in enumerate(RPOS)}; MEM.update({k: NR + s for s, k in enumerate(SPOS)})
    SIDX = {k: s for s, k in enumerate(SPOS)}
    assert len(SPOS) % 4 == 0 and SPOS[-4:] == [28, 29, 30, 31]
    W3 = [(0, 29), (8192, 29), (L_Z, 29), (16384, 30), (24576, 30), (L_Z + 8192, 30), (32768, 31), (40960, 31), (L_Z + 16384, 31),
          (147456, 31), (155648, 31), (49152, 32), (57344, 32), (L_Z + 24576, 32)]
    W3LOC = [x[0] for x in W3]
    kernel_begin(a, name)
    lab = lambda s: f'{name}_{s}'
    a(f's_cmp_ge_u32 s2, 256\ns_cbranch_scc1 {lab("done")}')
    if opt.get('prof') or opt.get('dbg') or opt.get('span'): a('s_memrealtime s[62:63]\ns_memtime s[66:67]')
    a(f's_load_dwordx2 s[4:5], s[0:1], {KA["u"]}\ns_load_dwordx2 s[12:13], s[0:1], {KA["ws"]}')
    a('''v_lshrrev_b32 v1, 6, v0
s_and_b32 s24, s2, 7
s_bfe_u32 s25, s2, 0x20003
v_readfirstlane_b32 s29, v1
s_lshr_b32 s26, s24, 1
s_lshl_b32 s26, s26, 2
s_add_u32 s26, s26, s25
s_lshr_b32 s27, s2, 5
s_and_b32 s30, s24, 1
s_mul_i32 s28, s30, 7
s_add_u32 s28, s28, s27
v_and_b32 v0, 63, v0''')
    a(f's_cmp_ge_u32 s29, 4\ns_cbranch_scc1 {lab("help")}')
    a(f's_load_dwordx8 s[40:47], s[0:1], {KA["logA"]}\ns_load_dwordx4 s[48:51], s[0:1], {KA["logdt"]}')
    a(f's_load_dwordx2 s[18:19], s[0:1], {KA["bsp"]}\ns_load_dwordx2 s[20:21], s[0:1], {KA["out"]}')
    a.emit(ssm.param_addr())
    a(f's_lshl_b32 s35, s26, 2\ns_add_u32 s35, s35, s29\ns_mul_i32 s54, s35, 57344\ns_lshl_b32 s31, s28, 12\ns_add_u32 s54, s54, s31\ns_add_u32 s54, s54, {WS_HF}')
    a('v_lshlrev_b32 v7, 4, v0\nv_mov_b32 v8, -1\nv_mov_b32 v9, -1\nv_mov_b32 v10, -1\nv_mov_b32 v11, -1')
    a('s_waitcnt lgkmcnt(0)')
    tagload = f's_add_u32 s16, s12, {WS_EPOCH}\ns_addc_u32 s17, s13, 0\ns_load_dword s24, s[16:17], 0'
    tagmake = 's_waitcnt lgkmcnt(0)\ns_mul_i32 s24, s24, 0x19660d\ns_add_u32 s24, s24, 0x3c6ef35f'
    a.emit(ssm.param_loads())
    a(tagload)
    a(f's_cmp_eq_u32 s27, 7\ns_cbranch_scc1 {lab("tcomp")}')
    hcl = opt.get('hcl', 't')
    if hcl == 'g':
        a(f's_and_b32 s13, s13, 0xffff\ns_mov_b32 s14, {hex(WS_BYTES)}\ns_mov_b32 s15, 0x20000')
        for q in range(4): a(f'buffer_store_dwordx4 v[8:11], v7, s[12:15], s54 offen offset:{1024*q} sc1')
    a(f's_branch {lab("comp")}')
    a(f'{lab("help")}:')
    a(f's_load_dwordx2 s[8:9], s[0:1], {KA["win"]}\ns_load_dwordx2 s[20:21], s[0:1], {KA["wsp"]}\ns_load_dwordx2 s[36:37], s[0:1], {KA["wout"]}')
    a('s_and_b32 s18, s29, 1\ns_lshl_b32 s19, s18, 12')
    srdc = f's_mov_b32 s14, {hex(WS_BYTES)}\ns_mov_b32 s15, 0x20000\ns_mov_b32 s6, 0x200000\ns_mov_b32 s7, 0x20000'
    a(srdc)
    if not opt.get('nocpf'):
        a(f's_getpc_b64 s[56:57]\n{lab("pc")}:\ns_lshr_b32 s31, s2, 2\ns_and_b32 s31, s31, 62\ns_add_u32 s31, s31, s18\nv_and_b32 v1, 7, v0\nv_lshlrev_b32 v1, 6, v1\nv_add_lshl_u32 v1, v1, s31, 7\nv_min_u32 v1, {lab("done")}-{lab("pc")}, v1')
        a('global_load_dword v31, v1, s[56:57]')
    a(f's_cmp_eq_u32 s27, 7\ns_cbranch_scc1 {lab("thelp")}')

    def rot3(r):
        sm, sn = opt.get('sm3', 0), opt.get('sn3', 0)
        a(f's_mul_i32 s{r}, s25, {sm}\ns_mul_i32 s31, s27, {sn}\ns_add_u32 s{r}, s{r}, s31\ns_lshr_b32 s{r}, s{r}, 4\ns_sub_u32 s31, s{r}, 14\ns_cmp_ge_u32 s{r}, 14\ns_cselect_b32 s{r}, s31, s{r}')
    def late_loader_setup():
        a(f's_mov_b32 s22, 0x800000\ns_mov_b32 s23, 0x20000\ns_mov_b32 s38, {896*1024}\ns_mov_b32 s39, 0x20000')
        a('s_and_b32 s21, s21, 0xffff\ns_and_b32 s37, s37, 0xffff\ns_and_b32 s13, s13, 0xffff')
        a('v_lshl_add_u32 v14, v0, 4, s19\nv_lshlrev_b32 v15, 7, v0')
        a('s_lshl_b32 s31, s27, 7\ns_lshl_b32 s3, s18, 15\ns_add_u32 s31, s31, s3'); troffs(a, 16, 1024, 's31')
        a('s_lshl_b32 s32, s26, 1\ns_add_u32 s32, s32, s30\ns_lshl_b32 s3, s32, 6'); rowoffs(a, 20, 's3', 10, 's31')
        rot3(60)
        a(f's_lshl_b32 s35, s2, 13')
        a(f's_lshr_b32 s31, s2, 7\ns_lshl_b32 s31, s31, 13\ns_add_u32 s59, s31, s19\ns_add_u32 s59, s59, {FX}\nv_and_b32 v32, 0xfff, v15')
        if hcl == 't': a(f'v_min_u32 v33, {3*128}, v15\ns_lshl_b32 s31, s26, 9\ns_add_u32 s31, s31, {FH}')
        else:
            a(f'v_min_u32 v33, 13, v0\nv_lshlrev_b32 v33, 13, v33\ns_lshl_b32 s31, s32, 1\ns_add_u32 s31, s31, s18\ns_lshl_b32 s31, s31, 7\ns_add_u32 s31, s31, {FZ}')
        a(f"""v_add_u32 v33, s31, v33
s_lshl_b32 s31, s27, 13
s_bfe_u32 s3, s26, 0x10001
s_lshl_b32 s3, s3, 16
s_add_u32 s31, s31, s3
s_add_u32 s31, s31, s19
s_add_u32 s61, s31, {FS}
v_mov_b32 v36, -1
v_mov_b32 v37, -1
v_mov_b32 v38, -1
v_mov_b32 v39, -1
v_mov_b32 v34, 0
v_lshlrev_b32 v44, 2, v0
s_lshl_b32 s31, s27, 18
s_lshl_b32 s3, s18, 17
s_add_u32 s31, s31, s3
s_lshl_b32 s3, s32, 7
s_add_u32 s31, s31, s3
s_add_u32 s31, s31, {WS_ST}""")
        troffs(a, 40, 4096, 's31')
    def adv(r): return [f's_add_u32 s{r}, s{r}, 1', f's_cmp_eq_u32 s{r}, 14', f's_cselect_b32 s{r}, 0, s{r}']
    def w3(j, need=None): return grp(W3LOC[j], ['s_lshl_b32 s56, s60, 16'] + adv(60), 16, 's[36:39]', 's56', need=need)
    def x3(need=None): return grp(L_X3, None, 20, 's[4:7]', '0', need=need)
    w3m = opt.get('w3m', 14)
    fsload = 'buffer_load_dword v27, v32, s[12:15], s61 offen sc1'
    def s3tail():
        if w3m < 14:
            paced(sum([w3(j) for j in range(w3m, 14)], []), opt.get('thin4', 60))
            a.L.append(fsload)
            a('s_waitcnt vmcnt(1)\ns_barrier\ns_waitcnt vmcnt(0)')
        lspin('s61', 'v32', w3m < 14)
        stream_emit(a, grp(L_S3, None, 40, 's[12:15]', '0', fl='sc1'), 0, 0)
        a('s_waitcnt vmcnt(0)')
        stamp(15)
    def rawg(cb=None): return grp(L_RAW + 16, [f's_add_u32 s31, s35, {WS_XNT}'], 14, 's[12:15]', 's31', True, cb, None, 'sc1')
    def lspin(soff, voff, first=False):
        lp = a.newlab('lsp'); lo = a.newlab('lspo')
        a(f's_mov_b32 s58, {SPIN}')
        if first: a(f's_branch {lp}c')
        a(f'{lp}:')
        a.L.append(f'buffer_load_dword v27, {voff}, s[12:15], {soff} offen sc1'); a.L.append('s_waitcnt vmcnt(0)')
        a(f'{lp}c:\nv_cmp_ne_u32 vcc, s24, v27\ns_cbranch_vccz {lo}\ns_sub_u32 s58, s58, 1\ns_cmp_lg_u32 s58, 0\ns_cbranch_scc1 {lp}\n{lo}:')
    def lflag(soff):
        a('s_mov_b32 exec_hi, 0'); a.L.append(f'buffer_store_dword v35, v44, s[12:15], {soff} offen sc1'); a('s_mov_b64 exec, -1')
    def paced(items, thin):
        for i in range(0, len(items), 4):
            stream_emit(a, items[i:i+4], 0, 0)
            if thin < 60: a(f's_waitcnt vmcnt({thin})')
    ft = opt.get('ft', ''); gs = opt.get('gs', 2); lg = gs.bit_length() - 1
    prog = opt.get('prog', 8)
    RG = 32 if prog else opt.get('rg', 1)
    def k0calc(r, with_c):
        if prog: a(f's_lshr_b32 s{r}, s26, 2\ns_lshl_b32 s{r}, s{r}, 3\ns_add_u32 s{r}, s{r}, {(32 - NR) % 32}')
        else: a(f's_mul_i32 s{r}, s25, {RG // 4 if RG >= 4 else 0}')
    def memidx(d, r, idx): return [f's_add_u32 s{d}, s{r}, {idx}', f's_and_b32 s{d}, s{d}, {RG-1}', f's_or_b32 s{d}, s{d}, {idx & ~(RG-1)}']
    def wtouch(groups, other, pace):
        for gi in groups:
            assert RG == 1 or (RG // 4) % gs == 0
            a(f's_xor_b32 s31, s30, {other}\ns_add_u32 s31, s31, {2*gi}\ns_lshl_b32 s31, s31, {lg}\ns_and_b32 s3, s31, {31 & ~(RG-1)}\ns_add_u32 s31, s31, s45\ns_and_b32 s31, s31, {RG-1}\ns_or_b32 s31, s31, s3\ns_lshl_b32 s31, s31, 7')
            for i in range(gs):
                a.L.append(f'buffer_load_dword v30, v29, s[20:23], s31 offen {ft}')
                if i + 1 < gs: a(f's_add_u32 s31, s31, {(64 // gs) * 4096}')
                if pace is not None: a(f's_waitcnt vmcnt({pace})')
    def count_bars(start): return sum(1 for x in a.L[start:] if x.strip() == 's_barrier')

    st0 = len(a.L)
    XO = [131072, 49152, 65536, 81920, 98304, 114688, 131072, 0]
    a('s_lshl_b32 s34, s25, 1\ns_add_u32 s34, s34, s27\ns_and_b32 s34, s34, 7\ns_lshl_b32 s33, s26, 7\ns_lshl_b32 s3, s18, 5\ns_add_u32 s33, s33, s3')
    rowoffs(a, 2, 's33', 10)
    a(f's_lshl_b32 s31, s28, 7\ns_mul_i32 s3, s18, {32*3584}\ns_add_u32 s31, s31, s3'); troffs(a, 6, 3584, 's31')
    def so(c): a(f's_add_u32 s31, s34, {c}\ns_and_b32 s31, s31, 7\ns_lshl_b32 s{40+c}, s31, 7\ns_mul_i32 s{48+c}, s31, {64*3584}')
    for c in range(4): so(c)
    a(f's_mov_b32 s10, {512*3584}\ns_mov_b32 s11, 0x20000')
    a('s_waitcnt lgkmcnt(0)')
    a(tagload)
    a('s_and_b32 s5, s5, 0xffff\ns_and_b32 s9, s9, 0xffff')
    f1 = opt.get('f1', '')
    def wg(p, cb=None): return grp(p*8192, [f's_add_u32 s31, s{48+p%8}, {1792 if p < 8 else 0}'], 6, 's[8:11]', 's31', cb=cb, fl=f1)
    def xg(c, need=None):
        return sum([grp(XO[c] + k*8192, [f's_add_u32 s31, s{40+c}, {k*65536}'], 2, 's[4:7]', 's31', cb=c+1, need=need if k == 0 else None, fl=f1) for k in range(2)], [])
    we = opt.get('we', 3)
    items = xg(0) + wg(0, 1) + wg(1, 2) + xg(1) + sum([wg(p, p+1) for p in range(2, we + 1)], [])
    for c in range(2, 8):
        items += xg(c, 1)
        if c > we: items += wg(c, c+1)
    ncs = opt.get('ncs', 4)
    for p in range(8, 8 + ncs): items += wg(p)
    early = opt.get('early', 2)
    def setup2():
        for c in range(4, 8): so(c)
        late_loader_setup()
        rowoffs(a, 10, 's33', 12)
        k0calc(57, True)
    if early >= 1: setup2()
    if early >= 2: a('@WARM@')
    def hook1(b, k):
        if b == 0 and k == -1:
            if early < 1: setup2()
            if early < 2: a('@WARM@')
            a(tagmake + '\nv_mov_b32 v35, s24')
        if k == 1 and b in (1, 8): stamp({1: 1, 8: 2}[b])
    stream_emit(a, items, 9, opt.get('d1', 16), hook1)
    a(f's_lshl_b32 s34, s28, 18\ns_lshl_b32 s31, s28, 13\ns_lshl_b32 s3, s18, 7\ns_add_u32 s44, s31, s3\ns_add_u32 s44, s44, {FZ}\nv_lshlrev_b32 v28, 1, v32')
    a('s_barrier')
    stream_emit(a, sum([wg(p) for p in range(8 + ncs, 16)], []), 0, 0)
    fw = opt.get('fw', '')
    wcnt = [0]
    def wst(slot, half, cb=None, need=None):
        if half == 0:
            su = memidx(42, 57, wcnt[0] % opt.get('wfix', 32)) + ['s_lshl_b32 s42, s42, 7']; wcnt[0] += 1
        else: su = ['s_add_u32 s42, s42, 0x40000']
        return grp(slot * 16384 + half*8192, su, 10, 's[20:23]', 's42', cb=cb, need=need, fl=fw)
    def wfull(slot): return wst(slot, 0) + wst(slot, 1)
    def zst(k, cb=None, need=None):
        return grp(L_Z + (k % 4) * 8192, memidx(43, 57, MEM[k] % opt.get('zfix', 32)) + ['s_lshl_b32 s43, s43, 13', 's_add_u32 s43, s43, s34'], 14, 's[12:15]', 's43', True, cb, need, 'sc1')
    pre1 = opt.get('pre1', 2); thin = opt.get('thin', 12)
    for k in range(pre1): paced(wfull(k), thin)
    a(f's_waitcnt vmcnt({8*pre1})\ns_barrier')
    pre2 = opt.get('pre2', 4)
    for k in range(pre1, pre2): paced(wfull(k), thin)
    a('@WARM@')
    if pre2 < 4:
        a('s_barrier')
        for k in range(pre2, 4): paced(wfull(k), 60)
    stamp(3)
    spre = 4 if NR == 0 else opt.get('spre', 4)
    sp1 = min(spre, opt.get('sp1', 2))
    lspin('s59', 'v32')
    gt = opt.get('gt', 1)
    def gtouch():
        assert gs == 2 and RG == 32
        a('s_and_b32 s3, s27, 1\ns_lshl_b32 s3, s3, 6\ns_add_u32 s3, s3, s33\nv_lshrrev_b32 v29, 1, v0\nv_add_u32 v29, s3, v29\nv_lshlrev_b32 v29, 5, v29\nv_and_b32 v1, 1, v0\nv_add_lshl_u32 v29, v29, v1, 7')
        for i in range(gt):
            a(f's_lshr_b32 s31, s27, 1\ns_min_u32 s31, s31, 2\ns_add_u32 s31, s31, {8 - 3*gt + 3*i}\ns_lshl_b32 s31, s31, 1\ns_add_u32 s31, s31, s30\ns_lshl_b32 s31, s31, 1\ns_add_u32 s31, s31, s57\ns_and_b32 s31, s31, 31\ns_lshl_b32 s31, s31, 7')
            a.L.append('buffer_load_dword v30, v29, s[20:23], s31 offen')
    if NR >= 4: a('s_barrier')
    if gt: gtouch()
    a('s_barrier')
    stream_emit(a, rawg(0) + (sum([wfull(k) for k in range(sp1)], []) if NR >= 4 else []), 1, 64)
    if NR >= 4:
        for k in range(sp1, spre): paced(wfull(k), 60)
    npre = opt.get('npre', 0)
    if npre: a('s_barrier')
    stamp(4)
    if prog:
        assert all(pat[k] == 'S' for k in range(min(prog, 6)))
        pn = min(prog, pat.index('R') if 'R' in pat else 32)
        a(f's_lshr_b32 s31, s26, 2\ns_lshl_b32 s31, s31, 11\nv_min_u32 v45, {(pn-1)*256}, v28\nv_add_u32 v45, s31, v45')
        lspin('s44', 'v45')
    else: lspin('s44', 'v28')
    stamp(5)
    tiles = [(k, 0, lambda k=k: zst(k, k, k - 3 if k >= 4 else None)) for k in range(32)]
    last = -1
    for s in range(spre, len(SPOS)):
        need = SPOS[s-4] + 1 if s >= 4 else None
        for h in range(2):
            key = min(SPOS[s] - 0.5, max((need + 3 if need is not None else 0) - 0.5, last + opt.get('wgap', 10) / 10))
            last = key
            tiles.append((key, s*2 + h + 1, lambda s=s, h=h, need=need: wst(s % 4, h, SPOS[s], need)))
    hc = opt.get('hc', 28)
    if hcl != 'g': tiles.append((hc - 0.9, 0, lambda: [([], 'buffer_load_dword v27, v33, s[12:15], 0 offen sc1', hc, None)]))
    if prog:
        pb = pn - 3
        tiles.append((pb + 0.1, 0, lambda: [([], 'buffer_load_dword v27, v28, s[12:15], s44 offen sc1', pb, None)]))
    tiles.sort(key=lambda x: (x[0], x[1]))
    items = sum([t[2]() for t in tiles], [])
    w3e = opt.get('w3e', 6)
    for j in range(w3e): items += w3(j, W3[j][1])
    hk = {(0,1): 6, (4,1): 7, (8,1): 8, (16,1): 9, (24,1): 10, (31,1): 11, (16,0): 16, (24,0): 17, (32,1): 12}
    hintb = opt.get('hintb', 32)
    def hook2(b, k):
        if (b, k) in hk: stamp(hk[(b, k)])
        if prog and (b, k) == (pb, 1): lspin('s44', 'v28', True)
        if (b, k) == (hc, 1) and hcl != 'g': lspin('0', 'v33', True)
        if (b, k) == (hintb, 1):
            sk = a.newlab('nohint')
            a(f's_or_b32 s3, s27, s18\ns_cmp_lg_u32 s3, 0\ns_cbranch_scc1 {sk}\ns_lshl_b32 s3, s32, 7\ns_add_u32 s3, s3, {FT}')
            lflag('s3')
            a(f'{sk}:')
    stream_emit(a, items, 33, lambda b: opt.get('d2', 20) if b < 30 else opt.get('d2e', 12), hook2)
    hb = opt.get('hb', 7)
    if hb:
        paced(x3() + sum([w3(j) for j in range(w3e, hb)], []), 60)
        hook2(32.5, 1)
        a('s_barrier')
        paced(sum([w3(j) for j in range(max(hb, w3e), w3m)], []), 60)
    else: paced(x3() + sum([w3(j) for j in range(w3e, w3m)], []), 60)
    stamp(14)
    hook2(33, 1)
    a('s_waitcnt vmcnt(0)')
    hook2(34, 1)
    a('s_barrier')
    stamp(13)
    s3tail()
    nb['gl'] = count_bars(st0)
    g.prof_store()
    a('s_endpgm')

    a(f'{lab("thelp")}:')
    st0 = len(a.L)
    a('v_mov_b32 v36, -1\nv_mov_b32 v37, -1\nv_mov_b32 v38, -1\nv_mov_b32 v39, -1\nv_lshlrev_b32 v14, 4, v0')
    a(f's_lshl_b32 s31, s26, 1\ns_add_u32 s31, s31, s30\ns_lshl_b32 s31, s31, 1\ns_add_u32 s31, s31, s18\ns_lshl_b32 s31, s31, 13\ns_add_u32 s31, s31, {WS_STATS}')
    a('s_waitcnt lgkmcnt(0)')
    a(tagload)
    a('s_and_b32 s5, s5, 0xffff\ns_and_b32 s13, s13, 0xffff')
    for q in range(4): a.L.append(f'buffer_store_dwordx4 v[36:39], v14, s[12:15], s31 offen offset:{1024*q} sc1')
    late_loader_setup()
    if opt.get('tlbs'): a(f's_load_dwordx2 s[40:41], s[0:1], {KA["out"]}\ns_load_dwordx2 s[42:43], s[0:1], {KA["bsp"]}')
    k0calc(45, False)
    a(f's_lshl_b32 s31, s26, 7\ns_lshl_b32 s3, s18, 6\ns_add_u32 s31, s31, s3\nv_lshrrev_b32 v29, {lg}, v0\nv_add_u32 v29, s31, v29\nv_lshlrev_b32 v29, 5, v29\nv_and_b32 v1, {gs-1}, v0\nv_add_lshl_u32 v29, v29, v1, 7')
    ng = 16 // gs; tp_ = opt.get('tpace', 2); te = opt.get('te', 4) // gs
    a(tagmake + '\nv_mov_b32 v35, s24')
    if opt.get('tlbs'):
        st = opt['tlbs'] << 10
        a('s_lshl_b32 s31, s26, 19\ns_load_dword s46, s[20:21], s31')
        for o in range(0, 12 << 20, st): a(f's_mov_b32 s31, {o}\ns_load_dword s46, s[12:13], s31')
        a('s_load_dword s46, s[42:43], 0\ns_load_dword s46, s[36:37], 0\ns_load_dword s46, s[40:41], 0')
    a('s_waitcnt vmcnt(0)')
    stamp(1)
    a('s_barrier')
    te = opt.get('te', 0) // gs
    wtouch(range(te), 0, None)
    a('s_barrier')
    tm = opt.get('tm', 2) // gs; tn = opt.get('tn', 8) // gs
    wtouch(range(te, max(te, tm)), 0, None); tm = max(te, tm)
    a('s_barrier')
    wtouch(range(tm, min(tn, ng - 3*gt)), 0, None)
    a('s_barrier')
    a('s_barrier')
    lspin('s59', 'v32')
    stream_emit(a, rawg(0), 1, 0)
    stamp(5)
    wtouch(range(tn, ng - 3*gt), 0, None)
    a('s_barrier')
    stamp(2)
    if hcl == 't':
        cl_ = a.newlab('hclr')
        a(f's_lshl_b32 s41, s32, 1\ns_add_u32 s41, s41, s18\ns_mul_i32 s31, s41, 57344\ns_sub_u32 s31, s31, s19\ns_add_u32 s31, s31, {WS_HF}\ns_mov_b32 s3, 14\n{cl_}:')
        for q in range(4): a.L.append(f'buffer_store_dwordx4 v[36:39], v14, s[12:15], s31 offen offset:{1024*q} sc1')
        a(f's_add_u32 s31, s31, 4096\ns_sub_u32 s3, s3, 1\ns_cmp_lg_u32 s3, 0\ns_cbranch_scc1 {cl_}')
        a(f's_waitcnt vmcnt(0)\ns_lshl_b32 s31, s41, 7\ns_add_u32 s31, s31, {FH}')
        lflag('s31')
    stamp(3)
    a('s_barrier')
    wtouch(range(opt.get('tskip', 16) // gs, ng), 1, tp_)
    nwo = opt.get('nwo', 14)
    a(f's_lshl_b32 s41, s25, 1\ns_add_u32 s41, s41, s18\ns_mul_i32 s41, s41, {14*8192}\ns_and_b32 s40, s2, 7\ns_mul_i32 s40, s40, 7\ns_lshr_b32 s40, s40, 2')
    for i in range(nwo):
        a('s_lshl_b32 s31, s40, 13\ns_add_u32 s31, s31, s41')
        a.L.append('buffer_load_dword v30, v15, s[36:39], s31 offen')
        a('\n'.join(adv(40)))
    paced(x3() + sum([w3(j) for j in range(w3m)], []), 60)
    stamp(6)
    if hcl != 't': lspin('0', 'v33')
    stamp(12)
    a(f's_lshl_b32 s3, s32, 7\ns_add_u32 s3, s3, {FT}')
    lspin('s3', 'v34')
    a('s_barrier\ns_barrier')
    stamp(13)
    s3tail()
    nb['tl'] = count_bars(st0)
    g.prof_store()
    a('s_endpgm')

    a('.p2align 12')
    a(f'{lab("comp")}:')
    g.comp = True
    a.vm = ['prm'] * 6 + (['hcl'] * 4 if hcl == 'g' else []); a.lg = []
    def cprologue():
        a(srdc)
        a('s_mov_b32 s33, 0xffff0000\ns_mov_b32 s34, 0x3f803f80\ns_mov_b32 s22, 0x200000\ns_mov_b32 s23, 0x20000')
        a('s_and_b32 s5, s5, 0xffff\ns_and_b32 s13, s13, 0xffff\ns_and_b32 s21, s21, 0xffff')
        a('v_lshlrev_b32 v7, 4, v0\nv_lshlrev_b32 v6, 2, v0')
    cprologue()
    a(f's_lshl_b32 s35, s26, 2\ns_add_u32 s35, s35, s29\ns_lshl_b32 s31, s35, 13\ns_add_u32 s37, s31, {WS_STATS}\ns_add_u32 s60, s37, 4096\ns_lshl_b32 s3, s28, 8\ns_add_u32 s38, s37, s3')
    a.emit(ssm.kaddr())
    X = 128; A2 = 64; A1 = 96; WF = 32
    XR = A1; ST = A1 + 4; T = A1 + 8; SD = A1 + 16; CC = A1 + 18; NM = A1 + 20; FL = A1 + 22
    WR = 8; SEL = 16; CS = 24; NEG = 28
    a('s_lshl_b32 s32, s29, 12\ns_add_u32 s32, s32, 131072')
    a.emit(rowread_list(1, 2, 's32') + trread_list(3, 2))
    for i in range(4):
        a(f's_add_u32 s31, s29, {i}\ns_and_b32 s31, s31, 3\ns_lshl_b32 s3, s31, 5\nv_xor_b32 v{XR+i}, s3, v1\ns_lshl_b32 s3, s31, 11\nv_add_u32 v{WR+2*i}, s3, v3\nv_xor_b32 v{WR+1+2*i}, 64, v{WR+2*i}')
    a(f'''v_bfe_u32 v1, v0, 4, 1
v_lshlrev_b32 v1, 2, v1
v_and_b32 v2, 15, v0
v_cmp_eq_u32 vcc, v1, v2
v_mov_b32 v3, s34
v_add_u32 v1, 8, v1
v_cndmask_b32 v{SEL}, 0, v3, vcc
v_cmp_eq_u32 vcc, v1, v2
s_lshl_b32 s31, s29, 2
s_add_u32 s31, s31, {L_CS}
v_cndmask_b32 v{SEL+4}, 0, v3, vcc
v_add_u32 v1, s31, v7
v_and_b32 v2, 511, v7
v_add_u32 v2, {L_CS}, v2''')
    for i in range(1, 4): a(f'v_mov_b32 v{SEL+i}, v{SEL}\nv_mov_b32 v{SEL+4+i}, v{SEL+4}')
    a(f's_lshl_b32 s31, s35, 12\ns_lshl_b32 s3, s28, 8')
    a(f's_lshl_b32 s52, s28, 18\ns_add_u32 s52, s52, s31')
    a(f's_lshl_b32 s31, s35, 2\ns_add_u32 s53, s31, s3\ns_lshl_b32 s53, s53, 5\ns_add_u32 s53, s53, {FZ}')
    a(tagmake); a.lg = []
    a(f'{lab("kgen")}:')
    emit_plain(a, ssm.kgen())
    stamp(1)
    a(f's_cmp_eq_u32 s27, 7\ns_cbranch_scc1 {lab("tcomp2")}')
    lg_split = list(a.lg)
    st0 = len(a.L)
    def xreads(c, base, off): return [(f'ds_read_b128 {vr(X+16*c+4*i,4)}, v{base+i} offset:{off}', f'xr{c}') for i in range(4)]
    XB = [131072, 49152, 49152, 49152, 49152, 114688, 114688, 0]
    def gx(c):
        L = []
        if c and XB[c] != XB[c-1]: L += [f'v_add_u32 v{XR+i}, {hex((XB[c] - XB[c-1]) & 0xffffffff)}, v{XR+i}' for i in range(4)]
        return L, xreads(c, XR, XO[c] - XB[c])
    def dots(c, S):
        for i in range(16):
            r = X + 16*c + i
            a(f'v_dot2c_f32_bf16 v{S + 2*(i&1)}, s34, v{r}\nv_dot2c_f32_bf16 v{S + 1 + 2*(i&1)}, v{r}, v{r}')
    def redux(S): return [f'v_add_f32 v{S}, v{S}, v{S+2}', f'v_add_f32 v{S+1}, v{S+1}, v{S+3}', f'v_mov_b32 v{S+2}, v{S}', f'v_mov_b32 v{S+3}, v{S+1}',
             f'v_permlane32_swap_b32 v{S}, v{S+2}', f'v_permlane32_swap_b32 v{S+1}, v{S+3}', f'v_add_f32 v{S}, v{S}, v{S+2}', f'v_add_f32 v{S+1}, v{S+1}, v{S+3}']
    def wreads(t):
        n, i = divmod(t, 4)
        L = []
        for fb in range(2):
            d = WF + 8*i + 4*fb
            L.append((f'ds_read_b64_tr_b16 {vr(d,2)}, v{WR+2*i+fb} offset:{(n%8)*8192}', f'wr{t}'))
            L.append((f'ds_read_b64_tr_b16 {vr(d+2,2)}, v{WR+2*i+fb} offset:{(n%8)*8192+512}', f'wr{t}'))
        return L
    def mfmas(t):
        n, i = divmod(t, 4); acc = A2 if n < 8 else A1; f = t % 32
        L = []
        for fb in range(2):
            c = '0' if f == 0 else vr(acc+16*fb, 16)
            L.append(f'v_mfma_f32_32x32x16_bf16 {vr(acc+16*fb,16)}, {vr(WF+8*i+4*fb,4)}, {vr(X+4*f,4)}, {c}')
        if i == 0:
            cs = [f'v_mfma_f32_16x16x32_bf16 {vr(CS,4)}, {vr(SEL+4*fb,4)}, {vr(WF+4*fb,4)}, {"0" if (f == 0 and fb == 0) else vr(CS,4)}' for fb in range(2)]
            L = ['\n'.join(cs + L[:1]), L[1]]
        return L
    def cs_write(part, T):
        return [f'v_cvt_pk_bf16_f32 v{T}, v{CS}, v{CS}', f'v_lshlrev_b32 v{T}, 16, v{T}', f'v_sub_f32 v{T}, v{CS}, v{T}', f'v_cvt_pk_bf16_f32 v{T}, v{CS}, v{T}',
                (f'ds_write_b32 v1, v{T} offset:{part*1024}', 'csw')]
    def cs_read(part, T):
        return [lambda: a.waitall(vm=False), 's_barrier'] + [(f'ds_read_b128 {vr(T+4*fb,4)}, v2 offset:{part*1024 + 512*fb}', 'csr') for fb in range(2)]
    def cs_apply(acc, T):
        return [lambda: a.waitlg('csr')] + [f'v_mfma_f32_32x32x16_bf16 {vr(acc+16*fb,16)}, {vr(T+4*fb,4)}, {vr(NEG,4)}, {vr(acc+16*fb,16)}' for fb in range(2)]
    def gconst(cc, r): return [f'v_mul_f32 v{cc+1}, {fbits(C0)}, v{r}', f'v_mul_f32 v{cc}, v{r}, v{r}', f'v_mul_f32 v{cc}, v{cc}, v{cc+1}', f'v_mul_f32 v{cc}, {fbits(0.044715)}, v{cc}']
    def halves(S, Q): return [f'v_permlane32_swap_b32 v{S}, v{Q}', f'v_add_f32 v{S}, v{S}, v{Q}', f'v_mov_b32 v{S+1}, v{S}', f'v_permlane32_swap_b32 v{S}, v{S+1}']
    fin1 = halves(ST, ST+2) + ln_list(ST, ST+1, 512, ST+2, NM, 4, SD) + [
        'v_cmp_gt_u32 vcc, 32, v0', f'v_lshrrev_b32 v{NEG}, 16, v{NM}', f'v_or_b32 v{NEG}, v{NEG}, v{NM}', f'v_cndmask_b32 v{NEG}, 0, v{NEG}, vcc'] + \
        [f'v_mov_b32 v{NEG+i}, v{NEG}' for i in range(1, 4)] + gconst(CC, 4)
    sload = f'buffer_load_dwordx4 {vr(ST,4)}, v7, s[12:15], s60 offen offset:3072 sc1'
    a.waitall(vm=False)
    a('s_barrier'); a.emit(gx(0)[1] + wreads(0) + wreads(1) + wreads(2))
    ts = opt.get('ts', 17); tk = opt.get('tk', 29)
    for c in range(8):
        fi = opt.get('fine') == 'p1' and c in (3, 4)
        if fi: stamp(3 + 6*(c-3), True)
        if c < 7:
            pre, xr = gx(c+1)
            last = [] if c == 0 else [xlast]
            fills = {0: last + wreads(4*c+3) + pre + ['s_barrier'], 1: xr[:1] + wreads(4*c+4), 2: xr[1:2] + wreads(4*c+5), 3: xr[2:3] + wreads(4*c+6)}
            xlast = xr[3]
        else:
            fills = {0: [xlast] + wreads(4*c+3), 1: cs_write(0, T), 2: [], 3: cs_read(0, T)}
            n = 32 - tk
            for j in range(n): fills[tk - 28 + j] += fin1[j*len(fin1)//n:(j+1)*len(fin1)//n]
        for i in range(4):
            t = 4*c + i
            if opt.get('fine') == 'p1e' and t >= 19 and t != 22: stamp(3 + t - 19 - (t > 22), True)
            if t == ts: a(sload, 'st1')
            if t == tk:
                a.waitvm('st1'); g.spin([sload], [ST+1, ST+3], FL)
            if opt.get('fine') == 'p1e' and t == tk: stamp(15, True)
            a.waitlg(f'wr{t}')
            a.emit(merge(mfmas(t), fills[i]))
            if fi: stamp(5 + i + 6*(c-3), True)
    stamp(2)
    a.emit(cs_apply(A2, T))
    for i in range(8): a(f'v_add_u32 v{WR+i}, 65536, v{WR+i}')
    a(f'v_and_b32 v{FL}, 15, v0\nv_lshrrev_b32 v{FL+1}, 4, v0\nv_lshlrev_b32 v{FL}, 4, v{FL}\nv_lshl_add_u32 v{FL}, v{FL+1}, 2, v{FL}')
    a.emit(gelu_pk(A2, 32, CC, SD, T))
    AH = 3
    rd = sum([wreads(t) for t in range(32, 32 + AH)], [])
    st = []
    for i in range(16):
        p = A2 + 2*i
        if i == 0: st.append(f'v_pk_mul_f32 {vr(ST+2,2)}, {vr(p,2)}, {vr(p,2)}')
        else: st += [f'v_pk_add_f32 {vr(ST,2)}, {vr(p-2,2) if i == 1 else vr(ST,2)}, {vr(p,2)}', f'v_pk_fma_f32 {vr(ST+2,2)}, {vr(p,2)}, {vr(p,2)}, {vr(ST+2,2)}']
    st += [f'v_add_f32 v{ST}, v{ST}, v{ST+1}', f'v_add_f32 v{ST+2}, v{ST+2}, v{ST+3}']
    a.emit(st)
    a(f'v_permlane32_swap_b32 v{ST}, v{ST+2}')
    a(f'v_add_f32 v3, v{ST}, v{ST+2}\nv_min_u32 v3, 0xfffffffe, v3')
    a.waitall(lg=False)
    a(f'buffer_store_dword v3, v{FL}, s[12:15], s38 offen sc1', 'pub')
    stamp(3)
    a('s_barrier')
    a.emit(rd)
    TA = X; P = X + 8; T2 = A2 + 16; U = X + 16; Q = X + 6; RA = A2 + 24
    pl = [f'buffer_load_dwordx4 {vr(P+4*j,4)}, v{7 if j < 3 else TA+7}, s[12:15], s37 offen offset:{1024*j} sc1' for j in range(4)]
    taddr = f"""v_and_b32 v{TA+6}, 7, v0
v_lshrrev_b32 v{TA+7}, 5, v0
v_xor_b32 v{TA+6}, v{TA+6}, v{TA+7}
v_lshlrev_b32 v{TA+6}, 4, v{TA+6}
v_and_b32 v{TA}, 31, v0
v_lshl_add_u32 v{TA}, v{TA}, 7, v{TA+6}
v_add_u32 v{TA}, s32, v{TA}
v_xor_b32 v{TA+1}, 32, v{TA}
v_xor_b32 v{TA+2}, 64, v{TA}
v_xor_b32 v{TA+3}, 96, v{TA}
v_bfe_u32 v{TA+6}, v0, 2, 2
v_lshl_add_u32 v{TA+7}, v{TA+7}, 3, v{TA+6}
v_lshlrev_b32 v{TA+6}, 4, v{TA+6}
v_and_b32 v{TA+4}, 56, v{WR}
v_xor_b32 v{TA+4}, v{TA+4}, v{TA+6}
v_lshl_add_u32 v{TA+4}, v{TA+7}, 7, v{TA+4}
v_add_u32 v{TA+4}, s32, v{TA+4}
v_xor_b32 v{TA+5}, 64, v{TA+4}
v_lshlrev_b32 v{TA+7}, 25, v0
v_and_b32 v{TA+7}, 0x40000000, v{TA+7}
v_add_u32 v{TA+7}, v{TA+7}, v7""".split('\n')
    fin2 = [f'v_pk_add_f32 {vr(P+j,2)}, {vr(P+j,2)}, {vr(P+j+8,2)}' for j in range(0, 8, 2)] + [f'v_pk_add_f32 {vr(P+j,2)}, {vr(P+j,2)}, {vr(P+j+4,2)}' for j in range(0, 4, 2)] + \
           [f'v_permlane16_swap_b32 v{P}, v{P+1}', f'v_permlane16_swap_b32 v{P+2}, v{P+3}', f'v_add_f32 v{P}, v{P}, v{P+1}', f'v_add_f32 v{P+2}, v{P+2}, v{P+3}']
    fin2 += halves(P, P+2) + ln_list(P, P+1, 896, P+2, P+5, P+4) + [f'v_mul_f32 v{P+5}, v{P+5}, v{P+4}']
    for q in range(4):
        for i in range(4): fin2.append(f'v_pk_fma_f32 {vr(A2+8*q+2*i,2)}, {vr(A2+8*q+2*i,2)}, {vr(P+4,2)}, {vr(P+4,2)} op_sel:[0,0,1] op_sel_hi:[1,0,1]')
        for i in range(4): fin2.append(f'v_cvt_pk_bf16_f32 v{U+4*q+i}, v{A2+8*q+2*i}, v{A2+8*q+2*i+1}')
        fin2.append((f'ds_write_b128 v{TA+q}, {vr(U+4*q,4)}', 'tw'))
    for q in range(4):
        ks2, fb = divmod(q, 2)
        fin2.append((f'ds_read_b64_tr_b16 {vr(A2+4*q,2)}, v{TA+4+fb} offset:{ks2*2048}', f'tr{q}'))
        fin2.append((f'ds_read_b64_tr_b16 {vr(A2+2+4*q,2)}, v{TA+5-fb} offset:{ks2*2048 + 512}', f'tr{q}'))
    fin4 = []
    for q in range(4): fin4 += [lambda q=q: a.waitlg(f'tr{q}'), (f'buffer_store_dwordx4 {vr(A2+4*q,4)}, v7, s[12:15], s52 offen offset:{1024*q} sc1', 'z2st')]
    tp = opt.get('tp', 38); tc = opt.get('tc', 45)
    assert tp >= 37 and tc >= 41
    fills = {t: [] for t in range(32, 70)}
    fills[34] += taddr[:7]; fills[35] += taddr[7:14]; fills[36] += taddr[14:]
    fills[33] += ['s_lshl_b32 s31, s35, 5', 'v_and_b32 v3, 31, v0', 'v_add_lshl_u32 v3, v3, s31, 1', ('global_load_ushort v3, v3, s[18:19]', 'bsp')]
    for j in range(4): fills[tp + j//2].append((pl[j], 'pl'))
    if pre2 < 4: fills[tp + 1].append('s_barrier')
    def waddr(d): return ['s_lshl_b32 s31, s29, 12'] + rowread_list(d, d+1, 's31') + [f'v_xor_b32 v{d+i}, {32*i}, v{d}' for i in range(1, 4)]
    def rreads(r, base): return [(f'ds_read_b128 {vr(X+16*r+4*ks,4)}, v{base+ks} offset:{(r%4)*16384}', f'res{r}') for ks in range(4)]
    t0 = tc + 1
    if hcl == 'z':
        fills[tc] += [f'v_mov_b32 v{T2+4+i}, -1' for i in range(4)] + [(f'buffer_store_dwordx4 {vr(T2+4,4)}, v7, s[12:15], s54 offen offset:{1024*q} sc1', 'hcl') for q in range(4)]
    if NR >= 4:
        fills[t0] += waddr(RA) + ['s_barrier']
        rr = sum([rreads(r, RA) for r in range(4)], [])
        rper = opt.get('rper', 3)
        for j in range(16):
            t = max(t0 + 1 + j // rper, 33 + j)
            fills[t].append(rr[j])
    fills[max(56, t0 + 3 + 15 // opt.get('rper', 3))] += [lambda: a.waitlg('res3'), 's_barrier']
    fills[61] = fills[61] + cs_write(1, T2)
    tf = opt.get('tf', 53)
    flagz = g.setflag('s53', T2+1) + [lambda: stamp(7)]
    fills[tf] += flagz
    fp = lambda i: stamp(i, True) if opt.get('fine') == 'p3' else None
    for t in range(32, 64):
        if t in (32, tp, tp + 4, tc): fp({32: 3, tp: 4, tp + 4: 5, tc: 6}[t])
        if t in (tc + 1, tc + 2, tc + 6, tc + 10, tf, tf + 1): fp({tc + 1: 10, tc + 2: 11, tc + 6: 12, tc + 10: 13, tf: 14, tf + 1: 15}[t])
        if t == tc:
            a.waitvm('pl'); fp(7)
            g.spin(pl, range(P, P+16), Q, True); stamp(4); fp(8)
            a.emit(fin2); fp(9)
        a.waitlg(f'wr{t}')
        rd = wreads(t + AH) if t + AH < 64 else []
        if t == tc:
            m = mfmas(t); a.emit(m + fin4 + rd + fills[t]); stamp(5)
        else: a.emit(merge(mfmas(t), rd + fills[t]))
    a.emit(fills[64])
    stamp(6)
    ub = ssm.ubuild()
    ib = ub.index(BAR)
    a.emit(cs_read(1, T2))
    gw = opt.get('gw', 1)
    if gw: a('v_rcp_f32 v24, v4')
    a.emit(waddr(8) + (gconst(26, 4) if gw else []))
    a.emit(cs_apply(A1, T2))
    a.emit(ub[:ib] + ub[ib+1:ib+4])
    Z1 = 112
    if gw: a.emit(gelu_pk(A1, 32, 26, 24, 16))
    else:
        for i in range(16): a(f'v_pk_mul_f32 {vr(A1+2*i,2)}, {vr(A1+2*i,2)}, v[4:5] op_sel_hi:[1,0]')
    for i in range(15, -1, -1): a(f'v_cvt_pk_bf16_f32 v{Z1+i}, v{A1+2*i}, v{A1+2*i+1}')
    a(f'v_add_u32 v12, {L_Z}, v7\nv_lshlrev_b32 v4, 16, v3\nv_mov_b32 v14, {fbits(C1)}')
    a.emit(ub[ib+4:-1])
    cpre, cg = ssm.conv()
    if npre:
        emit_plain(a, [BAR] + cpre + sum(cg[:10*npre], [])); cg = cg[10*npre:]; cpre = []
    stamp(8)
    assert NR <= 4
    ACC = 32; F = [64, 88]
    def rd2(k, half):
        L = []
        for j in range(2):
            ks = 2*half + j
            if k in SIDX: L.append((f'ds_read_b128 {vr(F[half]+12*j,4)}, v{8+ks} offset:{(SIDX[k]%4)*16384}', f'g{k}_{ks}'))
            for fb in range(2): L.append((f'ds_read_b128 {vr(F[half]+12*j+4+4*fb,4)}, v12 offset:{(k%4)*8192+ks*2048+fb*1024}', f'g{k}_{ks}'))
        return L
    def mm2(k, half):
        L = []
        for j in range(2):
            wreg = F[half]+12*j if k in SIDX else X + 16*MEM[k] + 4*(2*half+j)
            for fb in range(2):
                c = '0' if (k == 0 and half == 0 and j == 0) else vr(ACC+16*fb, 16)
                L.append((f'g{k}_{2*half+j}', f'v_mfma_f32_32x32x16_bf16 {vr(ACC+16*fb,16)}, {vr(F[half]+12*j+4+4*fb,4)}, {vr(wreg,4)}, {c}'))
        return L
    kf = 0
    c0, c1 = opt.get('c0', 2), opt.get('c1', 26)
    plan = {}
    def spread(groups, slots, wts):
        cum = 0; tot = sum(int(wts[s[2]]) for s in slots); done = 0
        for s in slots:
            cum += int(wts[s[2]]); n = cum * len(groups) // tot
            plan.setdefault(s, []).extend(groups[done:n]); done = n
    allslots = [(k, ph, i) for k in range(32) for ph in range(2) for i in range(4) if (k, ph) != (0, 0)]
    if cg and not opt.get('noconv'): spread(cg, [s for s in allslots if c0 <= s[0] <= c1], opt.get('cw', '0013'))
    if cpre: spread([[x] for x in cpre], [s for s in allslots if (kf, 1) <= s[:2] and s[0] < c0], '1113')
    if not gw: spread([[x] for x in gelu_packed(Z1, 16, 128, 14)], [s for s in allslots if opt.get('g0', 8) <= s[0] < opt.get('ge', 30)], '2223')
    fin, fflag = ssm.finish()
    sst = [x for x in fin if isinstance(x, tuple) and x[1] == 'sst']
    spread([[x] for x in fin if x not in sst], [s for s in allslots if c1 + 1 <= s[0] <= c1 + 2], '2223')
    plan.setdefault((opt.get('sk', c1 + 2), 1, 3), []).append(sst)
    assert c1 + 2 <= 30
    for k in range(33):
        if k in (0, 31): a.waitall(vm=False)
        else: a.waitlg(f'g{k-1}_3')
        a('s_barrier')
        if k == 0: stamp(9)
        if str(opt.get('fine')).startswith('g2'):
            k0 = int(opt['fine'][2:])
            if k0 <= k < k0 + 13: stamp(3 + k - k0, True)
        for ph in range(2):
            m = (mm2(k-1, 1) if k > 0 else []) if ph == 0 else (mm2(k, 0) if k < 32 else [])
            r = rd2(k, ph) if k < 32 else []
            if not m:
                a.emit(r); continue
            for i, (tg, ins) in enumerate(m):
                a.waitlg(tg)
                a(ins)
                a.emit(r[2*i:2*i+2])
                for x in plan.get((k, ph, i), []): a.emit(x)
                if k == 31:
                    for j in range(2):
                        z = 8*ph + 2*i + j
                        a(f'v_lshlrev_b32 v{128+2*z}, 16, v{Z1+z}\nv_and_b32 v{129+2*z}, s33, v{Z1+z}')
    stamp(10)
    a.emit(fflag[:2])
    for q in range(4):
        for i in range(4):
            p = ACC + 8*q + 2*i
            a(f'v_pk_add_f32 {vr(p,2)}, {vr(p,2)}, v[4:5] op_sel_hi:[1,0]')
        for i in range(4):
            p = ACC + 8*q + 2*i
            a(f'v_pk_mul_f32 {vr(p,2)}, {vr(p,2)}, {vr(128+8*q+2*i,2)}')
        for i in range(4): a(f'v_cvt_pk_bf16_f32 v{F[0]+4*q+i}, v{ACC+8*q+2*i}, v{ACC+8*q+2*i+1}')
        a(f'buffer_store_dwordx4 {vr(F[0]+4*q,4)}, v7, s[12:15], s54 offen offset:{1024*q} sc1', 'hst')
    a.emit(fflag[2:])
    if hb: a('s_barrier')
    stamp(11)
    nb['gc'] = count_bars(st0) + 2 + (w3m < 14)

    a(f'{lab("g3comp")}:')
    HB = 16; ACC = 160; WB = [224, 240]; SR = 192; SF = 200; XR = 216; XF = 136; T = 152
    a('s_and_b32 s36, s29, 1\ns_lshr_b32 s37, s29, 1\ns_lshl_b32 s32, s26, 1\ns_add_u32 s32, s32, s30')
    a.emit(trread_list(1, 2))
    a(f'''s_lshl_b32 s55, s37, 6
s_lshl_b32 s31, s37, 12
v_xor_b32 v1, s55, v1
v_add_u32 v1, s31, v1
v_xor_b32 v2, 64, v1
v_add_u32 v3, {L_Z}, v1
v_add_u32 v4, {L_Z}, v2
s_lshl_b32 s3, s36, 12
s_add_u32 s3, s3, {L_X3}''')
    a.emit(rowread_list(9, 10, 's3'))
    a(f'''v_xor_b32 v9, s55, v9
v_xor_b32 v10, 32, v9
v_lshrrev_b32 v11, 2, v0
v_and_b32 v12, 3, v0
v_lshlrev_b32 v13, 4, v12
v_lshl_add_u32 v15, v11, 10, v13
v_bfe_u32 v13, v0, 3, 3
v_xor_b32 v12, v12, v13
v_lshlrev_b32 v12, 4, v12
v_xor_b32 v12, s55, v12
v_lshl_add_u32 v12, v11, 7, v12
v_add_u32 v14, s3, v12
v_lshrrev_b32 v11, 5, v0
v_bfe_u32 v13, v0, 2, 2
v_lshl_add_u32 v11, v11, 3, v13
v_lshlrev_b32 v11, 7, v11
v_bfe_u32 v13, v0, 3, 1
v_xor_b32 v13, s36, v13
v_lshl_add_u32 v11, v13, 6, v11
v_bfe_u32 v13, v0, 4, 1
v_lshl_add_u32 v11, v13, 5, v11
v_and_b32 v13, 3, v0
v_lshl_add_u32 v11, v13, 3, v11
s_add_u32 s31, s31, {L_S3}
v_add_u32 v11, s31, v11
s_lshl_b32 s3, s32, 1
s_add_u32 s3, s3, s36
s_lshl_b32 s61, s3, 15
s_mul_i32 s38, s3, 57344
s_lshl_b32 s3, s27, 7
s_add_u32 s61, s61, s3
s_add_u32 s61, s61, s55
s_lshl_b32 s3, s37, 11
s_add_u32 s38, s38, s3
s_add_u32 s38, s38, {WS_HF}
s_lshl_b32 s3, s29, 12
s_add_u32 s3, s3, {L_U}
v_add_u32 v8, s3, v7
v_xor_b32 v13, 8192, v8
v_mov_b32 v12, {fbits(-LOG2E)}''')
    rot3(35)
    for j in range(14):
        a(f's_lshl_b32 s31, s35, 12\ns_add_u32 s{40+j}, s31, s38')
        if j < 13: a('\n'.join(adv(35)))
    a(f's_mov_b32 s39, {SPIN >> 3}')
    aw = opt.get('aw', 0)
    if aw: a(f's_waitcnt vmcnt({aw})')
    else: a.waitall(lg=False)
    stamp(12)
    NI = opt.get('ni', 5)
    def hl(j): return [f'buffer_load_dwordx4 {vr(HB+8*j+4*p,4)}, v7, s[12:15], s{40+(j if not opt.get("hfix") else 0)} offen offset:{1024*p} sc1' for p in range(2)]
    def rdw(j, ks):
        w = W3LOC[j]; hi = w >= L_Z; w -= L_Z * hi
        return [(f'ds_read_b64_tr_b16 {vr(WB[j&1]+8*ks+4*b+2*p,2)}, v{1+b+2*hi} offset:{w+ks*2048+512*p}', f'w{j}_{ks}') for b in (1, 0) for p in range(2)]
    for j in range(NI): a.emit([(x, f'h{j}') for x in hl(j)])
    a('s_barrier')
    stamp(13)
    a.emit(rdw(0, 0) + rdw(0, 1))
    es = opt.get('es', 8)
    xs = [(f'ds_read_b128 {vr(XR+4*p,4)}, v{9+p}', 'xr') for p in range(2)]
    un = sum([[f'v_lshlrev_b32 v{XF+2*i}, 16, v{XR+i}', f'v_and_b32 v{XF+2*i+1}, s33, v{XR+i}'] for i in range(8)], [])
    retry = []
    def check(j):
        lc = a.newlab('hchk'); lr = a.newlab('hretry')
        a.waitvm(f'h{j}')
        H = HB + 8*j
        a(f'{lc}:\nv_max3_u32 v{T}, v{H}, v{H+1}, v{H+2}\nv_max3_u32 v{T+1}, v{H+3}, v{H+4}, v{H+5}\nv_max3_u32 v{T}, v{T}, v{H+6}, v{H+7}\nv_max_u32 v{T}, v{T}, v{T+1}')
        a(f'v_cmp_eq_u32 vcc, -1, v{T}')
        return lc, lr
    def cbr(j, lc, lr, mid=None):
        a(f's_cbranch_vccnz {lr}\n{lc}x:')
        retry.append((lr, lc, j, sum([hl(i) for i in range(j, min(14, j + NI))], [])))
    lc, lr = check(0); cbr(0, lc, lr)
    stamp(14)
    for j in range(14):
        if opt.get('fine') == 'g3' and j % 2 == 0: stamp(3 + j // 2, True)
        seq = []
        for ks in range(2):
            for b in (1, 0):
                seq.append((ks, f'v_mfma_f32_32x32x16_bf16 {vr(ACC+16*b,16)}, {vr(WB[j&1]+8*ks+4*b,4)}, {vr(HB+8*j+4*ks,4)}, {"0" if (j == 0 and ks == 0) else vr(ACC+16*b,16)}'))
        if j == 13: seq = [seq[0], seq[2], seq[1], seq[3]]
        nxt = (rdw(j+1, 0) + rdw(j+1, 1)) if j < 13 else []
        for i, (ks, ins) in enumerate(seq):
            a.waitlg(f'w{j}_{ks}')
            a(ins)
            if j == w3m - 1 and i == 0 and w3m < 14: a('s_barrier')
            if i < 2:
                a.emit(nxt[3*i:3*i+3])
                if j + NI < 14: a(hl(j + NI)[i], f'h{j+NI}')
            if j == es and i in (0, 1): a.emit(xs[3*i:3*i+3])
            if j > es and i in (0, 1, 3):
                a.waitlg('xr'); a.emit(un[:4]); un = un[4:]
            if i == 2 and j < 13: lc, lr = check(j + 1)
            if i == 3 and j < 13:
                a.emit(nxt[6:]); cbr(j + 1, lc, lr)
    stamp(15)
    if opt.get('prof'): a(f's_sub_u32 s100, {SPIN >> 3}, s39\ns_mul_i32 s100, s100, 10\ns_add_u32 s100, s100, s66')
    ft_ = lambda i: stamp(i, True) if opt.get('fine') == 'g3' else None
    ft_(10)
    for q in range(4): a(f'ds_write_b128 v8, {vr(ACC+16+4*q,4)} offset:{1024*q}', 'rw')
    a.waitall(vm=False); ft_(11); a('s_barrier'); ft_(12)
    assert not un
    for q in range(2): a(f'ds_read_b128 {vr(WB[0]+4*q,4)}, v13 offset:{1024*q}', f'rr0')
    for q in range(4): a(f'ds_read_b64_tr_b16 {vr(SR+2*q,2)}, v11 offset:{2048*(q//2)+512*(q%2)}', 'sr')
    for q in range(2, 4): a(f'ds_read_b128 {vr(WB[0]+4*q,4)}, v13 offset:{1024*q}', f'rr1')
    for p in range(2):
        B = ACC + 8*p
        a.waitlg(f'rr{p}')
        if p == 0: ft_(13)
        for i in range(4): a(f'v_pk_add_f32 {vr(B+2*i,2)}, {vr(B+2*i,2)}, {vr(WB[0]+8*p+2*i,2)}')
        for i in range(4): a(f'v_pk_mul_f32 {vr(T+2*i,2)}, {vr(B+2*i,2)}, v[12:13] op_sel_hi:[1,0]')
        for i in range(8): a(f'v_exp_f32 v{T+i}, v{T+i}')
        a.waitlg('sr')
        for i in range(4): a(f'v_lshlrev_b32 v{SF+8*p+2*i}, 16, v{SR+4*p+i}\nv_and_b32 v{SF+8*p+2*i+1}, s33, v{SR+4*p+i}')
        for i in range(4): a(f'v_pk_mul_f32 {vr(B+2*i,2)}, {vr(B+2*i,2)}, {vr(SF+8*p+2*i,2)}')
        for i in range(4): a(f'v_pk_add_f32 {vr(T+2*i,2)}, {vr(T+2*i,2)}, 1.0 op_sel_hi:[1,0]')
        for i in range(8): a(f'v_rcp_f32 v{T+i}, v{T+i}')
        for i in range(4): a(f'v_pk_fma_f32 {vr(B+2*i,2)}, {vr(B+2*i,2)}, {vr(T+2*i,2)}, {vr(XF+8*p+2*i,2)}')
        for i in range(4): a(f'v_cvt_pk_bf16_f32 v{HB+4*p+i}, v{B+2*i}, v{B+2*i+1}')
        a(f'ds_write_b128 v{9+p}, {vr(HB+4*p,4)}', 'ow')
    ft_(14)
    for p in range(2): a(f'ds_read_b128 {vr(HB+8+4*p,4)}, v14 offset:{2048*p}', f'or{p}')
    for p in range(2):
        a.waitlg(f'or{p}')
        if p: a('s_add_u32 s61, s61, 16384')
        a(f'buffer_store_dwordx4 {vr(HB+8+4*p,4)}, v15, s[20:23], s61 offen {opt.get("outflag","sc1")}', 'ost')
    stamp(16)
    sk = a.newlab('noepoch')
    a(f's_or_b32 s3, s2, s29\ns_cmp_lg_u32 s3, 0\ns_cbranch_scc1 {sk}\nv_mov_b32 v1, s24\ns_mov_b32 s3, {WS_EPOCH}\ns_mov_b64 exec, 1')
    a('buffer_store_dword v1, off, s[12:15], s3 sc1')
    a(f's_mov_b64 exec, -1\n{sk}:')
    if opt.get('span'):
        a(f's_waitcnt vmcnt(0)\ns_memrealtime s[64:65]\ns_lshl_b32 s3, s2, 2\ns_add_u32 s3, s3, s29\ns_lshl_b32 s3, s3, 3\ns_add_u32 s3, s3, {WS_PROF}\ns_waitcnt lgkmcnt(0)\nv_mov_b32 v2, s62\nv_mov_b32 v3, s64\ns_mov_b64 exec, 1')
        a('buffer_store_dwordx2 v[2:3], off, s[12:15], s3')
    if opt.get('dbg'):
        sk = a.newlab('nodbg')
        a(f's_lshr_b32 s3, s2, 3\ns_or_b32 s3, s3, s29\ns_cmp_lg_u32 s3, 0\ns_cbranch_scc1 {sk}\ns_load_dwordx2 s[16:17], s[0:1], {KA["dbg"]}\ns_memrealtime s[64:65]\ns_waitcnt lgkmcnt(0)')
        a(f's_and_b32 s62, s62, 0xfffff\ns_and_b32 s64, s{66 + 2*opt["dbg"] if opt["dbg"] > 0 else 64}, 0xfffff\nv_mov_b32 v1, s62\nv_mov_b32 v2, s64\ns_lshl_b32 s3, s2, 2\nv_mov_b32 v3, s3')
        a('global_store_dword v3, v1, s[16:17]\nglobal_store_dword v3, v2, s[16:17] offset:32')
        a(f'{sk}:')
    g.prof_store()
    a('s_endpgm')
    for x in g.cold: a.L.append(x)
    g.cold = []
    for lr, lc, j, lds_ in retry:
        H = HB + 8*j
        a(f'{lr}:\ns_sub_u32 s39, s39, 1\ns_cmp_lt_i32 s39, 0\ns_cbranch_scc1 {lc}x')
        for x in lds_: a.L.append(x)
        a(f's_waitcnt vmcnt(0)\nv_max3_u32 v{T}, v{H}, v{H+1}, v{H+2}\nv_max3_u32 v{T+1}, v{H+3}, v{H+4}, v{H+5}\nv_max3_u32 v{T}, v{T}, v{H+6}, v{H+7}\nv_max_u32 v{T}, v{T}, v{T+1}')
        a(f'v_cmp_eq_u32 vcc, -1, v{T}\ns_cbranch_vccnz {lr}\ns_branch {lc}x')

    a(f'{lab("tcomp")}:')
    st0 = len(a.L)
    a.vm = ['prm'] * 6; a.lg = []
    T = 24; X = 64
    a('s_mov_b32 s6, 0x200000\ns_mov_b32 s7, 0x20000\ns_and_b32 s5, s5, 0xffff')
    a('s_lshl_b32 s32, s29, 14\ns_lshl_b32 s35, s26, 1\ns_add_u32 s35, s35, s30\ns_lshl_b32 s35, s35, 1\ns_and_b32 s3, s29, 1\ns_add_u32 s35, s35, s3\ns_lshl_b32 s3, s35, 5\ns_lshr_b32 s61, s29, 1\ns_lshl_b32 s38, s61, 9')
    rowoffs(a, 32, 's3', 10)
    for c in range(4):
        a.emit([f's_add_u32 m0, s32, {4096*c}', f's_add_u32 s31, s38, {128*c}'] + [(f'buffer_load_dwordx4 v{32+i}, s[4:7], s31 offen offset:{1024*i} lds', f'x{c}') for i in range(4)])
    cprologue()
    a.emit(rowread_list(8, 9, 's32'))
    a('v_xor_b32 v9, 32, v8\nv_xor_b32 v10, 64, v8\nv_xor_b32 v11, 96, v8')
    a('s_mov_b32 s36, 0x00003f80\ns_mov_b32 s37, 0x3f800000')
    for i in range(4): a(f'v_mov_b32 v{20+i}, 0')
    a('v_lshrrev_b32 v13, 5, v0\nv_lshlrev_b32 v13, 15, v13\nv_and_b32 v16, 31, v0\nv_lshl_add_u32 v12, v16, 2, v13')
    for i in range(1, 4): a(f'v_add_u32 v{12+i}, {8192*i}, v12')
    a(f's_lshl_b32 s31, s35, 7\ns_add_u32 s52, s31, {WS_XNT}\ns_lshl_b32 s3, s61, 20\ns_add_u32 s52, s52, s3')
    a(f's_lshl_b32 s53, s61, 13\ns_add_u32 s53, s53, s31\ns_add_u32 s53, s53, {FX}')
    a(f's_lshl_b32 s31, s35, 13\ns_add_u32 s60, s31, s38\ns_add_u32 s60, s60, {WS_STATS + 14*512}')
    a(f's_lshl_b32 s31, s29, 8\ns_add_u32 s31, s31, {L_CS}\nv_lshl_add_u32 v16, v0, 2, s31\nv_xor_b32 v17, 512, v16')
    a(tagmake)
    for c in range(4):
        a.waitvm(f'x{c}')
        a.emit(xreads(c, 8, 4096*c))
        if c == opt.get('tb', 1): a('s_barrier')
        if c > 0: dots(c-1, 20)
        a.waitlg(f'xr{c}')
    dots(3, 20)
    a('v_add_f32 v20, v20, v22\nv_add_f32 v21, v21, v23\nv_mov_b32 v41, s24\nv_mov_b32 v43, s24\nv_permlane32_swap_b32 v20, v21\nv_add_f32 v22, v20, v21\nv_add_f32 v40, v20, v21\nv_permlane32_swap_b32 v40, v42\ns_mov_b32 exec_hi, 0')
    a(f'buffer_store_dwordx4 v[40:43], v7, s[12:15], s60 offen sc1', 'pub')
    a('s_mov_b64 exec, -1')
    a('ds_write_b32 v16, v22')
    a.waitall(vm=False); a('s_barrier')
    a('ds_read_b32 v20, v17')
    a.waitall(vm=False)
    a('v_add_f32 v20, v20, v22\nv_mov_b32 v21, v20\nv_permlane32_swap_b32 v20, v21')
    a.emit(ln_list(20, 21, 512, 22, 19, 18))
    stamp(2)
    for f in range(16):
        for i in range(4):
            a(f'v_dot2_f32_bf16 v{T+2*i}, v{X+4*f+i}, s36, v19\nv_dot2_f32_bf16 v{T+2*i+1}, v{X+4*f+i}, s37, v19')
        for i in range(4): a(f'v_cvt_pk_bf16_f32 v{X+4*f+i}, v{T+2*i}, v{T+2*i+1}')
        for i in range(4): a(f'v_lshlrev_b32 v{T+2*i}, 16, v{X+4*f+i}\nv_and_b32 v{T+2*i+1}, s33, v{X+4*f+i}')
        for i in range(4): a(f'v_pk_mul_f32 {vr(T+2*i,2)}, {vr(T+2*i,2)}, v[18:19] op_sel_hi:[1,0]')
        for i in range(4): a(f'v_cvt_pk_bf16_f32 v{X+4*f+i}, v{T+2*i}, v{T+2*i+1}')
        for i in range(4): a(f'buffer_store_dword v{X+4*f+i}, v{12+i}, s[12:15], s52 offen sc1', 'xst')
        a('s_add_u32 s52, s52, 65536')
    stamp(3)
    a.emit(ssm.kaddr())
    a.emit(g.setflag('s53', 16))
    stamp(7)
    a('s_barrier')
    a(f's_branch {lab("kgen")}')
    a(f'{lab("tcomp2")}:')
    a.vm = []; a.lg = list(lg_split)
    a.waitall(vm=False); a('s_barrier')
    emit_plain(a, ssm.ubuild()); stamp(9)
    cpre, cg = ssm.conv()
    fin, fflag = ssm.finish()
    emit_plain(a, cpre + sum(cg, []) + fin + fflag + [BAR]); stamp(10)
    a('s_barrier')
    nb['tc'] = count_bars(st0) + 2 + (w3m < 14)
    a(f's_branch {lab("g3comp")}')
    a(f'{lab("done")}:\ns_endpgm')
    assert nb['gl'] == nb['gc'] and nb['tl'] == nb['tc'], nb
    kernel_desc(a, name, 256, 102)
    return finalize(a, name, opt)

NAME = 'recurrent_scan__ssm_conv_s4d__mixer_gmlp__prompt_kernel'
def write(path, args):
    opt = {}
    for kv in args:
        k, _, v = kv.partition('=')
        opt[k] = (int(v) if v.lstrip('-').isdigit() and k != 'cw' else v) if v else True
    try: HDR = open('recurrent_scan__ssm_conv_s4d__mixer_gmlp__prompt.s.ref').read().split('; Override launch')[0]
    except OSError: HDR = ''
    txt = HDR + '; @launch grid=(256,1,1) block=(384,1,1) lds=163840\n.amdgcn_target "amdgcn-amd-amdhsa--gfx950"\n' + fused(NAME, opt)
    open(path, 'w').write(txt)

if __name__ == '__main__':
    import sys
    sys.path.insert(0, 'work')
    write(sys.argv[1], sys.argv[2:])
    from hx import build
    import cdna_launch as cl
    co, _ = build(sys.argv[1], 15, NAME)
    p = cl.address_register_problem(co, NAME)
    if p: print('CHECK PROBLEM:', p)
```

```python
from gen import *
import struct, math
def fbits(x): return hex(struct.unpack('<I', struct.pack('<f', x))[0])
def f32(x): return struct.unpack('<f', struct.pack('<f', x))[0]
WS_Z2F = 0; WS_XNT = 4 << 20; WS_HF = 6 << 20; WS_ST = 10 << 20; WS_STATS = 12 << 20; WS_FL = WS_STATS + (512 << 10)
WS_EPOCH = WS_FL + (384 << 10)
WS_PROF = 13 << 20; WS_BYTES = 14 << 20
FZ = WS_FL; FX = WS_FL + 896*128; FH = WS_FL + 1024*128; FT = WS_FL + 1536*128; FS = WS_FL + 2048*128
KA = dict(u=0, logA=8, Aim=16, Cre=24, Cim=32, logdt=40, Dskip=48, bx=56, win=64, wsp=72, bsp=80, wout=88, out=96, dbg=104, ws=112)
LOG2E = math.log2(math.e)
C0 = -2 * LOG2E * math.sqrt(2 / math.pi); C1 = C0 * 0.044715
BAR = ('BAR',)
SPIN = 0x20000
L_SSM = 65536; L_Z = 114688
USTR = 4640; UGRP = 3 * USTR + 4480; L_U = L_SSM; L_RAW = 102400 - 16; L_K = 147456
L_CS = 159744; L_TR = 131072
L_X3 = 81920; L_S3 = 90112; KSTR = 4736

class G:
    def __init__(self, name, opt):
        self.a = Asm(); self.name = name; self.opt = opt; self.comp = False; self.cold = []
    def stamp(self, idx, fine=False):
        if self.opt.get('fine') and not fine and 3 <= idx <= 15 and self.comp: return
        if self.opt.get('dbg') == idx: self.a(f's_memrealtime s[{66+2*idx}:{67+2*idx}]')
        if self.opt.get('prof'): self.a(f's_mem{"real" if self.opt.get("rt") else ""}time s[{66+2*idx}:{67+2*idx}]')
    def prof_store(self):
        if not self.opt.get('prof'): return
        a = self.a
        a('s_memrealtime s[64:65]\ns_memtime s[60:61]')
        a.waitall()
        a('v_mov_b32 v2, 0\ns_sub_u32 s31, s60, s66\nv_writelane_b32 v2, s31, 2')
        for i in range(1, 18):
            a(f's_sub_u32 s31, s{66+2*i}, s{62 if self.opt.get("rt") else 66}\nv_writelane_b32 v2, s31, {i+2}')
        a('v_writelane_b32 v2, s62, 0\nv_writelane_b32 v2, s64, 1')
        a(f's_lshl_b32 s3, s2, 3\ns_add_u32 s3, s3, s29\ns_lshl_b32 s3, s3, 7\ns_add_u32 s3, s3, {WS_PROF}')
        a('v_lshlrev_b32 v1, 2, v0\ns_mov_b32 exec_hi, 0')
        a('buffer_store_dword v2, v1, s[12:15], s3 offen')
    def spin(self, loads, tags, tmp, sentinel=False):
        a = self.a
        lp = a.newlab('sp'); lc = a.newlab('spc'); lo = a.newlab('spo')
        chk = []
        r = list(tags)
        if sentinel:
            cur = r.pop(0)
            while r:
                if len(r) >= 2: chk.append(f'v_max3_u32 v{tmp}, v{cur}, v{r[0]}, v{r[1]}'); r = r[2:]
                else: chk.append(f'v_max_u32 v{tmp}, v{cur}, v{r[0]}'); r = []
                cur = tmp
            chk.append(f'v_cmp_eq_u32 vcc, -1, v{tmp}')
        elif len(r) == 1: chk.append(f'v_cmp_ne_u32 vcc, s24, v{r[0]}')
        else:
            chk.append(f'v_xor_b32 v{tmp}, s24, v{r[0]}')
            for x in r[1:]: chk.append(f'v_bitop3_b32 v{tmp}, v{tmp}, v{x}, s24 bitop3:0xf6')
            chk.append(f'v_cmp_ne_u32 vcc, 0, v{tmp}')
        for x in chk: a(x)
        a(f's_cbranch_vccnz {lp}\n{lo}:')
        self.cold += [f'{lp}:', f's_mov_b32 s39, {SPIN}', f'{lc}:'] + list(loads) + ['s_waitcnt vmcnt(0)'] + chk + \
            [f's_cbranch_vccz {lo}', 's_sub_u32 s39, s39, 1', 's_cmp_lg_u32 s39, 0', f's_cbranch_scc1 {lc}', f's_branch {lo}']
    def setflag(self, soff, vtmp):
        return [f'v_mov_b32 v{vtmp}, s24', lambda: self.a.waitall(lg=False), (f's_mov_b32 exec_hi, 0\nbuffer_store_dword v{vtmp}, v6, s[12:15], {soff} offen sc1\ns_mov_b64 exec, -1', 'flag')]

def ln_list(vS, vQ, n, vT, out_negm, out_r, out_sd=None):
    L = [f'v_mul_f32 v{vS}, {fbits(1.0/n)}, v{vS}', f'v_mul_f32 v{vQ}, {fbits(1.0/n)}, v{vQ}', f'v_fma_f32 v{vQ}, -v{vS}, v{vS}, v{vQ}',
         f'v_max_f32 v{vQ}, 0, v{vQ}', f'v_cvt_pk_bf16_f32 v{vT}, v{vQ}, v{vS}', f'v_lshlrev_b32 v{vQ}, 16, v{vT}', f'v_and_b32 v{vT}, 0xffff0000, v{vT}',
         f'v_add_f32 v{vQ}, {fbits(1e-5)}, v{vQ}', f'v_xor_b32 v{out_negm}, 0x80000000, v{vT}', f'v_cvt_pk_bf16_f32 v{vQ}, v{vQ}, v{vQ}',
         f'v_lshlrev_b32 v{vQ}, 16, v{vQ}', f'v_sqrt_f32 v{vQ}, v{vQ}', f'v_cvt_pk_bf16_f32 v{vQ}, v{vQ}, v{vQ}']
    sd = vQ if out_sd is None else out_sd
    L += [f'v_lshlrev_b32 v{sd}, 16, v{vQ}', f'v_rcp_f32 v{out_r}, v{sd}']
    return L

def gelu_pk(A, n, vC, vSD, T):
    L = []
    for b in range(0, n, 8):
        P = [A + b + 2*i for i in range(4)]; Q = [T + 2*i for i in range(4)]
        for p, q in zip(P, Q): L.append(f'v_pk_mul_f32 {vr(q,2)}, {vr(p,2)}, {vr(p,2)}')
        for q in Q: L.append(f'v_pk_fma_f32 {vr(q,2)}, {vr(q,2)}, {vr(vC,2)}, {vr(vC,2)} op_sel:[0,0,1] op_sel_hi:[1,0,1]')
        for p, q in zip(P, Q): L.append(f'v_pk_mul_f32 {vr(q,2)}, {vr(q,2)}, {vr(p,2)}')
        for i in range(8): L.append(f'v_exp_f32 v{T+i}, v{T+i}')
        for q in Q: L.append(f'v_pk_fma_f32 {vr(q,2)}, {vr(q,2)}, {vr(vSD,2)}, {vr(vSD,2)} op_sel_hi:[1,0,0]')
        for i in range(8): L.append(f'v_rcp_f32 v{T+i}, v{T+i}')
        for p, q in zip(P, Q): L.append(f'v_pk_mul_f32 {vr(p,2)}, {vr(p,2)}, {vr(q,2)}')
    return L

def gelu_packed(Z, n, T, vC1):
    L = []
    for b in range(0, n, 2):
        for i in range(2): L += [f'v_lshlrev_b32 v{T+2*i}, 16, v{Z+b+i}', f'v_and_b32 v{T+2*i+1}, s33, v{Z+b+i}']
        for i in range(4): L.append(f'v_mul_f32 v{T+4+i}, v{T+i}, v{T+i}')
        for i in range(4): L.append(f'v_fmaak_f32 v{T+4+i}, v{vC1}, v{T+4+i}, {fbits(C0)}')
        for i in range(4): L.append(f'v_mul_f32 v{T+4+i}, v{T+i}, v{T+4+i}')
        for i in range(4): L.append(f'v_exp_f32 v{T+4+i}, v{T+4+i}')
        for i in range(4): L.append(f'v_add_f32 v{T+4+i}, 1.0, v{T+4+i}')
        for i in range(4): L.append(f'v_rcp_f32 v{T+4+i}, v{T+4+i}')
        for i in range(4): L.append(f'v_mul_f32 v{T+i}, v{T+i}, v{T+4+i}')
        for i in range(2): L.append(f'v_cvt_pk_bf16_f32 v{Z+b+i}, v{T+2*i}, v{T+2*i+1}')
    return L

def stream_emit(a, items, nbar, D, hook=None, always=False):
    comp = {}
    for i, it in enumerate(items):
        if it[2] is not None: comp[it[2]] = i + 1
    DD = D if callable(D) else (lambda b: D)
    nb = 0
    def bar(n):
        nonlocal nb
        c = max([comp.get(b, 0) for b in range(nb + 1)])
        assert c <= n, (nb, c, n)
        if hook: hook(nb, -1)
        if c or always: a.L.append(f's_waitcnt vmcnt({min(63, n - c)})')
        if hook: hook(nb, 0)
        a.L.append('s_barrier')
        if hook: hook(nb, 1)
        nb += 1
    for i, (setup, ld, cb, need) in enumerate(items):
        while need is not None and nb <= need: bar(i)
        for x in setup:
            if callable(x): x()
            else: a.L.append(x)
        a.L.append(ld)
        while nb < nbar and nb in comp and i + 1 >= comp[nb] + DD(nb): bar(i + 1)
    while nb < nbar: bar(len(items))

def grp(m0, soff_setup, vbase, srd_, soff, same=False, cb=None, need=None, fl='', mreg='s19'):
    L = []
    for i in range(4):
        su = ([f's_add_u32 m0, {mreg}, {m0}'] + (soff_setup or ['s_nop 0'])) if i == 0 else []
        L.append((su, f'buffer_load_dwordx4 v{vbase if same else vbase+i}, {srd_}, {soff} offen offset:{1024*i} {fl} lds', cb, need if i == 0 else None))
    return L

def rowoffs(a, d, rowbase, sh, colbase=None):
    st = 1 << sh
    a(f"""v_lshrrev_b32 v24, 3, v0
v_add_u32 v24, {rowbase}, v24
v_lshlrev_b32 v24, {sh}, v24
v_and_b32 v25, 7, v0
v_lshrrev_b32 v26, 4, v0
v_xor_b32 v25, v25, v26
v_lshl_add_u32 v{d}, v25, 4, v24""")
    if colbase: a(f'v_add_u32 v{d}, {colbase}, v{d}')
    a(f'v_xor_b32 v{d+1}, 64, v{d}\nv_add_u32 v{d+1}, {8*st-1024}, v{d+1}\nv_add_u32 v{d+2}, {16*st-2048}, v{d}\nv_add_u32 v{d+3}, {16*st-2048}, v{d+1}')

def troffs(a, d, stride, colbase):
    a(f"""v_lshrrev_b32 v24, 3, v0
v_mul_u32_u24 v24, {stride}, v24
v_bfe_u32 v25, v0, 4, 1
v_lshlrev_b32 v25, 2, v25
v_and_b32 v26, 7, v0
v_xor_b32 v25, v25, v26
v_lshl_add_u32 v24, v25, 4, v24
v_add_u32 v{d}, {colbase}, v24""")
    for i in range(1, 4): a(f'v_add_u32 v{d+i}, {8*stride-1024}, v{d+i-1}')

def rowread_list(d, t, base):
    return [f'v_lshrrev_b32 v{t}, 5, v0', f'v_bfe_u32 v{d}, v0, 1, 3', f'v_xor_b32 v{d}, v{d}, v{t}', f'v_lshlrev_b32 v{d}, 4, v{d}',
            f'v_and_b32 v{t}, 31, v0', f'v_lshl_add_u32 v{d}, v{t}, 7, v{d}', f'v_add_u32 v{d}, {base}, v{d}']
def trread_list(d, t):
    return [f'v_lshrrev_b32 v{d}, 5, v0', f'v_bfe_u32 v{t}, v0, 2, 2', f'v_lshl_add_u32 v{d}, v{d}, 3, v{t}', f'v_lshlrev_b32 v{d}, 7, v{d}',
            f'v_bfe_u32 v{t}, v0, 3, 1', f'v_lshl_add_u32 v{d}, v{t}, 6, v{d}', f'v_bfe_u32 v{t}, v0, 4, 1', f'v_lshl_add_u32 v{d}, v{t}, 5, v{d}',
            f'v_and_b32 v{t}, 1, v0', f'v_lshl_add_u32 v{d}, v{t}, 4, v{d}', f'v_bfe_u32 v{t}, v0, 1, 1', f'v_lshl_add_u32 v{d}, v{t}, 3, v{d}']

def cost(x):
    if callable(x): return 4
    t = x[0] if isinstance(x, tuple) else x
    if t.startswith(TRANS): return 8
    if t.startswith('v_mfma_f32_32'): return 32
    if t.startswith('v_mfma'): return 12
    return 4

class SSM:
    CA = 16; PR = 208; DS = 5
    def __init__(self, g): self.g = g; self.a = g.a
    def param_addr(self):
        P = self.PR
        return ['s_lshl_b32 s31, s2, 9', 's_lshl_b32 s3, s29, 7', 's_add_u32 s31, s31, s3', f'v_lshl_add_u32 v{P+6}, v0, 1, s31',
                's_lshl_b32 s31, s2, 2', f'v_mov_b32 v{P+7}, s31']
    def param_loads(self):
        P = self.PR
        L = [(f'global_load_dword v{P+4}, v{P+7}, s[48:49]', 'prm')]
        for i in range(4): L.append((f'global_load_ushort v{P+i}, v{P+6}, s[{40+2*i}:{41+2*i}]', 'prm'))
        L.append((f'global_load_dword v{self.DS}, v{P+7}, s[50:51]', 'prm'))
        return L
    def kaddr(self):
        A = 216
        L = ['s_lshl_b32 s31, s29, 14', f's_add_u32 s31, s31, {L_SSM}', f'v_bfe_u32 v{A+4}, v0, 1, 2', f'v_lshlrev_b32 v{A+4}, 4, v{A+4}', f'v_lshl_add_u32 v{A+4}, v0, 6, v{A+4}', f'v_add_u32 v{A}, s31, v{A+4}']
        for b in range(1, 4): L.append(f'v_xor_b32 v{A+b}, {16*b}, v{A}')
        R, t, u = A+4, A+6, A+7
        L += ['s_and_b32 s3, s31, 0xffff8000', f'v_bfe_u32 v{t}, v0, 3, 2', f'v_bfe_u32 v{R}, v0, 1, 1', f'v_xor_b32 v{R}, v{R}, v{t}', f'v_lshlrev_b32 v{R}, 4, v{R}',
              f'v_lshrrev_b32 v{t}, 2, v0', f'v_lshl_add_u32 v{R}, v{t}, 6, v{R}', f'v_and_b32 v{u}, 1, v0', f'v_lshl_add_u32 v{R}, v{u}, 3, v{R}', f'v_add_u32 v{R}, s3, v{R}',
              f'v_xor_b32 v{A+5}, 32, v{R}', 's_and_b32 s3, s29, 1', 's_lshl_b32 s31, s3, 5', f'v_xor_b32 v{A+6}, s31, v{R}',
              f'v_cmp_eq_u32 s[58:59], 0, v{u}', f'v_and_b32 v{u}, 16, v0', f'v_cmp_eq_u32 s[46:47], 0, v{u}']
        L += ['s_lshr_b32 s31, s29, 1', f's_mul_i32 s57, s31, {KSTR}', f's_add_u32 s57, s57, {L_K}', 's_lshl_b32 s3, s3, 8', 's_sub_u32 s3, s57, s3',
              f'v_and_b32 v{A+9}, 255, v7', f'v_sub_u32 v{A+9}, s3, v{A+9}', f'v_lshrrev_b32 v{A+10}, 4, v0',
              f'v_lshlrev_b32 v{A+11}, 2, v{A+10}', f'v_sub_u32 v{A+7}, v{A+9}, v{A+11}', f'v_lshlrev_b32 v{A+11}, 9, v{A+10}', f'v_sub_u32 v{A+14}, v{A+9}, v{A+11}',
              f'v_lshrrev_b32 v{A+11}, 5, v0', f'v_lshlrev_b32 v{A+11}, 9, v{A+11}', f'v_sub_u32 v{A+8}, v{A+9}, v{A+11}', f'v_bfe_u32 v{A+11}, v0, 4, 1', f'v_lshlrev_b32 v{A+11}, 3, v{A+11}', f'v_sub_u32 v{A+8}, v{A+8}, v{A+11}',
              f'v_min_u32 v{A+9}, 39, v0', f'v_lshl_add_u32 v{A+9}, v{A+9}, 4, s57'] + [f'v_mov_b32 v{A+10+i}, 0' for i in range(4)]
        L.append((f'ds_write_b128 v{A+9}, {vr(A+10,4)} offset:4096', 'kt'))
        return L
    def kgen(self):
        a = self.a; P = self.PR; A = 216
        E1, E8, E64, E256, Cc, E2 = 128, 130, 132, 134, 136, 138
        t = 140
        Lhi = f32(LOG2E); Llo = LOG2E - Lhi
        def exp_acc(d, x, t0, t1):
            return [f'v_mul_f32 v{t0}, s40, v{x}', f'v_fma_f32 v{t1}, v{x}, s40, -v{t0}', f'v_fma_f32 v{t1}, v{x}, s41, v{t1}',
                    f'v_exp_f32 v{t0}, v{t0}', f'v_mul_f32 v{t1}, s42, v{t1}', f'v_fma_f32 v{d}, v{t0}, v{t1}, v{t0}']
        L = [f's_mov_b32 s40, {fbits(Lhi)}', f's_mov_b32 s41, {fbits(Llo)}', f's_mov_b32 s42, {fbits(math.log(2))}',
             's_lshr_b32 s31, s29, 1', 's_lshl_b32 s31, s31, 4', lambda: a.waitvm('prm'), lambda: self.g.stamp(17), f'v_lshrrev_b32 v{P+4}, s31, v{P+4}']
        for i in range(5): L.append(f'v_lshlrev_b32 v{P+i}, 16, v{P+i}')
        for x, y in zip(exp_acc(P+4, P+4, t, t+1), exp_acc(P, P, t+2, t+3)): L += [x, y]
        L += [f'v_cvt_pk_bf16_f32 v{P+4}, v{P}, v{P+4}', f'v_lshlrev_b32 v{P}, 16, v{P+4}', f'v_and_b32 v{P+4}, s33, v{P+4}']
        for i in range(4): L.append(f'v_mul_f32 v{P+i}, v{P+i}, v{P+4}')
        L += [f'v_mul_f32 v{t}, {fbits(-LOG2E)}, v{P}', f'v_mul_f32 v{t+4}, 0.15915494, v{P+1}', f'v_add_f32 v{Cc}, v{P+2}, v{P+2}', f'v_add_f32 v{Cc+1}, v{P+3}, v{P+3}']
        for k, p in enumerate([8.0, 64.0, 256.0]): L += [f'v_mul_f32 v{t+1+k}, {fbits(p)}, v{t}', f'v_mul_f32 v{t+5+k}, {fbits(p)}, v{t+4}']
        for k in range(4): L += [f'v_exp_f32 v{t+k}, v{t+k}', f'v_fract_f32 v{t+4+k}, v{t+4+k}']
        for k in range(4): L += [f'v_cos_f32 v{E1+2*k}, v{t+4+k}', f'v_sin_f32 v{E1+1+2*k}, v{t+4+k}']
        for k in range(4): L += [f'v_mul_f32 v{E1+2*k}, v{t+k}, v{E1+2*k}', f'v_mul_f32 v{E1+1+2*k}, v{t+k}, v{E1+1+2*k}']
        fk = lambda i: (lambda: self.g.stamp(i, True) if self.g.opt.get('fine') == 'kg' else None)
        L.append(fk(3))
        O = 140
        def cm(jobs):
            R = []
            for d, x, y in jobs: R.append(f'v_pk_mul_f32 {vr(d,2)}, {vr(x,2)}, {vr(y,2)} op_sel_hi:[1,0]')
            for d, x, y in jobs: R.append(f'v_pk_fma_f32 {vr(d,2)}, {vr(x,2)}, {vr(y,2)}, {vr(d,2)} op_sel:[1,1,0] op_sel_hi:[0,1,1] neg_lo:[1,0,0]')
            return R
        cnt = [0]
        def pack(vals, blk, plane, neg):
            o = O + 8 * (cnt[0] & 1); cnt[0] += 1
            R = []
            for i in range(4): R.append(f'v_cvt_pk_bf16_f32 v{o+i}, v{vals[2*i]}, v{vals[2*i+1]}')
            R.append((f'ds_write_b128 v{A+blk}, {vr(o,4)} offset:{plane*4096}', 'kt'))
            s = '-' if neg else ''
            for i in range(4): R.append(f'v_cvt_pk_bf16_f32 v{o+4+i}, {s}v{vals[2*i]+1}, {s}v{vals[2*i+1]+1}')
            R.append((f'ds_write_b128 v{A+blk}, {vr(o+4,4)} offset:{plane*4096+4096}', 'kt'))
            return R
        B = [156 + 2*i for i in range(26)]
        fa = B[0:8]; fb = B[8:16]; g = [Cc] + B[16:24]
        fa0 = [fa[0], E8] + fa[2:]
        L += [f'v_mov_b32 v{fa[0]}, 1.0', f'v_mov_b32 v{fa[0]+1}, 0']
        L += cm([(fa[2], E8, E8), (g[1], Cc, E1), (E2, E1, E1), (g[8], Cc, E8)])
        L += cm([(fa[3], fa[2], E8), (fa[4], fa[2], fa[2]), (g[2], Cc, E2), (g[3], g[1], E2)])
        L += cm([(fa[5], fa[4], E8), (fa[6], fa[4], fa[2]), (fa[7], fa[4], fa[3]), (g[4], g[2], E2), (g[5], g[3], E2)])
        L += pack(fa0, 0, 2, False)
        fb0 = [E64] + fb[1:]
        L += cm([(g[6], g[4], E2), (g[7], g[5], E2)] + [(fb[i], fa0[i], E64) for i in range(1, 8)])
        L += cm([(fa[i], fb0[i], E64) for i in range(8)])
        L += pack(fb0, 1, 2, False)
        L += cm([(fb[i], fa[i], E64) for i in range(8)])
        L += pack(fa, 2, 2, False)
        h0, h2, h4, h6, h8, i0, i4, i8 = B[0:8]
        j0, j4, j8, k0, k8, l0, l8 = B[8:15]
        L += cm([(h0, g[0], E256), (h2, g[2], E256), (h4, g[4], E256), (h6, g[6], E256), (h8, g[8], E256), (E2, E256, E256)])
        L += pack(fb, 3, 2, False)
        L += cm([(i0, g[0], E2), (i4, g[4], E2), (i8, g[8], E2), (j0, h0, E2), (j4, h4, E2), (j8, h8, E2)])
        L += pack([g[0], g[1], h0, h0, g[2], g[3], h2, h4], 0, 0, True)
        m0, m8, n0, n8 = g[1], g[2], g[3], B[15]
        L += cm([(k0, i0, E2), (k8, i8, E2), (l0, j0, E2), (l8, j8, E2)])
        L += pack([g[4], g[5], h4, h4, g[6], g[7], h6, h8], 1, 0, True)
        L += cm([(m0, k0, E2), (m8, k8, E2), (n0, l0, E2), (n8, l8, E2)])
        L += pack([i0, i4, k0, k8, i4, i8, l0, l8], 2, 0, True)
        L += pack([j0, j4, m0, m8, j4, j8, n0, n8], 3, 0, True)
        L.append(fk(4))
        L.append(BAR)
        L.append(fk(5))
        D = 128; FR = 136
        def rd(j):
            o = 16384 * (j // 4) + 1024 * (j % 4); b = FR + 12 * (j % 5)
            return [(f'ds_read_b64_tr_b16 {vr(b+4*k+2*p,2)}, v{A+(6,4,5)[k]} offset:{o + 4096*p + (8192 if k == 0 else 0)}', f'kr{j}') for k in range(3) for p in range(2)]
        for j in range(2): L += rd(j)
        for j in range(8):
            b = FR + 12 * (j % 5); nx = rd(j+2) if j + 2 < 8 else []
            L += nx[:3]
            L.append(lambda j=j: a.waitlg(f'kr{j}'))
            L.append(f'v_mfma_f32_16x16x32_bf16 {vr(D,4)}, {vr(b+4,4)}, {vr(b,4)}, {"0" if j == 0 else vr(D,4)}')
            L += nx[3:]
            L.append(f'v_mfma_f32_16x16x32_bf16 {vr(D+4,4)}, {vr(b+8,4)}, {vr(b,4)}, {"0" if j == 0 else vr(D+4,4)}')
        L.append(fk(6))
        O = 196
        L += [f'v_cvt_pk_bf16_f32 v{O}, v{D+1}, v{D}', f'v_cvt_pk_bf16_f32 v{O+1}, v{D+3}, v{D+2}',
              f'v_cndmask_b32 v{O+2}, v{D+5}, v{D+4}, s[46:47]', f'v_cndmask_b32 v{O+5}, v{D+7}, v{D+6}, s[58:59]',
              f'v_cvt_pk_bf16_f32 v{O+4}, v{D+7}, v{D+7}', f'v_cvt_pk_bf16_f32 v{O+5}, v{D+7}, v{O+5}', f'v_cvt_pk_bf16_f32 v{O+6}, v{D+6}, v{D+6}', f'v_cvt_pk_bf16_f32 v{O+7}, v{D+6}, v{D+6}',
              (f'ds_write_b128 v{A+14}, {vr(O+4,4)} offset:{4080-2048}', 'kw'),
              f'v_cvt_pk_bf16_f32 v{O+2}, v{D+5}, v{O+2}', f'v_cvt_pk_bf16_f32 v{O+3}, v{D+4}, v{D+4}',
              (f'ds_write_b64 v{A+8}, {vr(O+2,2)} offset:{4088-1024}', 'kw'),
              (f'ds_write_b32 v{A+7}, v{O} offset:4092', 'kw'), (f'ds_write_b32 v{A+7}, v{O+1} offset:{4092-512}', 'kw')]
        return L
    UA = 13; KA_ = 15
    def ubuild(self, R, T, O, TL):
        a = self.a
        ld = ['s_lshl_b32 s31, s29, 11', f'v_lshl_add_u32 v{TL}, v0, 5, s31', 's_lshl_b32 s31, s2, 13', f's_add_u32 s31, s31, {WS_XNT - 16}']
        ld += [(f'buffer_load_dwordx4 {vr(R+4*k,4)}, v{TL}, s[12:15], s31 offen offset:{16*k} sc1', 'raw') for k in range(3)]
        ad = ['s_mov_b32 s44, 0x05040100', 's_mov_b32 s45, 0x07060302'] + [f'v_mov_b32 v{T+4+k}, 0' for k in range(4)]
        ad += ['s_lshr_b32 s31, s29, 1', f's_mul_i32 s46, s31, {UGRP}', f's_add_u32 s46, s46, {L_U}', 's_and_b32 s47, s29, 1',
               f'v_lshrrev_b32 v{T+2}, 5, v0', f'v_mul_u32_u24 v{T+2}, {USTR}, v{T+2}', f'v_and_b32 v{T+3}, 31, v0', f'v_min_u32 v{T+3}, 23, v{T+3}',
               f's_mul_i32 s31, s47, {2*USTR}', 's_add_u32 s31, s31, s46', f'v_lshl_add_u32 v{T+3}, v{T+3}, 4, v{T+2}', f'v_add_u32 v{T+3}, s31, v{T+3}',
               's_lshl_b32 s31, s29, 10', f's_add_u32 s31, s31, {L_U + 384}', f'v_add_u32 v{T+1}, s31, v7',
               's_cmp_eq_u32 s29, 0\ns_cselect_b32 s31, 0, -1', f'v_cmp_eq_u32 s[58:59], s31, v0']
        L = [(f'ds_write_b128 v{T+3}, {vr(T+4,4)}', 'uw'), lambda: a.waitvm('raw')]
        for k in range(1, 4): L.append(f'v_cndmask_b32 v{R+k}, v{R+k}, v{T+4}, s[58:59]')
        for dl in range(2):
            for e in range(4):
                d = O + 4 * (e & 1)
                for k in range(4): L.append(f'v_perm_b32 v{d+k}, v{R+4+2*k+e-2}, v{R+4+2*k+e-3}, s{44+dl}')
                L.append((f'ds_write_b128 v{T+1}, {vr(d,4)} offset:{dl*UGRP+e*USTR}', 'uw'))
        ca = [f'v_and_b32 v{T}, 3, v0', f'v_mul_u32_u24 v{T}, {USTR}, v{T}', f'v_bfe_u32 v{T+2}, v0, 2, 2', f'v_lshl_add_u32 v{T}, v{T+2}, 7, v{T}',
              f'v_and_b32 v{T+2}, 48, v0', f'v_add3_u32 v{self.UA}, v{T}, v{T+2}, s46', 's_lshl_b32 s3, s47, 9',
              's_sub_u32 s31, s57, s3', 's_add_u32 s31, s31, 632', f'v_and_b32 v{T}, 15, v0', f'v_lshlrev_b32 v{T}, 3, v{T}', f'v_sub_u32 v{T}, v{T+2}, v{T}', f'v_add_u32 v{self.KA_}, s31, v{T}']
        return ld, ad, L, ca
    def conv(self):
        a = self.a; CA = self.CA
        FB = [192, 224]
        def reads(n):
            r, par = divmod(n, 2)
            L = []
            for i in range(4):
                kk = 3 - i
                pp = 2*kk + 1 - par
                if i == 0: L.append((f'ds_read_b128 {vr(FB[n&1],4)}, v{self.UA} offset:{512*par+64*r}', f't{n}_0'))
                for h in range(2): L.append((f'ds_read_b64 {vr(FB[n&1]+16+4*kk+2*h,2)}, v{self.KA_} offset:{3584 - 512*pp + 64*r + 8*h}', f'k{n}_{kk}'))
            for i in range(1, 4): L.append((f'ds_read_b128 {vr(FB[n&1]+4*i,4)}, v{self.UA} offset:{512*(2*i+par)+64*r}', f't{n}_{i}'))
            return L
        G_ = []
        for n in range(16):
            nx = reads(n+1) if n < 15 else []
            m = 0
            for i in range(4):
                for kk in range(3 - i, -1, -1):
                    A = i + kk
                    tags = [f't{n}_{i}', f'k{n}_{kk}']
                    c = '0' if (n == 0 and i == 0) else vr(CA+4*A, 4)
                    g = [lambda tags=tags: a.waitlg(tags), f'v_mfma_f32_16x16x32_bf16 {vr(CA+4*A,4)}, {vr(FB[n&1]+4*i,4)}, {vr(FB[n&1]+16+4*kk,4)}, {c}']
                    k = 2 if m < 4 else (1 if m < 8 else 0)
                    g += nx[:k]; nx = nx[k:]; m += 1
                    G_.append(g)
            assert not nx
        return reads(0), G_
    def finish(self):
        a = self.a; CA = self.CA; R = 192; T = 224
        L = ['s_lshl_b32 s3, s47, 9', f's_add_u32 s31, s46, {3*USTR + 384}', 's_add_u32 s31, s31, s3', f'v_lshlrev_b32 v{T+1}, 3, v0', f'v_add_u32 v{T}, s31, v{T+1}']
        for k in range(4): L.append((f'ds_read_b64 {vr(R+16+2*k,2)}, v{T} offset:{1024*k}', f'ur{k}'))
        L += ['s_lshr_b32 s31, s29, 1', 's_lshl_b32 s55, s2, 1', 's_add_u32 s55, s55, s31', 's_lshl_b32 s56, s55, 12', 's_add_u32 s56, s56, s3', f's_add_u32 s56, s56, {WS_ST}',
              's_add_u32 s55, s55, s3', 's_lshl_b32 s55, s55, 7', f's_add_u32 s60, s55, {FS}',
              's_lshl_b32 s31, s31, 4', f'v_lshrrev_b32 v{T+2}, s31, v{self.DS}', f'v_lshlrev_b32 v{T+2}, 16, v{T+2}']
        for k in range(4):
            L.append(lambda k=k: a.waitlg(f'ur{k}'))
            for j in range(2): L += [f'v_lshlrev_b32 v{R+4*k+2*j}, 16, v{R+16+2*k+j}', f'v_and_b32 v{R+4*k+2*j+1}, s33, v{R+16+2*k+j}']
            for j in range(4): L.append(f'v_fmac_f32 v{CA+4*k+j}, v{R+4*k+j}, v{T+2}')
            for j in range(2): L.append(f'v_cvt_pk_bf16_f32 v{T+4+2*k+j}, v{CA+4*k+2*j}, v{CA+4*k+2*j+1}')
            L.append((f'buffer_store_dwordx2 {vr(T+4+2*k,2)}, v{T+1}, s[12:15], s56 offen offset:{1024*k} sc1', 'sst'))
        return L, self.g.setflag('s60', T+3)

def emit_plain(a, L):
    n = 0
    for x in L:
        if x is BAR:
            a.waitall(vm=False); a('s_barrier'); n += 1
        else: a.emit([x])
    return n


def sizes_of(lines):
    import subprocess, tempfile, os
    d = tempfile.mkdtemp()
    open(d + '/t.s', 'w').write('.amdgcn_target "amdgcn-amd-amdhsa--gfx950"\n' + '\n'.join(lines) + '\n')
    r = subprocess.run(['llvm-mc', '-triple=amdgcn-amd-amdhsa', '-mcpu=gfx950', '-show-encoding', d + '/t.s'], capture_output=True, text=True)
    assert r.returncode == 0, r.stderr[:2000]
    enc = [len(l.split('encoding: [')[1].split(']')[0].split(',')) for l in r.stdout.split('\n') if 'encoding: [' in l]
    idx = [i for i, l in enumerate(lines) if Ins(l).is_ins]
    assert len(enc) == len(idx), (len(enc), len(idx))
    return dict(zip(idx, enc))

def finalize(a, name, opt):
    L, _ = pad_hazards([x for x in a.L], opt.get('verbose'))
    warm = [i for i, x in enumerate(L) if x == '@WARM@']
    base = [x if x != '@WARM@' else '' for x in L]
    sz = sizes_of(base)
    start = base.index('.p2align 12')
    out = base[:start + 1]; addr = 0; pads = []
    stop = base.index(f'{name}_tcomp:')
    n = len(base); i = start + 1
    E64 = ('v_add_f32', 'v_mul_f32', 'v_sub_f32', 'v_lshlrev_b32', 'v_and_b32', 'v_xor_b32', 'v_or_b32', 'v_mov_b32', 'v_exp_f32', 'v_rcp_f32', 'v_add_u32', 'v_max_f32',
           'v_lshrrev_b32', 'v_sqrt_f32', 'v_fmac_f32', 'v_max_u32', 'v_min_u32', 'v_sin_f32', 'v_cos_f32', 'v_fract_f32')
    while i < n:
        ln = base[i]
        if i in sz:
            if addr >= 4096 * (len(pads) + 1) and i < stop and not opt.get('nopad'):
                lb = f'{name}_pad{len(pads)}'; pads.append(lb)
                out.append(f'{lb}:'); out.append(f'@PAD{len(pads)-1}@'); addr += 4
            s = sz[i]
            if s == 4 and not opt.get('noalign') and (addr + 4) % 8 == 4:
                j = i + 1; run = 0; mf = 0
                while j < n and (j not in sz or sz[j] == 8):
                    if j in sz:
                        run += 1; mf += base[j].startswith('v_mfma')
                    j += 1
                mn = ln.split()[0]
                if run >= 3 and mn in E64:
                    ln = ln.replace(mn, mn + '_e64', 1); s = 8
                elif run >= 10 and mf == 0:
                    out.append('s_nop 0'); addr += 4
            addr += s
        out.append(ln); i += 1
    res = []; wi = 0
    for k, x in enumerate(out):
        if x.startswith('@PAD'):
            p = int(x[4:-1])
            res.append(f's_cbranch_execz {name + "_warmret0" if p < 2 else pads[p+2] if p + 2 < len(pads) else name + "_warmret1"}')
        elif k in warm and pads:
            res += ['s_mov_b64 exec, 0', 's_cmp_eq_u32 s18, 0', f's_cbranch_scc1 {pads[2*wi]}', f's_branch {pads[2*wi+1]}', f'{name}_warmret{wi}:', 's_mov_b64 exec, -1']
            wi += 1
        else: res.append(x)
    return '\n'.join(res) + '\n'

def fused(name, opt):
    g = G(name, opt); a = g.a; ssm = SSM(g); stamp = g.stamp
    nb = {'gl': 0, 'gc': 0, 'tl': 0, 'tc': 0}
    OWN = opt.get('own', 1); ZS = lambda k: (k + 2*OWN) % 4
    NR = opt.get('nr', 4); M16 = opt.get('m16', 1)
    rp = opt.get('rpat', 'SSSSSSR')
    pat = ''
    while len(pat) < 32:
        ch = rp[len(pat) % len(rp)]
        pat += ch if pat.count('R') < NR else 'S'
    RPOS = [k for k in range(32) if pat[k] == 'R']; SPOS = [k for k in range(32) if pat[k] == 'S']
    MEM = {k: r for r, k in enumerate(RPOS)}; MEM.update({k: NR + s for s, k in enumerate(SPOS)})
    SIDX = {k: s for s, k in enumerate(SPOS)}
    assert len(SPOS) % 4 == 0 and SPOS[-4:] == [28, 29, 30, 31]
    W3 = [(0, 29), (8192, 29), (L_Z + 8192*ZS(0), 29), (16384, 30), (24576, 30), (L_Z + 8192*ZS(1), 30), (32768, 31), (40960, 31), (L_Z + 8192*ZS(2), 31),
          (147456, 31), (155648, 31), (49152, 32), (57344, 32), (L_Z + 8192*ZS(3), 32)]
    W3LOC = [x[0] for x in W3]
    kernel_begin(a, name)
    lab = lambda s: f'{name}_{s}'
    a(f's_cmp_ge_u32 s2, 256\ns_cbranch_scc1 {lab("done")}')
    if opt.get('prof') or opt.get('dbg') or opt.get('span'): a('s_memrealtime s[62:63]\ns_memtime s[66:67]')
    a(f's_load_dwordx2 s[4:5], s[0:1], {KA["u"]}\ns_load_dwordx2 s[12:13], s[0:1], {KA["ws"]}')
    a('''v_lshrrev_b32 v1, 6, v0
s_and_b32 s24, s2, 7
s_bfe_u32 s25, s2, 0x20003
v_readfirstlane_b32 s29, v1
s_lshr_b32 s26, s24, 1
s_lshl_b32 s26, s26, 2
s_add_u32 s26, s26, s25
s_lshr_b32 s27, s2, 5
s_and_b32 s30, s24, 1
s_mul_i32 s28, s30, 7
s_add_u32 s28, s28, s27
v_and_b32 v0, 63, v0''')
    a(f's_cmp_ge_u32 s29, 4\ns_cbranch_scc1 {lab("help")}')
    a(f's_load_dwordx8 s[40:47], s[0:1], {KA["logA"]}\ns_load_dwordx4 s[48:51], s[0:1], {KA["logdt"]}')
    a(f's_load_dwordx2 s[18:19], s[0:1], {KA["bsp"]}\ns_load_dwordx2 s[20:21], s[0:1], {KA["out"]}')
    a.emit(ssm.param_addr())
    a(f's_lshl_b32 s35, s26, 2\ns_add_u32 s35, s35, s29\ns_mul_i32 s54, s35, 57344\ns_lshl_b32 s31, s28, 12\ns_add_u32 s54, s54, s31\ns_add_u32 s54, s54, {WS_HF}')
    a('v_lshlrev_b32 v7, 4, v0\nv_mov_b32 v8, -1\nv_mov_b32 v9, -1\nv_mov_b32 v10, -1\nv_mov_b32 v11, -1')
    a('s_waitcnt lgkmcnt(0)')
    tagload = f's_add_u32 s16, s12, {WS_EPOCH}\ns_addc_u32 s17, s13, 0\ns_load_dword s24, s[16:17], 0'
    tagmake = 's_waitcnt lgkmcnt(0)\ns_mul_i32 s24, s24, 0x19660d\ns_add_u32 s24, s24, 0x3c6ef35f'
    a.emit(ssm.param_loads())
    a(tagload)
    a(f's_cmp_eq_u32 s27, 7\ns_cbranch_scc1 {lab("tcomp")}')
    hcl = opt.get('hcl', 't')
    if hcl == 'g':
        a(f's_and_b32 s13, s13, 0xffff\ns_mov_b32 s14, {hex(WS_BYTES)}\ns_mov_b32 s15, 0x20000')
        for q in range(4): a(f'buffer_store_dwordx4 v[8:11], v7, s[12:15], s54 offen offset:{1024*q} sc1')
    a(f's_branch {lab("comp")}')
    a(f'{lab("help")}:')
    a(f's_load_dwordx2 s[8:9], s[0:1], {KA["win"]}\ns_load_dwordx2 s[20:21], s[0:1], {KA["wsp"]}\ns_load_dwordx2 s[36:37], s[0:1], {KA["wout"]}')
    a('s_and_b32 s18, s29, 1\ns_lshl_b32 s19, s18, 12')
    srdc = f's_mov_b32 s14, {hex(WS_BYTES)}\ns_mov_b32 s15, 0x20000\ns_mov_b32 s6, 0x200000\ns_mov_b32 s7, 0x20000'
    a(srdc)
    if not opt.get('nocpf'):
        a(f's_getpc_b64 s[56:57]\n{lab("pc")}:\ns_lshr_b32 s31, s2, 2\ns_and_b32 s31, s31, 62\ns_add_u32 s31, s31, s18\nv_and_b32 v1, 7, v0\nv_lshlrev_b32 v1, 6, v1\nv_add_lshl_u32 v1, v1, s31, 7\nv_min_u32 v1, {lab("done")}-{lab("pc")}, v1')
        a('global_load_dword v31, v1, s[56:57]')
    a(f's_cmp_eq_u32 s27, 7\ns_cbranch_scc1 {lab("thelp")}')

    def rot3(r):
        sm, sn = opt.get('sm3', 0), opt.get('sn3', 0)
        a(f's_mul_i32 s{r}, s25, {sm}\ns_mul_i32 s31, s27, {sn}\ns_add_u32 s{r}, s{r}, s31\ns_lshr_b32 s{r}, s{r}, 4\ns_sub_u32 s31, s{r}, 14\ns_cmp_ge_u32 s{r}, 14\ns_cselect_b32 s{r}, s31, s{r}')
    def late_loader_setup():
        a(f's_mov_b32 s22, 0x800000\ns_mov_b32 s23, 0x20000\ns_mov_b32 s38, {896*1024}\ns_mov_b32 s39, 0x20000')
        a('s_and_b32 s21, s21, 0xffff\ns_and_b32 s37, s37, 0xffff\ns_and_b32 s13, s13, 0xffff')
        a('v_lshl_add_u32 v14, v0, 4, s19\nv_lshlrev_b32 v15, 7, v0')
        a('s_lshl_b32 s31, s27, 7\ns_lshl_b32 s3, s18, 15\ns_add_u32 s31, s31, s3'); troffs(a, 16, 1024, 's31')
        a('s_lshl_b32 s32, s26, 1\ns_add_u32 s32, s32, s30\ns_lshl_b32 s3, s32, 6'); rowoffs(a, 20, 's3', 10, 's31')
        rot3(60)
        a(f's_lshl_b32 s35, s2, 13')
        a(f's_lshr_b32 s31, s2, 7\ns_lshl_b32 s31, s31, 13\ns_add_u32 s59, s31, s19\ns_add_u32 s59, s59, {FX}\nv_and_b32 v32, 0xfff, v15')
        if hcl == 't': a(f'v_min_u32 v33, {3*128}, v15\ns_lshl_b32 s31, s26, 9\ns_add_u32 s31, s31, {FH}')
        else:
            a(f'v_min_u32 v33, 13, v0\nv_lshlrev_b32 v33, 13, v33\ns_lshl_b32 s31, s32, 1\ns_add_u32 s31, s31, s18\ns_lshl_b32 s31, s31, 7\ns_add_u32 s31, s31, {FZ}')
        a(f"""v_add_u32 v33, s31, v33
s_lshl_b32 s31, s27, 13
s_bfe_u32 s3, s26, 0x10001
s_lshl_b32 s3, s3, 16
s_add_u32 s31, s31, s3
s_add_u32 s31, s31, s19
s_add_u32 s61, s31, {FS}
v_mov_b32 v36, -1
v_mov_b32 v37, -1
v_mov_b32 v38, -1
v_mov_b32 v39, -1
v_mov_b32 v34, 0
v_lshlrev_b32 v44, 2, v0
s_lshl_b32 s31, s27, 18
s_lshl_b32 s3, s18, 17
s_add_u32 s31, s31, s3
s_lshl_b32 s3, s32, 7
s_add_u32 s31, s31, s3
s_add_u32 s31, s31, {WS_ST}""")
        troffs(a, 40, 4096, 's31')
    def adv(r): return [f's_add_u32 s{r}, s{r}, 1', f's_cmp_eq_u32 s{r}, 14', f's_cselect_b32 s{r}, 0, s{r}']
    def w3(j, need=None): return grp(W3LOC[j], ['s_lshl_b32 s56, s60, 16'] + adv(60), 16, 's[36:39]', 's56', need=need)
    def x3(need=None): return grp(L_X3, None, 20, 's[4:7]', '0', need=need)
    w3m = opt.get('w3m', 14)
    fsload = 'buffer_load_dword v27, v32, s[12:15], s61 offen sc1'
    def s3tail():
        if w3m < 14:
            paced(sum([w3(j) for j in range(w3m, 14)], []), opt.get('thin4', 60))
            a.L.append(fsload)
            a('s_waitcnt vmcnt(1)\ns_barrier\ns_waitcnt vmcnt(0)')
        lspin('s61', 'v32', w3m < 14)
        stream_emit(a, grp(L_S3, None, 40, 's[12:15]', '0', fl='sc1'), 0, 0)
        a('s_waitcnt vmcnt(0)')
        stamp(15)
    def rawg(cb=None): return grp(L_RAW + 16, [f's_add_u32 s31, s35, {WS_XNT}'], 14, 's[12:15]', 's31', True, cb, None, 'sc1')
    def lspin(soff, voff, first=False):
        lp = a.newlab('lsp'); lo = a.newlab('lspo')
        a(f's_mov_b32 s58, {SPIN}')
        if first: a(f's_branch {lp}c')
        a(f'{lp}:')
        a.L.append(f'buffer_load_dword v27, {voff}, s[12:15], {soff} offen sc1'); a.L.append('s_waitcnt vmcnt(0)')
        a(f'{lp}c:\nv_cmp_ne_u32 vcc, s24, v27\ns_cbranch_vccz {lo}\ns_sub_u32 s58, s58, 1\ns_cmp_lg_u32 s58, 0\ns_cbranch_scc1 {lp}\n{lo}:')
    def lflag(soff):
        a('s_mov_b32 exec_hi, 0'); a.L.append(f'buffer_store_dword v35, v44, s[12:15], {soff} offen sc1'); a('s_mov_b64 exec, -1')
    def paced(items, thin):
        for i in range(0, len(items), 4):
            stream_emit(a, items[i:i+4], 0, 0)
            if thin < 60: a(f's_waitcnt vmcnt({thin})')
    ft = opt.get('ft', ''); gs = opt.get('gs', 2); lg = gs.bit_length() - 1
    prog = opt.get('prog', 8)
    RG = 32 if prog else opt.get('rg', 1)
    def k0calc(r, with_c):
        if prog: a(f's_lshr_b32 s{r}, s26, 2\ns_lshl_b32 s{r}, s{r}, 3\ns_add_u32 s{r}, s{r}, {(32 - NR) % 32}')
        else: a(f's_mul_i32 s{r}, s25, {RG // 4 if RG >= 4 else 0}')
    def memidx(d, r, idx):
        if OWN and NR <= idx < NR + 8:
            return [f's_add_u32 s{d}, s47, {idx - NR}', f's_and_b32 s{d}, s{d}, 7', f's_or_b32 s{d}, s{d}, s46']
        return [f's_add_u32 s{d}, s{r}, {idx}', f's_and_b32 s{d}, s{d}, {RG-1}', f's_or_b32 s{d}, s{d}, {idx & ~(RG-1)}']
    def wtouch(groups, other, pace):
        for gi in groups:
            assert RG == 1 or (RG // 4) % gs == 0
            a(f's_xor_b32 s31, s30, {other}\ns_add_u32 s31, s31, {2*gi}\ns_lshl_b32 s31, s31, {lg}\ns_and_b32 s3, s31, {31 & ~(RG-1)}\ns_add_u32 s31, s31, s45\ns_and_b32 s31, s31, {RG-1}\ns_or_b32 s31, s31, s3\ns_lshl_b32 s31, s31, 7')
            for i in range(gs):
                a.L.append(f'buffer_load_dword v30, v29, s[20:23], s31 offen {ft}')
                if i + 1 < gs: a(f's_add_u32 s31, s31, {(64 // gs) * 4096}')
                if pace is not None: a(f's_waitcnt vmcnt({pace})')
    def count_bars(start): return sum(1 for x in a.L[start:] if x.strip() == 's_barrier')

    st0 = len(a.L)
    XO = [131072, 49152, 65536, 81920, 98304, 114688, 131072, 0]
    a('s_lshl_b32 s34, s25, 1\ns_add_u32 s34, s34, s27\ns_and_b32 s34, s34, 7\ns_lshl_b32 s33, s26, 7\ns_lshl_b32 s3, s18, 5\ns_add_u32 s33, s33, s3')
    rowoffs(a, 2, 's33', 10)
    a(f's_lshl_b32 s31, s28, 7\ns_mul_i32 s3, s18, {32*3584}\ns_add_u32 s31, s31, s3'); troffs(a, 6, 3584, 's31')
    def so(c): a(f's_add_u32 s31, s34, {c}\ns_and_b32 s31, s31, 7\ns_lshl_b32 s{40+c}, s31, 7\ns_mul_i32 s{48+c}, s31, {64*3584}')
    for c in range(4): so(c)
    a(f's_mov_b32 s10, {512*3584}\ns_mov_b32 s11, 0x20000')
    a('s_waitcnt lgkmcnt(0)')
    a(tagload)
    a('s_and_b32 s5, s5, 0xffff\ns_and_b32 s9, s9, 0xffff')
    f1 = opt.get('f1', '')
    def wg(p, cb=None): return grp(p*8192, [f's_add_u32 s31, s{48+p%8}, {1792 if p < 8 else 0}'], 6, 's[8:11]', 's31', cb=cb, fl=f1)
    def xg(c, need=None):
        return sum([grp(XO[c] + k*8192, [f's_add_u32 s31, s{40+c}, {k*65536}'], 2, 's[4:7]', 's31', cb=c+1, need=need if k == 0 else None, fl=f1) for k in range(2)], [])
    we = opt.get('we', 3)
    items = xg(0) + wg(0, 1) + wg(1, 2) + xg(1) + sum([wg(p, p+1) for p in range(2, we + 1)], [])
    for c in range(2, 8):
        items += xg(c, 1)
        if c > we: items += wg(c, c+1)
    ncs = opt.get('ncs', 4)
    for p in range(8, 8 + ncs): items += wg(p)
    early = opt.get('early', 2)
    def setup2():
        for c in range(4, 8): so(c)
        late_loader_setup()
        rowoffs(a, 10, 's33', 12)
        k0calc(57, True)
    if early >= 1: setup2()
    if early >= 2: a('@WARM@')
    def hook1(b, k):
        if b == 0 and k == -1:
            if early < 1: setup2()
            if early < 2: a('@WARM@')
            a(tagmake + '\nv_mov_b32 v35, s24')
        if k == 1 and b in (1, 8): stamp({1: 1, 8: 2}[b])
    stream_emit(a, items, 9, opt.get('d1', 16), hook1)
    a('s_lshl_b32 s47, s25, 1\ns_lshr_b32 s46, s26, 2\ns_lshl_b32 s46, s46, 3')
    a(f's_lshl_b32 s34, s28, 18\ns_lshl_b32 s31, s28, 13\ns_lshl_b32 s3, s18, 7\ns_add_u32 s44, s31, s3\ns_add_u32 s44, s44, {FZ}\nv_lshlrev_b32 v28, 1, v32')
    a('s_barrier')
    stream_emit(a, sum([wg(p) for p in range(8 + ncs, 16)], []), 0, 0)
    fw = opt.get('fw', '')
    wcnt = [0]
    def wst(slot, half, cb=None, need=None):
        if half == 0:
            su = memidx(42, 57, wcnt[0] % opt.get('wfix', 32)) + ['s_lshl_b32 s42, s42, 7']; wcnt[0] += 1
        else: su = ['s_add_u32 s42, s42, 0x40000']
        return grp(slot * 16384 + half*8192, su, 10, 's[20:23]', 's42', cb=cb, need=need, fl=fw)
    def wfull(slot): return wst(slot, 0) + wst(slot, 1)
    def zst(k, cb=None, need=None):
        return grp(L_Z + ZS(k) * 8192, memidx(43, 57, MEM[k] % opt.get('zfix', 32)) + ['s_lshl_b32 s43, s43, 13', 's_add_u32 s43, s43, s34'], 14, 's[12:15]', 's43', True, cb, need, 'sc1')
    pre1 = opt.get('pre1', 2); thin = opt.get('thin', 12)
    for k in range(pre1): paced(wfull(k), thin)
    a(f's_waitcnt vmcnt({8*pre1})\ns_barrier')
    pre2 = opt.get('pre2', 4)
    for k in range(pre1, pre2): paced(wfull(k), thin)
    a('@WARM@')
    if pre2 < 4:
        a('s_barrier')
        for k in range(pre2, 4): paced(wfull(k), 60)
    stamp(3)
    spre = 4 if NR == 0 else opt.get('spre', 4)
    sp1 = min(spre, opt.get('sp1', 2))
    lspin('s59', 'v32')
    gt = opt.get('gt', 0)
    def gtouch():
        assert gs == 2 and RG == 32
        a('s_and_b32 s3, s27, 1\ns_lshl_b32 s3, s3, 6\ns_add_u32 s3, s3, s33\nv_lshrrev_b32 v29, 1, v0\nv_add_u32 v29, s3, v29\nv_lshlrev_b32 v29, 5, v29\nv_and_b32 v1, 1, v0\nv_add_lshl_u32 v29, v29, v1, 7')
        for i in range(gt):
            a(f's_lshr_b32 s31, s27, 1\ns_min_u32 s31, s31, 2\ns_add_u32 s31, s31, {8 - 3*gt + 3*i}\ns_lshl_b32 s31, s31, 1\ns_add_u32 s31, s31, s30\ns_lshl_b32 s31, s31, 1\ns_add_u32 s31, s31, s57\ns_and_b32 s31, s31, 31\ns_lshl_b32 s31, s31, 7')
            a.L.append('buffer_load_dword v30, v29, s[20:23], s31 offen')
    if NR >= 4: a('s_barrier')
    if gt: gtouch()
    a('s_barrier')
    for k in range(sp1): paced(wfull(k), 60)
    lb = opt.get('lb', 0)
    if not lb: a('s_barrier')
    npre = opt.get('npre', 3)
    fzv = 'v28'
    if prog:
        assert all(pat[k] == 'S' for k in range(min(prog, 6)))
        pn = min(prog, pat.index('R') if 'R' in pat else 32)
        a(f's_lshr_b32 s31, s26, 2\ns_lshl_b32 s31, s31, 11\nv_min_u32 v45, {((8 if OWN else pn)-1)*256}, v28\nv_add_u32 v45, s31, v45')
        fzv = 'v45'
    spec = opt.get('spec', 1)
    rest = list(range(sp1, spre)) if NR >= 4 else []
    for n, k in enumerate(rest):
        if spec: a.L.append(f'buffer_load_dword v{46+n}, {fzv}, s[12:15], s44 offen sc1')
        paced(wfull(k), 60)
    if lb:
        a.L.append(f'buffer_load_dword v27, {fzv}, s[12:15], s44 offen sc1')
        a('s_barrier')
    stamp(4)
    go = a.newlab('zgo')
    if spec:
        for n in range(len(rest)):
            a(f's_waitcnt vmcnt({9*(len(rest)-n) - 1 + lb})\nv_cmp_ne_u32 vcc, s24, v{46+n}\ns_cbranch_vccz {go}')
    if lb: a('s_waitcnt vmcnt(0)')
    lspin('s44', fzv, bool(lb))
    a(f'{go}:')
    stamp(5)
    tiles = [(k, 0, lambda k=k: zst(k, k, k - 3 if k >= 4 else None)) for k in range(2*OWN, 32)]
    last = -1
    for s in range(spre, len(SPOS)):
        need = SPOS[s-4] + 1 if s >= 4 else None
        for h in range(2):
            key = min(SPOS[s] - 0.5, max((need + 3 if need is not None else 0) - 0.5, last + opt.get('wgap', 10) / 10))
            last = key
            tiles.append((key, s*2 + h + 1, lambda s=s, h=h, need=need: wst(s % 4, h, SPOS[s], need)))
    hc = opt.get('hc', 28)
    if hcl != 'g': tiles.append((hc - 0.9, 0, lambda: [([], 'buffer_load_dword v27, v33, s[12:15], 0 offen sc1', hc, None)]))
    if prog:
        pb = pn - 3
        tiles.append((pb + 0.1, 0, lambda: [([], 'buffer_load_dword v27, v28, s[12:15], s44 offen sc1', pb, None)]))
    tiles.sort(key=lambda x: (x[0], x[1]))
    items = sum([t[2]() for t in tiles], [])
    w3e = opt.get('w3e', 6)
    for j in range(w3e): items += w3(j, W3[j][1])
    hk = {(0,1): 6, (4,1): 7, (8,1): 8, (16,1): 9, (24,1): 10, (31,1): 11, (16,0): 16, (24,0): 17, (32,1): 12}
    hintb = opt.get('hintb', 32)
    def hook2(b, k):
        if (b, k) in hk: stamp(hk[(b, k)])
        if prog and (b, k) == (pb, 1): lspin('s44', 'v28', True)
        if (b, k) == (hc, 1) and hcl != 'g': lspin('0', 'v33', True)
        if (b, k) == (hintb, 1):
            sk = a.newlab('nohint')
            a(f's_or_b32 s3, s27, s18\ns_cmp_lg_u32 s3, 0\ns_cbranch_scc1 {sk}\ns_lshl_b32 s3, s32, 7\ns_add_u32 s3, s3, {FT}')
            lflag('s3')
            a(f'{sk}:')
    stream_emit(a, items, 33, lambda b: opt.get('d2', 20) if b < 30 else opt.get('d2e', 12), hook2, True)
    hb = opt.get('hb', 7)
    if hb:
        paced(x3() + sum([w3(j) for j in range(w3e, hb)], []), 60)
        hook2(32.5, 1)
        a('s_barrier')
        paced(sum([w3(j) for j in range(max(hb, w3e), w3m)], []), 60)
    else: paced(x3() + sum([w3(j) for j in range(w3e, w3m)], []), 60)
    stamp(14)
    hook2(33, 1)
    a('s_waitcnt vmcnt(0)')
    hook2(34, 1)
    a('s_barrier')
    stamp(13)
    s3tail()
    nb['gl'] = count_bars(st0)
    g.prof_store()
    a('s_endpgm')

    a(f'{lab("thelp")}:')
    st0 = len(a.L)
    a('v_mov_b32 v36, -1\nv_mov_b32 v37, -1\nv_mov_b32 v38, -1\nv_mov_b32 v39, -1\nv_lshlrev_b32 v14, 4, v0')
    a(f's_lshl_b32 s31, s26, 1\ns_add_u32 s31, s31, s30\ns_lshl_b32 s31, s31, 1\ns_add_u32 s31, s31, s18\ns_lshl_b32 s31, s31, 13\ns_add_u32 s31, s31, {WS_STATS}')
    a('s_waitcnt lgkmcnt(0)')
    a(tagload)
    a('s_and_b32 s5, s5, 0xffff\ns_and_b32 s13, s13, 0xffff')
    for q in range(4): a.L.append(f'buffer_store_dwordx4 v[36:39], v14, s[12:15], s31 offen offset:{1024*q} sc1')
    late_loader_setup()
    if opt.get('tlbs'): a(f's_load_dwordx2 s[40:41], s[0:1], {KA["out"]}\ns_load_dwordx2 s[42:43], s[0:1], {KA["bsp"]}')
    k0calc(45, False)
    a(f's_lshl_b32 s31, s26, 7\ns_lshl_b32 s3, s18, 6\ns_add_u32 s31, s31, s3\nv_lshrrev_b32 v29, {lg}, v0\nv_add_u32 v29, s31, v29\nv_lshlrev_b32 v29, 5, v29\nv_and_b32 v1, {gs-1}, v0\nv_add_lshl_u32 v29, v29, v1, 7')
    ng = 16 // gs; tp_ = opt.get('tpace', 2); te = opt.get('te', 4) // gs
    a(tagmake + '\nv_mov_b32 v35, s24')
    if opt.get('tlbs'):
        st = opt['tlbs'] << 10
        a('s_lshl_b32 s31, s26, 19\ns_load_dword s46, s[20:21], s31')
        for o in range(0, 12 << 20, st): a(f's_mov_b32 s31, {o}\ns_load_dword s46, s[12:13], s31')
        a('s_load_dword s46, s[42:43], 0\ns_load_dword s46, s[36:37], 0\ns_load_dword s46, s[40:41], 0')
    a('s_waitcnt vmcnt(0)')
    stamp(1)
    a('s_barrier')
    te = opt.get('te', 0) // gs
    wtouch(range(te), 0, None)
    a('s_barrier')
    tm = opt.get('tm', 2) // gs; tn = opt.get('tn', 8) // gs
    wtouch(range(te, max(te, tm)), 0, None); tm = max(te, tm)
    a('s_barrier')
    wtouch(range(tm, min(tn, ng - 3*gt)), 0, None)
    a('s_barrier')
    lspin('s59', 'v32')
    a('s_barrier')
    stamp(5)
    wtouch(range(tn, ng - 3*gt), 0, None)
    a('s_barrier')
    stamp(2)
    if hcl == 't':
        cl_ = a.newlab('hclr')
        a(f's_lshl_b32 s41, s32, 1\ns_add_u32 s41, s41, s18\ns_mul_i32 s31, s41, 57344\ns_sub_u32 s31, s31, s19\ns_add_u32 s31, s31, {WS_HF}\ns_mov_b32 s3, 14\n{cl_}:')
        for q in range(4): a.L.append(f'buffer_store_dwordx4 v[36:39], v14, s[12:15], s31 offen offset:{1024*q} sc1')
        a(f's_add_u32 s31, s31, 4096\ns_sub_u32 s3, s3, 1\ns_cmp_lg_u32 s3, 0\ns_cbranch_scc1 {cl_}')
        a(f's_waitcnt vmcnt(0)\ns_lshl_b32 s31, s41, 7\ns_add_u32 s31, s31, {FH}')
        lflag('s31')
    stamp(3)
    a('s_barrier')
    wtouch(range(opt.get('tskip', 16) // gs, ng), 1, tp_)
    nwo = opt.get('nwo', 14)
    a(f's_lshl_b32 s41, s25, 1\ns_add_u32 s41, s41, s18\ns_mul_i32 s41, s41, {14*8192}\ns_and_b32 s40, s2, 7\ns_mul_i32 s40, s40, 7\ns_lshr_b32 s40, s40, 2')
    for i in range(nwo):
        a('s_lshl_b32 s31, s40, 13\ns_add_u32 s31, s31, s41')
        a.L.append('buffer_load_dword v30, v15, s[36:39], s31 offen')
        a('\n'.join(adv(40)))
    paced(x3() + sum([w3(j) for j in range(w3m)], []), 60)
    stamp(6)
    if hcl != 't': lspin('0', 'v33')
    stamp(12)
    a(f's_lshl_b32 s3, s32, 7\ns_add_u32 s3, s3, {FT}')
    lspin('s3', 'v34')
    a('s_barrier\ns_barrier')
    stamp(13)
    s3tail()
    nb['tl'] = count_bars(st0)
    g.prof_store()
    a('s_endpgm')

    a('.p2align 12')
    a(f'{lab("comp")}:')
    g.comp = True
    a.vm = ['prm'] * 6 + (['hcl'] * 4 if hcl == 'g' else []); a.lg = []
    def cprologue():
        a(srdc)
        a('s_mov_b32 s33, 0xffff0000\ns_mov_b32 s34, 0x3f803f80\ns_mov_b32 s22, 0x200000\ns_mov_b32 s23, 0x20000')
        a('s_and_b32 s5, s5, 0xffff\ns_and_b32 s13, s13, 0xffff\ns_and_b32 s21, s21, 0xffff')
        a('v_lshlrev_b32 v7, 4, v0\nv_lshlrev_b32 v6, 2, v0')
    cprologue()
    a(f's_lshl_b32 s35, s26, 2\ns_add_u32 s35, s35, s29\ns_lshl_b32 s31, s35, 13\ns_add_u32 s37, s31, {WS_STATS}\ns_add_u32 s60, s37, 4096\ns_lshl_b32 s3, s28, 8\ns_add_u32 s38, s37, s3')
    a.emit(ssm.kaddr())
    X = 128; A2 = 64; A1 = 96; WF = 32
    XR = A1; ST = A1 + 4; T = A1 + 8; SD = A1 + 16; CC = A1 + 18; NM = A1 + 20; FL = A1 + 22
    WR = 8; SEL = 16; CS = 24; NEG = 28
    a('s_lshl_b32 s32, s29, 12\ns_add_u32 s32, s32, 131072')
    a.emit(rowread_list(1, 2, 's32') + trread_list(3, 2))
    for i in range(4):
        a(f's_add_u32 s31, s29, {i}\ns_and_b32 s31, s31, 3\ns_lshl_b32 s3, s31, 5\nv_xor_b32 v{XR+i}, s3, v1\ns_lshl_b32 s3, s31, 11\nv_add_u32 v{WR+2*i}, s3, v3\nv_xor_b32 v{WR+1+2*i}, 64, v{WR+2*i}')
    a(f'''v_bfe_u32 v1, v0, 4, 1
v_lshlrev_b32 v1, 2, v1
v_and_b32 v2, 15, v0
v_cmp_eq_u32 vcc, v1, v2
v_mov_b32 v3, s34
v_add_u32 v1, 8, v1
v_cndmask_b32 v{SEL}, 0, v3, vcc
v_cmp_eq_u32 vcc, v1, v2
s_lshl_b32 s31, s29, 2
s_add_u32 s31, s31, {L_CS}
v_cndmask_b32 v{SEL+4}, 0, v3, vcc
v_add_u32 v1, s31, v7
v_and_b32 v2, 511, v7
v_add_u32 v2, {L_CS}, v2''')
    for i in range(1, 4): a(f'v_mov_b32 v{SEL+i}, v{SEL}\nv_mov_b32 v{SEL+4+i}, v{SEL+4}')
    a(f's_lshl_b32 s31, s35, 12\ns_lshl_b32 s3, s28, 8')
    a(f's_lshl_b32 s52, s28, 18\ns_add_u32 s52, s52, s31')
    a(f's_lshl_b32 s31, s35, 2\ns_add_u32 s53, s31, s3\ns_lshl_b32 s53, s53, 5\ns_add_u32 s53, s53, {FZ}')
    a(tagmake); a.lg = []
    a(f'{lab("kgen")}:')
    emit_plain(a, ssm.kgen())
    stamp(1)
    a(f's_cmp_eq_u32 s27, 7\ns_cbranch_scc1 {lab("tcomp2")}')
    lg_split = list(a.lg)
    st0 = len(a.L)
    def xreads(c, base, off): return [(f'ds_read_b128 {vr(X+16*c+4*i,4)}, v{base+i} offset:{off}', f'xr{c}') for i in range(4)]
    XB = [131072, 49152, 49152, 49152, 49152, 114688, 114688, 0]
    def gx(c):
        L = []
        if c and XB[c] != XB[c-1]: L += [f'v_add_u32 v{XR+i}, {hex((XB[c] - XB[c-1]) & 0xffffffff)}, v{XR+i}' for i in range(4)]
        return L, xreads(c, XR, XO[c] - XB[c])
    def dots(c, S):
        for i in range(16):
            r = X + 16*c + i
            a(f'v_dot2c_f32_bf16 v{S + 2*(i&1)}, s34, v{r}\nv_dot2c_f32_bf16 v{S + 1 + 2*(i&1)}, v{r}, v{r}')
    def redux(S): return [f'v_add_f32 v{S}, v{S}, v{S+2}', f'v_add_f32 v{S+1}, v{S+1}, v{S+3}', f'v_mov_b32 v{S+2}, v{S}', f'v_mov_b32 v{S+3}, v{S+1}',
             f'v_permlane32_swap_b32 v{S}, v{S+2}', f'v_permlane32_swap_b32 v{S+1}, v{S+3}', f'v_add_f32 v{S}, v{S}, v{S+2}', f'v_add_f32 v{S+1}, v{S+1}, v{S+3}']
    def wreads(t):
        n, i = divmod(t, 4)
        L = []
        for fb in range(2):
            d = WF + 8*i + 4*fb
            L.append((f'ds_read_b64_tr_b16 {vr(d,2)}, v{WR+2*i+fb} offset:{(n%8)*8192}', f'wr{t}'))
            L.append((f'ds_read_b64_tr_b16 {vr(d+2,2)}, v{WR+2*i+fb} offset:{(n%8)*8192+512}', f'wr{t}'))
        return L
    def mfmas(t):
        n, i = divmod(t, 4); acc = A2 if n < 8 else A1; f = t % 32
        L = []
        for fb in range(2):
            c = '0' if f == 0 else vr(acc+16*fb, 16)
            L.append(f'v_mfma_f32_32x32x16_bf16 {vr(acc+16*fb,16)}, {vr(WF+8*i+4*fb,4)}, {vr(X+4*f,4)}, {c}')
        if i == 0:
            cs = [f'v_mfma_f32_16x16x32_bf16 {vr(CS,4)}, {vr(SEL+4*fb,4)}, {vr(WF+4*fb,4)}, {"0" if (f == 0 and fb == 0) else vr(CS,4)}' for fb in range(2)]
            L = ['\n'.join(cs + L[:1]), L[1]]
        return L
    def cs_write(part, T):
        return [f'v_cvt_pk_bf16_f32 v{T}, v{CS}, v{CS}', f'v_lshlrev_b32 v{T}, 16, v{T}', f'v_sub_f32 v{T}, v{CS}, v{T}', f'v_cvt_pk_bf16_f32 v{T}, v{CS}, v{T}',
                (f'ds_write_b32 v1, v{T} offset:{part*1024}', 'csw')]
    def cs_read(part, T):
        return [lambda: a.waitall(vm=False), 's_barrier'] + [(f'ds_read_b128 {vr(T+4*fb,4)}, v2 offset:{part*1024 + 512*fb}', 'csr') for fb in range(2)]
    def cs_apply(acc, T):
        return [lambda: a.waitlg('csr')] + [f'v_mfma_f32_32x32x16_bf16 {vr(acc+16*fb,16)}, {vr(T+4*fb,4)}, {vr(NEG,4)}, {vr(acc+16*fb,16)}' for fb in range(2)]
    def gconst(cc, r): return [f'v_mul_f32 v{cc+1}, {fbits(C0)}, v{r}', f'v_mul_f32 v{cc}, v{r}, v{r}', f'v_mul_f32 v{cc}, v{cc}, v{cc+1}', f'v_mul_f32 v{cc}, {fbits(0.044715)}, v{cc}']
    def halves(S, Q): return [f'v_permlane32_swap_b32 v{S}, v{Q}', f'v_add_f32 v{S}, v{S}, v{Q}', f'v_mov_b32 v{S+1}, v{S}', f'v_permlane32_swap_b32 v{S}, v{S+1}']
    fin1 = halves(ST, ST+2) + ln_list(ST, ST+1, 512, ST+2, NM, 4, SD) + [
        'v_cmp_gt_u32 vcc, 32, v0', f'v_lshrrev_b32 v{NEG}, 16, v{NM}', f'v_or_b32 v{NEG}, v{NEG}, v{NM}', f'v_cndmask_b32 v{NEG}, 0, v{NEG}, vcc'] + \
        [f'v_mov_b32 v{NEG+i}, v{NEG}' for i in range(1, 4)] + gconst(CC, 4)
    sload = f'buffer_load_dwordx4 {vr(ST,4)}, v7, s[12:15], s60 offen offset:3072 sc1'
    a.waitall(vm=False)
    a('s_barrier'); a.emit(gx(0)[1] + wreads(0) + wreads(1) + wreads(2))
    ts = opt.get('ts', 17); tk = opt.get('tk', 29)
    for c in range(8):
        fi = opt.get('fine') == 'p1' and c in (3, 4)
        if fi: stamp(3 + 6*(c-3), True)
        if c < 7:
            pre, xr = gx(c+1)
            last = [] if c == 0 else [xlast]
            fills = {0: last + wreads(4*c+3) + pre + ['s_barrier'], 1: xr[:1] + wreads(4*c+4), 2: xr[1:2] + wreads(4*c+5), 3: xr[2:3] + wreads(4*c+6)}
            xlast = xr[3]
        else:
            fills = {0: [xlast] + wreads(4*c+3), 1: cs_write(0, T), 2: [], 3: cs_read(0, T)}
            n = 32 - tk
            for j in range(n): fills[tk - 28 + j] += fin1[j*len(fin1)//n:(j+1)*len(fin1)//n]
        for i in range(4):
            t = 4*c + i
            if opt.get('fine') == 'p1e' and t >= 19 and t != 22: stamp(3 + t - 19 - (t > 22), True)
            if t == ts: a(sload, 'st1')
            if t == tk:
                a.waitvm('st1'); g.spin([sload], [ST+1, ST+3], FL)
            if opt.get('fine') == 'p1e' and t == tk: stamp(15, True)
            a.waitlg(f'wr{t}')
            a.emit(merge(mfmas(t), fills[i]))
            if fi: stamp(5 + i + 6*(c-3), True)
    stamp(2)
    a.emit(cs_apply(A2, T))
    for i in range(8): a(f'v_add_u32 v{WR+i}, 65536, v{WR+i}')
    a(f'v_and_b32 v{FL}, 15, v0\nv_lshrrev_b32 v{FL+1}, 4, v0\nv_lshlrev_b32 v{FL}, 4, v{FL}\nv_lshl_add_u32 v{FL}, v{FL+1}, 2, v{FL}')
    a.emit(gelu_pk(A2, 32, CC, SD, T))
    AH = 3
    rd = sum([wreads(t) for t in range(32, 32 + AH)], [])
    st = []
    for i in range(16):
        p = A2 + 2*i
        if i == 0: st.append(f'v_pk_mul_f32 {vr(ST+2,2)}, {vr(p,2)}, {vr(p,2)}')
        else: st += [f'v_pk_add_f32 {vr(ST,2)}, {vr(p-2,2) if i == 1 else vr(ST,2)}, {vr(p,2)}', f'v_pk_fma_f32 {vr(ST+2,2)}, {vr(p,2)}, {vr(p,2)}, {vr(ST+2,2)}']
    st += [f'v_add_f32 v{ST}, v{ST}, v{ST+1}', f'v_add_f32 v{ST+2}, v{ST+2}, v{ST+3}']
    a.emit(st)
    a(f'v_permlane32_swap_b32 v{ST}, v{ST+2}')
    a(f'v_add_f32 v3, v{ST}, v{ST+2}\nv_min_u32 v3, 0xfffffffe, v3')
    a.waitall(lg=False)
    a(f'buffer_store_dword v3, v{FL}, s[12:15], s38 offen sc1', 'pub')
    stamp(3)
    a('s_barrier')
    a.emit(rd)
    TA = X; P = X + 8; T2 = A2 + 16; U = X + 16; Q = X + 6; RA = A2 + 28
    pl = [f'buffer_load_dwordx4 {vr(P+4*j,4)}, v{7 if j < 3 else TA+7}, s[12:15], s37 offen offset:{1024*j} sc1' for j in range(4)]
    zcol = f'v_and_b32 v{TA+4}, 56, v{WR}' if not M16 else f'v_and_b32 v{TA+4}, 3, v0\nv_bfe_u32 v{TA+5}, v0, 4, 1\nv_lshl_add_u32 v{TA+4}, v{TA+5}, 2, v{TA+4}\nv_lshlrev_b32 v{TA+4}, 3, v{TA+4}'
    taddr = f"""v_and_b32 v{TA+6}, 7, v0
v_lshrrev_b32 v{TA+7}, 5, v0
v_xor_b32 v{TA+6}, v{TA+6}, v{TA+7}
v_lshlrev_b32 v{TA+6}, 4, v{TA+6}
v_and_b32 v{TA}, 31, v0
v_lshl_add_u32 v{TA}, v{TA}, 7, v{TA+6}
v_add_u32 v{TA}, s32, v{TA}
v_xor_b32 v{TA+1}, 32, v{TA}
v_xor_b32 v{TA+2}, 64, v{TA}
v_xor_b32 v{TA+3}, 96, v{TA}
v_bfe_u32 v{TA+6}, v0, 2, 2
v_lshl_add_u32 v{TA+7}, v{TA+7}, 3, v{TA+6}
v_lshlrev_b32 v{TA+6}, 4, v{TA+6}
{zcol}
v_xor_b32 v{TA+4}, v{TA+4}, v{TA+6}
v_lshl_add_u32 v{TA+4}, v{TA+7}, 7, v{TA+4}
v_add_u32 v{TA+4}, s32, v{TA+4}
v_xor_b32 v{TA+5}, 64, v{TA+4}
v_lshlrev_b32 v{TA+7}, 25, v0
v_and_b32 v{TA+7}, 0x40000000, v{TA+7}
v_add_u32 v{TA+7}, v{TA+7}, v7""".split('\n')
    fin2 = [f'v_pk_add_f32 {vr(P+j,2)}, {vr(P+j,2)}, {vr(P+j+8,2)}' for j in range(0, 8, 2)] + [f'v_pk_add_f32 {vr(P+j,2)}, {vr(P+j,2)}, {vr(P+j+4,2)}' for j in range(0, 4, 2)] + \
           [f'v_permlane16_swap_b32 v{P}, v{P+1}', f'v_permlane16_swap_b32 v{P+2}, v{P+3}', f'v_add_f32 v{P}, v{P}, v{P+1}', f'v_add_f32 v{P+2}, v{P+2}, v{P+3}']
    fin2 += halves(P, P+2) + ln_list(P, P+1, 896, P+2, P+5, P+4) + [f'v_mul_f32 v{P+5}, v{P+5}, v{P+4}']
    for q in range(4):
        for i in range(4): fin2.append(f'v_pk_fma_f32 {vr(A2+8*q+2*i,2)}, {vr(A2+8*q+2*i,2)}, {vr(P+4,2)}, {vr(P+4,2)} op_sel:[0,0,1] op_sel_hi:[1,0,1]')
        for i in range(4): fin2.append(f'v_cvt_pk_bf16_f32 v{U+4*q+i}, v{A2+8*q+2*i}, v{A2+8*q+2*i+1}')
        fin2.append((f'ds_write_b128 v{TA+q}, {vr(U+4*q,4)}', 'tw'))
    for q in range(4):
        ks2, fb = divmod(q, 2)
        fin2.append((f'ds_read_b64_tr_b16 {vr(A2+4*q,2)}, v{TA+4+fb} offset:{ks2*2048}', f'tr{q}'))
        fin2.append((f'ds_read_b64_tr_b16 {vr(A2+2+4*q,2)}, v{TA+5-fb} offset:{ks2*2048 + 512}', f'tr{q}'))
    fin4 = []
    for q in range(4): fin4 += [lambda q=q: a.waitlg(f'tr{q}'), (f'buffer_store_dwordx4 {vr(A2+4*q,4)}, v7, s[12:15], s52 offen offset:{1024*q} sc1', 'z2st')]
    tp = opt.get('tp', 41); tc = opt.get('tc', 47)
    assert tp >= 37 and tc >= 41
    fills = {t: [] for t in range(32, 70)}
    fills[34] += taddr[:8]; fills[35] += taddr[8:16]; fills[36] += taddr[16:]
    fills[33] += ['s_lshl_b32 s31, s35, 5', 'v_and_b32 v3, 31, v0', 'v_add_lshl_u32 v3, v3, s31, 1', ('global_load_ushort v3, v3, s[18:19]', 'bsp')]
    for j in range(4): fills[tp + j//2].append((pl[j], 'pl'))
    if pre2 < 4: fills[tp + 1].append('s_barrier')
    def waddr(d):
        if not M16: return ['s_lshl_b32 s31, s29, 12'] + rowread_list(d, d+1, 's31') + [f'v_xor_b32 v{d+i}, {32*i}, v{d}' for i in range(1, 4)]
        return ['s_lshl_b32 s31, s29, 12', f'v_lshrrev_b32 v{d+1}, 4, v0', f'v_bfe_u32 v{d}, v0, 1, 3', f'v_xor_b32 v{d}, v{d}, v{d+1}', f'v_lshlrev_b32 v{d}, 4, v{d}',
                f'v_and_b32 v{d+1}, 15, v0', f'v_lshl_add_u32 v{d}, v{d+1}, 7, v{d}', f'v_add_u32 v{d}, s31, v{d}', f'v_xor_b32 v{d+1}, 64, v{d}']
    def wsrc(base, ks, slot): return f'v{base+ks} offset:{slot*16384}' if not M16 else f'v{base+ks//2} offset:{slot*16384 + (ks&1)*2048}'
    def rreads(r, base): return [(f'ds_read_b128 {vr(X+16*r+4*ks,4)}, {wsrc(base, ks, r%4)}', f'res{r}') for ks in range(4)]
    t0 = tc + 1
    if OWN: fills[tc] += [f'v_add_u32 v{TA}, s32, v7'] + [(f'ds_write_b128 v{TA}, {vr(A2+4*q,4)} offset:{1024*q}', 'own') for q in range(4)]
    if hcl == 'z':
        fills[tc] += [f'v_mov_b32 v{T2+4+i}, -1' for i in range(4)] + [(f'buffer_store_dwordx4 {vr(T2+4,4)}, v7, s[12:15], s54 offen offset:{1024*q} sc1', 'hcl') for q in range(4)]
    if NR >= 4:
        fills[t0] += waddr(RA) + ['s_barrier']
        rr = sum([rreads(r, RA) for r in range(4)], [])
        rper = opt.get('rper', 3)
        for j in range(16):
            t = max(t0 + 1 + j // rper, 33 + j)
            fills[t].append(rr[j])
    assert NR == 4
    tb1 = max(52, t0 + 3 + 15 // opt.get('rper', 3))
    fills[tb1] += [lambda: a.waitlg('res3'), 's_barrier']
    assert M16 and hcl != 'z'
    ld, ad, ub, ca = ssm.ubuild(A2 + 16, X + 64, A2, A2 + 31)
    fills[t0] += ld
    tu = max(t0 + 1, 49)
    fills[tu+1] += ad[:11]; fills[tu+2] += ad[11:]
    u0 = max(tb1, tu + 2, opt.get('tf', 55)) + 1
    u1 = opt.get('u1', 65)
    for j in range(u0, u1): fills[j] += ub[(j-u0)*len(ub)//(u1-u0):(j-u0+1)*len(ub)//(u1-u0)]
    fills[61] = fills[61] + cs_write(1, A2 + 31)
    tf = opt.get('tf', 55)
    flagz = g.setflag('s53', A2 + 30) + [lambda: stamp(7)]
    fills[tf] += flagz
    fp = lambda i: stamp(i, True) if opt.get('fine') == 'p3' else None
    for t in range(32, 64):
        if t in (32, tp, tp + 4, tc): fp({32: 3, tp: 4, tp + 4: 5, tc: 6}[t])
        if t in (tc + 1, tc + 2, tc + 6, tc + 10, tf, tf + 1): fp({tc + 1: 10, tc + 2: 11, tc + 6: 12, tc + 10: 13, tf: 14, tf + 1: 15}[t])
        if t == tc:
            a.waitvm('pl'); fp(7)
            g.spin(pl, range(P, P+16), Q, True); stamp(4); fp(8)
            a.emit(fin2); fp(9)
        a.waitlg(f'wr{t}')
        rd = wreads(t + AH) if t + AH < 64 else []
        if t == tc:
            m = mfmas(t); a.emit(m + fin4 + rd + fills[t]); stamp(5)
        else: a.emit(merge(mfmas(t), rd + fills[t]))
    a.emit(fills[64])
    stamp(6)
    a.emit(cs_read(1, T2))
    gw = opt.get('gw', 0)
    if gw: a('v_rcp_f32 v24, v4')
    a.emit(waddr(8) + (gconst(26, 4) if gw else []))
    a.emit(cs_apply(A1, T2))
    a.emit(ca)
    Z1 = 112
    if gw: a.emit(gelu_pk(A1, 32, 26, 24, 16))
    else:
        for i in range(16): a(f'v_pk_mul_f32 {vr(A1+2*i,2)}, {vr(A1+2*i,2)}, v[4:5] op_sel_hi:[1,0]')
    for i in range(15, -1, -1): a(f'v_cvt_pk_bf16_f32 v{Z1+i}, v{A1+2*i}, v{A1+2*i+1}')
    if M16:
        a(f'v_lshlrev_b32 v10, 16, v3\nv_lshlrev_b32 v11, 16, v3\nv_and_b32 v12, 255, v7\nv_bfe_u32 v14, v0, 4, 1\nv_lshl_add_u32 v12, v14, 9, v12\nv_lshrrev_b32 v14, 5, v0\nv_lshl_add_u32 v12, v14, 11, v12\nv_add_u32 v12, {L_Z}, v12')
        a('v_permlane16_swap_b32 v10, v11')
        for p in range(4):
            for j in range(2): a(f'v_permlane16_swap_b32 v{Z1+4*p+j}, v{Z1+4*p+2+j}')
        a(f'v_mov_b32 v14, {fbits(C1)}')
    else: a(f'v_add_u32 v12, {L_Z}, v7\nv_lshlrev_b32 v4, 16, v3\nv_mov_b32 v14, {fbits(C1)}')
    cpre, cg = ssm.conv()
    if npre:
        emit_plain(a, cpre + sum(cg[:10*npre], [])); cg = cg[10*npre:]; cpre = []
    stamp(8)
    assert NR <= 4
    ACC = 32; F = [64, 88]
    def rd2(k, half):
        L = []
        if M16:
            wr = [(f'ds_read_b128 {vr(F[half]+4*tb,4)}, {wsrc(8, 2*half+tb, SIDX[k]%4)}', f'g{k}_{2*half}') for tb in range(2)] if k in SIDX else []
            zr = [(f'ds_read_b128 {vr(F[half]+8+4*fb,4)}, v12 offset:{ZS(k)*8192 + half*4096 + (fb>>1)*1024 + (fb&1)*256}', f'g{k}_{2*half + fb//2}') for fb in range(4)]
            return wr + zr
        for j in range(2):
            ks = 2*half + j
            if k in SIDX: L.append((f'ds_read_b128 {vr(F[half]+12*j,4)}, v{8+ks} offset:{(SIDX[k]%4)*16384}', f'g{k}_{ks}'))
            for fb in range(2): L.append((f'ds_read_b128 {vr(F[half]+12*j+4+4*fb,4)}, v12 offset:{ZS(k)*8192+ks*2048+fb*1024}', f'g{k}_{ks}'))
        return L
    def mm2(k, half):
        L = []
        if M16:
            for fb in range(4):
                pair = []
                for tb in range(2):
                    wreg = F[half]+4*tb if k in SIDX else X + 16*MEM[k] + 4*(2*half+tb)
                    d = ACC + 8*fb + 4*tb
                    pair.append(f'v_mfma_f32_16x16x32_bf16 {vr(d,4)}, {vr(F[half]+8+4*fb,4)}, {vr(wreg,4)}, {"0" if (k == 0 and half == 0) else vr(d,4)}')
                L.append((f'g{k}_{2*half + fb//2}', pair))
            return L
        for j in range(2):
            wreg = F[half]+12*j if k in SIDX else X + 16*MEM[k] + 4*(2*half+j)
            for fb in range(2):
                c = '0' if (k == 0 and half == 0 and j == 0) else vr(ACC+16*fb, 16)
                L.append((f'g{k}_{2*half+j}', [f'v_mfma_f32_32x32x16_bf16 {vr(ACC+16*fb,16)}, {vr(F[half]+12*j+4+4*fb,4)}, {vr(wreg,4)}, {c}']))
        return L
    kf = 0
    c0, c1 = opt.get('c0', 2), opt.get('c1', 25)
    plan = {}
    def spread(groups, slots, wts):
        cum = 0; tot = sum(int(wts[s[2]]) for s in slots); done = 0
        for s in slots:
            cum += int(wts[s[2]]); n = cum * len(groups) // tot
            plan.setdefault(s, []).extend(groups[done:n]); done = n
    allslots = [(k, ph, i) for k in range(32) for ph in range(2) for i in range(4) if (k, ph) != (0, 0)]
    if cg and not opt.get('noconv'): spread(cg, [s for s in allslots if c0 <= s[0] <= c1], opt.get('cw', '0112'))
    if cpre: spread([[x] for x in cpre], [s for s in allslots if (kf, 1) <= s[:2] and s[0] < c0], '1113')
    if not gw: spread([[x] for x in gelu_packed(Z1, 16, 128, 14)], [s for s in allslots if opt.get('g0', 8) <= s[0] < opt.get('ge', 30)], '2223')
    fin, fflag = ssm.finish()
    sst = [x for x in fin if isinstance(x, tuple) and x[1] == 'sst']
    spread([[x] for x in fin if x not in sst], [s for s in allslots if c1 + 1 <= s[0] <= c1 + 2], '2223')
    plan.setdefault((opt.get('sk', c1 + 2), 1, 3), []).append(sst)
    assert c1 + 2 <= 30
    for k in range(33):
        if k in (0, 31): a.waitall(vm=False)
        else: a.waitlg(f'g{k-1}_3')
        a('s_barrier')
        if k == 0: stamp(9)
        if str(opt.get('fine')).startswith('g2'):
            k0 = int(opt['fine'][2:])
            if k0 <= k < k0 + 13: stamp(3 + k - k0, True)
        for ph in range(2):
            m = (mm2(k-1, 1) if k > 0 else []) if ph == 0 else (mm2(k, 0) if k < 32 else [])
            r = rd2(k, ph) if k < 32 else []
            if not m:
                a.emit(r); continue
            for i, (tg, ins) in enumerate(m):
                a.waitlg(tg)
                a.emit(merge(ins, r[2*i:2*i+2]))
                for x in plan.get((k, ph, i), []): a.emit(x)
                if k == 31:
                    for j in range(2):
                        z = 8*ph + 2*i + j
                        a(f'v_lshlrev_b32 v{128+2*z}, 16, v{Z1+z}\nv_and_b32 v{129+2*z}, s33, v{Z1+z}')
    stamp(10)
    a.emit(fflag[:2])
    for q in range(4):
        for i in range(4):
            p = ACC + 8*q + 2*i
            if M16: a(f'v_pk_add_f32 {vr(p,2)}, {vr(p,2)}, v[10:11] op_sel:[0,{i//2}] op_sel_hi:[1,{i//2}]')
            else: a(f'v_pk_add_f32 {vr(p,2)}, {vr(p,2)}, v[4:5] op_sel_hi:[1,0]')
        for i in range(4):
            p = ACC + 8*q + 2*i
            a(f'v_pk_mul_f32 {vr(p,2)}, {vr(p,2)}, {vr(128+8*q+2*i,2)}')
        for i in range(4): a(f'v_cvt_pk_bf16_f32 v{F[0]+4*q+i}, v{ACC+8*q+2*i}, v{ACC+8*q+2*i+1}')
        def hout(q):
            if M16:
                for j in range(2): a(f'v_permlane16_swap_b32 v{F[0]+4*q+j}, v{F[0]+4*q+2+j}')
            a(f'buffer_store_dwordx4 {vr(F[0]+4*q,4)}, v7, s[12:15], s54 offen offset:{1024*q} sc1', 'hst')
        hout(q)
    a.emit(fflag[2:])
    if hb: a('s_barrier')
    stamp(11)
    nb['gc'] = count_bars(st0) + 2 + (w3m < 14)

    a(f'{lab("g3comp")}:')
    HB = 16; ACC = 160; WB = [224, 240]; SR = 192; SF = 200; XR = 216; XF = 136; T = 152
    a('s_and_b32 s36, s29, 1\ns_lshr_b32 s37, s29, 1\ns_lshl_b32 s32, s26, 1\ns_add_u32 s32, s32, s30')
    a.emit(trread_list(1, 2))
    a(f'''s_lshl_b32 s55, s37, 6
s_lshl_b32 s31, s37, 12
v_xor_b32 v1, s55, v1
v_add_u32 v1, s31, v1
v_xor_b32 v2, 64, v1
v_add_u32 v3, {L_Z}, v1
v_add_u32 v4, {L_Z}, v2
s_lshl_b32 s3, s36, 12
s_add_u32 s3, s3, {L_X3}''')
    a.emit(rowread_list(9, 10, 's3'))
    a(f'''v_xor_b32 v9, s55, v9
v_xor_b32 v10, 32, v9
v_lshrrev_b32 v11, 2, v0
v_and_b32 v12, 3, v0
v_lshlrev_b32 v13, 4, v12
v_lshl_add_u32 v15, v11, 10, v13
v_bfe_u32 v13, v0, 3, 3
v_xor_b32 v12, v12, v13
v_lshlrev_b32 v12, 4, v12
v_xor_b32 v12, s55, v12
v_lshl_add_u32 v12, v11, 7, v12
v_add_u32 v14, s3, v12
v_lshrrev_b32 v11, 5, v0
v_bfe_u32 v13, v0, 2, 2
v_lshl_add_u32 v11, v11, 3, v13
v_lshlrev_b32 v11, 7, v11
v_bfe_u32 v13, v0, 3, 1
v_xor_b32 v13, s36, v13
v_lshl_add_u32 v11, v13, 6, v11
v_bfe_u32 v13, v0, 4, 1
v_lshl_add_u32 v11, v13, 5, v11
v_and_b32 v13, 3, v0
v_lshl_add_u32 v11, v13, 3, v11
s_add_u32 s31, s31, {L_S3}
v_add_u32 v11, s31, v11
s_lshl_b32 s3, s32, 1
s_add_u32 s3, s3, s36
s_lshl_b32 s61, s3, 15
s_mul_i32 s38, s3, 57344
s_lshl_b32 s3, s27, 7
s_add_u32 s61, s61, s3
s_add_u32 s61, s61, s55
s_lshl_b32 s3, s37, 11
s_add_u32 s38, s38, s3
s_add_u32 s38, s38, {WS_HF}
s_lshl_b32 s3, s29, 12
s_add_u32 s3, s3, {L_U}
v_add_u32 v8, s3, v7
v_xor_b32 v13, 8192, v8
v_mov_b32 v12, {fbits(-LOG2E)}''')
    rot3(35)
    for j in range(14):
        a(f's_lshl_b32 s31, s35, 12\ns_add_u32 s{40+j}, s31, s38')
        if j < 13: a('\n'.join(adv(35)))
    a(f's_mov_b32 s39, {SPIN >> 3}')
    aw = opt.get('aw', 0)
    if aw: a(f's_waitcnt vmcnt({aw})')
    else: a.waitall(lg=False)
    stamp(12)
    NI = opt.get('ni', 5)
    def hl(j): return [f'buffer_load_dwordx4 {vr(HB+8*j+4*p,4)}, v7, s[12:15], s{40+(j if not opt.get("hfix") else 0)} offen offset:{1024*p} sc1' for p in range(2)]
    def rdw(j, ks):
        w = W3LOC[j]; hi = w >= L_Z; w -= L_Z * hi
        return [(f'ds_read_b64_tr_b16 {vr(WB[j&1]+8*ks+4*b+2*p,2)}, v{1+b+2*hi} offset:{w+ks*2048+512*p}', f'w{j}_{ks}') for b in (1, 0) for p in range(2)]
    for j in range(NI): a.emit([(x, f'h{j}') for x in hl(j)])
    a('s_barrier')
    stamp(13)
    a.emit(rdw(0, 0) + rdw(0, 1))
    es = opt.get('es', 8)
    xs = [(f'ds_read_b128 {vr(XR+4*p,4)}, v{9+p}', 'xr') for p in range(2)]
    un = sum([[f'v_lshlrev_b32 v{XF+2*i}, 16, v{XR+i}', f'v_and_b32 v{XF+2*i+1}, s33, v{XR+i}'] for i in range(8)], [])
    retry = []
    def check(j):
        lc = a.newlab('hchk'); lr = a.newlab('hretry')
        a.waitvm(f'h{j}')
        H = HB + 8*j
        a(f'{lc}:\nv_max3_u32 v{T}, v{H}, v{H+1}, v{H+2}\nv_max3_u32 v{T+1}, v{H+3}, v{H+4}, v{H+5}\nv_max3_u32 v{T}, v{T}, v{H+6}, v{H+7}\nv_max_u32 v{T}, v{T}, v{T+1}')
        a(f'v_cmp_eq_u32 vcc, -1, v{T}')
        return lc, lr
    def cbr(j, lc, lr, mid=None):
        a(f's_cbranch_vccnz {lr}\n{lc}x:')
        retry.append((lr, lc, j, sum([hl(i) for i in range(j, min(14, j + NI))], [])))
    lc, lr = check(0); cbr(0, lc, lr)
    stamp(14)
    for j in range(14):
        if opt.get('fine') == 'g3' and j % 2 == 0: stamp(3 + j // 2, True)
        seq = []
        for ks in range(2):
            for b in (1, 0):
                seq.append((ks, f'v_mfma_f32_32x32x16_bf16 {vr(ACC+16*b,16)}, {vr(WB[j&1]+8*ks+4*b,4)}, {vr(HB+8*j+4*ks,4)}, {"0" if (j == 0 and ks == 0) else vr(ACC+16*b,16)}'))
        if j == 13: seq = [seq[0], seq[2], seq[1], seq[3]]
        nxt = (rdw(j+1, 0) + rdw(j+1, 1)) if j < 13 else []
        for i, (ks, ins) in enumerate(seq):
            a.waitlg(f'w{j}_{ks}')
            a(ins)
            if j == w3m - 1 and i == 0 and w3m < 14: a('s_barrier')
            if i < 2:
                a.emit(nxt[3*i:3*i+3])
                if j + NI < 14: a(hl(j + NI)[i], f'h{j+NI}')
            if j == es and i in (0, 1): a.emit(xs[3*i:3*i+3])
            if j > es and i in (0, 1, 3):
                a.waitlg('xr'); a.emit(un[:4]); un = un[4:]
            if i == 2 and j < 13: lc, lr = check(j + 1)
            if i == 3 and j < 13:
                a.emit(nxt[6:]); cbr(j + 1, lc, lr)
    stamp(15)
    if opt.get('prof'): a(f's_sub_u32 s100, {SPIN >> 3}, s39\ns_mul_i32 s100, s100, 10\ns_add_u32 s100, s100, s66')
    ft_ = lambda i: stamp(i, True) if opt.get('fine') == 'g3' else None
    ft_(10)
    for q in range(4): a(f'ds_write_b128 v8, {vr(ACC+16+4*q,4)} offset:{1024*q}', 'rw')
    a.waitall(vm=False); ft_(11); a('s_barrier'); ft_(12)
    assert not un
    for q in range(2): a(f'ds_read_b128 {vr(WB[0]+4*q,4)}, v13 offset:{1024*q}', f'rr0')
    for q in range(4): a(f'ds_read_b64_tr_b16 {vr(SR+2*q,2)}, v11 offset:{2048*(q//2)+512*(q%2)}', 'sr')
    for q in range(2, 4): a(f'ds_read_b128 {vr(WB[0]+4*q,4)}, v13 offset:{1024*q}', f'rr1')
    for p in range(2):
        B = ACC + 8*p
        a.waitlg(f'rr{p}')
        if p == 0: ft_(13)
        for i in range(4): a(f'v_pk_add_f32 {vr(B+2*i,2)}, {vr(B+2*i,2)}, {vr(WB[0]+8*p+2*i,2)}')
        for i in range(4): a(f'v_pk_mul_f32 {vr(T+2*i,2)}, {vr(B+2*i,2)}, v[12:13] op_sel_hi:[1,0]')
        for i in range(8): a(f'v_exp_f32 v{T+i}, v{T+i}')
        a.waitlg('sr')
        for i in range(4): a(f'v_lshlrev_b32 v{SF+8*p+2*i}, 16, v{SR+4*p+i}\nv_and_b32 v{SF+8*p+2*i+1}, s33, v{SR+4*p+i}')
        for i in range(4): a(f'v_pk_mul_f32 {vr(B+2*i,2)}, {vr(B+2*i,2)}, {vr(SF+8*p+2*i,2)}')
        for i in range(4): a(f'v_pk_add_f32 {vr(T+2*i,2)}, {vr(T+2*i,2)}, 1.0 op_sel_hi:[1,0]')
        for i in range(8): a(f'v_rcp_f32 v{T+i}, v{T+i}')
        for i in range(4): a(f'v_pk_fma_f32 {vr(B+2*i,2)}, {vr(B+2*i,2)}, {vr(T+2*i,2)}, {vr(XF+8*p+2*i,2)}')
        for i in range(4): a(f'v_cvt_pk_bf16_f32 v{HB+4*p+i}, v{B+2*i}, v{B+2*i+1}')
        a(f'ds_write_b128 v{9+p}, {vr(HB+4*p,4)}', 'ow')
    ft_(14)
    for p in range(2): a(f'ds_read_b128 {vr(HB+8+4*p,4)}, v14 offset:{2048*p}', f'or{p}')
    for p in range(2):
        a.waitlg(f'or{p}')
        if p: a('s_add_u32 s61, s61, 16384')
        a(f'buffer_store_dwordx4 {vr(HB+8+4*p,4)}, v15, s[20:23], s61 offen {opt.get("outflag","sc1")}', 'ost')
    stamp(16)
    sk = a.newlab('noepoch')
    a(f's_or_b32 s3, s2, s29\ns_cmp_lg_u32 s3, 0\ns_cbranch_scc1 {sk}\nv_mov_b32 v1, s24\ns_mov_b32 s3, {WS_EPOCH}\ns_mov_b64 exec, 1')
    a('buffer_store_dword v1, off, s[12:15], s3 sc1')
    a(f's_mov_b64 exec, -1\n{sk}:')
    if opt.get('span'):
        a(f's_waitcnt vmcnt(0)\ns_memrealtime s[64:65]\ns_lshl_b32 s3, s2, 2\ns_add_u32 s3, s3, s29\ns_lshl_b32 s3, s3, 3\ns_add_u32 s3, s3, {WS_PROF}\ns_waitcnt lgkmcnt(0)\nv_mov_b32 v2, s62\nv_mov_b32 v3, s64\ns_mov_b64 exec, 1')
        a('buffer_store_dwordx2 v[2:3], off, s[12:15], s3')
    if opt.get('dbg'):
        sk = a.newlab('nodbg')
        a(f's_lshr_b32 s3, s2, 3\ns_or_b32 s3, s3, s29\ns_cmp_lg_u32 s3, 0\ns_cbranch_scc1 {sk}\ns_load_dwordx2 s[16:17], s[0:1], {KA["dbg"]}\ns_memrealtime s[64:65]\ns_waitcnt lgkmcnt(0)')
        a(f's_and_b32 s62, s62, 0xfffff\ns_and_b32 s64, s{66 + 2*opt["dbg"] if opt["dbg"] > 0 else 64}, 0xfffff\nv_mov_b32 v1, s62\nv_mov_b32 v2, s64\ns_lshl_b32 s3, s2, 2\nv_mov_b32 v3, s3')
        a('global_store_dword v3, v1, s[16:17]\nglobal_store_dword v3, v2, s[16:17] offset:32')
        a(f'{sk}:')
    g.prof_store()
    a('s_endpgm')
    for x in g.cold: a.L.append(x)
    g.cold = []
    for lr, lc, j, lds_ in retry:
        H = HB + 8*j
        a(f'{lr}:\ns_sub_u32 s39, s39, 1\ns_cmp_lt_i32 s39, 0\ns_cbranch_scc1 {lc}x')
        for x in lds_: a.L.append(x)
        a(f's_waitcnt vmcnt(0)\nv_max3_u32 v{T}, v{H}, v{H+1}, v{H+2}\nv_max3_u32 v{T+1}, v{H+3}, v{H+4}, v{H+5}\nv_max3_u32 v{T}, v{T}, v{H+6}, v{H+7}\nv_max_u32 v{T}, v{T}, v{T+1}')
        a(f'v_cmp_eq_u32 vcc, -1, v{T}\ns_cbranch_vccnz {lr}\ns_branch {lc}x')

    a(f'{lab("tcomp")}:')
    st0 = len(a.L)
    a.vm = ['prm'] * 6; a.lg = []
    T = 24; X = 64
    a('s_mov_b32 s6, 0x200000\ns_mov_b32 s7, 0x20000\ns_and_b32 s5, s5, 0xffff')
    a('s_lshl_b32 s32, s29, 14\ns_lshl_b32 s35, s26, 1\ns_add_u32 s35, s35, s30\ns_lshl_b32 s35, s35, 1\ns_and_b32 s3, s29, 1\ns_add_u32 s35, s35, s3\ns_lshl_b32 s3, s35, 5\ns_lshr_b32 s61, s29, 1\ns_lshl_b32 s38, s61, 9')
    rowoffs(a, 32, 's3', 10)
    for c in range(4):
        a.emit([f's_add_u32 m0, s32, {4096*c}', f's_add_u32 s31, s38, {128*c}'] + [(f'buffer_load_dwordx4 v{32+i}, s[4:7], s31 offen offset:{1024*i} lds', f'x{c}') for i in range(4)])
    cprologue()
    a.emit(rowread_list(8, 9, 's32'))
    a('v_xor_b32 v9, 32, v8\nv_xor_b32 v10, 64, v8\nv_xor_b32 v11, 96, v8')
    a('s_mov_b32 s36, 0x00003f80\ns_mov_b32 s37, 0x3f800000')
    for i in range(4): a(f'v_mov_b32 v{20+i}, 0')
    a('v_lshrrev_b32 v13, 5, v0\nv_lshlrev_b32 v13, 15, v13\nv_and_b32 v16, 31, v0\nv_lshl_add_u32 v12, v16, 2, v13')
    for i in range(1, 4): a(f'v_add_u32 v{12+i}, {8192*i}, v12')
    a(f's_lshl_b32 s31, s35, 7\ns_add_u32 s52, s31, {WS_XNT}\ns_lshl_b32 s3, s61, 20\ns_add_u32 s52, s52, s3')
    a(f's_lshl_b32 s53, s61, 13\ns_add_u32 s53, s53, s31\ns_add_u32 s53, s53, {FX}')
    a(f's_lshl_b32 s31, s35, 13\ns_add_u32 s60, s31, s38\ns_add_u32 s60, s60, {WS_STATS + 14*512}')
    a(f's_lshl_b32 s31, s29, 8\ns_add_u32 s31, s31, {L_CS}\nv_lshl_add_u32 v16, v0, 2, s31\nv_xor_b32 v17, 512, v16')
    a(tagmake)
    for c in range(4):
        a.waitvm(f'x{c}')
        a.emit(xreads(c, 8, 4096*c))
        if c == opt.get('tb', 1): a('s_barrier')
        if c > 0: dots(c-1, 20)
        a.waitlg(f'xr{c}')
    dots(3, 20)
    a('v_add_f32 v20, v20, v22\nv_add_f32 v21, v21, v23\nv_mov_b32 v41, s24\nv_mov_b32 v43, s24\nv_permlane32_swap_b32 v20, v21\nv_add_f32 v22, v20, v21\nv_add_f32 v40, v20, v21\nv_permlane32_swap_b32 v40, v42\ns_mov_b32 exec_hi, 0')
    a(f'buffer_store_dwordx4 v[40:43], v7, s[12:15], s60 offen sc1', 'pub')
    a('s_mov_b64 exec, -1')
    a('ds_write_b32 v16, v22')
    a.waitall(vm=False); a('s_barrier')
    a('ds_read_b32 v20, v17')
    a.waitall(vm=False)
    a('v_add_f32 v20, v20, v22\nv_mov_b32 v21, v20\nv_permlane32_swap_b32 v20, v21')
    a.emit(ln_list(20, 21, 512, 22, 19, 18))
    stamp(2)
    for f in range(16):
        for i in range(4):
            a(f'v_dot2_f32_bf16 v{T+2*i}, v{X+4*f+i}, s36, v19\nv_dot2_f32_bf16 v{T+2*i+1}, v{X+4*f+i}, s37, v19')
        for i in range(4): a(f'v_cvt_pk_bf16_f32 v{X+4*f+i}, v{T+2*i}, v{T+2*i+1}')
        for i in range(4): a(f'v_lshlrev_b32 v{T+2*i}, 16, v{X+4*f+i}\nv_and_b32 v{T+2*i+1}, s33, v{X+4*f+i}')
        for i in range(4): a(f'v_pk_mul_f32 {vr(T+2*i,2)}, {vr(T+2*i,2)}, v[18:19] op_sel_hi:[1,0]')
        for i in range(4): a(f'v_cvt_pk_bf16_f32 v{X+4*f+i}, v{T+2*i}, v{T+2*i+1}')
        for i in range(4): a(f'buffer_store_dword v{X+4*f+i}, v{12+i}, s[12:15], s52 offen sc1', 'xst')
        a('s_add_u32 s52, s52, 65536')
    stamp(3)
    a.emit(ssm.kaddr())
    a.emit(g.setflag('s53', 16))
    stamp(7)
    a('s_barrier')
    a(f's_branch {lab("kgen")}')
    a(f'{lab("tcomp2")}:')
    a.vm = []; a.lg = list(lg_split)
    a.waitall(vm=False); a('s_barrier')
    ld, ad, ub, ca = ssm.ubuild(64, 80, 88, 96)
    emit_plain(a, ld + ad + ca + ub + [BAR]); stamp(9)
    cpre, cg = ssm.conv()
    fin, fflag = ssm.finish()
    emit_plain(a, cpre + sum(cg, []) + fin + fflag + [BAR]); stamp(10)
    a('s_barrier')
    nb['tc'] = count_bars(st0) + 2 + (w3m < 14)
    a(f's_branch {lab("g3comp")}')
    a(f'{lab("done")}:\ns_endpgm')
    assert nb['gl'] == nb['gc'] and nb['tl'] == nb['tc'], nb
    kernel_desc(a, name, 256, 102)
    return finalize(a, name, opt)

NAME = 'recurrent_scan__ssm_conv_s4d__mixer_gmlp__prompt_kernel'
def write(path, args):
    opt = {}
    for kv in args:
        k, _, v = kv.partition('=')
        opt[k] = (int(v) if v.lstrip('-').isdigit() and k != 'cw' else v) if v else True
    try: HDR = open('recurrent_scan__ssm_conv_s4d__mixer_gmlp__prompt.s.ref').read().split('; Override launch')[0]
    except OSError: HDR = ''
    txt = HDR + '; @launch grid=(256,1,1) block=(384,1,1) lds=163840\n.amdgcn_target "amdgcn-amd-amdhsa--gfx950"\n' + fused(NAME, opt)
    open(path, 'w').write(txt)

if __name__ == '__main__':
    import sys
    sys.path.insert(0, 'work')
    write(sys.argv[1], sys.argv[2:])
    from hx import build
    import cdna_launch as cl
    co, _ = build(sys.argv[1], 15, NAME)
    p = cl.address_register_problem(co, NAME)
    if p: print('CHECK PROBLEM:', p)
```

```python
from gen import *
import struct, math
def fbits(x): return hex(struct.unpack('<I', struct.pack('<f', x))[0])
def f32(x): return struct.unpack('<f', struct.pack('<f', x))[0]
WS_Z2F = 0; WS_XNT = 4 << 20; WS_HF = 6 << 20; WS_ST = 10 << 20; WS_STATS = 12 << 20; WS_FL = WS_STATS + (512 << 10)
WS_EPOCH = WS_FL + (384 << 10)
WS_PROF = 13 << 20; WS_BYTES = 14 << 20
FZ = WS_FL; FX = WS_FL + 896*128; FH = WS_FL + 1024*128; FT = WS_FL + 1536*128; FS = WS_FL + 2048*128
KA = dict(u=0, logA=8, Aim=16, Cre=24, Cim=32, logdt=40, Dskip=48, bx=56, win=64, wsp=72, bsp=80, wout=88, out=96, dbg=104, ws=112)
LOG2E = math.log2(math.e)
C0 = -2 * LOG2E * math.sqrt(2 / math.pi); C1 = C0 * 0.044715
BAR = ('BAR',)
SPIN = 0x20000
L_SSM = 65536; L_Z = 114688
USTR = 4640; UGRP = 3 * USTR + 4480; L_U = L_SSM; L_RAW = 102400 - 16; L_K = 147456
L_CS = 159744; L_TR = 131072
L_X3 = 81920; L_S3 = 90112; KSTR = 4736

class G:
    def __init__(self, name, opt):
        self.a = Asm(); self.name = name; self.opt = opt; self.comp = False; self.cold = []
    def stamp(self, idx, fine=False):
        if self.opt.get('fine') and not fine and 3 <= idx <= 15 and self.comp: return
        if self.opt.get('dbg') == idx: self.a(f's_memrealtime s[{66+2*idx}:{67+2*idx}]')
        if self.opt.get('prof'): self.a(f's_mem{"real" if self.opt.get("rt") else ""}time s[{66+2*idx}:{67+2*idx}]')
    def prof_store(self):
        if not self.opt.get('prof'): return
        a = self.a
        a('s_memrealtime s[64:65]\ns_memtime s[60:61]')
        a.waitall()
        a('v_mov_b32 v2, 0\ns_sub_u32 s31, s60, s66\nv_writelane_b32 v2, s31, 2')
        for i in range(1, 18):
            a(f's_sub_u32 s31, s{66+2*i}, s{62 if self.opt.get("rt") else 66}\nv_writelane_b32 v2, s31, {i+2}')
        a('v_writelane_b32 v2, s62, 0\nv_writelane_b32 v2, s64, 1')
        a(f's_lshl_b32 s3, s2, 3\ns_add_u32 s3, s3, s29\ns_lshl_b32 s3, s3, 7\ns_add_u32 s3, s3, {WS_PROF}')
        a('v_lshlrev_b32 v1, 2, v0\ns_mov_b32 exec_hi, 0')
        a('buffer_store_dword v2, v1, s[12:15], s3 offen')
    def spin(self, loads, tags, tmp, sentinel=False):
        a = self.a
        lp = a.newlab('sp'); lc = a.newlab('spc'); lo = a.newlab('spo')
        chk = []
        r = list(tags)
        if sentinel:
            cur = r.pop(0)
            while r:
                if len(r) >= 2: chk.append(f'v_max3_u32 v{tmp}, v{cur}, v{r[0]}, v{r[1]}'); r = r[2:]
                else: chk.append(f'v_max_u32 v{tmp}, v{cur}, v{r[0]}'); r = []
                cur = tmp
            chk.append(f'v_cmp_eq_u32 vcc, -1, v{tmp}')
        elif len(r) == 1: chk.append(f'v_cmp_ne_u32 vcc, s24, v{r[0]}')
        else:
            chk.append(f'v_xor_b32 v{tmp}, s24, v{r[0]}')
            for x in r[1:]: chk.append(f'v_bitop3_b32 v{tmp}, v{tmp}, v{x}, s24 bitop3:0xf6')
            chk.append(f'v_cmp_ne_u32 vcc, 0, v{tmp}')
        for x in chk: a(x)
        a(f's_cbranch_vccnz {lp}\n{lo}:')
        self.cold += [f'{lp}:', f's_mov_b32 s39, {SPIN}', f'{lc}:'] + list(loads) + ['s_waitcnt vmcnt(0)'] + chk + \
            [f's_cbranch_vccz {lo}', 's_sub_u32 s39, s39, 1', 's_cmp_lg_u32 s39, 0', f's_cbranch_scc1 {lc}', f's_branch {lo}']
    def setflag(self, soff, vtmp):
        return [f'v_mov_b32 v{vtmp}, s24', lambda: self.a.waitall(lg=False), (f's_mov_b32 exec_hi, 0\nbuffer_store_dword v{vtmp}, v6, s[12:15], {soff} offen sc1\ns_mov_b64 exec, -1', 'flag')]

def ln_list(vS, vQ, n, vT, out_negm, out_r):
    return [f'v_mul_f32 v{vS}, {fbits(-1.0/n)}, v{vS}', f'v_mul_f32 v{vQ}, {fbits(1.0/n)}, v{vQ}', f'v_fma_f32 v{vQ}, -v{vS}, v{vS}, v{vQ}',
            f'v_max_f32 v{vQ}, 0, v{vQ}', f'v_cvt_pk_bf16_f32 v{vQ}, 0, v{vQ}', f'v_add_f32 v{vQ}, {fbits(1e-5)}, v{vQ}', f'v_cvt_pk_bf16_f32 v{vQ}, 0, v{vQ}',
            f'v_sqrt_f32 v{vQ}, v{vQ}', f'v_cvt_pk_bf16_f32 v{out_negm}, 0, v{vS}', f'v_cvt_pk_bf16_f32 v{vQ}, 0, v{vQ}', f'v_rcp_f32 v{out_r}, v{vQ}']

def gelu_pk(A, n, vC, vSD, T):
    L = []
    for b in range(0, n, 8):
        P = [A + b + 2*i for i in range(4)]; Q = [T + 2*i for i in range(4)]
        for p, q in zip(P, Q): L.append(f'v_pk_mul_f32 {vr(q,2)}, {vr(p,2)}, {vr(p,2)}')
        for q in Q: L.append(f'v_pk_fma_f32 {vr(q,2)}, {vr(q,2)}, {vr(vC,2)}, {vr(vC,2)} op_sel:[0,0,1] op_sel_hi:[1,0,1]')
        for p, q in zip(P, Q): L.append(f'v_pk_mul_f32 {vr(q,2)}, {vr(q,2)}, {vr(p,2)}')
        for i in range(8): L.append(f'v_exp_f32 v{T+i}, v{T+i}')
        for q in Q: L.append(f'v_pk_fma_f32 {vr(q,2)}, {vr(q,2)}, {vr(vSD,2)}, {vr(vSD,2)} op_sel_hi:[1,0,0]')
        for i in range(8): L.append(f'v_rcp_f32 v{T+i}, v{T+i}')
        for p, q in zip(P, Q): L.append(f'v_pk_mul_f32 {vr(p,2)}, {vr(p,2)}, {vr(q,2)}')
    return L

def gelu_packed(Z, n, T, vC1):
    L = []
    for b in range(0, n, 2):
        for i in range(2): L += [f'v_lshlrev_b32 v{T+2*i}, 16, v{Z+b+i}', f'v_and_b32 v{T+2*i+1}, s33, v{Z+b+i}']
        for i in range(4): L.append(f'v_mul_f32 v{T+4+i}, v{T+i}, v{T+i}')
        for i in range(4): L.append(f'v_fmaak_f32 v{T+4+i}, v{vC1}, v{T+4+i}, {fbits(C0)}')
        for i in range(4): L.append(f'v_mul_f32 v{T+4+i}, v{T+i}, v{T+4+i}')
        for i in range(4): L.append(f'v_exp_f32 v{T+4+i}, v{T+4+i}')
        for i in range(4): L.append(f'v_add_f32 v{T+4+i}, 1.0, v{T+4+i}')
        for i in range(4): L.append(f'v_rcp_f32 v{T+4+i}, v{T+4+i}')
        for i in range(4): L.append(f'v_mul_f32 v{T+i}, v{T+i}, v{T+4+i}')
        for i in range(2): L.append(f'v_cvt_pk_bf16_f32 v{Z+b+i}, v{T+2*i}, v{T+2*i+1}')
    return L

def stream_emit(a, items, nbar, D, hook=None, always=False):
    comp = {}
    for i, it in enumerate(items):
        if it[2] is not None: comp[it[2]] = i + 1
    DD = D if callable(D) else (lambda b: D)
    nb = 0
    def bar(n):
        nonlocal nb
        c = max([comp.get(b, 0) for b in range(nb + 1)])
        assert c <= n, (nb, c, n)
        if hook: hook(nb, -1)
        if c or always: a.L.append(f's_waitcnt vmcnt({min(63, n - c)})')
        if hook: hook(nb, 0)
        a.L.append('s_barrier')
        if hook: hook(nb, 1)
        nb += 1
    for i, (setup, ld, cb, need) in enumerate(items):
        while need is not None and nb <= need: bar(i)
        for x in setup:
            if callable(x): x()
            else: a.L.append(x)
        a.L.append(ld)
        while nb < nbar and nb in comp and i + 1 >= comp[nb] + DD(nb): bar(i + 1)
    while nb < nbar: bar(len(items))

def grp(m0, soff_setup, vbase, srd_, soff, same=False, cb=None, need=None, fl='', mreg='s19'):
    L = []
    for i in range(4):
        su = ([f's_add_u32 m0, {mreg}, {m0}'] + (soff_setup or ['s_nop 0'])) if i == 0 else []
        L.append((su, f'buffer_load_dwordx4 v{vbase if same else vbase+i}, {srd_}, {soff} offen offset:{1024*i} {fl} lds', cb, need if i == 0 else None))
    return L

def rowoffs(a, d, rowbase, sh, colbase=None):
    st = 1 << sh
    a(f"""v_lshrrev_b32 v24, 3, v0
v_add_u32 v24, {rowbase}, v24
v_lshlrev_b32 v24, {sh}, v24
v_and_b32 v25, 7, v0
v_lshrrev_b32 v26, 4, v0
v_xor_b32 v25, v25, v26
v_lshl_add_u32 v{d}, v25, 4, v24""")
    if colbase: a(f'v_add_u32 v{d}, {colbase}, v{d}')
    a(f'v_xor_b32 v{d+1}, 64, v{d}\nv_add_u32 v{d+1}, {8*st-1024}, v{d+1}\nv_add_u32 v{d+2}, {16*st-2048}, v{d}\nv_add_u32 v{d+3}, {16*st-2048}, v{d+1}')

def troffs(a, d, stride, colbase):
    a(f"""v_lshrrev_b32 v24, 3, v0
v_mul_u32_u24 v24, {stride}, v24
v_bfe_u32 v25, v0, 4, 1
v_lshlrev_b32 v25, 2, v25
v_and_b32 v26, 7, v0
v_xor_b32 v25, v25, v26
v_lshl_add_u32 v24, v25, 4, v24
v_add_u32 v{d}, {colbase}, v24""")
    for i in range(1, 4): a(f'v_add_u32 v{d+i}, {8*stride-1024}, v{d+i-1}')

def rowread_list(d, t, base):
    return [f'v_lshrrev_b32 v{t}, 5, v0', f'v_bfe_u32 v{d}, v0, 1, 3', f'v_xor_b32 v{d}, v{d}, v{t}', f'v_lshlrev_b32 v{d}, 4, v{d}',
            f'v_and_b32 v{t}, 31, v0', f'v_lshl_add_u32 v{d}, v{t}, 7, v{d}', f'v_add_u32 v{d}, {base}, v{d}']
def trread_list(d, t):
    return [f'v_lshrrev_b32 v{d}, 5, v0', f'v_bfe_u32 v{t}, v0, 2, 2', f'v_lshl_add_u32 v{d}, v{d}, 3, v{t}', f'v_lshlrev_b32 v{d}, 7, v{d}',
            f'v_bfe_u32 v{t}, v0, 3, 1', f'v_lshl_add_u32 v{d}, v{t}, 6, v{d}', f'v_bfe_u32 v{t}, v0, 4, 1', f'v_lshl_add_u32 v{d}, v{t}, 5, v{d}',
            f'v_and_b32 v{t}, 1, v0', f'v_lshl_add_u32 v{d}, v{t}, 4, v{d}', f'v_bfe_u32 v{t}, v0, 1, 1', f'v_lshl_add_u32 v{d}, v{t}, 3, v{d}']

def cost(x):
    if callable(x): return 4
    t = x[0] if isinstance(x, tuple) else x
    if t.startswith(TRANS): return 8
    if t.startswith('v_mfma_f32_32'): return 32
    if t.startswith('v_mfma'): return 12
    return 4

class SSM:
    CA = 16; PR = 208; DS = 5
    def __init__(self, g): self.g = g; self.a = g.a
    def param_addr(self):
        P = self.PR
        return ['s_lshl_b32 s31, s2, 9', 's_lshl_b32 s3, s29, 7', 's_add_u32 s31, s31, s3', f'v_lshl_add_u32 v{P+6}, v0, 1, s31',
                's_lshl_b32 s31, s2, 2', f'v_mov_b32 v{P+7}, s31']
    def param_loads(self):
        P = self.PR
        L = [(f'global_load_dword v{P+4}, v{P+7}, s[48:49]', 'prm')]
        for i in range(4): L.append((f'global_load_ushort v{P+i}, v{P+6}, s[{40+2*i}:{41+2*i}]', 'prm'))
        L.append((f'global_load_dword v{self.DS}, v{P+7}, s[50:51]', 'prm'))
        return L
    def kaddr(self):
        A = 216
        L = ['s_lshl_b32 s31, s29, 14', f's_add_u32 s31, s31, {L_SSM}', f'v_bfe_u32 v{A+4}, v0, 1, 2', f'v_lshlrev_b32 v{A+4}, 4, v{A+4}', f'v_lshl_add_u32 v{A+4}, v0, 6, v{A+4}', f'v_add_u32 v{A}, s31, v{A+4}']
        for b in range(1, 4): L.append(f'v_xor_b32 v{A+b}, {16*b}, v{A}')
        R, t, u = A+4, A+6, A+7
        L += ['s_and_b32 s3, s31, 0xffff8000', f'v_bfe_u32 v{t}, v0, 3, 2', f'v_bfe_u32 v{R}, v0, 1, 1', f'v_xor_b32 v{R}, v{R}, v{t}', f'v_lshlrev_b32 v{R}, 4, v{R}',
              f'v_lshrrev_b32 v{t}, 2, v0', f'v_lshl_add_u32 v{R}, v{t}, 6, v{R}', f'v_and_b32 v{u}, 1, v0', f'v_lshl_add_u32 v{R}, v{u}, 3, v{R}', f'v_add_u32 v{R}, s3, v{R}',
              f'v_xor_b32 v{A+5}, 32, v{R}', 's_and_b32 s3, s29, 1', 's_lshl_b32 s31, s3, 5', f'v_xor_b32 v{A+6}, s31, v{R}',
              f'v_cmp_eq_u32 s[58:59], 0, v{u}', f'v_and_b32 v{u}, 16, v0', f'v_cmp_eq_u32 s[46:47], 0, v{u}']
        L += ['s_lshr_b32 s31, s29, 1', f's_mul_i32 s57, s31, {KSTR}', f's_add_u32 s57, s57, {L_K}', 's_lshl_b32 s3, s3, 8', 's_sub_u32 s3, s57, s3',
              f'v_and_b32 v{A+9}, 255, v7', f'v_sub_u32 v{A+9}, s3, v{A+9}', f'v_lshrrev_b32 v{A+10}, 4, v0',
              f'v_lshlrev_b32 v{A+11}, 2, v{A+10}', f'v_sub_u32 v{A+7}, v{A+9}, v{A+11}', f'v_lshlrev_b32 v{A+11}, 9, v{A+10}', f'v_sub_u32 v{A+14}, v{A+9}, v{A+11}',
              f'v_lshrrev_b32 v{A+11}, 5, v0', f'v_lshlrev_b32 v{A+11}, 9, v{A+11}', f'v_sub_u32 v{A+8}, v{A+9}, v{A+11}', f'v_bfe_u32 v{A+11}, v0, 4, 1', f'v_lshlrev_b32 v{A+11}, 3, v{A+11}', f'v_sub_u32 v{A+8}, v{A+8}, v{A+11}',
              f'v_min_u32 v{A+9}, 39, v0', f'v_lshl_add_u32 v{A+9}, v{A+9}, 4, s57'] + [f'v_mov_b32 v{A+10+i}, 0' for i in range(4)]
        L.append((f'ds_write_b128 v{A+9}, {vr(A+10,4)} offset:4096', 'kt'))
        return L
    def kgen(self):
        a = self.a; P = self.PR; A = 216
        E1, E8, E64, E256, Cc, E2 = 128, 130, 132, 134, 136, 138
        t = 140
        Lhi = f32(LOG2E); Llo = LOG2E - Lhi
        def exp_acc(d, x, t0, t1):
            return [f'v_mul_f32 v{t0}, s40, v{x}', f'v_fma_f32 v{t1}, v{x}, s40, -v{t0}', f'v_fma_f32 v{t1}, v{x}, s41, v{t1}',
                    f'v_exp_f32 v{t0}, v{t0}', f'v_mul_f32 v{t1}, s42, v{t1}', f'v_fma_f32 v{d}, v{t0}, v{t1}, v{t0}']
        L = [f's_mov_b32 s40, {fbits(Lhi)}', f's_mov_b32 s41, {fbits(Llo)}', f's_mov_b32 s42, {fbits(math.log(2))}',
             's_lshr_b32 s31, s29, 1', 's_lshl_b32 s31, s31, 4', lambda: a.waitvm('prm'), lambda: self.g.stamp(17), f'v_lshrrev_b32 v{P+4}, s31, v{P+4}']
        for i in range(5): L.append(f'v_lshlrev_b32 v{P+i}, 16, v{P+i}')
        for x, y in zip(exp_acc(P+4, P+4, t, t+1), exp_acc(P, P, t+2, t+3)): L += [x, y]
        L += [f'v_cvt_pk_bf16_f32 v{P+4}, v{P}, v{P+4}', f'v_lshlrev_b32 v{P}, 16, v{P+4}', f'v_and_b32 v{P+4}, s33, v{P+4}']
        for i in range(4): L.append(f'v_mul_f32 v{P+i}, v{P+i}, v{P+4}')
        L += [f'v_mul_f32 v{t}, {fbits(-LOG2E)}, v{P}', f'v_mul_f32 v{t+4}, 0.15915494, v{P+1}', f'v_add_f32 v{Cc}, v{P+2}, v{P+2}', f'v_add_f32 v{Cc+1}, v{P+3}, v{P+3}']
        for k, p in enumerate([8.0, 64.0, 256.0]): L += [f'v_mul_f32 v{t+1+k}, {fbits(p)}, v{t}', f'v_mul_f32 v{t+5+k}, {fbits(p)}, v{t+4}']
        for k in range(4): L += [f'v_exp_f32 v{t+k}, v{t+k}', f'v_fract_f32 v{t+4+k}, v{t+4+k}']
        for k in range(4): L += [f'v_cos_f32 v{E1+2*k}, v{t+4+k}', f'v_sin_f32 v{E1+1+2*k}, v{t+4+k}']
        for k in range(4): L += [f'v_mul_f32 v{E1+2*k}, v{t+k}, v{E1+2*k}', f'v_mul_f32 v{E1+1+2*k}, v{t+k}, v{E1+1+2*k}']
        fk = lambda i: (lambda: self.g.stamp(i, True) if self.g.opt.get('fine') == 'kg' else None)
        L.append(fk(3))
        O = 140
        def cm(jobs):
            R = []
            for d, x, y in jobs: R.append(f'v_pk_mul_f32 {vr(d,2)}, {vr(x,2)}, {vr(y,2)} op_sel_hi:[1,0]')
            for d, x, y in jobs: R.append(f'v_pk_fma_f32 {vr(d,2)}, {vr(x,2)}, {vr(y,2)}, {vr(d,2)} op_sel:[1,1,0] op_sel_hi:[0,1,1] neg_lo:[1,0,0]')
            return R
        cnt = [0]
        def pack(vals, blk, plane, neg):
            o = O + 8 * (cnt[0] & 1); cnt[0] += 1
            R = []
            for i in range(4): R.append(f'v_cvt_pk_bf16_f32 v{o+i}, v{vals[2*i]}, v{vals[2*i+1]}')
            R.append((f'ds_write_b128 v{A+blk}, {vr(o,4)} offset:{plane*4096}', 'kt'))
            s = '-' if neg else ''
            for i in range(4): R.append(f'v_cvt_pk_bf16_f32 v{o+4+i}, {s}v{vals[2*i]+1}, {s}v{vals[2*i+1]+1}')
            R.append((f'ds_write_b128 v{A+blk}, {vr(o+4,4)} offset:{plane*4096+4096}', 'kt'))
            return R
        B = [156 + 2*i for i in range(26)]
        fa = B[0:8]; fb = B[8:16]; g = [Cc] + B[16:24]
        fa0 = [fa[0], E8] + fa[2:]
        L += [f'v_mov_b32 v{fa[0]}, 1.0', f'v_mov_b32 v{fa[0]+1}, 0']
        L += cm([(fa[2], E8, E8), (g[1], Cc, E1), (E2, E1, E1), (g[8], Cc, E8)])
        L += cm([(fa[3], fa[2], E8), (fa[4], fa[2], fa[2]), (g[2], Cc, E2), (g[3], g[1], E2)])
        L += cm([(fa[5], fa[4], E8), (fa[6], fa[4], fa[2]), (fa[7], fa[4], fa[3]), (g[4], g[2], E2), (g[5], g[3], E2)])
        L += pack(fa0, 0, 2, False)
        fb0 = [E64] + fb[1:]
        L += cm([(g[6], g[4], E2), (g[7], g[5], E2)] + [(fb[i], fa0[i], E64) for i in range(1, 8)])
        L += cm([(fa[i], fb0[i], E64) for i in range(8)])
        L += pack(fb0, 1, 2, False)
        L += cm([(fb[i], fa[i], E64) for i in range(8)])
        L += pack(fa, 2, 2, False)
        h0, h2, h4, h6, h8, i0, i4, i8 = B[0:8]
        j0, j4, j8, k0, k8, l0, l8 = B[8:15]
        L += cm([(h0, g[0], E256), (h2, g[2], E256), (h4, g[4], E256), (h6, g[6], E256), (h8, g[8], E256), (E2, E256, E256)])
        L += pack(fb, 3, 2, False)
        L += cm([(i0, g[0], E2), (i4, g[4], E2), (i8, g[8], E2), (j0, h0, E2), (j4, h4, E2), (j8, h8, E2)])
        L += pack([g[0], g[1], h0, h0, g[2], g[3], h2, h4], 0, 0, True)
        m0, m8, n0, n8 = g[1], g[2], g[3], B[15]
        L += cm([(k0, i0, E2), (k8, i8, E2), (l0, j0, E2), (l8, j8, E2)])
        L += pack([g[4], g[5], h4, h4, g[6], g[7], h6, h8], 1, 0, True)
        L += cm([(m0, k0, E2), (m8, k8, E2), (n0, l0, E2), (n8, l8, E2)])
        L += pack([i0, i4, k0, k8, i4, i8, l0, l8], 2, 0, True)
        L += pack([j0, j4, m0, m8, j4, j8, n0, n8], 3, 0, True)
        L.append(fk(4))
        L.append(BAR)
        L.append(fk(5))
        D = 128; FR = 136
        def rd(j):
            o = 16384 * (j // 4) + 1024 * (j % 4); b = FR + 12 * (j % 5)
            return [(f'ds_read_b64_tr_b16 {vr(b+4*k+2*p,2)}, v{A+(6,4,5)[k]} offset:{o + 4096*p + (8192 if k == 0 else 0)}', f'kr{j}') for k in range(3) for p in range(2)]
        KA2 = self.g.opt.get('ka', 2)
        for j in range(KA2): L += rd(j)
        for j in range(8):
            b = FR + 12 * (j % 5); nx = rd(j+KA2) if j + KA2 < 8 else []
            L += nx[:3]
            L.append(lambda j=j: a.waitlg(f'kr{j}'))
            L.append(f'v_mfma_f32_16x16x32_bf16 {vr(D,4)}, {vr(b+4,4)}, {vr(b,4)}, {"0" if j == 0 else vr(D,4)}')
            L += nx[3:]
            L.append(f'v_mfma_f32_16x16x32_bf16 {vr(D+4,4)}, {vr(b+8,4)}, {vr(b,4)}, {"0" if j == 0 else vr(D+4,4)}')
        L.append(fk(6))
        O = 196
        L += [f'v_cvt_pk_bf16_f32 v{O}, v{D+1}, v{D}', f'v_cvt_pk_bf16_f32 v{O+1}, v{D+3}, v{D+2}',
              f'v_cndmask_b32 v{O+2}, v{D+5}, v{D+4}, s[46:47]', f'v_cndmask_b32 v{O+5}, v{D+7}, v{D+6}, s[58:59]',
              f'v_cvt_pk_bf16_f32 v{O+4}, v{D+7}, v{D+7}', f'v_cvt_pk_bf16_f32 v{O+5}, v{D+7}, v{O+5}', f'v_cvt_pk_bf16_f32 v{O+6}, v{D+6}, v{D+6}', f'v_cvt_pk_bf16_f32 v{O+7}, v{D+6}, v{D+6}',
              (f'ds_write_b128 v{A+14}, {vr(O+4,4)} offset:{4080-2048}', 'kw'),
              f'v_cvt_pk_bf16_f32 v{O+2}, v{D+5}, v{O+2}', f'v_cvt_pk_bf16_f32 v{O+3}, v{D+4}, v{D+4}',
              (f'ds_write_b64 v{A+8}, {vr(O+2,2)} offset:{4088-1024}', 'kw'),
              (f'ds_write_b32 v{A+7}, v{O} offset:4092', 'kw'), (f'ds_write_b32 v{A+7}, v{O+1} offset:{4092-512}', 'kw')]
        return L
    UA = 13; KA_ = 15
    def ubuild(self, R, T, O, TL):
        a = self.a
        ld = ['s_lshl_b32 s31, s29, 11', f'v_lshl_add_u32 v{TL}, v0, 5, s31', 's_lshl_b32 s31, s2, 13', f's_add_u32 s31, s31, {WS_XNT - 16}']
        ld += [(f'buffer_load_dwordx4 {vr(R+4*k,4)}, v{TL}, s[12:15], s31 offen offset:{16*k} {self.g.opt.get("rawf", "sc1").replace("-", "")}', 'raw') for k in range(3)]
        ad = ['s_mov_b32 s44, 0x05040100', 's_mov_b32 s45, 0x07060302'] + [f'v_mov_b32 v{T+4+k}, 0' for k in range(4)]
        ad += ['s_lshr_b32 s31, s29, 1', f's_mul_i32 s46, s31, {UGRP}', f's_add_u32 s46, s46, {L_U}', 's_and_b32 s47, s29, 1',
               f'v_lshrrev_b32 v{T+2}, 5, v0', f'v_mul_u32_u24 v{T+2}, {USTR}, v{T+2}', f'v_and_b32 v{T+3}, 31, v0', f'v_min_u32 v{T+3}, 23, v{T+3}',
               f's_mul_i32 s31, s47, {2*USTR}', 's_add_u32 s31, s31, s46', f'v_lshl_add_u32 v{T+3}, v{T+3}, 4, v{T+2}', f'v_add_u32 v{T+3}, s31, v{T+3}',
               's_lshl_b32 s31, s29, 10', f's_add_u32 s31, s31, {L_U + 384}', f'v_add_u32 v{T+1}, s31, v7',
               's_cmp_eq_u32 s29, 0\ns_cselect_b32 s31, 0, -1', f'v_cmp_eq_u32 s[58:59], s31, v0']
        L = [(f'ds_write_b128 v{T+3}, {vr(T+4,4)}', 'uw'), lambda: a.waitvm('raw')]
        for k in range(1, 4): L.append(f'v_cndmask_b32 v{R+k}, v{R+k}, v{T+4}, s[58:59]')
        for dl in range(2):
            for e in range(4):
                d = O + 4 * (e & 1)
                for k in range(4): L.append(f'v_perm_b32 v{d+k}, v{R+4+2*k+e-2}, v{R+4+2*k+e-3}, s{44+dl}')
                L.append((f'ds_write_b128 v{T+1}, {vr(d,4)} offset:{dl*UGRP+e*USTR}', 'uw'))
        ca = [f'v_and_b32 v{T}, 3, v0', f'v_mul_u32_u24 v{T}, {USTR}, v{T}', f'v_bfe_u32 v{T+2}, v0, 2, 2', f'v_lshl_add_u32 v{T}, v{T+2}, 7, v{T}',
              f'v_and_b32 v{T+2}, 48, v0', f'v_add3_u32 v{self.UA}, v{T}, v{T+2}, s46', 's_lshl_b32 s3, s47, 9',
              's_sub_u32 s31, s57, s3', 's_add_u32 s31, s31, 632', f'v_and_b32 v{T}, 15, v0', f'v_lshlrev_b32 v{T}, 3, v{T}', f'v_sub_u32 v{T}, v{T+2}, v{T}', f'v_add_u32 v{self.KA_}, s31, v{T}']
        return ld, ad, L, ca
    def conv(self):
        a = self.a; CA = self.CA
        FB = [192, 224]
        def reads(n):
            r, par = divmod(n, 2)
            L = []
            for i in range(4):
                kk = 3 - i
                pp = 2*kk + 1 - par
                if i == 0: L.append((f'ds_read_b128 {vr(FB[n&1],4)}, v{self.UA} offset:{512*par+64*r}', f't{n}_0'))
                for h in range(2): L.append((f'ds_read_b64 {vr(FB[n&1]+16+4*kk+2*h,2)}, v{self.KA_} offset:{3584 - 512*pp + 64*r + 8*h}', f'k{n}_{kk}'))
            for i in range(1, 4): L.append((f'ds_read_b128 {vr(FB[n&1]+4*i,4)}, v{self.UA} offset:{512*(2*i+par)+64*r}', f't{n}_{i}'))
            return L
        G_ = []
        for n in range(16):
            nx = reads(n+1) if n < 15 else []
            m = 0
            for i in range(4):
                for kk in range(3 - i, -1, -1):
                    A = i + kk
                    tags = [f't{n}_{i}', f'k{n}_{kk}']
                    c = '0' if (n == 0 and i == 0) else vr(CA+4*A, 4)
                    g = [lambda tags=tags: a.waitlg(tags), f'v_mfma_f32_16x16x32_bf16 {vr(CA+4*A,4)}, {vr(FB[n&1]+4*i,4)}, {vr(FB[n&1]+16+4*kk,4)}, {c}']
                    k = 2 if m < 4 else (1 if m < 8 else 0)
                    g += nx[:k]; nx = nx[k:]; m += 1
                    G_.append(g)
            assert not nx
        return reads(0), G_
    def finish(self):
        a = self.a; CA = self.CA; R = 192; T = 224
        L = ['s_lshl_b32 s3, s47, 9', f's_add_u32 s31, s46, {3*USTR + 384}', 's_add_u32 s31, s31, s3', f'v_lshlrev_b32 v{T+1}, 3, v0', f'v_add_u32 v{T}, s31, v{T+1}']
        for k in range(4): L.append((f'ds_read_b64 {vr(R+16+2*k,2)}, v{T} offset:{1024*k}', f'ur{k}'))
        L += ['s_lshr_b32 s31, s29, 1', 's_lshl_b32 s55, s2, 1', 's_add_u32 s55, s55, s31', 's_lshl_b32 s56, s55, 12', 's_add_u32 s56, s56, s3', f's_add_u32 s56, s56, {WS_ST}',
              's_add_u32 s55, s55, s3', 's_lshl_b32 s55, s55, 7', f's_add_u32 s60, s55, {FS}',
              's_lshl_b32 s31, s31, 4', f'v_lshrrev_b32 v{T+2}, s31, v{self.DS}', f'v_lshlrev_b32 v{T+2}, 16, v{T+2}']
        for k in range(4):
            L.append(lambda k=k: a.waitlg(f'ur{k}'))
            for j in range(2): L += [f'v_lshlrev_b32 v{R+4*k+2*j}, 16, v{R+16+2*k+j}', f'v_and_b32 v{R+4*k+2*j+1}, s33, v{R+16+2*k+j}']
            for j in range(4): L.append(f'v_fmac_f32 v{CA+4*k+j}, v{R+4*k+j}, v{T+2}')
            for j in range(2): L.append(f'v_cvt_pk_bf16_f32 v{T+4+2*k+j}, v{CA+4*k+2*j}, v{CA+4*k+2*j+1}')
            L.append((f'buffer_store_dwordx2 {vr(T+4+2*k,2)}, v{T+1}, s[12:15], s56 offen offset:{1024*k} sc1', 'sst'))
        return L, self.g.setflag('s60', T+3)

def emit_plain(a, L):
    n = 0
    for x in L:
        if x is BAR:
            a.waitall(vm=False); a('s_barrier'); n += 1
        else: a.emit([x])
    return n


def sizes_of(lines):
    import subprocess, tempfile, os
    d = tempfile.mkdtemp()
    open(d + '/t.s', 'w').write('.amdgcn_target "amdgcn-amd-amdhsa--gfx950"\n' + '\n'.join(lines) + '\n')
    r = subprocess.run(['llvm-mc', '-triple=amdgcn-amd-amdhsa', '-mcpu=gfx950', '-show-encoding', d + '/t.s'], capture_output=True, text=True)
    assert r.returncode == 0, r.stderr[:2000]
    enc = [len(l.split('encoding: [')[1].split(']')[0].split(',')) for l in r.stdout.split('\n') if 'encoding: [' in l]
    idx = [i for i, l in enumerate(lines) if Ins(l).is_ins]
    assert len(enc) == len(idx), (len(enc), len(idx))
    return dict(zip(idx, enc))

def finalize(a, name, opt):
    L, _ = pad_hazards([x for x in a.L], opt.get('verbose'))
    warm = [i for i, x in enumerate(L) if x == '@WARM@']
    base = [x if x != '@WARM@' else '' for x in L]
    sz = sizes_of(base)
    start = base.index('.p2align 12')
    out = base[:start + 1]; addr = 0; pads = []
    stop = base.index(f'{name}_tcomp:')
    n = len(base); i = start + 1
    E64 = ('v_add_f32', 'v_mul_f32', 'v_sub_f32', 'v_lshlrev_b32', 'v_and_b32', 'v_xor_b32', 'v_or_b32', 'v_mov_b32', 'v_exp_f32', 'v_rcp_f32', 'v_add_u32', 'v_max_f32',
           'v_lshrrev_b32', 'v_sqrt_f32', 'v_fmac_f32', 'v_max_u32', 'v_min_u32', 'v_sin_f32', 'v_cos_f32', 'v_fract_f32')
    while i < n:
        ln = base[i]
        if i in sz:
            if addr >= 4096 * (len(pads) + 1) and i < stop and not opt.get('nopad'):
                lb = f'{name}_pad{len(pads)}'; pads.append(lb)
                out.append(f'{lb}:'); out.append(f'@PAD{len(pads)-1}@'); addr += 4
            s = sz[i]
            if s == 4 and not opt.get('noalign') and (addr + 4) % 8 == 4:
                j = i + 1; run = 0; mf = 0
                while j < n and (j not in sz or sz[j] == 8):
                    if j in sz:
                        run += 1; mf += base[j].startswith('v_mfma')
                    j += 1
                mn = ln.split()[0]
                if run >= 3 and mn in E64:
                    ln = ln.replace(mn, mn + '_e64', 1); s = 8
                elif run >= 10 and mf == 0:
                    out.append('s_nop 0'); addr += 4
            addr += s
        out.append(ln); i += 1
    res = []; wi = 0
    for k, x in enumerate(out):
        if x.startswith('@PAD'):
            p = int(x[4:-1])
            res.append(f's_cbranch_execz {name + "_warmret0" if p < 2 else pads[p+2] if p + 2 < len(pads) else name + "_warmret1"}')
        elif k in warm and pads:
            res += ['s_mov_b64 exec, 0', 's_cmp_eq_u32 s18, 0', f's_cbranch_scc1 {pads[2*wi]}', f's_branch {pads[2*wi+1]}', f'{name}_warmret{wi}:', 's_mov_b64 exec, -1']
            wi += 1
        else: res.append(x)
    if opt.get('stf'): res = [x.replace(' sc1', ' ' + opt['stf'].replace('_', ' ')) if x.startswith('buffer_store') else x for x in res]
    if opt.get('ldf'): res = [x.replace(' sc1 lds', ' ' + opt['ldf'].replace('_', ' ').replace('-', '') + ' lds') if x.startswith('buffer_load') else x for x in res]
    return '\n'.join(res) + '\n'

def fused(name, opt):
    g = G(name, opt); a = g.a; ssm = SSM(g); stamp = g.stamp
    nb = {'gl': 0, 'gc': 0, 'tl': 0, 'tc': 0}
    rlx = opt.get('rlx', 0)
    OWN = opt.get('own', 1); ZN = opt.get('zn', 5); ZX = ZN - 4; ZS = lambda k: (k + 2*OWN + ZX) % ZN - ZX
    NR = opt.get('nr', 4); M16 = opt.get('m16', 1)
    rp = opt.get('rpat', 'SSSSSSSSRSSSSRSSSSRSSSSRSSSSSSSS')
    pat = ''
    while len(pat) < 32:
        ch = rp[len(pat) % len(rp)]
        pat += ch if pat.count('R') < NR else 'S'
    RPOS = [k for k in range(32) if pat[k] == 'R']; SPOS = [k for k in range(32) if pat[k] == 'S']
    MEM = {k: r for r, k in enumerate(RPOS)}; MEM.update({k: NR + s for s, k in enumerate(SPOS)})
    SIDX = {k: s for s, k in enumerate(SPOS)}
    assert OWN and not rlx and min(ZS(k) for k in range(28, 32)) >= 0
    assert len(SPOS) % 4 == 0 and SPOS[-4:] == [28, 29, 30, 31]
    W3 = [(0, 29), (8192, 29), (L_Z + 8192*ZS(28), 29), (16384, 30), (24576, 30), (L_Z + 8192*ZS(29), 30), (32768, 31), (40960, 31), (L_Z + 8192*ZS(30), 31),
          (147456, 31), (155648, 31), (49152, 32), (57344, 32), (L_Z + 8192*ZS(31), 32)]
    W3LOC = [x[0] for x in W3]
    kernel_begin(a, name)
    lab = lambda s: f'{name}_{s}'
    a(f's_cmp_ge_u32 s2, 256\ns_cbranch_scc1 {lab("done")}')
    if opt.get('prof') or opt.get('dbg') or opt.get('span'): a('s_memrealtime s[62:63]\ns_memtime s[66:67]')
    a(f's_load_dwordx2 s[4:5], s[0:1], {KA["u"]}\ns_load_dwordx2 s[12:13], s[0:1], {KA["ws"]}')
    a('''v_lshrrev_b32 v1, 6, v0
s_and_b32 s24, s2, 7
s_bfe_u32 s25, s2, 0x20003
v_readfirstlane_b32 s29, v1
s_lshr_b32 s26, s24, 1
s_lshl_b32 s26, s26, 2
s_add_u32 s26, s26, s25
s_lshr_b32 s27, s2, 5
s_and_b32 s30, s24, 1
s_mul_i32 s28, s30, 7
s_add_u32 s28, s28, s27
v_and_b32 v0, 63, v0''')
    a(f's_cmp_ge_u32 s29, 4\ns_cbranch_scc1 {lab("help")}')
    a(f's_load_dwordx8 s[40:47], s[0:1], {KA["logA"]}\ns_load_dwordx4 s[48:51], s[0:1], {KA["logdt"]}')
    a(f's_load_dwordx2 s[18:19], s[0:1], {KA["bsp"]}\ns_load_dwordx2 s[20:21], s[0:1], {KA["out"]}')
    a.emit(ssm.param_addr())
    a(f's_lshl_b32 s35, s26, 2\ns_add_u32 s35, s35, s29\ns_mul_i32 s54, s35, 57344\ns_lshl_b32 s31, s28, 12\ns_add_u32 s54, s54, s31\ns_add_u32 s54, s54, {WS_HF}')
    a('v_lshlrev_b32 v7, 4, v0\nv_mov_b32 v8, -1\nv_mov_b32 v9, -1\nv_mov_b32 v10, -1\nv_mov_b32 v11, -1')
    a('s_waitcnt lgkmcnt(0)')
    tagload = f's_add_u32 s16, s12, {WS_EPOCH}\ns_addc_u32 s17, s13, 0\ns_load_dword s24, s[16:17], 0'
    tagmake = 's_waitcnt lgkmcnt(0)\ns_mul_i32 s24, s24, 0x19660d\ns_add_u32 s24, s24, 0x3c6ef35f'
    a.emit(ssm.param_loads())
    a(tagload)
    a(f's_cmp_eq_u32 s27, 7\ns_cbranch_scc1 {lab("tcomp")}')
    hcl = opt.get('hcl', 't')
    if hcl == 'g':
        a(f's_and_b32 s13, s13, 0xffff\ns_mov_b32 s14, {hex(WS_BYTES)}\ns_mov_b32 s15, 0x20000')
        for q in range(4): a(f'buffer_store_dwordx4 v[8:11], v7, s[12:15], s54 offen offset:{1024*q} sc1')
    a(f's_branch {lab("comp")}')
    a(f'{lab("help")}:')
    a(f's_load_dwordx2 s[8:9], s[0:1], {KA["win"]}\ns_load_dwordx2 s[20:21], s[0:1], {KA["wsp"]}\ns_load_dwordx2 s[36:37], s[0:1], {KA["wout"]}')
    if opt.get('lp'): a(f's_setprio {opt["lp"]}')
    a('s_and_b32 s18, s29, 1\ns_lshl_b32 s19, s18, 12')
    srdc = f's_mov_b32 s14, {hex(WS_BYTES)}\ns_mov_b32 s15, 0x20000\ns_mov_b32 s6, 0x200000\ns_mov_b32 s7, 0x20000'
    a(srdc)
    if not opt.get('nocpf'):
        a(f's_getpc_b64 s[56:57]\n{lab("pc")}:\ns_lshr_b32 s31, s2, 2\ns_and_b32 s31, s31, 62\ns_add_u32 s31, s31, s18\nv_and_b32 v1, 7, v0\nv_lshlrev_b32 v1, 6, v1\nv_add_lshl_u32 v1, v1, s31, 7\nv_min_u32 v1, {lab("done")}-{lab("pc")}, v1')
        a('global_load_dword v31, v1, s[56:57]')
    a(f's_cmp_eq_u32 s27, 7\ns_cbranch_scc1 {lab("thelp")}')

    def rot3(r):
        sm, sn = opt.get('sm3', 0), opt.get('sn3', 0)
        a(f's_mul_i32 s{r}, s25, {sm}\ns_mul_i32 s31, s27, {sn}\ns_add_u32 s{r}, s{r}, s31\ns_lshr_b32 s{r}, s{r}, 4\ns_sub_u32 s31, s{r}, 14\ns_cmp_ge_u32 s{r}, 14\ns_cselect_b32 s{r}, s31, s{r}')
    def late_loader_setup():
        a(f's_mov_b32 s22, 0x800000\ns_mov_b32 s23, 0x20000\ns_mov_b32 s38, {896*1024}\ns_mov_b32 s39, 0x20000')
        a('s_and_b32 s21, s21, 0xffff\ns_and_b32 s37, s37, 0xffff\ns_and_b32 s13, s13, 0xffff')
        a('v_lshl_add_u32 v14, v0, 4, s19\nv_lshlrev_b32 v15, 7, v0')
        a('s_lshl_b32 s31, s27, 7\ns_lshl_b32 s3, s18, 15\ns_add_u32 s31, s31, s3'); troffs(a, 16, 1024, 's31')
        a('s_lshl_b32 s32, s26, 1\ns_add_u32 s32, s32, s30\ns_lshl_b32 s3, s32, 6'); rowoffs(a, 20, 's3', 10, 's31')
        rot3(60)
        a(f's_lshl_b32 s35, s2, 13')
        a(f's_lshr_b32 s31, s2, 7\ns_lshl_b32 s31, s31, 13\ns_add_u32 s59, s31, {FX}\nv_and_b32 v32, 0xfff, v15')
        if hcl == 't': a(f'v_min_u32 v33, {3*128}, v15\ns_lshl_b32 s31, s26, 9\ns_add_u32 s31, s31, {FH}')
        else:
            a(f'v_min_u32 v33, 13, v0\nv_lshlrev_b32 v33, 13, v33\ns_lshl_b32 s31, s32, 1\ns_add_u32 s31, s31, s18\ns_lshl_b32 s31, s31, 7\ns_add_u32 s31, s31, {FZ}')
        a(f"""v_add_u32 v33, s31, v33
s_lshl_b32 s31, s27, 13
s_bfe_u32 s3, s26, 0x10001
s_lshl_b32 s3, s3, 16
s_add_u32 s31, s31, s3
s_add_u32 s31, s31, s19
s_add_u32 s61, s31, {FS}
v_mov_b32 v36, -1
v_mov_b32 v37, -1
v_mov_b32 v38, -1
v_mov_b32 v39, -1
v_mov_b32 v34, 0
v_lshlrev_b32 v44, 2, v0
s_lshl_b32 s31, s27, 18
s_lshl_b32 s3, s18, 17
s_add_u32 s31, s31, s3
s_lshl_b32 s3, s32, 7
s_add_u32 s31, s31, s3
s_add_u32 s31, s31, {WS_ST}""")
        troffs(a, 40, 4096, 's31')
    def adv(r): return [f's_add_u32 s{r}, s{r}, 1', f's_cmp_eq_u32 s{r}, 14', f's_cselect_b32 s{r}, 0, s{r}']
    def w3(j, need=None): return grp(W3LOC[j], ['s_lshl_b32 s56, s60, 16'] + adv(60), 16, 's[36:39]', 's56', need=need)
    vat = opt.get('vat', 'ssssaaaa').replace('-', ''); NV = len(vat); xat = opt.get('xat', 'a').replace('-', ''); assert NV <= 12 and (NV or not xat)
    def vload(where, pace=None):
        for j in range(14 - NV, 14):
            if vat[j - 14 + NV] != where: continue
            a(f's_mov_b32 s56, {j << 16}')
            for i in range(4): a.L.append(f'buffer_load_dwordx4 {vr(256 - 16*(14-j) + 4*i, 4)}, v{16+i}, s[36:39], s56 offen offset:{1024*i}')
            if pace is not None: a(f's_waitcnt vmcnt({pace})')
        if xat == where:
            for i in range(4): a.L.append(f'buffer_load_dwordx4 {vr(48 + 4*i, 4)}, v{20+i}, s[4:7], 0 offen offset:{1024*i}')
    def vstore():
        if xat:
            a(f'v_add_u32 v1, {L_X3}, v14')
            for i in range(4): a.L.append(f'ds_write_b128 v1, {vr(48 + 4*i, 4)} offset:{1024*i}')
        a(f'v_add_u32 v1, {L_Z}, v14')
        for j in range(14 - NV, 14):
            w = W3LOC[j]; hi = w >= L_Z
            for i in range(4): a.L.append(f'ds_write_b128 v{1 if hi else 14}, {vr(256 - 16*(14-j) + 4*i, 4)} offset:{w - L_Z*hi + 1024*i}')
        a('s_waitcnt lgkmcnt(0)')
    def x3(need=None): return grp(L_X3, None, 20, 's[4:7]', '0', need=need)
    w3m = opt.get('w3m', 14)
    fsload = 'buffer_load_dword v27, v32, s[12:15], s61 offen sc1'
    def s3tail():
        if w3m < 14:
            paced(sum([w3(j) for j in range(w3m, 14)], []), opt.get('thin4', 60))
            a.L.append(fsload)
            a('s_waitcnt vmcnt(1)\ns_barrier\ns_waitcnt vmcnt(0)')
        lspin('s61', 'v32', w3m < 14)
        stream_emit(a, grp(L_S3, None, 40, 's[12:15]', '0', fl='sc1'), 0, 0)
        a('s_waitcnt vmcnt(0)')
        stamp(15)
    def rawg(cb=None): return grp(L_RAW + 16, [f's_add_u32 s31, s35, {WS_XNT}'], 14, 's[12:15]', 's31', True, cb, None, 'sc1')
    def lspin(soff, voff, first=False):
        lp = a.newlab('lsp'); lo = a.newlab('lspo')
        a(f's_mov_b32 s58, {SPIN}')
        if first: a(f's_branch {lp}c')
        a(f'{lp}:')
        a.L.append(f'buffer_load_dword v27, {voff}, s[12:15], {soff} offen sc1'); a.L.append('s_waitcnt vmcnt(0)')
        a(f'{lp}c:\nv_cmp_ne_u32 vcc, s24, v27\ns_cbranch_vccz {lo}\ns_sub_u32 s58, s58, 1\ns_cmp_lg_u32 s58, 0\ns_cbranch_scc1 {lp}\n{lo}:')
    def lflag(soff):
        a('s_mov_b32 exec_hi, 0'); a.L.append(f'buffer_store_dword v35, v44, s[12:15], {soff} offen sc1'); a('s_mov_b64 exec, -1')
    def paced(items, thin):
        for i in range(0, len(items), 4):
            stream_emit(a, items[i:i+4], 0, 0)
            if thin < 60: a(f's_waitcnt vmcnt({thin})')
    ft = opt.get('ft', ''); gs = opt.get('gs', 2); lg = gs.bit_length() - 1
    prog = opt.get('prog', 8)
    RG = 32 if prog else opt.get('rg', 1)
    def k0calc(r, with_c):
        if prog: a(f's_lshr_b32 s{r}, s26, 2\ns_lshl_b32 s{r}, s{r}, 3\ns_add_u32 s{r}, s{r}, {(32 - NR) % 32}')
        else: a(f's_mul_i32 s{r}, s25, {RG // 4 if RG >= 4 else 0}')
    def memidx(d, r, idx):
        if OWN and NR <= idx < NR + 8:
            return [f's_add_u32 s{d}, s47, {idx - NR}', f's_and_b32 s{d}, s{d}, 7', f's_or_b32 s{d}, s{d}, s46']
        return [f's_add_u32 s{d}, s{r}, {idx}', f's_and_b32 s{d}, s{d}, {RG-1}', f's_or_b32 s{d}, s{d}, {idx & ~(RG-1)}']
    def wtouch(groups, other, pace):
        for gi in groups:
            assert RG == 1 or (RG // 4) % gs == 0
            a(f's_xor_b32 s31, s30, {other}\ns_add_u32 s31, s31, {2*gi}\ns_lshl_b32 s31, s31, {lg}\ns_and_b32 s3, s31, {31 & ~(RG-1)}\ns_add_u32 s31, s31, s45\ns_and_b32 s31, s31, {RG-1}\ns_or_b32 s31, s31, s3\ns_lshl_b32 s31, s31, 7')
            for i in range(gs):
                a.L.append(f'buffer_load_dword v30, v29, s[20:23], s31 offen {ft}')
                if i + 1 < gs: a(f's_add_u32 s31, s31, {(64 // gs) * 4096}')
                if pace is not None: a(f's_waitcnt vmcnt({pace})')
    def count_bars(start): return sum(1 for x in a.L[start:] if x.strip() == 's_barrier')

    st0 = len(a.L)
    XO = [131072, 49152, 65536, 81920, 98304, 114688, 131072, 0]
    a('s_lshl_b32 s34, s25, 1\ns_add_u32 s34, s34, s27\ns_and_b32 s34, s34, 7\ns_lshl_b32 s33, s26, 7\ns_lshl_b32 s3, s18, 5\ns_add_u32 s33, s33, s3')
    rowoffs(a, 2, 's33', 10)
    a(f's_lshl_b32 s31, s28, 7\ns_mul_i32 s3, s18, {32*3584}\ns_add_u32 s31, s31, s3'); troffs(a, 6, 3584, 's31')
    def so(c): a(f's_add_u32 s31, s34, {c}\ns_and_b32 s31, s31, 7\ns_lshl_b32 s{40+c}, s31, 7\ns_mul_i32 s{48+c}, s31, {64*3584}')
    for c in range(4): so(c)
    a(f's_mov_b32 s10, {512*3584}\ns_mov_b32 s11, 0x20000')
    a('s_waitcnt lgkmcnt(0)')
    a(tagload)
    a('s_and_b32 s5, s5, 0xffff\ns_and_b32 s9, s9, 0xffff')
    f1 = opt.get('f1', '')
    def wg(p, cb=None): return grp(p*8192, [f's_add_u32 s31, s{48+p%8}, {1792 if p < 8 else 0}'], 6, 's[8:11]', 's31', cb=cb, fl=f1)
    def xg(c, need=None):
        return sum([grp(XO[c] + k*8192, [f's_add_u32 s31, s{40+c}, {k*65536}'], 2, 's[4:7]', 's31', cb=c+1, need=need if k == 0 else None, fl=f1) for k in range(2)], [])
    we = opt.get('we', 3)
    items = xg(0) + wg(0, 1) + wg(1, 2) + xg(1) + sum([wg(p, p+1) for p in range(2, we + 1)], [])
    t_ = Asm(); a_ = a; a = t_; vload('s'); a = a_
    su = []
    for x in t_.L:
        if x.startswith('buffer'): items.append((su, x, None, 0 if opt.get('sb', 0) else None)); su = []
        else: su.append(x)
    for c in range(2, 8):
        items += xg(c, 1)
        if c > we: items += wg(c, c+1)
    ncs = opt.get('ncs', 4)
    for p in range(8, 8 + ncs): items += wg(p)
    early = opt.get('early', 2)
    def setup2():
        for c in range(4, 8): so(c)
        late_loader_setup()
        rowoffs(a, 10, 's33', 12)
        k0calc(57, True)
    assert early >= 1 or not set(vat) & set('sf')
    if early >= 1: setup2()
    vload('f')
    if early >= 2: a('@WARM@')
    def hook1(b, k):
        if b == 0 and k == -1:
            if early < 1: setup2()
            if early < 2: a('@WARM@')
            a(tagmake + '\nv_mov_b32 v35, s24')
        if k == 1 and b in (1, 8): stamp({1: 1, 8: 2}[b])
    stream_emit(a, items, 9, opt.get('d1', 16), hook1)
    a('s_lshl_b32 s47, s25, 1\ns_lshr_b32 s46, s26, 2\ns_lshl_b32 s46, s46, 3')
    a(f's_lshl_b32 s34, s28, 18\ns_lshl_b32 s31, s28, 13\ns_lshl_b32 s3, s18, 7\ns_add_u32 s44, s31, s3\ns_add_u32 s44, s44, {FZ}\nv_lshlrev_b32 v28, 1, v32')
    vload('p', opt.get('vp'))
    a('s_barrier')
    stream_emit(a, sum([wg(p) for p in range(8 + ncs, 16)], []), 0, 0)
    fw = opt.get('fw', '')
    wcnt = [0]
    def wst(slot, half, cb=None, need=None):
        if half == 0:
            su = memidx(42, 57, wcnt[0] % opt.get('wfix', 32)) + ['s_lshl_b32 s42, s42, 7']; wcnt[0] += 1
        else: su = ['s_add_u32 s42, s42, 0x40000']
        return grp(slot * 16384 + half*8192, su, 10, 's[20:23]', 's42', cb=cb, need=need, fl=fw)
    def wfull(slot): return wst(slot, 0) + wst(slot, 1)
    def zst(k, cb=None, need=None):
        return grp(L_Z + ZS(k) * 8192, memidx(43, 57, MEM[k] % opt.get('zfix', 32)) + ['s_lshl_b32 s43, s43, 13', 's_add_u32 s43, s43, s34'], 14, 's[12:15]', 's43', True, cb, need, 'sc1')
    pre1 = opt.get('pre1', 2); thin = opt.get('thin', 12)
    for k in range(pre1): paced(wfull(k), thin)
    a(f's_waitcnt vmcnt({8*pre1})\ns_barrier')
    pre2 = opt.get('pre2', 4)
    for k in range(pre1, pre2): paced(wfull(k), thin)
    a('@WARM@')
    if pre2 < 4:
        a('s_barrier')
        for k in range(pre2, 4): paced(wfull(k), 60)
    vload('a', opt.get('vp'))
    stamp(3)
    spre = 4 if NR == 0 else opt.get('spre', 4)
    sp1 = min(spre, opt.get('sp1', 2))
    lu = opt.get('lu', 0)
    lspin('s59', 'v15')
    if lu:
        UR, UT, UO = 64, 88, 96
        a(f'v_lshlrev_b32 v{UT}, 5, v0\ns_add_u32 s31, s35, s19\ns_add_u32 s31, s31, {WS_XNT - 16}')
        for h in range(2):
            for k in range(3): a.L.append(f'buffer_load_dwordx4 {vr(UR+12*h+4*k,4)}, v{UT}, s[12:15], s31 offen offset:{2048*h + 16*k} sc1')
        a('s_mov_b32 s48, 0x05040100\ns_mov_b32 s49, 0x07060302')
        for k in range(4): a(f'v_mov_b32 v{UT+4+k}, 0')
        a(f'''s_mul_i32 s31, s18, {UGRP}
s_add_u32 s31, s31, {L_U}
v_lshrrev_b32 v{UT+2}, 5, v0
v_mul_u32_u24 v{UT+2}, {USTR}, v{UT+2}
v_and_b32 v{UT+3}, 31, v0
v_min_u32 v{UT+3}, 23, v{UT+3}
v_lshl_add_u32 v{UT+3}, v{UT+3}, 4, v{UT+2}
v_add_u32 v{UT+3}, s31, v{UT+3}
s_lshl_b32 s31, s18, 11
s_add_u32 s31, s31, {L_U + 384}
v_lshl_add_u32 v{UT+1}, v0, 4, s31
s_sub_u32 s31, 0, s18
v_cmp_eq_u32 vcc, s31, v0''')
    def lubuild():
        a.L.append(f'ds_write_b128 v{UT+3}, {vr(UT+4,4)}'); a.L.append(f'ds_write_b128 v{UT+3}, {vr(UT+4,4)} offset:{2*USTR}')
        for h in range(2):
            R = UR + 12*h
            for dl in range(2):
                for e in range(4):
                    d = UO + 4 * (e & 1)
                    for k in range(4): a(f'v_perm_b32 v{d+k}, v{R+4+2*k+e-2}, v{R+4+2*k+e-3}, s{48+dl}')
                    a.L.append(f'ds_write_b128 v{UT+1}, {vr(d,4)} offset:{dl*UGRP + e*USTR + 1024*h}')
        a('s_waitcnt lgkmcnt(0)')
    gt = opt.get('gt', 0)
    def gtouch():
        assert gs == 2 and RG == 32
        a('s_and_b32 s3, s27, 1\ns_lshl_b32 s3, s3, 6\ns_add_u32 s3, s3, s33\nv_lshrrev_b32 v29, 1, v0\nv_add_u32 v29, s3, v29\nv_lshlrev_b32 v29, 5, v29\nv_and_b32 v1, 1, v0\nv_add_lshl_u32 v29, v29, v1, 7')
        for i in range(gt):
            a(f's_lshr_b32 s31, s27, 1\ns_min_u32 s31, s31, 2\ns_add_u32 s31, s31, {8 - 3*gt + 3*i}\ns_lshl_b32 s31, s31, 1\ns_add_u32 s31, s31, s30\ns_lshl_b32 s31, s31, 1\ns_add_u32 s31, s31, s57\ns_and_b32 s31, s31, 31\ns_lshl_b32 s31, s31, 7')
            a.L.append('buffer_load_dword v30, v29, s[20:23], s31 offen')
    if NR >= 4: a('s_barrier')
    if gt: gtouch()
    vload('b', opt.get('vp'))
    if lu:
        a('s_waitcnt vmcnt(0)')
        for k in range(1, 4): a(f'v_cndmask_b32 v{UR+k}, v{UR+k}, v{UT+4}, vcc')
    a('s_barrier')
    if lu == 2: lubuild()
    for k in range(sp1): paced(wfull(k), 60)
    if lu == 1: lubuild()
    lb = opt.get('lb', 0)
    if not lb: a('s_barrier')
    npre = opt.get('npre', 3)
    fzv = 'v28'
    if prog:
        assert all(pat[k] == 'S' for k in range(min(prog, 6)))
        pn = min(prog, pat.index('R') if 'R' in pat else 32)
        a(f's_lshr_b32 s31, s26, 2\ns_lshl_b32 s31, s31, 11\nv_min_u32 v45, {((8 if OWN else pn)-1)*256}, v28\nv_add_u32 v45, s31, v45')
        fzv = 'v45'
    spec = opt.get('spec', 1)
    rest = list(range(sp1, spre)) if NR >= 4 else []
    assert len(rest) <= 2
    for n, k in enumerate(rest):
        if spec: a.L.append(f'buffer_load_dword v{46+n}, {fzv}, s[12:15], s44 offen sc1')
        paced(wfull(k), 60)
    if lb:
        a.L.append(f'buffer_load_dword v27, {fzv}, s[12:15], s44 offen sc1')
        a('s_barrier')
    stamp(4)
    go = a.newlab('zgo')
    if spec:
        for n in range(len(rest)):
            a(f's_waitcnt vmcnt({9*(len(rest)-n) - 1 + lb})\nv_cmp_ne_u32 vcc, s24, v{46+n}\ns_cbranch_vccz {go}')
    if lb: a('s_waitcnt vmcnt(0)')
    lspin('s44', fzv, bool(lb))
    a(f'{go}:')
    stamp(5)
    tiles = [(k - ZX * opt.get('zl', 10) / 10, 0, lambda k=k: zst(k, k, k - ZN + 1 if k >= ZN else None)) for k in range(2*OWN, 32)]
    last = -1
    for s in range(spre, len(SPOS)):
        need = min(SPOS[s-4] + 1 + rlx, max(SPOS[s-4] + 1, 28)) if s >= 4 else None
        for h in range(2):
            key = min(SPOS[s] - 0.5, max((need + 3 if need is not None else 0) - 0.5, last + opt.get('wgap', 10) / 10))
            last = key
            tiles.append((key, s*2 + h + 1, lambda s=s, h=h, need=need: wst(s % 4, h, SPOS[s], need)))
    hc = opt.get('hc', 28)
    if hcl != 'g': tiles.append((hc - 0.9, 0, lambda: [([], 'buffer_load_dword v27, v33, s[12:15], 0 offen sc1', hc, None)]))
    if prog:
        pb = pn - 3 - ZX
        tiles.append((max(pb, 3 - ZX) + 0.1 - ZX, 0, lambda: [([], 'buffer_load_dword v27, v28, s[12:15], s44 offen sc1', pb, None)]))
    tiles.sort(key=lambda x: (x[0], x[1]))
    items = sum([t[2]() for t in tiles], [])
    w3e = opt.get('w3e', 6)
    for j in range(w3e): items += w3(j, W3[j][1])
    hk = {(0,1): 6, (4,1): 7, (8,1): 8, (16,1): 9, (24,1): 10, (31,1): 11, (16,0): 16, (24,0): 17, (32,1): 12}
    hintb = opt.get('hintb', 32)
    def hook2(b, k):
        if (b, k) in hk: stamp(hk[(b, k)])
        if prog and (b, k) == (pb, 1): lspin('s44', 'v28', True)
        if (b, k) == (hc, 1) and hcl != 'g': lspin('0', 'v33', True)
        if (b, k) == (hintb, 1):
            sk = a.newlab('nohint')
            a(f's_or_b32 s3, s27, s18\ns_cmp_lg_u32 s3, 0\ns_cbranch_scc1 {sk}\ns_lshl_b32 s3, s32, 7\ns_add_u32 s3, s3, {FT}')
            lflag('s3')
            a(f'{sk}:')
    stream_emit(a, items, 33, lambda b: opt.get('d2', 32) if b < 30 else opt.get('d2e', 12), hook2, True)
    hb = opt.get('hb', 6)
    if hb:
        paced(([] if xat else x3()) + sum([w3(j) for j in range(w3e, hb)], []), 60)
        hook2(32.5, 1)
        a('s_barrier')
        paced(sum([w3(j) for j in range(max(hb, w3e), w3m - NV)], []), 60)
        if NV:
            assert w3m == 14 and max(hb, w3e) <= 14 - NV
            vstore()
    else: paced(x3() + sum([w3(j) for j in range(w3e, w3m)], []), 60)
    stamp(14)
    hook2(33, 1)
    a('s_waitcnt vmcnt(0)')
    hook2(34, 1)
    a('s_barrier')
    stamp(13)
    s3tail()
    nb['gl'] = count_bars(st0)
    g.prof_store()
    a('s_endpgm')

    a(f'{lab("thelp")}:')
    st0 = len(a.L)
    a('v_mov_b32 v36, -1\nv_mov_b32 v37, -1\nv_mov_b32 v38, -1\nv_mov_b32 v39, -1\nv_lshlrev_b32 v14, 4, v0')
    a(f's_lshl_b32 s31, s26, 1\ns_add_u32 s31, s31, s30\ns_lshl_b32 s31, s31, 1\ns_add_u32 s31, s31, s18\ns_lshl_b32 s31, s31, 13\ns_add_u32 s31, s31, {WS_STATS}')
    a('s_waitcnt lgkmcnt(0)')
    a(tagload)
    a('s_and_b32 s5, s5, 0xffff\ns_and_b32 s13, s13, 0xffff')
    for q in range(4): a.L.append(f'buffer_store_dwordx4 v[36:39], v14, s[12:15], s31 offen offset:{1024*q} sc1')
    late_loader_setup()
    if opt.get('tlbs'): a(f's_load_dwordx2 s[40:41], s[0:1], {KA["out"]}\ns_load_dwordx2 s[42:43], s[0:1], {KA["bsp"]}')
    k0calc(45, False)
    a(f's_lshl_b32 s31, s26, 7\ns_lshl_b32 s3, s18, 6\ns_add_u32 s31, s31, s3\nv_lshrrev_b32 v29, {lg}, v0\nv_add_u32 v29, s31, v29\nv_lshlrev_b32 v29, 5, v29\nv_and_b32 v1, {gs-1}, v0\nv_add_lshl_u32 v29, v29, v1, 7')
    ng = 16 // gs; tp_ = opt.get('tpace', 2); te = opt.get('te', 4) // gs
    a(tagmake + '\nv_mov_b32 v35, s24')
    if opt.get('tlbs'):
        st = opt['tlbs'] << 10
        a('s_lshl_b32 s31, s26, 19\ns_load_dword s46, s[20:21], s31')
        for o in range(0, 12 << 20, st): a(f's_mov_b32 s31, {o}\ns_load_dword s46, s[12:13], s31')
        a('s_load_dword s46, s[42:43], 0\ns_load_dword s46, s[36:37], 0\ns_load_dword s46, s[40:41], 0')
    a('s_waitcnt vmcnt(0)')
    stamp(1)
    a('s_barrier')
    te = opt.get('te', 0) // gs
    wtouch(range(te), 0, None)
    a('s_barrier')
    tm = opt.get('tm', 2) // gs; tn = opt.get('tn', 8) // gs
    wtouch(range(te, max(te, tm)), 0, None); tm = max(te, tm)
    if NV and opt.get('vt', 1):
        a(f's_and_b32 s31, s2, 31\ns_lshl_b32 s31, s31, 1\ns_add_u32 s31, s31, s18\ns_lshl_b32 s31, s31, 13\ns_add_u32 s31, s31, {(14-NV) << 16}')
        for i in range((NV + 7) // 8):
            a.L.append('buffer_load_dword v30, v15, s[36:39], s31 offen')
            a('s_add_u32 s31, s31, 0x80000')
    a('s_barrier')
    wtouch(range(tm, min(tn, ng - 3*gt)), 0, None)
    a('s_barrier')
    lspin('s59', 'v15')
    a('s_barrier')
    stamp(5)
    wtouch(range(tn, ng - 3*gt), 0, None)
    a('s_barrier')
    stamp(2)
    if hcl == 't':
        cl_ = a.newlab('hclr')
        a(f's_lshl_b32 s41, s32, 1\ns_add_u32 s41, s41, s18\ns_mul_i32 s31, s41, 57344\ns_sub_u32 s31, s31, s19\ns_add_u32 s31, s31, {WS_HF}\ns_mov_b32 s3, 14\n{cl_}:')
        for q in range(4): a.L.append(f'buffer_store_dwordx4 v[36:39], v14, s[12:15], s31 offen offset:{1024*q} sc1')
        a(f's_add_u32 s31, s31, 4096\ns_sub_u32 s3, s3, 1\ns_cmp_lg_u32 s3, 0\ns_cbranch_scc1 {cl_}')
        a(f's_waitcnt vmcnt(0)\ns_lshl_b32 s31, s41, 7\ns_add_u32 s31, s31, {FH}')
        lflag('s31')
    stamp(3)
    a('s_barrier')
    wtouch(range(opt.get('tskip', 16) // gs, ng), 1, tp_)
    nwo = opt.get('nwo', 14)
    nwo = min(nwo, 14 - NV)
    a(f's_lshl_b32 s41, s25, 1\ns_add_u32 s41, s41, s18\ns_mul_i32 s41, s41, {nwo*8192}\ns_and_b32 s40, s2, 7\ns_mul_i32 s40, s40, {nwo}\ns_lshr_b32 s40, s40, 3')
    for i in range(nwo):
        a('s_lshl_b32 s31, s40, 13\ns_add_u32 s31, s31, s41')
        a.L.append('buffer_load_dword v30, v15, s[36:39], s31 offen')
        a(f's_add_u32 s40, s40, 1\ns_cmp_eq_u32 s40, {nwo}\ns_cselect_b32 s40, 0, s40')
    paced(x3() + sum([w3(j) for j in range(w3m)], []), 60)
    stamp(6)
    if hcl != 't': lspin('0', 'v33')
    stamp(12)
    a(f's_lshl_b32 s3, s32, 7\ns_add_u32 s3, s3, {FT}')
    lspin('s3', 'v34')
    a('s_barrier\ns_barrier')
    stamp(13)
    s3tail()
    nb['tl'] = count_bars(st0)
    g.prof_store()
    a('s_endpgm')

    a('.p2align 12')
    a(f'{lab("comp")}:')
    g.comp = True
    a.vm = ['prm'] * 6 + (['hcl'] * 4 if hcl == 'g' else []); a.lg = []
    def cprologue():
        a(srdc)
        a('s_mov_b32 s33, 0xffff0000\ns_mov_b32 s34, 0x3f803f80\ns_mov_b32 s22, 0x200000\ns_mov_b32 s23, 0x20000')
        a('s_and_b32 s5, s5, 0xffff\ns_and_b32 s13, s13, 0xffff\ns_and_b32 s21, s21, 0xffff')
        a('v_lshlrev_b32 v7, 4, v0\nv_lshlrev_b32 v6, 2, v0')
    cprologue()
    if opt.get('cp'): a(f's_setprio {opt["cp"]}')
    a(f's_lshl_b32 s35, s26, 2\ns_add_u32 s35, s35, s29\ns_lshl_b32 s31, s35, 13\ns_add_u32 s37, s31, {WS_STATS}\ns_add_u32 s60, s37, 4096\ns_lshl_b32 s3, s28, 8\ns_add_u32 s38, s37, s3')
    a.emit(ssm.kaddr())
    X = 128; A2 = 64; A1 = 96; WF = 32
    XR = A1; ST = A1 + 4; T = A1 + 8; SD = A1 + 16; CC = A1 + 18; NM = A1 + 20; FL = A1 + 22
    WR = 8; SEL = 16; CS = 24; NEG = 28
    a('s_lshl_b32 s32, s29, 12\ns_add_u32 s32, s32, 131072')
    a.emit(rowread_list(1, 2, 's32') + trread_list(3, 2))
    for i in range(4):
        a(f's_add_u32 s31, s29, {i}\ns_and_b32 s31, s31, 3\ns_lshl_b32 s3, s31, 5\nv_xor_b32 v{XR+i}, s3, v1\ns_lshl_b32 s3, s31, 11\nv_add_u32 v{WR+2*i}, s3, v3\nv_xor_b32 v{WR+1+2*i}, 64, v{WR+2*i}')
    a(f'''v_bfe_u32 v1, v0, 4, 1
v_lshlrev_b32 v1, 2, v1
v_and_b32 v2, 15, v0
v_cmp_eq_u32 vcc, v1, v2
v_mov_b32 v3, s34
v_add_u32 v1, 8, v1
v_cndmask_b32 v{SEL}, 0, v3, vcc
v_cmp_eq_u32 vcc, v1, v2
s_lshl_b32 s31, s29, 2
s_add_u32 s31, s31, {L_CS}
v_cndmask_b32 v{SEL+4}, 0, v3, vcc
v_add_u32 v1, s31, v7
v_and_b32 v2, 511, v7
v_add_u32 v2, {L_CS}, v2''')
    for i in range(1, 4): a(f'v_mov_b32 v{SEL+i}, v{SEL}\nv_mov_b32 v{SEL+4+i}, v{SEL+4}')
    a(f's_lshl_b32 s31, s35, 12\ns_lshl_b32 s3, s28, 8')
    a(f's_lshl_b32 s52, s28, 18\ns_add_u32 s52, s52, s31')
    a(f's_lshl_b32 s31, s35, 2\ns_add_u32 s53, s31, s3\ns_lshl_b32 s53, s53, 5\ns_add_u32 s53, s53, {FZ}')
    a(tagmake); a.lg = []
    a(f'{lab("kgen")}:')
    emit_plain(a, ssm.kgen())
    stamp(1)
    a(f's_cmp_eq_u32 s27, 7\ns_cbranch_scc1 {lab("tcomp2")}')
    lg_split = list(a.lg)
    st0 = len(a.L)
    def xreads(c, base, off): return [(f'ds_read_b128 {vr(X+16*c+4*i,4)}, v{base+i} offset:{off}', f'xr{c}') for i in range(4)]
    XB = [131072, 49152, 49152, 49152, 49152, 114688, 114688, 0]
    def gx(c):
        L = []
        if c and XB[c] != XB[c-1]: L += [f'v_add_u32 v{XR+i}, {hex((XB[c] - XB[c-1]) & 0xffffffff)}, v{XR+i}' for i in range(4)]
        return L, xreads(c, XR, XO[c] - XB[c])
    def dots(c, S):
        for i in range(16):
            r = X + 16*c + i
            a(f'v_dot2c_f32_bf16 v{S + 2*(i&1)}, s34, v{r}\nv_dot2c_f32_bf16 v{S + 1 + 2*(i&1)}, v{r}, v{r}')
    def redux(S): return [f'v_add_f32 v{S}, v{S}, v{S+2}', f'v_add_f32 v{S+1}, v{S+1}, v{S+3}', f'v_mov_b32 v{S+2}, v{S}', f'v_mov_b32 v{S+3}, v{S+1}',
             f'v_permlane32_swap_b32 v{S}, v{S+2}', f'v_permlane32_swap_b32 v{S+1}, v{S+3}', f'v_add_f32 v{S}, v{S}, v{S+2}', f'v_add_f32 v{S+1}, v{S+1}, v{S+3}']
    def wreads(t):
        n, i = divmod(t, 4)
        L = []
        for fb in range(2):
            d = WF + 8*i + 4*fb
            L.append((f'ds_read_b64_tr_b16 {vr(d,2)}, v{WR+2*i+fb} offset:{(n%8)*8192}', f'wr{t}'))
            L.append((f'ds_read_b64_tr_b16 {vr(d+2,2)}, v{WR+2*i+fb} offset:{(n%8)*8192+512}', f'wr{t}'))
        return L
    def mfmas(t):
        n, i = divmod(t, 4); acc = A2 if n < 8 else A1; f = t % 32
        L = []
        for fb in range(2):
            c = '0' if f == 0 else vr(acc+16*fb, 16)
            L.append(f'v_mfma_f32_32x32x16_bf16 {vr(acc+16*fb,16)}, {vr(WF+8*i+4*fb,4)}, {vr(X+4*f,4)}, {c}')
        if i == 0:
            cs = [f'v_mfma_f32_16x16x32_bf16 {vr(CS,4)}, {vr(SEL+4*fb,4)}, {vr(WF+4*fb,4)}, {"0" if (f == 0 and fb == 0) else vr(CS,4)}' for fb in range(2)]
            L = ['\n'.join(cs + L[:1]), L[1]]
        return L
    def cs_write(part, T):
        return [f'v_cvt_pk_bf16_f32 v{T}, v{CS}, v{CS}', f'v_lshlrev_b32 v{T}, 16, v{T}', f'v_sub_f32 v{T}, v{CS}, v{T}', f'v_cvt_pk_bf16_f32 v{T}, v{CS}, v{T}',
                (f'ds_write_b32 v1, v{T} offset:{part*1024}', 'csw')]
    def cs_read(part, T):
        return [lambda: a.waitall(vm=False), 's_barrier'] + [(f'ds_read_b128 {vr(T+4*fb,4)}, v2 offset:{part*1024 + 512*fb}', 'csr') for fb in range(2)]
    def cs_apply(acc, T):
        return [lambda: a.waitlg('csr')] + [f'v_mfma_f32_32x32x16_bf16 {vr(acc+16*fb,16)}, {vr(T+4*fb,4)}, {vr(NEG,4)}, {vr(acc+16*fb,16)}' for fb in range(2)]
    def gconst(cc, r): return [f'v_mul_f32 v{cc+1}, {fbits(C0)}, v{r}', f'v_mul_f32 v{cc}, v{r}, v{r}', f'v_mul_f32 v{cc}, v{cc}, v{cc+1}', f'v_mul_f32 v{cc}, {fbits(0.044715)}, v{cc}']
    def halves(S, Q): return [f'v_permlane32_swap_b32 v{S}, v{Q}', f'v_add_f32 v{S}, v{S}, v{Q}', f'v_mov_b32 v{S+1}, v{S}', f'v_permlane32_swap_b32 v{S}, v{S+1}']
    finA = ['v_cmp_gt_u32 vcc, 32, v0'] + halves(ST, ST+2) + [f'v_mul_f32 v{NM}, {fbits(-1.0/512)}, v{ST}', f'v_cvt_pk_bf16_f32 v{NM+1}, v{NM}, v{NM}'] + \
        [f'v_cndmask_b32 v{NEG+i}, 0, v{NM+1}, vcc' for i in range(4)]
    Q1 = ST + 1
    finB = [f'v_mul_f32 v{Q1}, {fbits(1.0/512)}, v{Q1}', f'v_fma_f32 v{Q1}, -v{NM}, v{NM}, v{Q1}', f'v_max_f32 v{Q1}, 0, v{Q1}', f'v_cvt_pk_bf16_f32 v{Q1}, 0, v{Q1}',
            f'v_add_f32 v{Q1}, {fbits(1e-5)}, v{Q1}', f'v_cvt_pk_bf16_f32 v{Q1}, 0, v{Q1}', f'v_sqrt_f32 v{Q1}, v{Q1}', f'v_cvt_pk_bf16_f32 v{SD}, 0, v{Q1}', f'v_rcp_f32 v4, v{SD}'] + gconst(CC, 4)
    wadd = [f'v_add_u32 v{WR+i}, 65536, v{WR+i}' for i in range(8)]
    padr = [f'v_and_b32 v{FL+2}, 15, v0', f'v_lshrrev_b32 v{FL+1}, 4, v0', f'v_lshlrev_b32 v{FL+2}, 4, v{FL+2}', f'v_lshl_add_u32 v{FL+2}, v{FL+1}, 2, v{FL+2}']
    sload = f'buffer_load_dwordx4 {vr(ST,4)}, v7, s[12:15], s60 offen offset:3072 sc1'
    a.waitall(vm=False)
    a('s_barrier'); a.emit(gx(0)[1] + wreads(0) + wreads(1) + wreads(2))
    ts = opt.get('ts', 17); tk = opt.get('tk', 29)
    for c in range(8):
        fi = opt.get('fine') == 'p1' and c in (3, 4)
        if fi: stamp(3 + 6*(c-3), True)
        if c < 7:
            pre, xr = gx(c+1)
            last = [] if c == 0 else [xlast]
            fills = {0: last + wreads(4*c+3) + pre + ['s_barrier'], 1: xr[:1] + wreads(4*c+4), 2: xr[1:2] + wreads(4*c+5), 3: xr[2:3] + wreads(4*c+6)}
            xlast = xr[3]
        else:
            fills = {0: [xlast] + wreads(4*c+3) + padr, 1: cs_write(0, T) + wadd[:4], 2: wadd[4:] + cs_read(0, T), 3: []}
            fills[tk - 28] += finA
        for i in range(4):
            t = 4*c + i
            if opt.get('fine') == 'p1e' and t >= 19 and t != 22: stamp(3 + t - 19 - (t > 22), True)
            if t == ts: a(sload, 'st1')
            if t == tk:
                a.waitvm('st1'); g.spin([sload], [ST+1, ST+3], FL)
            if opt.get('fine') == 'p1e' and t == tk: stamp(15, True)
            a.waitlg(f'wr{t}')
            a.emit(merge(mfmas(t), fills[i]))
            if fi: stamp(5 + i + 6*(c-3), True)
    stamp(2)
    a.emit(cs_apply(A2, T))
    a.emit(finB)
    a.emit(gelu_pk(A2, 32, CC, SD, T))
    AH = 3
    rd = sum([wreads(t) for t in range(32, 32 + AH)], [])
    st = []
    for i in range(16):
        p = A2 + 2*i
        if i == 0: st.append(f'v_pk_mul_f32 {vr(ST+2,2)}, {vr(p,2)}, {vr(p,2)}')
        else: st += [f'v_pk_add_f32 {vr(ST,2)}, {vr(p-2,2) if i == 1 else vr(ST,2)}, {vr(p,2)}', f'v_pk_fma_f32 {vr(ST+2,2)}, {vr(p,2)}, {vr(p,2)}, {vr(ST+2,2)}']
    st += [f'v_add_f32 v{ST}, v{ST}, v{ST+1}', f'v_add_f32 v{ST+2}, v{ST+2}, v{ST+3}']
    a.emit(st)
    a(f'v_permlane32_swap_b32 v{ST}, v{ST+2}')
    a(f'v_add_f32 v3, v{ST}, v{ST+2}\nv_min_u32 v3, 0xfffffffe, v3')
    a.waitall(lg=False)
    a(f'buffer_store_dword v3, v{FL+2}, s[12:15], s38 offen sc1', 'pub')
    stamp(3)
    a('s_barrier')
    a.emit(rd)
    TA = X; P = X + 8; T2 = A2 + 16; U = X + 16; Q = X + 6; RA = A2 + 28
    pl = [f'buffer_load_dwordx4 {vr(P+4*j,4)}, v{7 if j < 3 else TA+7}, s[12:15], s37 offen offset:{1024*j} sc1' for j in range(4)]
    zcol = f'v_and_b32 v{TA+4}, 56, v{WR}' if not M16 else f'v_and_b32 v{TA+4}, 3, v0\nv_bfe_u32 v{TA+5}, v0, 4, 1\nv_lshl_add_u32 v{TA+4}, v{TA+5}, 2, v{TA+4}\nv_lshlrev_b32 v{TA+4}, 3, v{TA+4}'
    taddr = f"""v_and_b32 v{TA+6}, 7, v0
v_lshrrev_b32 v{TA+7}, 5, v0
v_xor_b32 v{TA+6}, v{TA+6}, v{TA+7}
v_lshlrev_b32 v{TA+6}, 4, v{TA+6}
v_and_b32 v{TA}, 31, v0
v_lshl_add_u32 v{TA}, v{TA}, 7, v{TA+6}
v_add_u32 v{TA}, s32, v{TA}
v_xor_b32 v{TA+1}, 32, v{TA}
v_xor_b32 v{TA+2}, 64, v{TA}
v_xor_b32 v{TA+3}, 96, v{TA}
v_bfe_u32 v{TA+6}, v0, 2, 2
v_lshl_add_u32 v{TA+7}, v{TA+7}, 3, v{TA+6}
v_lshlrev_b32 v{TA+6}, 4, v{TA+6}
{zcol}
v_xor_b32 v{TA+4}, v{TA+4}, v{TA+6}
v_lshl_add_u32 v{TA+4}, v{TA+7}, 7, v{TA+4}
v_add_u32 v{TA+4}, s32, v{TA+4}
v_xor_b32 v{TA+5}, 64, v{TA+4}
v_lshlrev_b32 v{TA+7}, 25, v0
v_and_b32 v{TA+7}, 0x40000000, v{TA+7}
v_add_u32 v{TA+7}, v{TA+7}, v7""".split('\n')
    fin2 = [f'v_pk_add_f32 {vr(P+j,2)}, {vr(P+j,2)}, {vr(P+j+8,2)}' for j in range(0, 8, 2)] + [f'v_pk_add_f32 {vr(P+j,2)}, {vr(P+j,2)}, {vr(P+j+4,2)}' for j in range(0, 4, 2)] + \
           [f'v_permlane16_swap_b32 v{P}, v{P+1}', f'v_permlane16_swap_b32 v{P+2}, v{P+3}', f'v_add_f32 v{P}, v{P}, v{P+1}', f'v_add_f32 v{P+2}, v{P+2}, v{P+3}']
    fin2 += halves(P, P+2) + ln_list(P, P+1, 896, P+2, P+5, P+4) + [f'v_mul_f32 v{P+5}, v{P+5}, v{P+4}']
    for q in range(4):
        for i in range(4): fin2.append(f'v_pk_fma_f32 {vr(A2+8*q+2*i,2)}, {vr(A2+8*q+2*i,2)}, {vr(P+4,2)}, {vr(P+4,2)} op_sel:[0,0,1] op_sel_hi:[1,0,1]')
        for i in range(4): fin2.append(f'v_cvt_pk_bf16_f32 v{U+4*q+i}, v{A2+8*q+2*i}, v{A2+8*q+2*i+1}')
        fin2.append((f'ds_write_b128 v{TA+q}, {vr(U+4*q,4)}', 'tw'))
    for q in range(4):
        ks2, fb = divmod(q, 2)
        fin2.append((f'ds_read_b64_tr_b16 {vr(A2+4*q,2)}, v{TA+4+fb} offset:{ks2*2048}', f'tr{q}'))
        fin2.append((f'ds_read_b64_tr_b16 {vr(A2+2+4*q,2)}, v{TA+5-fb} offset:{ks2*2048 + 512}', f'tr{q}'))
    fin4 = []
    for q in range(4): fin4 += [lambda q=q: a.waitlg(f'tr{q}'), (f'buffer_store_dwordx4 {vr(A2+4*q,4)}, v7, s[12:15], s52 offen offset:{1024*q} sc1', 'z2st')]
    tp = opt.get('tp', 41); tc = opt.get('tc', 47)
    assert tp >= 37 and tc >= 41
    fills = {t: [] for t in range(32, 70)}
    fills[34] += taddr[:8]; fills[35] += taddr[8:16]; fills[36] += taddr[16:]
    fills[33] += ['s_lshl_b32 s31, s35, 5', 'v_and_b32 v3, 31, v0', 'v_add_lshl_u32 v3, v3, s31, 1', ('global_load_ushort v3, v3, s[18:19]', 'bsp')]
    for j in range(4): fills[tp + j//2].append((pl[j], 'pl'))
    if pre2 < 4: fills[tp + 1].append('s_barrier')
    def waddr(d):
        if not M16: return ['s_lshl_b32 s31, s29, 12'] + rowread_list(d, d+1, 's31') + [f'v_xor_b32 v{d+i}, {32*i}, v{d}' for i in range(1, 4)]
        return ['s_lshl_b32 s31, s29, 12', f'v_lshrrev_b32 v{d+1}, 4, v0', f'v_bfe_u32 v{d}, v0, 1, 3', f'v_xor_b32 v{d}, v{d}, v{d+1}', f'v_lshlrev_b32 v{d}, 4, v{d}',
                f'v_and_b32 v{d+1}, 15, v0', f'v_lshl_add_u32 v{d}, v{d+1}, 7, v{d}', f'v_add_u32 v{d}, s31, v{d}', f'v_xor_b32 v{d+1}, 64, v{d}']
    def wsrc(base, ks, slot): return f'v{base+ks} offset:{slot*16384}' if not M16 else f'v{base+ks//2} offset:{slot*16384 + (ks&1)*2048}'
    def rreads(r, base): return [(f'ds_read_b128 {vr(X+16*r+4*ks,4)}, {wsrc(base, ks, r%4)}', f'res{r}') for ks in range(4)]
    t0 = tc + 1
    if OWN: fills[tc] += [f'v_add_u32 v{TA}, s32, v7'] + [(f'ds_write_b128 v{TA}, {vr(A2+4*q,4)} offset:{1024*q}', 'own') for q in range(4)]
    if hcl == 'z':
        fills[tc] += [f'v_mov_b32 v{T2+4+i}, -1' for i in range(4)] + [(f'buffer_store_dwordx4 {vr(T2+4,4)}, v7, s[12:15], s54 offen offset:{1024*q} sc1', 'hcl') for q in range(4)]
    if NR >= 4:
        fills[t0] += waddr(RA) + ['s_barrier']
        rr = sum([rreads(r, RA) for r in range(4)], [])
        rper = opt.get('rper', 3)
        for j in range(16):
            t = max(t0 + 1 + j // rper, 33 + j)
            fills[t].append(rr[j])
    assert NR == 4
    tb1 = max(52, t0 + 3 + 15 // opt.get('rper', 3))
    fills[tb1] += [lambda: a.waitlg('res3'), 's_barrier']
    assert M16 and hcl != 'z'
    ld, ad, ub, ca = ssm.ubuild(A2 + 16, X + 64, A2, A2 + 31)
    if lu:
        ca = ad[6:10] + ca; ld = []; ad = []; ub = []
    fills[t0] += ld
    tu = max(t0 + 1, 49)
    fills[tu+1] += ad[:11]; fills[tu+2] += ad[11:]
    u0 = max(tb1, tu + 2, opt.get('tf', 55)) + 1
    u1 = opt.get('u1', 65)
    for j in range(u0, u1): fills[j] += ub[(j-u0)*len(ub)//(u1-u0):(j-u0+1)*len(ub)//(u1-u0)]
    fills[61] = fills[61] + cs_write(1, A2 + 31)
    tf = opt.get('tf', 55)
    flagz = g.setflag('s53', A2 + 30) + [lambda: stamp(7)]
    fills[tf] += flagz
    fp = lambda i: stamp(i, True) if opt.get('fine') == 'p3' else None
    for t in range(32, 64):
        if t in (32, tp, tp + 4, tc): fp({32: 3, tp: 4, tp + 4: 5, tc: 6}[t])
        if t in (tc + 1, tc + 2, tc + 6, tc + 10, tf, tf + 1): fp({tc + 1: 10, tc + 2: 11, tc + 6: 12, tc + 10: 13, tf: 14, tf + 1: 15}[t])
        if t == tc:
            a.waitvm('pl'); fp(7)
            g.spin(pl, range(P, P+16), Q, True); stamp(4); fp(8)
            a.emit(fin2); fp(9)
        a.waitlg(f'wr{t}')
        rd = wreads(t + AH) if t + AH < 64 else []
        if t == tc:
            m = mfmas(t); a.emit(m + fin4 + rd + fills[t]); stamp(5)
        else: a.emit(merge(mfmas(t), rd + fills[t]))
    a.emit(fills[64])
    stamp(6)
    a.emit(cs_read(1, T2))
    gw = opt.get('gw', 0)
    if gw: a('v_rcp_f32 v24, v4')
    a.emit(waddr(8) + (gconst(26, 4) if gw else []))
    a.emit(cs_apply(A1, T2))
    a.emit(ca)
    Z1 = 112
    if gw: a.emit(gelu_pk(A1, 32, 26, 24, 16))
    else:
        for i in range(16): a(f'v_pk_mul_f32 {vr(A1+2*i,2)}, {vr(A1+2*i,2)}, v[4:5] op_sel_hi:[1,0]')
    for i in range(15, -1, -1): a(f'v_cvt_pk_bf16_f32 v{Z1+i}, v{A1+2*i}, v{A1+2*i+1}')
    if M16:
        a(f'v_lshlrev_b32 v10, 16, v3\nv_lshlrev_b32 v11, 16, v3\nv_and_b32 v12, 255, v7\nv_bfe_u32 v14, v0, 4, 1\nv_lshl_add_u32 v12, v14, 9, v12\nv_lshrrev_b32 v14, 5, v0\nv_lshl_add_u32 v12, v14, 11, v12\nv_add_u32 v12, {L_Z - 8192*ZX}, v12')
        a('v_permlane16_swap_b32 v10, v11')
        for p in range(4):
            for j in range(2): a(f'v_permlane16_swap_b32 v{Z1+4*p+j}, v{Z1+4*p+2+j}')
        a(f'v_mov_b32 v14, {fbits(C1)}')
    else: a(f'v_add_u32 v12, {L_Z}, v7\nv_lshlrev_b32 v4, 16, v3\nv_mov_b32 v14, {fbits(C1)}')
    cpre, cg = ssm.conv()
    if npre:
        emit_plain(a, cpre + sum(cg[:10*npre], [])); cg = cg[10*npre:]; cpre = []
    stamp(8)
    assert NR <= 4
    ACC = 32; F = [64, 88]
    def rd2(k, half):
        L = []
        if M16:
            wr = [(f'ds_read_b128 {vr(F[half]+4*tb,4)}, {wsrc(8, 2*half+tb, SIDX[k]%4)}', f'g{k}_{2*half}') for tb in range(2)] if k in SIDX else []
            zr = [(f'ds_read_b128 {vr(F[half]+8+4*fb,4)}, v12 offset:{(ZS(k)+ZX)*8192 + half*4096 + (fb>>1)*1024 + (fb&1)*256}', f'g{k}_{2*half + fb//2}') for fb in range(4)]
            return wr + zr
        for j in range(2):
            ks = 2*half + j
            if k in SIDX: L.append((f'ds_read_b128 {vr(F[half]+12*j,4)}, v{8+ks} offset:{(SIDX[k]%4)*16384}', f'g{k}_{ks}'))
            for fb in range(2): L.append((f'ds_read_b128 {vr(F[half]+12*j+4+4*fb,4)}, v12 offset:{ZS(k)*8192+ks*2048+fb*1024}', f'g{k}_{ks}'))
        return L
    def mm2(k, half):
        L = []
        if M16:
            for fb in range(4):
                pair = []
                for tb in range(2):
                    wreg = F[half]+4*tb if k in SIDX else X + 16*MEM[k] + 4*(2*half+tb)
                    d = ACC + 8*fb + 4*tb
                    pair.append(f'v_mfma_f32_16x16x32_bf16 {vr(d,4)}, {vr(F[half]+8+4*fb,4)}, {vr(wreg,4)}, {"0" if (k == 0 and half == 0) else vr(d,4)}')
                L.append((f'g{k}_{2*half + fb//2}', pair))
            return L
        for j in range(2):
            wreg = F[half]+12*j if k in SIDX else X + 16*MEM[k] + 4*(2*half+j)
            for fb in range(2):
                c = '0' if (k == 0 and half == 0 and j == 0) else vr(ACC+16*fb, 16)
                L.append((f'g{k}_{2*half+j}', [f'v_mfma_f32_32x32x16_bf16 {vr(ACC+16*fb,16)}, {vr(F[half]+12*j+4+4*fb,4)}, {vr(wreg,4)}, {c}']))
        return L
    kf = 0
    c0, c1 = opt.get('c0', 2), opt.get('c1', 25)
    plan = {}
    def spread(groups, slots, wts):
        cum = 0; tot = sum(int(wts[s[2]]) for s in slots); done = 0
        for s in slots:
            cum += int(wts[s[2]]); n = cum * len(groups) // tot
            plan.setdefault(s, []).extend(groups[done:n]); done = n
    allslots = [(k, ph, i) for k in range(32) for ph in range(2) for i in range(4) if (k, ph) != (0, 0)]
    if cg and not opt.get('noconv'): spread(cg, [s for s in allslots if c0 <= s[0] <= c1], opt.get('cw', '0112'))
    if cpre: spread([[x] for x in cpre], [s for s in allslots if (kf, 1) <= s[:2] and s[0] < c0], '1113')
    if not gw: spread([[x] for x in gelu_packed(Z1, 16, 128, 14)], [s for s in allslots if opt.get('g0', RPOS[0] + 3) <= s[0] < opt.get('ge', 30)], '2223')
    fin, fflag = ssm.finish()
    sst = [x for x in fin if isinstance(x, tuple) and x[1] == 'sst']
    spread([[x] for x in fin if x not in sst], [s for s in allslots if c1 + 1 <= s[0] <= c1 + 2], '2223')
    plan.setdefault((opt.get('sk', c1 + 2), 1, 3), []).append(sst)
    assert c1 + 2 <= 30
    for k in range(33):
        if k in (0, 31): a.waitall(vm=False)
        elif not rlx or k >= 28: a.waitlg(f'g{k-1}_3')
        a('s_barrier')
        if k == 0: stamp(9)
        if str(opt.get('fine')).startswith('g2'):
            k0 = int(opt['fine'][2:])
            if k0 <= k < k0 + 13: stamp(3 + k - k0, True)
        for ph in range(2):
            m = (mm2(k-1, 1) if k > 0 else []) if ph == 0 else (mm2(k, 0) if k < 32 else [])
            r = rd2(k, ph) if k < 32 else []
            if not m:
                a.emit(r); continue
            for i, (tg, ins) in enumerate(m):
                a.waitlg(tg)
                a.emit(merge(ins, r[2*i:2*i+2]))
                for x in plan.get((k, ph, i), []): a.emit(x)
                if k == 31:
                    for j in range(2):
                        z = 8*ph + 2*i + j
                        a(f'v_lshlrev_b32 v{128+2*z}, 16, v{Z1+z}\nv_and_b32 v{129+2*z}, s33, v{Z1+z}')
    stamp(10)
    a.emit(fflag[:2])
    for q in range(4):
        for i in range(4):
            p = ACC + 8*q + 2*i
            if M16: a(f'v_pk_add_f32 {vr(p,2)}, {vr(p,2)}, v[10:11] op_sel:[0,{i//2}] op_sel_hi:[1,{i//2}]')
            else: a(f'v_pk_add_f32 {vr(p,2)}, {vr(p,2)}, v[4:5] op_sel_hi:[1,0]')
        for i in range(4):
            p = ACC + 8*q + 2*i
            a(f'v_pk_mul_f32 {vr(p,2)}, {vr(p,2)}, {vr(128+8*q+2*i,2)}')
        for i in range(4): a(f'v_cvt_pk_bf16_f32 v{F[0]+4*q+i}, v{ACC+8*q+2*i}, v{ACC+8*q+2*i+1}')
        def hout(q):
            if M16:
                for j in range(2): a(f'v_permlane16_swap_b32 v{F[0]+4*q+j}, v{F[0]+4*q+2+j}')
            a(f'buffer_store_dwordx4 {vr(F[0]+4*q,4)}, v7, s[12:15], s54 offen offset:{1024*q} sc1', 'hst')
        hout(q)
    a.emit(fflag[2:])
    if hb: a('s_barrier')
    stamp(11)
    nb['gc'] = count_bars(st0) + 2 + (w3m < 14)

    a(f'{lab("g3comp")}:')
    HB = 16; ACC = 160; WB = [224, 240]; SR = 192; SF = 200; XR = 216; XF = 136; T = 152
    a('s_and_b32 s36, s29, 1\ns_lshr_b32 s37, s29, 1\ns_lshl_b32 s32, s26, 1\ns_add_u32 s32, s32, s30')
    a.emit(trread_list(1, 2))
    a(f'''s_lshl_b32 s55, s37, 6
s_lshl_b32 s31, s37, 12
v_xor_b32 v1, s55, v1
v_add_u32 v1, s31, v1
v_xor_b32 v2, 64, v1
v_add_u32 v3, {L_Z}, v1
v_add_u32 v4, {L_Z}, v2
s_lshl_b32 s3, s36, 12
s_add_u32 s3, s3, {L_X3}''')
    a.emit(rowread_list(9, 10, 's3'))
    a(f'''v_xor_b32 v9, s55, v9
v_xor_b32 v10, 32, v9
v_lshrrev_b32 v11, 2, v0
v_and_b32 v12, 3, v0
v_lshlrev_b32 v13, 4, v12
v_lshl_add_u32 v15, v11, 10, v13
v_bfe_u32 v13, v0, 3, 3
v_xor_b32 v12, v12, v13
v_lshlrev_b32 v12, 4, v12
v_xor_b32 v12, s55, v12
v_lshl_add_u32 v12, v11, 7, v12
v_add_u32 v14, s3, v12
v_lshrrev_b32 v11, 5, v0
v_bfe_u32 v13, v0, 2, 2
v_lshl_add_u32 v11, v11, 3, v13
v_lshlrev_b32 v11, 7, v11
v_bfe_u32 v13, v0, 3, 1
v_xor_b32 v13, s36, v13
v_lshl_add_u32 v11, v13, 6, v11
v_bfe_u32 v13, v0, 4, 1
v_lshl_add_u32 v11, v13, 5, v11
v_and_b32 v13, 3, v0
v_lshl_add_u32 v11, v13, 3, v11
s_add_u32 s31, s31, {L_S3}
v_add_u32 v11, s31, v11
s_lshl_b32 s3, s32, 1
s_add_u32 s3, s3, s36
s_lshl_b32 s61, s3, 15
s_mul_i32 s38, s3, 57344
s_lshl_b32 s3, s27, 7
s_add_u32 s61, s61, s3
s_add_u32 s61, s61, s55
s_lshl_b32 s3, s37, 11
s_add_u32 s38, s38, s3
s_add_u32 s38, s38, {WS_HF}
s_lshl_b32 s3, s29, 12
s_add_u32 s3, s3, {L_U}
v_add_u32 v8, s3, v7
v_xor_b32 v13, 8192, v8
v_mov_b32 v12, {fbits(-LOG2E)}''')
    do = opt.get('do', 0)
    if do: a('v_and_b32 v14, 31, v0\nv_lshrrev_b32 v15, 5, v0\nv_lshlrev_b32 v15, 4, v15\nv_lshl_add_u32 v15, v14, 10, v15')
    rot3(35)
    for j in range(14):
        a(f's_lshl_b32 s31, s35, 12\ns_add_u32 s{40+j}, s31, s38')
        if j < 13: a('\n'.join(adv(35)))
    a(f's_mov_b32 s39, {SPIN >> 3}')
    aw = opt.get('aw', 1)
    if aw: a(f's_waitcnt vmcnt({aw})')
    else: a.waitall(lg=False)
    stamp(12)
    NI = opt.get('ni', 5)
    def hl(j): return [f'buffer_load_dwordx4 {vr(HB+8*j+4*p,4)}, v7, s[12:15], s{40+(j if not opt.get("hfix") else 0)} offen offset:{1024*p} sc1' for p in range(2)]
    def rdw(j, ks):
        w = W3LOC[j]; hi = w >= L_Z; w -= L_Z * hi
        return [(f'ds_read_b64_tr_b16 {vr(WB[j&1]+8*ks+4*b+2*p,2)}, v{1+b+2*hi} offset:{w+ks*2048+512*p}', f'w{j}_{ks}') for b in (1, 0) for p in range(2)]
    for j in range(NI): a.emit([(x, f'h{j}') for x in hl(j)])
    a('s_barrier')
    stamp(13)
    a.emit(rdw(0, 0) + rdw(0, 1))
    es = opt.get('es', 8)
    xs = [(f'ds_read_b128 {vr(XR+4*p,4)}, v{9+p}', 'xr') for p in range(2)]
    un = sum([[f'v_lshlrev_b32 v{XF+2*i}, 16, v{XR+i}', f'v_and_b32 v{XF+2*i+1}, s33, v{XR+i}'] for i in range(8)], [])
    retry = []
    NP = opt.get('np', 1)
    issued = lambda j: min(14, NI + NP * j)
    def check(j):
        lc = a.newlab('hchk'); lr = a.newlab('hretry')
        a.waitvm(f'h{j}')
        H = HB + 8*j
        a(f'{lc}:\nv_max3_u32 v{T}, v{H}, v{H+1}, v{H+2}\nv_max3_u32 v{T+1}, v{H+3}, v{H+4}, v{H+5}\nv_max3_u32 v{T}, v{T}, v{H+6}, v{H+7}\nv_max_u32 v{T}, v{T}, v{T+1}')
        a(f'v_cmp_eq_u32 vcc, -1, v{T}')
        return lc, lr
    def cbr(j, lc, lr, mid=None):
        a(f's_cbranch_vccnz {lr}\n{lc}x:')
        retry.append((lr, lc, j, sum([hl(i) for i in range(j, min(issued(j), j + opt.get('nrt', 5)))], [])))
    lc, lr = check(0); cbr(0, lc, lr)
    stamp(14)
    for j in range(14):
        if opt.get('fine') == 'g3' and j % 2 == 0: stamp(3 + j // 2, True)
        seq = []
        for ks in range(2):
            for b in (1, 0):
                seq.append((ks, f'v_mfma_f32_32x32x16_bf16 {vr(ACC+16*b,16)}, {vr(WB[j&1]+8*ks+4*b,4)}, {vr(HB+8*j+4*ks,4)}, {"0" if (j == 0 and ks == 0) else vr(ACC+16*b,16)}'))
        if j == 13: seq = [seq[0], seq[2], seq[1], seq[3]]
        nxt = (rdw(j+1, 0) + rdw(j+1, 1)) if j < 13 else []
        for i, (ks, ins) in enumerate(seq):
            a.waitlg(f'w{j}_{ks}')
            a(ins)
            if j == w3m - 1 and i == 0 and w3m < 14: a('s_barrier')
            if i < 2:
                a.emit(nxt[3*i:3*i+3])
                new = [(x, f'h{s_}') for s_ in range(issued(j), issued(j+1)) for x in hl(s_)]
                a.emit(new[i*len(new)//2:(i+1)*len(new)//2])
            if j == es and i in (0, 1): a.emit(xs[3*i:3*i+3])
            if j > es and i in (0, 1, 3):
                a.waitlg('xr'); a.emit(un[:4]); un = un[4:]
            if i == 2 and j < 13: lc, lr = check(j + 1)
            if i == 3 and j < 13:
                a.emit(nxt[6:]); cbr(j + 1, lc, lr)
    stamp(15)
    if opt.get('prof'): a(f's_sub_u32 s100, {SPIN >> 3}, s39\ns_mul_i32 s100, s100, 10\ns_add_u32 s100, s100, s66')
    ft_ = lambda i: stamp(i, True) if opt.get('fine') == 'g3' else None
    ft_(10)
    for q in range(4): a(f'ds_write_b128 v8, {vr(ACC+16+4*q,4)} offset:{1024*q}', 'rw')
    a.waitall(vm=False); ft_(11); a('s_barrier'); ft_(12)
    assert not un
    for q in range(2): a(f'ds_read_b128 {vr(WB[0]+4*q,4)}, v13 offset:{1024*q}', f'rr0')
    for q in range(4): a(f'ds_read_b64_tr_b16 {vr(SR+2*q,2)}, v11 offset:{2048*(q//2)+512*(q%2)}', 'sr')
    for q in range(2, 4): a(f'ds_read_b128 {vr(WB[0]+4*q,4)}, v13 offset:{1024*q}', f'rr1')
    for p in range(2):
        B = ACC + 8*p
        a.waitlg(f'rr{p}')
        if p == 0: ft_(13)
        for i in range(4): a(f'v_pk_add_f32 {vr(B+2*i,2)}, {vr(B+2*i,2)}, {vr(WB[0]+8*p+2*i,2)}')
        for i in range(4): a(f'v_pk_mul_f32 {vr(T+2*i,2)}, {vr(B+2*i,2)}, v[12:13] op_sel_hi:[1,0]')
        for i in range(8): a(f'v_exp_f32 v{T+i}, v{T+i}')
        a.waitlg('sr')
        for i in range(4): a(f'v_lshlrev_b32 v{SF+8*p+2*i}, 16, v{SR+4*p+i}\nv_and_b32 v{SF+8*p+2*i+1}, s33, v{SR+4*p+i}')
        for i in range(4): a(f'v_pk_mul_f32 {vr(B+2*i,2)}, {vr(B+2*i,2)}, {vr(SF+8*p+2*i,2)}')
        for i in range(4): a(f'v_pk_add_f32 {vr(T+2*i,2)}, {vr(T+2*i,2)}, 1.0 op_sel_hi:[1,0]')
        for i in range(8): a(f'v_rcp_f32 v{T+i}, v{T+i}')
        for i in range(4): a(f'v_pk_fma_f32 {vr(B+2*i,2)}, {vr(B+2*i,2)}, {vr(T+2*i,2)}, {vr(XF+8*p+2*i,2)}')
        for i in range(4): a(f'v_cvt_pk_bf16_f32 v{HB+4*p+i}, v{B+2*i}, v{B+2*i+1}')
        if do: a(f'buffer_store_dwordx4 {vr(HB+4*p,4)}, v15, s[20:23], s61 offen offset:{32*p} {opt.get("outflag","sc1").replace("-", "")}', 'ost')
        else: a(f'ds_write_b128 v{9+p}, {vr(HB+4*p,4)}', 'ow')
    ft_(14)
    for p in range(0 if do else 2): a(f'ds_read_b128 {vr(HB+8+4*p,4)}, v14 offset:{2048*p}', f'or{p}')
    for p in range(0 if do else 2):
        a.waitlg(f'or{p}')
        if p: a('s_add_u32 s61, s61, 16384')
        a(f'buffer_store_dwordx4 {vr(HB+8+4*p,4)}, v15, s[20:23], s61 offen {opt.get("outflag","sc1")}', 'ost')
    stamp(16)
    sk = a.newlab('noepoch')
    a(f's_or_b32 s3, s2, s29\ns_cmp_lg_u32 s3, 0\ns_cbranch_scc1 {sk}\nv_mov_b32 v1, s24\ns_mov_b32 s3, {WS_EPOCH}\ns_mov_b64 exec, 1')
    a('buffer_store_dword v1, off, s[12:15], s3 sc1')
    a(f's_mov_b64 exec, -1\n{sk}:')
    if opt.get('span'):
        a(f's_waitcnt vmcnt(0)\ns_memrealtime s[64:65]\ns_lshl_b32 s3, s2, 2\ns_add_u32 s3, s3, s29\ns_lshl_b32 s3, s3, 3\ns_add_u32 s3, s3, {WS_PROF}\ns_waitcnt lgkmcnt(0)\nv_mov_b32 v2, s62\nv_mov_b32 v3, s64\ns_mov_b64 exec, 1')
        a('buffer_store_dwordx2 v[2:3], off, s[12:15], s3')
    if opt.get('dbg'):
        sk = a.newlab('nodbg')
        a(f's_lshr_b32 s3, s2, 3\ns_or_b32 s3, s3, s29\ns_cmp_lg_u32 s3, 0\ns_cbranch_scc1 {sk}\ns_load_dwordx2 s[16:17], s[0:1], {KA["dbg"]}\ns_memrealtime s[64:65]\ns_waitcnt lgkmcnt(0)')
        a(f's_and_b32 s62, s62, 0xfffff\ns_and_b32 s64, s{66 + 2*opt["dbg"] if opt["dbg"] > 0 else 64}, 0xfffff\nv_mov_b32 v1, s62\nv_mov_b32 v2, s64\ns_lshl_b32 s3, s2, 2\nv_mov_b32 v3, s3')
        a('global_store_dword v3, v1, s[16:17]\nglobal_store_dword v3, v2, s[16:17] offset:32')
        a(f'{sk}:')
    g.prof_store()
    a('s_endpgm')
    for x in g.cold: a.L.append(x)
    g.cold = []
    for lr, lc, j, lds_ in retry:
        H = HB + 8*j
        a(f'{lr}:\ns_sub_u32 s39, s39, 1\ns_cmp_lt_i32 s39, 0\ns_cbranch_scc1 {lc}x')
        for x in lds_: a.L.append(x)
        a(f's_waitcnt vmcnt(0)\nv_max3_u32 v{T}, v{H}, v{H+1}, v{H+2}\nv_max3_u32 v{T+1}, v{H+3}, v{H+4}, v{H+5}\nv_max3_u32 v{T}, v{T}, v{H+6}, v{H+7}\nv_max_u32 v{T}, v{T}, v{T+1}')
        a(f'v_cmp_eq_u32 vcc, -1, v{T}\ns_cbranch_vccnz {lr}\ns_branch {lc}x')

    a(f'{lab("tcomp")}:')
    st0 = len(a.L)
    a.vm = ['prm'] * 6; a.lg = []
    T = 24; X = 64
    a('s_mov_b32 s6, 0x200000\ns_mov_b32 s7, 0x20000\ns_and_b32 s5, s5, 0xffff')
    a('s_lshl_b32 s32, s29, 14\ns_lshl_b32 s35, s26, 1\ns_add_u32 s35, s35, s30\ns_lshl_b32 s35, s35, 1\ns_and_b32 s3, s29, 1\ns_add_u32 s35, s35, s3\ns_lshl_b32 s3, s35, 5\ns_lshr_b32 s61, s29, 1\ns_lshl_b32 s38, s61, 9')
    rowoffs(a, 32, 's3', 10)
    for c in range(4):
        a.emit([f's_add_u32 m0, s32, {4096*c}', f's_add_u32 s31, s38, {128*c}'] + [(f'buffer_load_dwordx4 v{32+i}, s[4:7], s31 offen offset:{1024*i} lds', f'x{c}') for i in range(4)])
    cprologue()
    a.emit(rowread_list(8, 9, 's32'))
    a('v_xor_b32 v9, 32, v8\nv_xor_b32 v10, 64, v8\nv_xor_b32 v11, 96, v8')
    a('s_mov_b32 s36, 0x00003f80\ns_mov_b32 s37, 0x3f800000')
    for i in range(4): a(f'v_mov_b32 v{20+i}, 0')
    a('v_lshrrev_b32 v13, 5, v0\nv_lshlrev_b32 v13, 15, v13\nv_and_b32 v16, 31, v0\nv_lshl_add_u32 v12, v16, 2, v13')
    for i in range(1, 4): a(f'v_add_u32 v{12+i}, {8192*i}, v12')
    a(f's_lshl_b32 s31, s35, 7\ns_add_u32 s52, s31, {WS_XNT}\ns_lshl_b32 s3, s61, 20\ns_add_u32 s52, s52, s3')
    a(f's_lshl_b32 s53, s61, 13\ns_add_u32 s53, s53, s31\ns_add_u32 s53, s53, {FX}')
    a(f's_lshl_b32 s31, s35, 13\ns_add_u32 s60, s31, s38\ns_add_u32 s60, s60, {WS_STATS + 14*512}')
    a(f's_lshl_b32 s31, s29, 8\ns_add_u32 s31, s31, {L_CS}\nv_lshl_add_u32 v16, v0, 2, s31\nv_xor_b32 v17, 512, v16')
    a(tagmake)
    for c in range(4):
        a.waitvm(f'x{c}')
        a.emit(xreads(c, 8, 4096*c))
        if c == opt.get('tb', 1): a('s_barrier')
        if c > 0: dots(c-1, 20)
        a.waitlg(f'xr{c}')
    dots(3, 20)
    a('v_add_f32 v20, v20, v22\nv_add_f32 v21, v21, v23\nv_mov_b32 v41, s24\nv_mov_b32 v43, s24\nv_permlane32_swap_b32 v20, v21\nv_add_f32 v22, v20, v21\nv_add_f32 v40, v20, v21\nv_permlane32_swap_b32 v40, v42\ns_mov_b32 exec_hi, 0')
    a(f'buffer_store_dwordx4 v[40:43], v7, s[12:15], s60 offen sc1', 'pub')
    a('s_mov_b64 exec, -1')
    a('ds_write_b32 v16, v22')
    a.waitall(vm=False); a('s_barrier')
    a('ds_read_b32 v20, v17')
    a.waitall(vm=False)
    a('v_add_f32 v20, v20, v22\nv_mov_b32 v21, v20\nv_permlane32_swap_b32 v20, v21')
    a.emit(ln_list(20, 21, 512, 22, 19, 18))
    stamp(2)
    for f in range(16):
        for i in range(4):
            a(f'v_dot2_f32_bf16 v{T+2*i}, v{X+4*f+i}, s36, v19\nv_dot2_f32_bf16 v{T+2*i+1}, v{X+4*f+i}, s37, v19')
        for i in range(4): a(f'v_cvt_pk_bf16_f32 v{X+4*f+i}, v{T+2*i}, v{T+2*i+1}')
        for i in range(4): a(f'v_lshlrev_b32 v{T+2*i}, 16, v{X+4*f+i}\nv_and_b32 v{T+2*i+1}, s33, v{X+4*f+i}')
        for i in range(4): a(f'v_pk_mul_f32 {vr(T+2*i,2)}, {vr(T+2*i,2)}, v[18:19] op_sel_hi:[1,0]')
        for i in range(4): a(f'v_cvt_pk_bf16_f32 v{X+4*f+i}, v{T+2*i}, v{T+2*i+1}')
        for i in range(4): a(f'buffer_store_dword v{X+4*f+i}, v{12+i}, s[12:15], s52 offen sc1', 'xst')
        a('s_add_u32 s52, s52, 65536')
    stamp(3)
    a.emit(ssm.kaddr())
    a.emit(g.setflag('s53', 16))
    stamp(7)
    a('s_barrier')
    a(f's_branch {lab("kgen")}')
    a(f'{lab("tcomp2")}:')
    a.vm = []; a.lg = list(lg_split)
    a.waitall(vm=False); a('s_barrier')
    ld, ad, ub, ca = ssm.ubuild(64, 80, 88, 96)
    emit_plain(a, ld + ad + ca + ub + [BAR]); stamp(9)
    cpre, cg = ssm.conv()
    fin, fflag = ssm.finish()
    emit_plain(a, cpre + sum(cg, []) + fin + fflag + [BAR]); stamp(10)
    a('s_barrier')
    nb['tc'] = count_bars(st0) + 2 + (w3m < 14)
    a(f's_branch {lab("g3comp")}')
    a(f'{lab("done")}:\ns_endpgm')
    assert nb['gl'] == nb['gc'] and nb['tl'] == nb['tc'], nb
    kernel_desc(a, name, 256, 102)
    return finalize(a, name, opt)

NAME = 'recurrent_scan__ssm_conv_s4d__mixer_gmlp__prompt_kernel'
def write(path, args):
    opt = {}
    for kv in args:
        k, _, v = kv.partition('=')
        opt[k] = (int(v) if v.lstrip('-').isdigit() and k != 'cw' else v) if v else True
    try: HDR = open('recurrent_scan__ssm_conv_s4d__mixer_gmlp__prompt.s.ref').read().split('; Override launch')[0]
    except OSError: HDR = ''
    txt = HDR + '; @launch grid=(256,1,1) block=(384,1,1) lds=163840\n.amdgcn_target "amdgcn-amd-amdhsa--gfx950"\n' + fused(NAME, opt)
    open(path, 'w').write(txt)

if __name__ == '__main__':
    import sys
    sys.path.insert(0, 'work')
    write(sys.argv[1], sys.argv[2:])
    from hx import build
    import cdna_launch as cl
    co, _ = build(sys.argv[1], 15, NAME)
    p = cl.address_register_problem(co, NAME)
    if p: print('CHECK PROBLEM:', p)
```

```python
from gen import *
import struct, math
def fbits(x): return hex(struct.unpack('<I', struct.pack('<f', x))[0])
def f32(x): return struct.unpack('<f', struct.pack('<f', x))[0]
WS_Z2F = 0; WS_XNT = 4 << 20; WS_HF = 6 << 20; WS_ST = 10 << 20; WS_STATS = 12 << 20; WS_FL = WS_STATS + (512 << 10)
WS_EPOCH = WS_FL + (384 << 10)
WS_PROF = 13 << 20; WS_BYTES = 14 << 20
FZ = WS_FL; FX = WS_FL + 896*128; FH = WS_FL + 1024*128; FT = WS_FL + 1536*128; FS = WS_FL + 2048*128
KA = dict(u=0, logA=8, Aim=16, Cre=24, Cim=32, logdt=40, Dskip=48, bx=56, win=64, wsp=72, bsp=80, wout=88, out=96, dbg=104, ws=112)
LOG2E = math.log2(math.e)
C0 = -2 * LOG2E * math.sqrt(2 / math.pi); C1 = C0 * 0.044715
BAR = ('BAR',)
SPIN = 0x20000
L_SSM = 65536; L_Z = 114688
USTR = 4640; UGRP = 3 * USTR + 4480; L_U = L_SSM; L_RAW = 102400 - 16; L_K = 147456
L_CS = 159744; L_TR = 131072
L_X3 = 81920; L_S3 = 90112; KSTR = 4736

class G:
    def __init__(self, name, opt):
        self.a = Asm(); self.name = name; self.opt = opt; self.comp = False; self.cold = []
    def stamp(self, idx, fine=False):
        if self.opt.get('fine') and not fine and 3 <= idx <= 15 and self.comp: return
        if self.opt.get('dbg') == idx: self.a(f's_memrealtime s[{66+2*idx}:{67+2*idx}]')
        if self.opt.get('prof'): self.a(f's_mem{"real" if self.opt.get("rt") else ""}time s[{66+2*idx}:{67+2*idx}]')
    def prof_store(self):
        if not self.opt.get('prof'): return
        a = self.a
        a('s_memrealtime s[64:65]\ns_memtime s[60:61]')
        a.waitall()
        a('v_mov_b32 v2, 0\ns_sub_u32 s31, s60, s66\nv_writelane_b32 v2, s31, 2')
        for i in range(1, 18):
            a(f's_sub_u32 s31, s{66+2*i}, s{62 if self.opt.get("rt") else 66}\nv_writelane_b32 v2, s31, {i+2}')
        a('v_writelane_b32 v2, s62, 0\nv_writelane_b32 v2, s64, 1')
        a(f's_lshl_b32 s3, s2, 3\ns_add_u32 s3, s3, s29\ns_lshl_b32 s3, s3, 7\ns_add_u32 s3, s3, {WS_PROF}')
        a('v_lshlrev_b32 v1, 2, v0\ns_mov_b32 exec_hi, 0')
        a('buffer_store_dword v2, v1, s[12:15], s3 offen')
    def spin(self, loads, tags, tmp, sentinel=False):
        a = self.a
        lp = a.newlab('sp'); lc = a.newlab('spc'); lo = a.newlab('spo')
        chk = []
        r = list(tags)
        if sentinel:
            cur = r.pop(0)
            while r:
                if len(r) >= 2: chk.append(f'v_max3_u32 v{tmp}, v{cur}, v{r[0]}, v{r[1]}'); r = r[2:]
                else: chk.append(f'v_max_u32 v{tmp}, v{cur}, v{r[0]}'); r = []
                cur = tmp
            chk.append(f'v_cmp_eq_u32 vcc, -1, v{tmp}')
        elif len(r) == 1: chk.append(f'v_cmp_ne_u32 vcc, s24, v{r[0]}')
        else:
            chk.append(f'v_xor_b32 v{tmp}, s24, v{r[0]}')
            for x in r[1:]: chk.append(f'v_bitop3_b32 v{tmp}, v{tmp}, v{x}, s24 bitop3:0xf6')
            chk.append(f'v_cmp_ne_u32 vcc, 0, v{tmp}')
        for x in chk: a(x)
        a(f's_cbranch_vccnz {lp}\n{lo}:')
        self.cold += [f'{lp}:', f's_mov_b32 s39, {SPIN}', f'{lc}:'] + list(loads) + ['s_waitcnt vmcnt(0)'] + chk + \
            [f's_cbranch_vccz {lo}', 's_sub_u32 s39, s39, 1', 's_cmp_lg_u32 s39, 0', f's_cbranch_scc1 {lc}', f's_branch {lo}']
    def setflag(self, soff, vtmp):
        return [f'v_mov_b32 v{vtmp}, s24', lambda: self.a.waitall(lg=False), (f's_mov_b32 exec_hi, 0\nbuffer_store_dword v{vtmp}, v6, s[12:15], {soff} offen sc1\ns_mov_b64 exec, -1', 'flag')]

def ln_list(vS, vQ, n, vT, out_negm, out_r):
    return [f'v_mul_f32 v{vS}, {fbits(-1.0/n)}, v{vS}', f'v_mul_f32 v{vQ}, {fbits(1.0/n)}, v{vQ}', f'v_fma_f32 v{vQ}, -v{vS}, v{vS}, v{vQ}',
            f'v_max_f32 v{vQ}, 0, v{vQ}', f'v_cvt_pk_bf16_f32 v{vQ}, 0, v{vQ}', f'v_add_f32 v{vQ}, {fbits(1e-5)}, v{vQ}', f'v_cvt_pk_bf16_f32 v{vQ}, 0, v{vQ}',
            f'v_sqrt_f32 v{vQ}, v{vQ}', f'v_cvt_pk_bf16_f32 v{out_negm}, 0, v{vS}', f'v_cvt_pk_bf16_f32 v{vQ}, 0, v{vQ}', f'v_rcp_f32 v{out_r}, v{vQ}']

def gelu_pk(A, n, vC, vSD, T):
    L = []
    for b in range(0, n, 8):
        P = [A + b + 2*i for i in range(4)]; Q = [T + 2*i for i in range(4)]
        for p, q in zip(P, Q): L.append(f'v_pk_mul_f32 {vr(q,2)}, {vr(p,2)}, {vr(p,2)}')
        for q in Q: L.append(f'v_pk_fma_f32 {vr(q,2)}, {vr(q,2)}, {vr(vC,2)}, {vr(vC,2)} op_sel:[0,0,1] op_sel_hi:[1,0,1]')
        for p, q in zip(P, Q): L.append(f'v_pk_mul_f32 {vr(q,2)}, {vr(q,2)}, {vr(p,2)}')
        for i in range(8): L.append(f'v_exp_f32 v{T+i}, v{T+i}')
        for q in Q: L.append(f'v_pk_fma_f32 {vr(q,2)}, {vr(q,2)}, {vr(vSD,2)}, {vr(vSD,2)} op_sel_hi:[1,0,0]')
        for i in range(8): L.append(f'v_rcp_f32 v{T+i}, v{T+i}')
        for p, q in zip(P, Q): L.append(f'v_pk_mul_f32 {vr(p,2)}, {vr(p,2)}, {vr(q,2)}')
    return L

def gelu_packed(Z, n, T, vC1):
    L = []
    for b in range(0, n, 2):
        for i in range(2): L += [f'v_lshlrev_b32 v{T+2*i}, 16, v{Z+b+i}', f'v_and_b32 v{T+2*i+1}, s33, v{Z+b+i}']
        for i in range(4): L.append(f'v_mul_f32 v{T+4+i}, v{T+i}, v{T+i}')
        for i in range(4): L.append(f'v_fmaak_f32 v{T+4+i}, v{vC1}, v{T+4+i}, {fbits(C0)}')
        for i in range(4): L.append(f'v_mul_f32 v{T+4+i}, v{T+i}, v{T+4+i}')
        for i in range(4): L.append(f'v_exp_f32 v{T+4+i}, v{T+4+i}')
        for i in range(4): L.append(f'v_add_f32 v{T+4+i}, 1.0, v{T+4+i}')
        for i in range(4): L.append(f'v_rcp_f32 v{T+4+i}, v{T+4+i}')
        for i in range(4): L.append(f'v_mul_f32 v{T+i}, v{T+i}, v{T+4+i}')
        for i in range(2): L.append(f'v_cvt_pk_bf16_f32 v{Z+b+i}, v{T+2*i}, v{T+2*i+1}')
    return L

def stream_emit(a, items, nbar, D, hook=None, always=False, skip=()):
    comp = {}
    for i, it in enumerate(items):
        if it[2] is not None: comp[it[2]] = i + 1
    DD = D if callable(D) else (lambda b: D)
    nb = 0
    def bar(n):
        nonlocal nb
        c = max([comp.get(b, 0) for b in range(nb + 1)])
        assert c <= n, (nb, c, n)
        if hook: hook(nb, -1)
        if c or always: a.L.append(f's_waitcnt vmcnt({min(63, n - c)})')
        if hook: hook(nb, 0)
        if nb not in skip: a.L.append('s_barrier')
        if hook: hook(nb, 1)
        nb += 1
    for i, (setup, ld, cb, need) in enumerate(items):
        while need is not None and nb <= need: bar(i)
        for x in setup:
            if callable(x): x()
            else: a.L.append(x)
        a.L.append(ld)
        while nb < nbar and nb in comp and i + 1 >= comp[nb] + DD(nb): bar(i + 1)
    while nb < nbar: bar(len(items))

def grp(m0, soff_setup, vbase, srd_, soff, same=False, cb=None, need=None, fl='', mreg='s19'):
    L = []
    for i in range(4):
        su = ([f's_add_u32 m0, {mreg}, {m0}'] + (soff_setup or ['s_nop 0'])) if i == 0 else []
        L.append((su, f'buffer_load_dwordx4 v{vbase if same else vbase+i}, {srd_}, {soff} offen offset:{1024*i} {fl} lds', cb, need if i == 0 else None))
    return L

def rowoffs(a, d, rowbase, sh, colbase=None):
    st = 1 << sh
    a(f"""v_lshrrev_b32 v24, 3, v0
v_add_u32 v24, {rowbase}, v24
v_lshlrev_b32 v24, {sh}, v24
v_and_b32 v25, 7, v0
v_lshrrev_b32 v26, 4, v0
v_xor_b32 v25, v25, v26
v_lshl_add_u32 v{d}, v25, 4, v24""")
    if colbase: a(f'v_add_u32 v{d}, {colbase}, v{d}')
    a(f'v_xor_b32 v{d+1}, 64, v{d}\nv_add_u32 v{d+1}, {8*st-1024}, v{d+1}\nv_add_u32 v{d+2}, {16*st-2048}, v{d}\nv_add_u32 v{d+3}, {16*st-2048}, v{d+1}')

def troffs(a, d, stride, colbase):
    a(f"""v_lshrrev_b32 v24, 3, v0
v_mul_u32_u24 v24, {stride}, v24
v_bfe_u32 v25, v0, 4, 1
v_lshlrev_b32 v25, 2, v25
v_and_b32 v26, 7, v0
v_xor_b32 v25, v25, v26
v_lshl_add_u32 v24, v25, 4, v24
v_add_u32 v{d}, {colbase}, v24""")
    for i in range(1, 4): a(f'v_add_u32 v{d+i}, {8*stride-1024}, v{d+i-1}')

def rowread_list(d, t, base):
    return [f'v_lshrrev_b32 v{t}, 5, v0', f'v_bfe_u32 v{d}, v0, 1, 3', f'v_xor_b32 v{d}, v{d}, v{t}', f'v_lshlrev_b32 v{d}, 4, v{d}',
            f'v_and_b32 v{t}, 31, v0', f'v_lshl_add_u32 v{d}, v{t}, 7, v{d}', f'v_add_u32 v{d}, {base}, v{d}']
def trread_list(d, t):
    return [f'v_lshrrev_b32 v{d}, 5, v0', f'v_bfe_u32 v{t}, v0, 2, 2', f'v_lshl_add_u32 v{d}, v{d}, 3, v{t}', f'v_lshlrev_b32 v{d}, 7, v{d}',
            f'v_bfe_u32 v{t}, v0, 3, 1', f'v_lshl_add_u32 v{d}, v{t}, 6, v{d}', f'v_bfe_u32 v{t}, v0, 4, 1', f'v_lshl_add_u32 v{d}, v{t}, 5, v{d}',
            f'v_and_b32 v{t}, 1, v0', f'v_lshl_add_u32 v{d}, v{t}, 4, v{d}', f'v_bfe_u32 v{t}, v0, 1, 1', f'v_lshl_add_u32 v{d}, v{t}, 3, v{d}']

def cost(x):
    if callable(x): return 4
    t = x[0] if isinstance(x, tuple) else x
    if t.startswith(TRANS): return 8
    if t.startswith('v_mfma_f32_32'): return 32
    if t.startswith('v_mfma'): return 12
    return 4

class SSM:
    CA = 16; PR = 208; DS = 5
    def __init__(self, g): self.g = g; self.a = g.a
    def param_addr(self):
        P = self.PR
        return ['s_lshl_b32 s31, s2, 9', 's_lshl_b32 s3, s29, 7', 's_add_u32 s31, s31, s3', f'v_lshl_add_u32 v{P+6}, v0, 1, s31',
                's_lshl_b32 s31, s2, 2', f'v_mov_b32 v{P+7}, s31']
    def param_loads(self):
        P = self.PR
        L = [(f'global_load_dword v{P+4}, v{P+7}, s[48:49]', 'prm')]
        for i in range(4): L.append((f'global_load_ushort v{P+i}, v{P+6}, s[{40+2*i}:{41+2*i}]', 'prm'))
        L.append((f'global_load_dword v{self.DS}, v{P+7}, s[50:51]', 'prm'))
        return L
    def kaddr(self):
        A = 216
        L = ['s_lshl_b32 s31, s29, 14', f's_add_u32 s31, s31, {L_SSM}', f'v_bfe_u32 v{A+4}, v0, 1, 2', f'v_lshlrev_b32 v{A+4}, 4, v{A+4}', f'v_lshl_add_u32 v{A+4}, v0, 6, v{A+4}', f'v_add_u32 v{A}, s31, v{A+4}']
        for b in range(1, 4): L.append(f'v_xor_b32 v{A+b}, {16*b}, v{A}')
        R, t, u = A+4, A+6, A+7
        L += ['s_and_b32 s3, s31, 0xffff8000', f'v_bfe_u32 v{t}, v0, 3, 2', f'v_bfe_u32 v{R}, v0, 1, 1', f'v_xor_b32 v{R}, v{R}, v{t}', f'v_lshlrev_b32 v{R}, 4, v{R}',
              f'v_lshrrev_b32 v{t}, 2, v0', f'v_lshl_add_u32 v{R}, v{t}, 6, v{R}', f'v_and_b32 v{u}, 1, v0', f'v_lshl_add_u32 v{R}, v{u}, 3, v{R}', f'v_add_u32 v{R}, s3, v{R}',
              f'v_xor_b32 v{A+5}, 32, v{R}', 's_and_b32 s3, s29, 1', 's_lshl_b32 s31, s3, 5', f'v_xor_b32 v{A+6}, s31, v{R}',
              f'v_cmp_eq_u32 s[58:59], 0, v{u}', f'v_and_b32 v{u}, 16, v0', f'v_cmp_eq_u32 s[46:47], 0, v{u}']
        L += ['s_lshr_b32 s31, s29, 1', f's_mul_i32 s57, s31, {KSTR}', f's_add_u32 s57, s57, {L_K}', 's_lshl_b32 s3, s3, 8', 's_sub_u32 s3, s57, s3',
              f'v_and_b32 v{A+9}, 255, v7', f'v_sub_u32 v{A+9}, s3, v{A+9}', f'v_lshrrev_b32 v{A+10}, 4, v0',
              f'v_lshlrev_b32 v{A+11}, 2, v{A+10}', f'v_sub_u32 v{A+7}, v{A+9}, v{A+11}', f'v_lshlrev_b32 v{A+11}, 9, v{A+10}', f'v_sub_u32 v{A+14}, v{A+9}, v{A+11}',
              f'v_lshrrev_b32 v{A+11}, 5, v0', f'v_lshlrev_b32 v{A+11}, 9, v{A+11}', f'v_sub_u32 v{A+8}, v{A+9}, v{A+11}', f'v_bfe_u32 v{A+11}, v0, 4, 1', f'v_lshlrev_b32 v{A+11}, 3, v{A+11}', f'v_sub_u32 v{A+8}, v{A+8}, v{A+11}',
              f'v_min_u32 v{A+9}, 39, v0', f'v_lshl_add_u32 v{A+9}, v{A+9}, 4, s57'] + [f'v_mov_b32 v{A+10+i}, 0' for i in range(4)]
        L.append((f'ds_write_b128 v{A+9}, {vr(A+10,4)} offset:4096', 'kt'))
        return L
    def kgen(self):
        a = self.a; P = self.PR; A = 216
        E1, E8, E64, E256, Cc, E2 = 128, 130, 132, 134, 136, 138
        t = 140
        Lhi = f32(LOG2E); Llo = LOG2E - Lhi
        def exp_acc(d, x, t0, t1):
            return [f'v_mul_f32 v{t0}, s40, v{x}', f'v_fma_f32 v{t1}, v{x}, s40, -v{t0}', f'v_fma_f32 v{t1}, v{x}, s41, v{t1}',
                    f'v_exp_f32 v{t0}, v{t0}', f'v_mul_f32 v{t1}, s42, v{t1}', f'v_fma_f32 v{d}, v{t0}, v{t1}, v{t0}']
        L = [f's_mov_b32 s40, {fbits(Lhi)}', f's_mov_b32 s41, {fbits(Llo)}', f's_mov_b32 s42, {fbits(math.log(2))}',
             's_lshr_b32 s31, s29, 1', 's_lshl_b32 s31, s31, 4', lambda: a.waitvm('prm'), lambda: self.g.stamp(17), f'v_lshrrev_b32 v{P+4}, s31, v{P+4}']
        for i in range(5): L.append(f'v_lshlrev_b32 v{P+i}, 16, v{P+i}')
        for x, y in zip(exp_acc(P+4, P+4, t, t+1), exp_acc(P, P, t+2, t+3)): L += [x, y]
        L += [f'v_cvt_pk_bf16_f32 v{P+4}, v{P}, v{P+4}', f'v_lshlrev_b32 v{P}, 16, v{P+4}', f'v_and_b32 v{P+4}, s33, v{P+4}']
        for i in range(4): L.append(f'v_mul_f32 v{P+i}, v{P+i}, v{P+4}')
        L += [f'v_mul_f32 v{t}, {fbits(-LOG2E)}, v{P}', f'v_mul_f32 v{t+4}, 0.15915494, v{P+1}', f'v_add_f32 v{Cc}, v{P+2}, v{P+2}', f'v_add_f32 v{Cc+1}, v{P+3}, v{P+3}']
        for k, p in enumerate([8.0, 64.0, 256.0]): L += [f'v_mul_f32 v{t+1+k}, {fbits(p)}, v{t}', f'v_mul_f32 v{t+5+k}, {fbits(p)}, v{t+4}']
        for k in range(4): L += [f'v_exp_f32 v{t+k}, v{t+k}', f'v_fract_f32 v{t+4+k}, v{t+4+k}']
        for k in range(4): L += [f'v_cos_f32 v{E1+2*k}, v{t+4+k}', f'v_sin_f32 v{E1+1+2*k}, v{t+4+k}']
        for k in range(4): L += [f'v_mul_f32 v{E1+2*k}, v{t+k}, v{E1+2*k}', f'v_mul_f32 v{E1+1+2*k}, v{t+k}, v{E1+1+2*k}']
        fk = lambda i: (lambda: self.g.stamp(i, True) if self.g.opt.get('fine') == 'kg' else None)
        L.append(fk(3))
        O = 140
        def cm(jobs):
            R = []
            for d, x, y in jobs: R.append(f'v_pk_mul_f32 {vr(d,2)}, {vr(x,2)}, {vr(y,2)} op_sel_hi:[1,0]')
            for d, x, y in jobs: R.append(f'v_pk_fma_f32 {vr(d,2)}, {vr(x,2)}, {vr(y,2)}, {vr(d,2)} op_sel:[1,1,0] op_sel_hi:[0,1,1] neg_lo:[1,0,0]')
            return R
        cnt = [0]
        def pack(vals, blk, plane, neg):
            o = O + 8 * (cnt[0] & 1); cnt[0] += 1
            R = []
            for i in range(4): R.append(f'v_cvt_pk_bf16_f32 v{o+i}, v{vals[2*i]}, v{vals[2*i+1]}')
            R.append((f'ds_write_b128 v{A+blk}, {vr(o,4)} offset:{plane*4096}', 'kt'))
            s = '-' if neg else ''
            for i in range(4): R.append(f'v_cvt_pk_bf16_f32 v{o+4+i}, {s}v{vals[2*i]+1}, {s}v{vals[2*i+1]+1}')
            R.append((f'ds_write_b128 v{A+blk}, {vr(o+4,4)} offset:{plane*4096+4096}', 'kt'))
            return R
        B = [156 + 2*i for i in range(26)]
        fa = B[0:8]; fb = B[8:16]; g = [Cc] + B[16:24]
        fa0 = [fa[0], E8] + fa[2:]
        L += [f'v_mov_b32 v{fa[0]}, 1.0', f'v_mov_b32 v{fa[0]+1}, 0']
        L += cm([(fa[2], E8, E8), (g[1], Cc, E1), (E2, E1, E1), (g[8], Cc, E8)])
        L += cm([(fa[3], fa[2], E8), (fa[4], fa[2], fa[2]), (g[2], Cc, E2), (g[3], g[1], E2)])
        L += cm([(fa[5], fa[4], E8), (fa[6], fa[4], fa[2]), (fa[7], fa[4], fa[3]), (g[4], g[2], E2), (g[5], g[3], E2)])
        L += pack(fa0, 0, 2, False)
        fb0 = [E64] + fb[1:]
        L += cm([(g[6], g[4], E2), (g[7], g[5], E2)] + [(fb[i], fa0[i], E64) for i in range(1, 8)])
        L += cm([(fa[i], fb0[i], E64) for i in range(8)])
        L += pack(fb0, 1, 2, False)
        L += cm([(fb[i], fa[i], E64) for i in range(8)])
        L += pack(fa, 2, 2, False)
        h0, h2, h4, h6, h8, i0, i4, i8 = B[0:8]
        j0, j4, j8, k0, k8, l0, l8 = B[8:15]
        L += cm([(h0, g[0], E256), (h2, g[2], E256), (h4, g[4], E256), (h6, g[6], E256), (h8, g[8], E256), (E2, E256, E256)])
        L += pack(fb, 3, 2, False)
        L += cm([(i0, g[0], E2), (i4, g[4], E2), (i8, g[8], E2), (j0, h0, E2), (j4, h4, E2), (j8, h8, E2)])
        L += pack([g[0], g[1], h0, h0, g[2], g[3], h2, h4], 0, 0, True)
        m0, m8, n0, n8 = g[1], g[2], g[3], B[15]
        L += cm([(k0, i0, E2), (k8, i8, E2), (l0, j0, E2), (l8, j8, E2)])
        L += pack([g[4], g[5], h4, h4, g[6], g[7], h6, h8], 1, 0, True)
        L += cm([(m0, k0, E2), (m8, k8, E2), (n0, l0, E2), (n8, l8, E2)])
        L += pack([i0, i4, k0, k8, i4, i8, l0, l8], 2, 0, True)
        L += pack([j0, j4, m0, m8, j4, j8, n0, n8], 3, 0, True)
        L.append(fk(4))
        if self.g.opt.get('lk'):
            def hs():
                lp = a.newlab('khs')
                a(f's_lshl_b32 s31, s29, 2\ns_add_u32 s31, s31, {L_CS + 2048}\nv_mov_b32 v128, s31\nv_xor_b32 v129, 4, v128')
                a('ds_write_b32 v128, v128')
                a(f'{lp}:'); a('ds_read_b32 v130, v129'); a.waitall(vm=False)
                a(f'v_cmp_eq_u32 vcc, 0, v130\ns_cbranch_vccnz {lp}')
            L.append(hs)
        else: L.append(BAR)
        L.append(fk(5))
        D = 128; FR = 136
        def rd(j):
            o = 16384 * (j // 4) + 1024 * (j % 4); b = FR + 12 * (j % 5)
            return [(f'ds_read_b64_tr_b16 {vr(b+4*k+2*p,2)}, v{A+(6,4,5)[k]} offset:{o + 4096*p + (8192 if k == 0 else 0)}', f'kr{j}') for k in range(3) for p in range(2)]
        KA2 = self.g.opt.get('ka', 2)
        for j in range(KA2): L += rd(j)
        for j in range(8):
            b = FR + 12 * (j % 5); nx = rd(j+KA2) if j + KA2 < 8 else []
            L += nx[:3]
            L.append(lambda j=j: a.waitlg(f'kr{j}'))
            L.append(f'v_mfma_f32_16x16x32_bf16 {vr(D,4)}, {vr(b+4,4)}, {vr(b,4)}, {"0" if j == 0 else vr(D,4)}')
            L += nx[3:]
            L.append(f'v_mfma_f32_16x16x32_bf16 {vr(D+4,4)}, {vr(b+8,4)}, {vr(b,4)}, {"0" if j == 0 else vr(D+4,4)}')
        L.append(fk(6))
        O = 196
        L += [f'v_cvt_pk_bf16_f32 v{O}, v{D+1}, v{D}', f'v_cvt_pk_bf16_f32 v{O+1}, v{D+3}, v{D+2}',
              f'v_cndmask_b32 v{O+2}, v{D+5}, v{D+4}, s[46:47]', f'v_cndmask_b32 v{O+5}, v{D+7}, v{D+6}, s[58:59]',
              f'v_cvt_pk_bf16_f32 v{O+4}, v{D+7}, v{D+7}', f'v_cvt_pk_bf16_f32 v{O+5}, v{D+7}, v{O+5}', f'v_cvt_pk_bf16_f32 v{O+6}, v{D+6}, v{D+6}', f'v_cvt_pk_bf16_f32 v{O+7}, v{D+6}, v{D+6}',
              (f'ds_write_b128 v{A+14}, {vr(O+4,4)} offset:{4080-2048}', 'kw'),
              f'v_cvt_pk_bf16_f32 v{O+2}, v{D+5}, v{O+2}', f'v_cvt_pk_bf16_f32 v{O+3}, v{D+4}, v{D+4}',
              (f'ds_write_b64 v{A+8}, {vr(O+2,2)} offset:{4088-1024}', 'kw'),
              (f'ds_write_b32 v{A+7}, v{O} offset:4092', 'kw'), (f'ds_write_b32 v{A+7}, v{O+1} offset:{4092-512}', 'kw')]
        return L
    UA = 13; KA_ = 15
    def ubuild(self, R, T, O, TL):
        a = self.a
        ld = ['s_lshl_b32 s31, s29, 11', f'v_lshl_add_u32 v{TL}, v0, 5, s31', 's_lshl_b32 s31, s2, 13', f's_add_u32 s31, s31, {WS_XNT - 16}']
        ld += [(f'buffer_load_dwordx4 {vr(R+4*k,4)}, v{TL}, s[12:15], s31 offen offset:{16*k} {self.g.opt.get("rawf", "sc1").replace("-", "")}', 'raw') for k in range(3)]
        ad = ['s_mov_b32 s44, 0x05040100', 's_mov_b32 s45, 0x07060302'] + [f'v_mov_b32 v{T+4+k}, 0' for k in range(4)]
        ad += ['s_lshr_b32 s31, s29, 1', f's_mul_i32 s46, s31, {UGRP}', f's_add_u32 s46, s46, {L_U}', 's_and_b32 s47, s29, 1',
               f'v_lshrrev_b32 v{T+2}, 5, v0', f'v_mul_u32_u24 v{T+2}, {USTR}, v{T+2}', f'v_and_b32 v{T+3}, 31, v0', f'v_min_u32 v{T+3}, 23, v{T+3}',
               f's_mul_i32 s31, s47, {2*USTR}', 's_add_u32 s31, s31, s46', f'v_lshl_add_u32 v{T+3}, v{T+3}, 4, v{T+2}', f'v_add_u32 v{T+3}, s31, v{T+3}',
               's_lshl_b32 s31, s29, 10', f's_add_u32 s31, s31, {L_U + 384}', f'v_add_u32 v{T+1}, s31, v7',
               's_cmp_eq_u32 s29, 0\ns_cselect_b32 s31, 0, -1', f'v_cmp_eq_u32 s[58:59], s31, v0']
        L = [(f'ds_write_b128 v{T+3}, {vr(T+4,4)}', 'uw'), lambda: a.waitvm('raw')]
        for k in range(1, 4): L.append(f'v_cndmask_b32 v{R+k}, v{R+k}, v{T+4}, s[58:59]')
        for dl in range(2):
            for e in range(4):
                d = O + 4 * (e & 1)
                for k in range(4): L.append(f'v_perm_b32 v{d+k}, v{R+4+2*k+e-2}, v{R+4+2*k+e-3}, s{44+dl}')
                L.append((f'ds_write_b128 v{T+1}, {vr(d,4)} offset:{dl*UGRP+e*USTR}', 'uw'))
        ca = [f'v_and_b32 v{T}, 3, v0', f'v_mul_u32_u24 v{T}, {USTR}, v{T}', f'v_bfe_u32 v{T+2}, v0, 2, 2', f'v_lshl_add_u32 v{T}, v{T+2}, 7, v{T}',
              f'v_and_b32 v{T+2}, 48, v0', f'v_add3_u32 v{self.UA}, v{T}, v{T+2}, s46', 's_lshl_b32 s3, s47, 9',
              's_sub_u32 s31, s57, s3', 's_add_u32 s31, s31, 632', f'v_and_b32 v{T}, 15, v0', f'v_lshlrev_b32 v{T}, 3, v{T}', f'v_sub_u32 v{T}, v{T+2}, v{T}', f'v_add_u32 v{self.KA_}, s31, v{T}']
        return ld, ad, L, ca
    def conv(self):
        a = self.a; CA = self.CA
        FB = [192, 224]
        def reads(n):
            r, par = divmod(n, 2)
            L = []
            for i in range(4):
                kk = 3 - i
                pp = 2*kk + 1 - par
                if i == 0: L.append((f'ds_read_b128 {vr(FB[n&1],4)}, v{self.UA} offset:{512*par+64*r}', f't{n}_0'))
                for h in range(2): L.append((f'ds_read_b64 {vr(FB[n&1]+16+4*kk+2*h,2)}, v{self.KA_} offset:{3584 - 512*pp + 64*r + 8*h}', f'k{n}_{kk}'))
            for i in range(1, 4): L.append((f'ds_read_b128 {vr(FB[n&1]+4*i,4)}, v{self.UA} offset:{512*(2*i+par)+64*r}', f't{n}_{i}'))
            return L
        G_ = []
        for n in range(16):
            nx = reads(n+1) if n < 15 else []
            m = 0
            for i in range(4):
                for kk in (range(3 - i, -1, -1) if not (self.g.opt.get('csn', 1) and i & 1) else range(0, 4 - i)):
                    A = i + kk
                    tags = [f't{n}_{i}', f'k{n}_{kk}']
                    c = '0' if (n == 0 and i == 0) else vr(CA+4*A, 4)
                    g = [lambda tags=tags: a.waitlg(tags), f'v_mfma_f32_16x16x32_bf16 {vr(CA+4*A,4)}, {vr(FB[n&1]+4*i,4)}, {vr(FB[n&1]+16+4*kk,4)}, {c}']
                    k = 2 if m < 4 else (1 if m < 8 else 0)
                    g += nx[:k]; nx = nx[k:]; m += 1
                    G_.append(g)
            assert not nx
        return reads(0), G_
    def finish(self):
        a = self.a; CA = self.CA; R = 192; T = 224
        L = ['s_lshl_b32 s3, s47, 9', f's_add_u32 s31, s46, {3*USTR + 384}', 's_add_u32 s31, s31, s3', f'v_lshlrev_b32 v{T+1}, 3, v0', f'v_add_u32 v{T}, s31, v{T+1}']
        for k in range(4): L.append((f'ds_read_b64 {vr(R+16+2*k,2)}, v{T} offset:{1024*k}', f'ur{k}'))
        L += ['s_lshr_b32 s31, s29, 1', 's_lshl_b32 s55, s2, 1', 's_add_u32 s55, s55, s31', 's_lshl_b32 s56, s55, 12', 's_add_u32 s56, s56, s3', f's_add_u32 s56, s56, {WS_ST}',
              's_add_u32 s55, s55, s3', 's_lshl_b32 s55, s55, 7', f's_add_u32 s60, s55, {FS}',
              's_lshl_b32 s31, s31, 4', f'v_lshrrev_b32 v{T+2}, s31, v{self.DS}', f'v_lshlrev_b32 v{T+2}, 16, v{T+2}']
        for k in range(4):
            L.append(lambda k=k: a.waitlg(f'ur{k}'))
            for j in range(2): L += [f'v_lshlrev_b32 v{R+4*k+2*j}, 16, v{R+16+2*k+j}', f'v_and_b32 v{R+4*k+2*j+1}, s33, v{R+16+2*k+j}']
            for j in range(4): L.append(f'v_fmac_f32 v{CA+4*k+j}, v{R+4*k+j}, v{T+2}')
            for j in range(2): L.append(f'v_cvt_pk_bf16_f32 v{T+4+2*k+j}, v{CA+4*k+2*j}, v{CA+4*k+2*j+1}')
            L.append((f'buffer_store_dwordx2 {vr(T+4+2*k,2)}, v{T+1}, s[12:15], s56 offen offset:{1024*k} sc1', 'sst'))
        return L, self.g.setflag('s60', T+3)

def emit_plain(a, L):
    n = 0
    for x in L:
        if x is BAR:
            a.waitall(vm=False); a('s_barrier'); n += 1
        else: a.emit([x])
    return n


def sizes_of(lines):
    import subprocess, tempfile, os
    d = tempfile.mkdtemp()
    open(d + '/t.s', 'w').write('.amdgcn_target "amdgcn-amd-amdhsa--gfx950"\n' + '\n'.join(lines) + '\n')
    r = subprocess.run(['llvm-mc', '-triple=amdgcn-amd-amdhsa', '-mcpu=gfx950', '-show-encoding', d + '/t.s'], capture_output=True, text=True)
    assert r.returncode == 0, r.stderr[:2000]
    enc = [len(l.split('encoding: [')[1].split(']')[0].split(',')) for l in r.stdout.split('\n') if 'encoding: [' in l]
    idx = [i for i, l in enumerate(lines) if Ins(l).is_ins]
    assert len(enc) == len(idx), (len(enc), len(idx))
    return dict(zip(idx, enc))

def finalize(a, name, opt):
    if opt.get('emu16'):
        import re
        N = []; cnt = {}; g3 = False
        for x in a.L:
            if x.endswith('g3comp:'): g3 = True
            m = re.match(r'v_mfma_f32_32x32x16_bf16 v\[(\d+):\d+\], (\S+), (\S+), (\S+)', x)
            if m and (opt['emu16'] & (2 if g3 else 1)):
                d = int(m.group(1)); k = cnt.get(d, 0); cnt[d] = k + 1
                qs = range(4) if m.group(4) == '0' else (2*(k&1), 2*(k&1)+1)
                for q in qs: N.append(f'v_mfma_f32_16x16x32_bf16 {vr(d+4*q,4)}, {m.group(2)}, {m.group(3)}, {"0" if m.group(4) == "0" else vr(d+4*q,4)}')
            else: N.append(x)
        a.L = N
    L, _ = pad_hazards([x for x in a.L], opt.get('verbose'))
    warm = [i for i, x in enumerate(L) if x == '@WARM@']
    base = [x if x != '@WARM@' else '' for x in L]
    sz = sizes_of(base)
    start = base.index('.p2align 12')
    out = base[:start + 1]; addr = 0; pads = []
    stop = base.index(f'{name}_tcomp:')
    n = len(base); i = start + 1
    E64 = ('v_add_f32', 'v_mul_f32', 'v_sub_f32', 'v_lshlrev_b32', 'v_and_b32', 'v_xor_b32', 'v_or_b32', 'v_mov_b32', 'v_exp_f32', 'v_rcp_f32', 'v_add_u32', 'v_max_f32',
           'v_lshrrev_b32', 'v_sqrt_f32', 'v_fmac_f32', 'v_max_u32', 'v_min_u32', 'v_sin_f32', 'v_cos_f32', 'v_fract_f32')
    while i < n:
        ln = base[i]
        if i in sz:
            if addr >= 4096 * (len(pads) + 1) and i < stop and not opt.get('nopad'):
                lb = f'{name}_pad{len(pads)}'; pads.append(lb)
                out.append(f'{lb}:'); out.append(f'@PAD{len(pads)-1}@'); addr += 4
            s = sz[i]
            if s == 4 and not opt.get('noalign') and (addr + 4) % 8 == 4:
                j = i + 1; run = 0; mf = 0
                while j < n and (j not in sz or sz[j] == 8):
                    if j in sz:
                        run += 1; mf += base[j].startswith('v_mfma')
                    j += 1
                mn = ln.split()[0]
                if run >= 3 and mn in E64:
                    ln = ln.replace(mn, mn + '_e64', 1); s = 8
                elif run >= 10 and mf == 0:
                    out.append('s_nop 0'); addr += 4
            addr += s
        out.append(ln); i += 1
    res = []; wi = 0
    for k, x in enumerate(out):
        if x.startswith('@PAD'):
            p = int(x[4:-1])
            res.append(f's_cbranch_execz {name + "_warmret0" if p < 2 else pads[p+2] if p + 2 < len(pads) else name + "_warmret1"}')
        elif k in warm and pads:
            res += ['s_mov_b64 exec, 0', 's_cmp_eq_u32 s18, 0', f's_cbranch_scc1 {pads[2*wi]}', f's_branch {pads[2*wi+1]}', f'{name}_warmret{wi}:', 's_mov_b64 exec, -1']
            wi += 1
        else: res.append(x)
    if opt.get('stf'): res = [x.replace(' sc1', ' ' + opt['stf'].replace('_', ' ')) if x.startswith('buffer_store') else x for x in res]
    if opt.get('ldf'): res = [x.replace(' sc1 lds', ' ' + opt['ldf'].replace('_', ' ').replace('-', '') + ' lds') if x.startswith('buffer_load') else x for x in res]
    return '\n'.join(res) + '\n'

def fused(name, opt):
    g = G(name, opt); a = g.a; ssm = SSM(g); stamp = g.stamp
    nb = {'gl': 0, 'gc': 0, 'tl': 0, 'tc': 0}
    rlx = opt.get('rlx', 0); bi = opt.get('bi', 1)
    OWN = opt.get('own', 1); ZN = opt.get('zn', 5); ZX = ZN - 4; ZS = lambda k: (k + 2*OWN + ZX) % ZN - ZX
    NR = opt.get('nr', 4); M16 = opt.get('m16', 1)
    rp = opt.get('rpat', 'SSSSSSSSRSSSSRSSSSRSSSSRSSSSSSSS')
    pat = ''
    while len(pat) < 32:
        ch = rp[len(pat) % len(rp)]
        pat += ch if pat.count('R') < NR else 'S'
    RPOS = [k for k in range(32) if pat[k] == 'R']; SPOS = [k for k in range(32) if pat[k] == 'S']
    MEM = {k: r for r, k in enumerate(RPOS)}; MEM.update({k: NR + s for s, k in enumerate(SPOS)})
    SIDX = {k: s for s, k in enumerate(SPOS)}
    assert OWN and not rlx and min(ZS(k) for k in range(28, 32)) >= 0
    assert len(SPOS) % 4 == 0 and SPOS[-4:] == [28, 29, 30, 31]
    W3 = [(0, 29), (8192, 29), (L_Z + 8192*ZS(28), 29), (16384, 30), (24576, 30), (L_Z + 8192*ZS(29), 30), (32768, 31), (40960, 31), (L_Z + 8192*ZS(30), 31),
          (147456, 31), (155648, 31), (49152, 32), (57344, 32), (L_Z + 8192*ZS(31), 32)]
    W3LOC = [x[0] for x in W3]
    kernel_begin(a, name)
    lab = lambda s: f'{name}_{s}'
    a(f's_cmp_ge_u32 s2, 256\ns_cbranch_scc1 {lab("done")}')
    if opt.get('prof') or opt.get('dbg') or opt.get('span'): a('s_memrealtime s[62:63]\ns_memtime s[66:67]')
    a(f's_load_dwordx2 s[4:5], s[0:1], {KA["u"]}\ns_load_dwordx2 s[12:13], s[0:1], {KA["ws"]}')
    a('''v_lshrrev_b32 v1, 6, v0
s_and_b32 s24, s2, 7
s_bfe_u32 s25, s2, 0x20003
v_readfirstlane_b32 s29, v1
s_lshr_b32 s26, s24, 1
s_lshl_b32 s26, s26, 2
s_add_u32 s26, s26, s25
s_lshr_b32 s27, s2, 5
s_and_b32 s30, s24, 1
s_mul_i32 s28, s30, 7
s_add_u32 s28, s28, s27
v_and_b32 v0, 63, v0''')
    lk = opt.get('lk', 0)
    if lk:
        a(f's_lshl_b32 s31, s29, 2\ns_add_u32 s31, s31, {L_CS + 2048}\nv_mov_b32 v2, s31\nv_mov_b32 v3, 0')
        a.L.append('ds_write_b32 v2, v3')
    a(f's_cmp_ge_u32 s29, 4\ns_cbranch_scc1 {lab("help")}')
    a(f's_load_dwordx8 s[40:47], s[0:1], {KA["logA"]}\ns_load_dwordx4 s[48:51], s[0:1], {KA["logdt"]}')
    a(f's_load_dwordx2 s[18:19], s[0:1], {KA["bsp"]}\ns_load_dwordx2 s[20:21], s[0:1], {KA["out"]}')
    a.emit(ssm.param_addr())
    a(f's_lshl_b32 s35, s26, 2\ns_add_u32 s35, s35, s29\ns_mul_i32 s54, s35, 57344\ns_lshl_b32 s31, s28, 12\ns_add_u32 s54, s54, s31\ns_add_u32 s54, s54, {WS_HF}')
    if opt.get('hcl', 't') == 'g': a('v_lshlrev_b32 v7, 4, v0\nv_mov_b32 v8, -1\nv_mov_b32 v9, -1\nv_mov_b32 v10, -1\nv_mov_b32 v11, -1')
    a('s_waitcnt lgkmcnt(0)')
    tagload = f's_add_u32 s16, s12, {WS_EPOCH}\ns_addc_u32 s17, s13, 0\ns_load_dword s24, s[16:17], 0'
    tagmake = 's_waitcnt lgkmcnt(0)\ns_mul_i32 s24, s24, 0x19660d\ns_add_u32 s24, s24, 0x3c6ef35f'
    a.emit(ssm.param_loads())
    if lk: a('s_barrier')
    a(tagload)
    a(f's_cmp_eq_u32 s27, 7\ns_cbranch_scc1 {lab("tcomp")}')
    hcl = opt.get('hcl', 't')
    if hcl == 'g':
        a(f's_and_b32 s13, s13, 0xffff\ns_mov_b32 s14, {hex(WS_BYTES)}\ns_mov_b32 s15, 0x20000')
        for q in range(4): a(f'buffer_store_dwordx4 v[8:11], v7, s[12:15], s54 offen offset:{1024*q} sc1')
    a(f's_branch {lab("comp")}')
    a(f'{lab("help")}:')
    a(f's_load_dwordx2 s[8:9], s[0:1], {KA["win"]}\ns_load_dwordx2 s[20:21], s[0:1], {KA["wsp"]}\ns_load_dwordx2 s[36:37], s[0:1], {KA["wout"]}')
    if opt.get('lp'): a(f's_setprio {opt["lp"]}')
    a('s_and_b32 s18, s29, 1\ns_lshl_b32 s19, s18, 12')
    srdc = f's_mov_b32 s14, {hex(WS_BYTES)}\ns_mov_b32 s15, 0x20000\ns_mov_b32 s6, 0x200000\ns_mov_b32 s7, 0x20000'
    a(srdc)
    if not opt.get('nocpf'):
        a(f's_getpc_b64 s[56:57]\n{lab("pc")}:\ns_lshr_b32 s31, s2, 2\ns_and_b32 s31, s31, 62\ns_add_u32 s31, s31, s18\nv_and_b32 v1, 7, v0\nv_lshlrev_b32 v1, 6, v1\nv_add_lshl_u32 v1, v1, s31, 7\nv_min_u32 v1, {lab("done")}-{lab("pc")}, v1')
        a('global_load_dword v31, v1, s[56:57]')
    if lk: a(f's_cmp_eq_u32 s27, 7\ns_cbranch_scc0 {lab("gload")}\ns_barrier\ns_branch {lab("thelp")}\n{lab("gload")}:')
    else: a(f's_cmp_eq_u32 s27, 7\ns_cbranch_scc1 {lab("thelp")}')

    def rot3(r):
        sm, sn = opt.get('sm3', 0), opt.get('sn3', 0)
        a(f's_mul_i32 s{r}, s25, {sm}\ns_mul_i32 s31, s27, {sn}\ns_add_u32 s{r}, s{r}, s31\ns_lshr_b32 s{r}, s{r}, 4\ns_sub_u32 s31, s{r}, 14\ns_cmp_ge_u32 s{r}, 14\ns_cselect_b32 s{r}, s31, s{r}')
    def late_loader_setup():
        a(f's_mov_b32 s22, 0x800000\ns_mov_b32 s23, 0x20000\ns_mov_b32 s38, {896*1024}\ns_mov_b32 s39, 0x20000')
        a('s_and_b32 s21, s21, 0xffff\ns_and_b32 s37, s37, 0xffff\ns_and_b32 s13, s13, 0xffff')
        a('v_lshl_add_u32 v14, v0, 4, s19\nv_lshlrev_b32 v15, 7, v0')
        a('s_lshl_b32 s31, s27, 7\ns_lshl_b32 s3, s18, 15\ns_add_u32 s31, s31, s3'); troffs(a, 16, 1024, 's31')
        a('s_lshl_b32 s32, s26, 1\ns_add_u32 s32, s32, s30\ns_lshl_b32 s3, s32, 6'); rowoffs(a, 20, 's3', 10, 's31')
        a(f's_lshl_b32 s35, s2, 13')
        a(f's_lshr_b32 s31, s2, 7\ns_lshl_b32 s31, s31, 13\ns_add_u32 s59, s31, {FX}\nv_and_b32 v32, 0xfff, v15')
        if hcl == 't': a(f'v_min_u32 v33, {3*128}, v15\ns_lshl_b32 s31, s26, 9\ns_add_u32 s31, s31, {FH}')
        else:
            a(f'v_min_u32 v33, 13, v0\nv_lshlrev_b32 v33, 13, v33\ns_lshl_b32 s31, s32, 1\ns_add_u32 s31, s31, s18\ns_lshl_b32 s31, s31, 7\ns_add_u32 s31, s31, {FZ}')
        a(f"""v_add_u32 v33, s31, v33
s_lshl_b32 s31, s27, 13
s_bfe_u32 s3, s26, 0x10001
s_lshl_b32 s3, s3, 16
s_add_u32 s31, s31, s3
s_add_u32 s31, s31, s19
s_add_u32 s61, s31, {FS}
v_mov_b32 v36, -1
v_mov_b32 v37, -1
v_mov_b32 v38, -1
v_mov_b32 v39, -1
v_mov_b32 v34, 0
v_lshlrev_b32 v44, 2, v0
s_lshl_b32 s31, s27, 18
s_lshl_b32 s3, s18, 17
s_add_u32 s31, s31, s3
s_lshl_b32 s3, s32, 7
s_add_u32 s31, s31, s3
s_add_u32 s31, s31, {WS_ST}""")
        troffs(a, 40, 4096, 's31')
    def adv(r): return [f's_add_u32 s{r}, s{r}, 1', f's_cmp_eq_u32 s{r}, 14', f's_cselect_b32 s{r}, 0, s{r}']
    def w3(j, need=None): return grp(W3LOC[j], [f's_mov_b32 s56, {j << 16}'], 16, 's[36:39]', 's56', need=need)
    vat = opt.get('vat', 'ssssaaaa').replace('-', ''); NV = len(vat); xat = opt.get('xat', 'a').replace('-', ''); assert NV <= 12 and (NV or not xat)
    def vload(where, pace=None):
        for j in range(14 - NV, 14):
            if vat[j - 14 + NV] != where: continue
            a(f's_mov_b32 s56, {j << 16}')
            for i in range(4): a.L.append(f'buffer_load_dwordx4 {vr(256 - 16*(14-j) + 4*i, 4)}, v{16+i}, s[36:39], s56 offen offset:{1024*i}')
            if pace is not None: a(f's_waitcnt vmcnt({pace})')
        if xat == where:
            for i in range(4): a.L.append(f'buffer_load_dwordx4 {vr(48 + 4*i, 4)}, v{20+i}, s[4:7], 0 offen offset:{1024*i}')
    def vstore():
        if xat:
            a(f'v_add_u32 v1, {L_X3}, v14')
            for i in range(4): a.L.append(f'ds_write_b128 v1, {vr(48 + 4*i, 4)} offset:{1024*i}')
        a(f'v_add_u32 v1, {L_Z}, v14')
        for j in range(14 - NV, 14):
            w = W3LOC[j]; hi = w >= L_Z
            for i in range(4): a.L.append(f'ds_write_b128 v{1 if hi else 14}, {vr(256 - 16*(14-j) + 4*i, 4)} offset:{w - L_Z*hi + 1024*i}')
        a('s_waitcnt lgkmcnt(0)')
    def x3(need=None): return grp(L_X3, None, 20, 's[4:7]', '0', need=need)
    w3m = opt.get('w3m', 14)
    fsload = 'buffer_load_dword v27, v32, s[12:15], s61 offen sc1'
    def s3tail():
        if w3m < 14:
            paced(sum([w3(j) for j in range(w3m, 14)], []), opt.get('thin4', 60))
            a.L.append(fsload)
            a('s_waitcnt vmcnt(1)\ns_barrier\ns_waitcnt vmcnt(0)')
        lspin('s61', 'v32', w3m < 14)
        stream_emit(a, grp(L_S3, None, 40, 's[12:15]', '0', fl='sc1'), 0, 0)
        a('s_waitcnt vmcnt(0)')
        stamp(15)
    def rawg(cb=None): return grp(L_RAW + 16, [f's_add_u32 s31, s35, {WS_XNT}'], 14, 's[12:15]', 's31', True, cb, None, 'sc1')
    def lspin(soff, voff, first=False):
        lp = a.newlab('lsp'); lo = a.newlab('lspo')
        a(f's_mov_b32 s58, {SPIN}')
        if first: a(f's_branch {lp}c')
        a(f'{lp}:')
        a.L.append(f'buffer_load_dword v27, {voff}, s[12:15], {soff} offen sc1'); a.L.append('s_waitcnt vmcnt(0)')
        a(f'{lp}c:\nv_cmp_ne_u32 vcc, s24, v27\ns_cbranch_vccz {lo}\ns_sub_u32 s58, s58, 1\ns_cmp_lg_u32 s58, 0\ns_cbranch_scc1 {lp}\n{lo}:')
    def lflag(soff):
        a('s_mov_b32 exec_hi, 0'); a.L.append(f'buffer_store_dword v35, v44, s[12:15], {soff} offen sc1'); a('s_mov_b64 exec, -1')
    def paced(items, thin):
        for i in range(0, len(items), 4):
            stream_emit(a, items[i:i+4], 0, 0)
            if thin < 60: a(f's_waitcnt vmcnt({thin})')
    ft = opt.get('ft', ''); gs = opt.get('gs', 2); lg = gs.bit_length() - 1
    prog = opt.get('prog', 8)
    RG = 32 if prog else opt.get('rg', 1)
    def k0calc(r, with_c):
        if prog: a(f's_lshr_b32 s{r}, s26, 2\ns_lshl_b32 s{r}, s{r}, 3\ns_add_u32 s{r}, s{r}, {(32 - NR) % 32}')
        else: a(f's_mul_i32 s{r}, s25, {RG // 4 if RG >= 4 else 0}')
    def memidx(d, r, idx):
        if OWN and NR <= idx < NR + 8:
            return [f's_add_u32 s{d}, s47, {idx - NR}', f's_and_b32 s{d}, s{d}, 7', f's_or_b32 s{d}, s{d}, s46']
        return [f's_add_u32 s{d}, s{r}, {idx}', f's_and_b32 s{d}, s{d}, {RG-1}', f's_or_b32 s{d}, s{d}, {idx & ~(RG-1)}']
    def wtouch(groups, other, pace):
        for gi in groups:
            assert RG == 1 or (RG // 4) % gs == 0
            a(f's_xor_b32 s31, s30, {other}\ns_add_u32 s31, s31, {2*gi}\ns_lshl_b32 s31, s31, {lg}\ns_and_b32 s3, s31, {31 & ~(RG-1)}\ns_add_u32 s31, s31, s45\ns_and_b32 s31, s31, {RG-1}\ns_or_b32 s31, s31, s3\ns_lshl_b32 s31, s31, 7')
            for i in range(gs):
                a.L.append(f'buffer_load_dword v30, v29, s[20:23], s31 offen {ft}')
                if i + 1 < gs: a(f's_add_u32 s31, s31, {(64 // gs) * 4096}')
                if pace is not None: a(f's_waitcnt vmcnt({pace})')
    def count_bars(start): return sum(1 for x in a.L[start:] if x.strip() == 's_barrier')

    st0 = len(a.L)
    XO = [131072, 49152, 65536, 81920, 98304, 114688, 131072, 0]
    a('s_lshl_b32 s34, s25, 1\ns_add_u32 s34, s34, s27\ns_and_b32 s34, s34, 7\ns_lshl_b32 s33, s26, 7\ns_lshl_b32 s3, s18, 5\ns_add_u32 s33, s33, s3')
    rowoffs(a, 2, 's33', 10)
    a(f's_lshl_b32 s31, s28, 7\ns_mul_i32 s3, s18, {32*3584}\ns_add_u32 s31, s31, s3'); troffs(a, 6, 3584, 's31')
    def so(c): a(f's_add_u32 s31, s34, {c}\ns_and_b32 s31, s31, 7\ns_lshl_b32 s{40+c}, s31, 7\ns_mul_i32 s{48+c}, s31, {64*3584}')
    for c in range(4): so(c)
    a(f's_mov_b32 s10, {512*3584}\ns_mov_b32 s11, 0x20000')
    a('s_waitcnt lgkmcnt(0)')
    if lk: a('s_barrier')
    a(tagload)
    a('s_and_b32 s5, s5, 0xffff\ns_and_b32 s9, s9, 0xffff')
    f1 = opt.get('f1', '')
    def wg(p, cb=None): return grp(p*8192, [f's_add_u32 s31, s{48+p%8}, {1792 if p < 8 else 0}'], 6, 's[8:11]', 's31', cb=cb, fl=f1)
    def xg(c, need=None):
        return sum([grp(XO[c] + k*8192, [f's_add_u32 s31, s{40+c}, {k*65536}'], 2, 's[4:7]', 's31', cb=c+1, need=need if k == 0 else None, fl=f1) for k in range(2)], [])
    we = opt.get('we', 3)
    items = xg(0) + wg(0, 1) + wg(1, 2) + xg(1) + sum([wg(p, p+1) for p in range(2, we + 1)], [])
    t_ = Asm(); a_ = a; a = t_; vload('s'); a = a_
    su = [lambda: setup2()] if opt.get('early', 2) < 0 else []
    for x in t_.L:
        if x.startswith('buffer'): items.append((su, x, None, 0 if opt.get('sb', 0) else None)); su = []
        else: su.append(x)
    for c in range(2, 8):
        items += xg(c, 1)
        if c > we: items += wg(c, c+1)
    ncs = opt.get('ncs', 4)
    for p in range(8, 8 + ncs): items += wg(p)
    early = opt.get('early', 2)
    def setup2():
        for c in range(4, 8): so(c)
        late_loader_setup()
        rowoffs(a, 10, 's33', 12)
        k0calc(57, True)
    assert early >= 1 or (early < 0 and 's' in vat and 'f' not in vat) or not set(vat) & set('sf')
    if early >= 1: setup2()
    vload('f')
    if early >= 2: a('@WARM@')
    def hook1(b, k):
        if b == 0 and k == -1:
            if early == 0: setup2()
            if early < 2: a('@WARM@')
            a(tagmake + '\nv_mov_b32 v35, s24')
        if k == 1 and b in (1, 8): stamp({1: 1, 8: 2}[b])
    stream_emit(a, items, 9, opt.get('d1', 16), hook1, skip=(0,) if lk else ())
    a('s_lshl_b32 s47, s25, 1\ns_lshr_b32 s46, s26, 2\ns_lshl_b32 s46, s46, 3')
    a(f's_lshl_b32 s34, s28, 18\ns_lshl_b32 s31, s28, 13\ns_lshl_b32 s3, s18, 7\ns_add_u32 s44, s31, s3\ns_add_u32 s44, s44, {FZ}\nv_lshlrev_b32 v28, 1, v32')
    vload('p', opt.get('vp'))
    a('s_barrier')
    stream_emit(a, sum([wg(p) for p in range(8 + ncs, 16)], []), 0, 0)
    fw = opt.get('fw', '')
    wcnt = [0]
    def wst(slot, half, cb=None, need=None):
        if half == 0:
            su = memidx(42, 57, wcnt[0] % opt.get('wfix', 32)) + ['s_lshl_b32 s42, s42, 7']; wcnt[0] += 1
        else: su = ['s_add_u32 s42, s42, 0x40000']
        return grp(slot * 16384 + half*8192, su, 10, 's[20:23]', 's42', cb=cb, need=need, fl=fw)
    def wfull(slot): return wst(slot, 0) + wst(slot, 1)
    def zst(k, cb=None, need=None):
        return grp(L_Z + ZS(k) * 8192, memidx(43, 57, MEM[k] % opt.get('zfix', 32)) + ['s_lshl_b32 s43, s43, 13', 's_add_u32 s43, s43, s34'], 14, 's[12:15]', 's43', True, cb, need, 'sc1')
    pre1 = opt.get('pre1', 2); thin = opt.get('thin', 12)
    for k in range(pre1): paced(wfull(k), thin)
    a(f's_waitcnt vmcnt({8*pre1})\ns_barrier')
    pre2 = opt.get('pre2', 4)
    for k in range(pre1, pre2): paced(wfull(k), thin)
    a('@WARM@')
    if pre2 < 4:
        a('s_barrier')
        for k in range(pre2, 4): paced(wfull(k), 60)
    vload('a', opt.get('vp'))
    stamp(3)
    spre = 4 if NR == 0 else opt.get('spre', 4)
    sp1 = min(spre, opt.get('sp1', 2))
    lu = opt.get('lu', 0)
    lspin('s59', 'v15')
    if lu:
        UR, UT, UO = 64, 88, 96
        a(f'v_lshlrev_b32 v{UT}, 5, v0\ns_add_u32 s31, s35, s19\ns_add_u32 s31, s31, {WS_XNT - 16}')
        for h in range(2):
            for k in range(3): a.L.append(f'buffer_load_dwordx4 {vr(UR+12*h+4*k,4)}, v{UT}, s[12:15], s31 offen offset:{2048*h + 16*k} sc1')
        a('s_mov_b32 s48, 0x05040100\ns_mov_b32 s49, 0x07060302')
        for k in range(4): a(f'v_mov_b32 v{UT+4+k}, 0')
        a(f'''s_mul_i32 s31, s18, {UGRP}
s_add_u32 s31, s31, {L_U}
v_lshrrev_b32 v{UT+2}, 5, v0
v_mul_u32_u24 v{UT+2}, {USTR}, v{UT+2}
v_and_b32 v{UT+3}, 31, v0
v_min_u32 v{UT+3}, 23, v{UT+3}
v_lshl_add_u32 v{UT+3}, v{UT+3}, 4, v{UT+2}
v_add_u32 v{UT+3}, s31, v{UT+3}
s_lshl_b32 s31, s18, 11
s_add_u32 s31, s31, {L_U + 384}
v_lshl_add_u32 v{UT+1}, v0, 4, s31
s_sub_u32 s31, 0, s18
v_cmp_eq_u32 vcc, s31, v0''')
    def lubuild():
        a.L.append(f'ds_write_b128 v{UT+3}, {vr(UT+4,4)}'); a.L.append(f'ds_write_b128 v{UT+3}, {vr(UT+4,4)} offset:{2*USTR}')
        for h in range(2):
            R = UR + 12*h
            for dl in range(2):
                for e in range(4):
                    d = UO + 4 * (e & 1)
                    for k in range(4): a(f'v_perm_b32 v{d+k}, v{R+4+2*k+e-2}, v{R+4+2*k+e-3}, s{48+dl}')
                    a.L.append(f'ds_write_b128 v{UT+1}, {vr(d,4)} offset:{dl*UGRP + e*USTR + 1024*h}')
        a('s_waitcnt lgkmcnt(0)')
    gt = opt.get('gt', 0)
    def gtouch():
        assert gs == 2 and RG == 32
        a('s_and_b32 s3, s27, 1\ns_lshl_b32 s3, s3, 6\ns_add_u32 s3, s3, s33\nv_lshrrev_b32 v29, 1, v0\nv_add_u32 v29, s3, v29\nv_lshlrev_b32 v29, 5, v29\nv_and_b32 v1, 1, v0\nv_add_lshl_u32 v29, v29, v1, 7')
        for i in range(gt):
            a(f's_lshr_b32 s31, s27, 1\ns_min_u32 s31, s31, 2\ns_add_u32 s31, s31, {8 - 3*gt + 3*i}\ns_lshl_b32 s31, s31, 1\ns_add_u32 s31, s31, s30\ns_lshl_b32 s31, s31, 1\ns_add_u32 s31, s31, s57\ns_and_b32 s31, s31, 31\ns_lshl_b32 s31, s31, 7')
            a.L.append('buffer_load_dword v30, v29, s[20:23], s31 offen')
    if NR >= 4: a('s_barrier')
    if gt: gtouch()
    vload('b', opt.get('vp'))
    if lu:
        a('s_waitcnt vmcnt(0)')
        for k in range(1, 4): a(f'v_cndmask_b32 v{UR+k}, v{UR+k}, v{UT+4}, vcc')
    a('s_barrier')
    if lu == 2: lubuild()
    for k in range(sp1): paced(wfull(k), 60)
    if lu == 1: lubuild()
    lb = opt.get('lb', 0)
    if not lb: a('s_barrier')
    npre = opt.get('npre', 3)
    fzv = 'v28'
    if prog:
        assert all(pat[k] == 'S' for k in range(min(prog, 6)))
        pn = min(prog, pat.index('R') if 'R' in pat else 32)
        a(f's_lshr_b32 s31, s26, 2\ns_lshl_b32 s31, s31, 11\nv_min_u32 v45, {((8 if OWN else pn)-1)*256}, v28\nv_add_u32 v45, s31, v45')
        fzv = 'v45'
    spec = opt.get('spec', 1)
    rest = list(range(sp1, spre)) if NR >= 4 else []
    assert len(rest) <= 2
    for n, k in enumerate(rest):
        if spec: a.L.append(f'buffer_load_dword v{46+n}, {fzv}, s[12:15], s44 offen sc1')
        paced(wfull(k), 60)
    if lb:
        a.L.append(f'buffer_load_dword v27, {fzv}, s[12:15], s44 offen sc1')
        a('s_barrier')
    stamp(4)
    go = a.newlab('zgo')
    if spec:
        for n in range(len(rest)):
            a(f's_waitcnt vmcnt({9*(len(rest)-n) - 1 + lb})\nv_cmp_ne_u32 vcc, s24, v{46+n}\ns_cbranch_vccz {go}')
    if lb: a('s_waitcnt vmcnt(0)')
    if not opt.get('nofz'): lspin('s44', fzv, bool(lb))
    a(f'{go}:')
    stamp(5)
    tiles = [(k - ZX * opt.get('zl', 10) / 10, 0, lambda k=k: zst(k, k, k - ZN + 1 if k >= ZN else None)) for k in range(2*OWN, 32)]
    last = -1
    for s in range(spre, len(SPOS)):
        need = min(SPOS[s-4] + 1 + rlx, max(SPOS[s-4] + 1, 28)) if s >= 4 else None
        for h in range(2):
            key = min(SPOS[s] - 0.5, max((need + 3 if need is not None else 0) - 0.5, last + opt.get('wgap', 10) / 10))
            last = key
            tiles.append((key, s*2 + h + 1, lambda s=s, h=h, need=need: wst(s % 4, h, SPOS[s], need)))
    hc = opt.get('hc', 28)
    if hcl != 'g': tiles.append((hc - 0.9, 0, lambda: [([], 'buffer_load_dword v27, v33, s[12:15], 0 offen sc1', hc, None)]))
    if prog:
        pb = pn - 3 - ZX
        tiles.append((max(pb, 3 - ZX) + 0.1 - ZX, 0, lambda: [([], 'buffer_load_dword v27, v28, s[12:15], s44 offen sc1', pb, None)]))
    tiles.sort(key=lambda x: (x[0], x[1]))
    items = sum([t[2]() for t in tiles], [])
    w3e = opt.get('w3e', 6)
    for j in range(w3e): items += w3(j, W3[j][1])
    hk = {(0,1): 6, (4,1): 7, (8,1): 8, (16,1): 9, (24,1): 10, (31,1): 11, (16,0): 16, (24,0): 17, (32,1): 12}
    hintb = opt.get('hintb', 32)
    def hook2(b, k):
        if (b, k) in hk: stamp(hk[(b, k)])
        if prog and (b, k) == (pb, 1) and not opt.get('nofz'): lspin('s44', 'v28', True)
        if (b, k) == (hc, 1) and hcl != 'g': lspin('0', 'v33', True)
        if (b, k) == (hintb, 1):
            sk = a.newlab('nohint')
            a(f's_or_b32 s3, s27, s18\ns_cmp_lg_u32 s3, 0\ns_cbranch_scc1 {sk}\ns_lshl_b32 s3, s32, 7\ns_add_u32 s3, s3, {FT}')
            lflag('s3')
            a(f'{sk}:')
    stream_emit(a, items, 33, lambda b: opt.get('d2', 32) if b < 30 else opt.get('d2e', 12), hook2, True)
    hb = opt.get('hb', 6)
    if hb:
        paced(([] if xat else x3()) + sum([w3(j) for j in range(w3e, hb)], []), 60)
        hook2(32.5, 1)
        a('s_barrier')
        paced(sum([w3(j) for j in range(max(hb, w3e), w3m - NV)], []), 60)
        if NV:
            assert w3m == 14 and max(hb, w3e) <= 14 - NV
            vstore()
    else: paced(x3() + sum([w3(j) for j in range(w3e, w3m)], []), 60)
    stamp(14)
    hook2(33, 1)
    a('s_waitcnt vmcnt(0)')
    hook2(34, 1)
    a('s_barrier')
    stamp(13)
    s3tail()
    nb['gl'] = count_bars(st0)
    g.prof_store()
    a('s_endpgm')

    a(f'{lab("thelp")}:')
    st0 = len(a.L)
    a('v_mov_b32 v36, -1\nv_mov_b32 v37, -1\nv_mov_b32 v38, -1\nv_mov_b32 v39, -1\nv_lshlrev_b32 v14, 4, v0')
    a(f's_lshl_b32 s31, s26, 1\ns_add_u32 s31, s31, s30\ns_lshl_b32 s31, s31, 1\ns_add_u32 s31, s31, s18\ns_lshl_b32 s31, s31, 13\ns_add_u32 s31, s31, {WS_STATS}')
    a('s_waitcnt lgkmcnt(0)')
    a(tagload)
    a('s_and_b32 s5, s5, 0xffff\ns_and_b32 s13, s13, 0xffff')
    for q in range(4): a.L.append(f'buffer_store_dwordx4 v[36:39], v14, s[12:15], s31 offen offset:{1024*q} sc1')
    late_loader_setup()
    if opt.get('tlbs'): a(f's_load_dwordx2 s[40:41], s[0:1], {KA["out"]}\ns_load_dwordx2 s[42:43], s[0:1], {KA["bsp"]}')
    k0calc(45, False)
    a(f's_lshl_b32 s31, s26, 7\ns_lshl_b32 s3, s18, 6\ns_add_u32 s31, s31, s3\nv_lshrrev_b32 v29, {lg}, v0\nv_add_u32 v29, s31, v29\nv_lshlrev_b32 v29, 5, v29\nv_and_b32 v1, {gs-1}, v0\nv_add_lshl_u32 v29, v29, v1, 7')
    ng = 16 // gs; tp_ = opt.get('tpace', 2); te = opt.get('te', 4) // gs
    a(tagmake + '\nv_mov_b32 v35, s24')
    if opt.get('tlbs'):
        st = opt['tlbs'] << 10
        a('s_lshl_b32 s31, s26, 19\ns_load_dword s46, s[20:21], s31')
        for o in range(0, 12 << 20, st): a(f's_mov_b32 s31, {o}\ns_load_dword s46, s[12:13], s31')
        a('s_load_dword s46, s[42:43], 0\ns_load_dword s46, s[36:37], 0\ns_load_dword s46, s[40:41], 0')
    a('s_waitcnt vmcnt(0)')
    stamp(1)
    a('s_barrier')
    te = opt.get('te', 0) // gs
    wtouch(range(te), 0, None)
    a('s_barrier')
    tm = opt.get('tm', 2) // gs; tn = opt.get('tn', 8) // gs
    wtouch(range(te, max(te, tm)), 0, None); tm = max(te, tm)
    if NV and opt.get('vt', 1):
        a(f's_and_b32 s31, s2, 31\ns_lshl_b32 s31, s31, 1\ns_add_u32 s31, s31, s18\ns_lshl_b32 s31, s31, 13\ns_add_u32 s31, s31, {(14-NV) << 16}')
        for i in range((NV + 7) // 8):
            a.L.append('buffer_load_dword v30, v15, s[36:39], s31 offen')
            a('s_add_u32 s31, s31, 0x80000')
    a('s_barrier')
    wtouch(range(tm, min(tn, ng - 3*gt)), 0, None)
    if not lk: a('s_barrier')
    lspin('s59', 'v15')
    a('s_barrier')
    stamp(5)
    wtouch(range(tn, ng - 3*gt), 0, None)
    a('s_barrier')
    stamp(2)
    if hcl == 't':
        cl_ = a.newlab('hclr')
        a(f's_lshl_b32 s41, s32, 1\ns_add_u32 s41, s41, s18\ns_mul_i32 s31, s41, 57344\ns_sub_u32 s31, s31, s19\ns_add_u32 s31, s31, {WS_HF}\ns_mov_b32 s3, 14\n{cl_}:')
        for q in range(4): a.L.append(f'buffer_store_dwordx4 v[36:39], v14, s[12:15], s31 offen offset:{1024*q} sc1')
        a(f's_add_u32 s31, s31, 4096\ns_sub_u32 s3, s3, 1\ns_cmp_lg_u32 s3, 0\ns_cbranch_scc1 {cl_}')
        a(f's_waitcnt vmcnt(0)\ns_lshl_b32 s31, s41, 7\ns_add_u32 s31, s31, {FH}')
        lflag('s31')
    stamp(3)
    a('s_barrier')
    wtouch(range(opt.get('tskip', 16) // gs, ng), 1, tp_)
    nwo = opt.get('nwo', 14)
    nwo = min(nwo, 14 - NV)
    a(f's_lshl_b32 s41, s25, 1\ns_add_u32 s41, s41, s18\ns_mul_i32 s41, s41, {nwo*8192}\ns_and_b32 s40, s2, 7\ns_mul_i32 s40, s40, {nwo}\ns_lshr_b32 s40, s40, 3')
    for i in range(nwo):
        a('s_lshl_b32 s31, s40, 13\ns_add_u32 s31, s31, s41')
        a.L.append('buffer_load_dword v30, v15, s[36:39], s31 offen')
        a(f's_add_u32 s40, s40, 1\ns_cmp_eq_u32 s40, {nwo}\ns_cselect_b32 s40, 0, s40')
    paced(x3() + sum([w3(j) for j in range(w3m)], []), 60)
    stamp(6)
    if hcl != 't': lspin('0', 'v33')
    stamp(12)
    a(f's_lshl_b32 s3, s32, 7\ns_add_u32 s3, s3, {FT}')
    lspin('s3', 'v34')
    a('s_barrier\ns_barrier')
    stamp(13)
    s3tail()
    nb['tl'] = count_bars(st0)
    g.prof_store()
    a('s_endpgm')

    a('.p2align 12')
    a(f'{lab("comp")}:')
    g.comp = True
    a.vm = ['prm'] * 6 + (['hcl'] * 4 if hcl == 'g' else []); a.lg = []
    def cprologue():
        a(srdc)
        a('s_mov_b32 s33, 0xffff0000\ns_mov_b32 s34, 0x3f803f80\ns_mov_b32 s22, 0x200000\ns_mov_b32 s23, 0x20000')
        a('s_and_b32 s5, s5, 0xffff\ns_and_b32 s13, s13, 0xffff\ns_and_b32 s21, s21, 0xffff')
        a('v_lshlrev_b32 v7, 4, v0\nv_lshlrev_b32 v6, 2, v0')
    cprologue()
    if opt.get('cp'): a(f's_setprio {opt["cp"]}')
    a(f's_lshl_b32 s35, s26, 2\ns_add_u32 s35, s35, s29\ns_lshl_b32 s31, s35, 13\ns_add_u32 s37, s31, {WS_STATS}\ns_add_u32 s60, s37, 4096\ns_lshl_b32 s3, s28, 8\ns_add_u32 s38, s37, s3')
    a.emit(ssm.kaddr())
    X = 128; A2 = 64; A1 = 96; WF = 32
    XR = A1; ST = A1 + 4; T = A1 + 8; SD = A1 + 16; CC = A1 + 18; NM = A1 + 20; FL = A1 + 22
    WR = 8; SEL = 16; CS = 24; NEG = 28
    a('s_lshl_b32 s32, s29, 12\ns_add_u32 s32, s32, 131072')
    a.emit(rowread_list(1, 2, 's32') + trread_list(3, 2))
    for i in range(4):
        a(f's_add_u32 s31, s29, {i}\ns_and_b32 s31, s31, 3\ns_lshl_b32 s3, s31, 5\nv_xor_b32 v{XR+i}, s3, v1\ns_lshl_b32 s3, s31, 11\nv_add_u32 v{WR+2*i}, s3, v3\nv_xor_b32 v{WR+1+2*i}, 64, v{WR+2*i}')
    a(f'''v_bfe_u32 v1, v0, 4, 1
v_lshlrev_b32 v1, 2, v1
v_and_b32 v2, 15, v0
v_cmp_eq_u32 vcc, v1, v2
v_mov_b32 v3, s34
v_add_u32 v1, 8, v1
v_cndmask_b32 v{SEL}, 0, v3, vcc
v_cmp_eq_u32 vcc, v1, v2
s_lshl_b32 s31, s29, 2
s_add_u32 s31, s31, {L_CS}
v_cndmask_b32 v{SEL+4}, 0, v3, vcc
v_add_u32 v1, s31, v7
v_and_b32 v2, 511, v7
v_add_u32 v2, {L_CS}, v2''')
    for i in range(1, 4): a(f'v_mov_b32 v{SEL+i}, v{SEL}\nv_mov_b32 v{SEL+4+i}, v{SEL+4}')
    a(f's_lshl_b32 s31, s35, 12\ns_lshl_b32 s3, s28, 8')
    a(f's_lshl_b32 s52, s28, 18\ns_add_u32 s52, s52, s31')
    a(f's_lshl_b32 s31, s35, 2\ns_add_u32 s53, s31, s3\ns_lshl_b32 s53, s53, 5\ns_add_u32 s53, s53, {FZ}')
    a(tagmake); a.lg = []
    a('; ===== S4D kernel table of this workgroup\'s two channels =====')
    a(f'{lab("kgen")}:')
    emit_plain(a, ssm.kgen() if not opt.get('nokg') else [BAR])
    stamp(1)
    a(f's_cmp_eq_u32 s27, 7\ns_cbranch_scc1 {lab("tcomp2")}')
    lg_split = list(a.lg)
    st0 = len(a.L)
    def xreads(c, base, off): return [(f'ds_read_b128 {vr(X+16*c+4*i,4)}, v{base+i} offset:{off}', f'xr{c}') for i in range(4)]
    XB = [131072, 49152, 49152, 49152, 49152, 114688, 114688, 0]
    def gx(c):
        L = []
        if c and XB[c] != XB[c-1]: L += [f'v_add_u32 v{XR+i}, {hex((XB[c] - XB[c-1]) & 0xffffffff)}, v{XR+i}' for i in range(4)]
        return L, xreads(c, XR, XO[c] - XB[c])
    def dots(c, S):
        for i in range(16):
            r = X + 16*c + i
            a(f'v_dot2c_f32_bf16 v{S + 2*(i&1)}, s34, v{r}\nv_dot2c_f32_bf16 v{S + 1 + 2*(i&1)}, v{r}, v{r}')
    def redux(S): return [f'v_add_f32 v{S}, v{S}, v{S+2}', f'v_add_f32 v{S+1}, v{S+1}, v{S+3}', f'v_mov_b32 v{S+2}, v{S}', f'v_mov_b32 v{S+3}, v{S+1}',
             f'v_permlane32_swap_b32 v{S}, v{S+2}', f'v_permlane32_swap_b32 v{S+1}, v{S+3}', f'v_add_f32 v{S}, v{S}, v{S+2}', f'v_add_f32 v{S+1}, v{S+1}, v{S+3}']
    def wreads(t):
        n, i = divmod(t, 4)
        L = []
        for fb in range(2):
            d = WF + 8*i + 4*fb
            L.append((f'ds_read_b64_tr_b16 {vr(d,2)}, v{WR+2*i+fb} offset:{(n%8)*8192}', f'wr{t}'))
            L.append((f'ds_read_b64_tr_b16 {vr(d+2,2)}, v{WR+2*i+fb} offset:{(n%8)*8192+512}', f'wr{t}'))
        return L
    def mfmas(t):
        n, i = divmod(t, 4); acc = A2 if n < 8 else A1; f = t % 32
        L = []
        for fb in range(2):
            c = '0' if f == 0 else vr(acc+16*fb, 16)
            L.append(f'v_mfma_f32_32x32x16_bf16 {vr(acc+16*fb,16)}, {vr(WF+8*i+4*fb,4)}, {vr(X+4*f,4)}, {c}')
        if i == 0 and not opt.get('nocs'):
            cs = [f'v_mfma_f32_16x16x32_bf16 {vr(CS,4)}, {vr(SEL+4*fb,4)}, {vr(WF+4*fb,4)}, {"0" if (f == 0 and fb == 0) else vr(CS,4)}' for fb in range(2)]
            L = ['\n'.join(cs + L[:1]), L[1]]
        return L
    def cs_write(part, T):
        return [f'v_cvt_pk_bf16_f32 v{T}, v{CS}, v{CS}', f'v_lshlrev_b32 v{T}, 16, v{T}', f'v_sub_f32 v{T}, v{CS}, v{T}', f'v_cvt_pk_bf16_f32 v{T}, v{CS}, v{T}',
                (f'ds_write_b32 v1, v{T} offset:{part*1024}', 'csw')]
    def cs_read(part, T):
        return [lambda: a.waitall(vm=False), 's_barrier'] + [(f'ds_read_b128 {vr(T+4*fb,4)}, v2 offset:{part*1024 + 512*fb}', 'csr') for fb in range(2)]
    def cs_apply(acc, T):
        return [lambda: a.waitlg('csr')] + [f'v_mfma_f32_32x32x16_bf16 {vr(acc+16*fb,16)}, {vr(T+4*fb,4)}, {vr(NEG,4)}, {vr(acc+16*fb,16)}' for fb in range(2)]
    def gconst(cc, r): return [f'v_mul_f32 v{cc+1}, {fbits(C0)}, v{r}', f'v_mul_f32 v{cc}, v{r}, v{r}', f'v_mul_f32 v{cc}, v{cc}, v{cc+1}', f'v_mul_f32 v{cc}, {fbits(0.044715)}, v{cc}']
    def halves(S, Q): return [f'v_permlane32_swap_b32 v{S}, v{Q}', f'v_add_f32 v{S}, v{S}, v{Q}', f'v_mov_b32 v{S+1}, v{S}', f'v_permlane32_swap_b32 v{S}, v{S+1}']
    finA = ['v_cmp_gt_u32 vcc, 32, v0'] + halves(ST, ST+2) + [f'v_mul_f32 v{NM}, {fbits(-1.0/512)}, v{ST}', f'v_cvt_pk_bf16_f32 v{NM+1}, v{NM}, v{NM}'] + \
        [f'v_cndmask_b32 v{NEG+i}, 0, v{NM+1}, vcc' for i in range(4)]
    Q1 = ST + 1
    finB = [f'v_mul_f32 v{Q1}, {fbits(1.0/512)}, v{Q1}', f'v_fma_f32 v{Q1}, -v{NM}, v{NM}, v{Q1}', f'v_max_f32 v{Q1}, 0, v{Q1}', f'v_cvt_pk_bf16_f32 v{Q1}, 0, v{Q1}',
            f'v_add_f32 v{Q1}, {fbits(1e-5)}, v{Q1}', f'v_cvt_pk_bf16_f32 v{Q1}, 0, v{Q1}', f'v_sqrt_f32 v{Q1}, v{Q1}', f'v_cvt_pk_bf16_f32 v{SD}, 0, v{Q1}', f'v_rcp_f32 v4, v{SD}'] + gconst(CC, 4)
    wadd = [f'v_add_u32 v{WR+i}, 65536, v{WR+i}' for i in range(8)]
    padr = [f'v_and_b32 v{FL+2}, 15, v0', f'v_lshrrev_b32 v{FL+1}, 4, v0', f'v_lshlrev_b32 v{FL+2}, 4, v{FL+2}', f'v_lshl_add_u32 v{FL+2}, v{FL+1}, 2, v{FL+2}']
    sload = f'buffer_load_dwordx4 {vr(ST,4)}, v7, s[12:15], s60 offen offset:3072 sc1'
    a.waitall(vm=False)
    a('s_barrier'); a.emit(gx(0)[1] + wreads(0) + wreads(1) + wreads(2))
    ts = opt.get('ts', 17); tk = opt.get('tk', 29)
    for c in range(8):
        fi = opt.get('fine') == 'p1' and c in (3, 4)
        if fi: stamp(3 + 6*(c-3), True)
        if c < 7:
            pre, xr = gx(c+1)
            last = [] if c == 0 else [xlast]
            fills = {0: last + wreads(4*c+3) + pre + ['s_barrier'], 1: xr[:1] + wreads(4*c+4), 2: xr[1:2] + wreads(4*c+5), 3: xr[2:3] + wreads(4*c+6)}
            xlast = xr[3]
        else:
            fills = {0: [xlast] + wreads(4*c+3) + padr, 1: cs_write(0, T) + wadd[:4], 2: wadd[4:] + cs_read(0, T), 3: []}
            fills[tk - 28] += finA
        for i in range(4):
            t = 4*c + i
            if opt.get('fine') == 'p1e' and t >= 19 and t != 22: stamp(3 + t - 19 - (t > 22), True)
            if t == ts: a(sload, 'st1')
            if t == tk:
                a.waitvm('st1'); g.spin([sload], [ST+1, ST+3], FL)
            if opt.get('fine') == 'p1e' and t == tk: stamp(15, True)
            a.waitlg(f'wr{t}')
            a.emit(merge(mfmas(t), fills[i]))
            if fi: stamp(5 + i + 6*(c-3), True)
    stamp(2)
    a.emit(cs_apply(A2, T))
    a.emit(finB)
    if not opt.get('nog2'): a.emit(gelu_pk(A2, 32, CC, SD, T))
    AH = 3
    rd = sum([wreads(t) for t in range(32, 32 + AH)], [])
    st = []
    for i in range(16):
        p = A2 + 2*i
        if i == 0: st.append(f'v_pk_mul_f32 {vr(ST+2,2)}, {vr(p,2)}, {vr(p,2)}')
        else: st += [f'v_pk_add_f32 {vr(ST,2)}, {vr(p-2,2) if i == 1 else vr(ST,2)}, {vr(p,2)}', f'v_pk_fma_f32 {vr(ST+2,2)}, {vr(p,2)}, {vr(p,2)}, {vr(ST+2,2)}']
    st += [f'v_add_f32 v{ST}, v{ST}, v{ST+1}', f'v_add_f32 v{ST+2}, v{ST+2}, v{ST+3}']
    a.emit(st)
    a(f'v_permlane32_swap_b32 v{ST}, v{ST+2}')
    a(f'v_add_f32 v3, v{ST}, v{ST+2}\nv_min_u32 v3, 0xfffffffe, v3')
    a.waitall(lg=False)
    a(f'buffer_store_dword v3, v{FL+2}, s[12:15], s38 offen sc1', 'pub')
    stamp(3)
    a('s_barrier')
    a.emit(rd)
    TA = X; P = X + 8; T2 = A2 + 16; U = X + 16; Q = X + 6; RA = A2 + 28
    pl = [f'buffer_load_dwordx4 {vr(P+4*j,4)}, v{7 if j < 3 else TA+7}, s[12:15], s37 offen offset:{1024*j} sc1' for j in range(4)]
    zcol = f'v_and_b32 v{TA+4}, 56, v{WR}' if not M16 else f'v_and_b32 v{TA+4}, 3, v0\nv_bfe_u32 v{TA+5}, v0, 4, 1\nv_lshl_add_u32 v{TA+4}, v{TA+5}, 2, v{TA+4}\nv_lshlrev_b32 v{TA+4}, 3, v{TA+4}'
    taddr = f"""v_and_b32 v{TA+6}, 7, v0
v_lshrrev_b32 v{TA+7}, 5, v0
v_xor_b32 v{TA+6}, v{TA+6}, v{TA+7}
v_lshlrev_b32 v{TA+6}, 4, v{TA+6}
v_and_b32 v{TA}, 31, v0
v_lshl_add_u32 v{TA}, v{TA}, 7, v{TA+6}
v_add_u32 v{TA}, s32, v{TA}
v_xor_b32 v{TA+1}, 32, v{TA}
v_xor_b32 v{TA+2}, 64, v{TA}
v_xor_b32 v{TA+3}, 96, v{TA}
v_bfe_u32 v{TA+6}, v0, 2, 2
v_lshl_add_u32 v{TA+7}, v{TA+7}, 3, v{TA+6}
v_lshlrev_b32 v{TA+6}, 4, v{TA+6}
{zcol}
v_xor_b32 v{TA+4}, v{TA+4}, v{TA+6}
v_lshl_add_u32 v{TA+4}, v{TA+7}, 7, v{TA+4}
v_add_u32 v{TA+4}, s32, v{TA+4}
v_xor_b32 v{TA+5}, 64, v{TA+4}
v_lshlrev_b32 v{TA+7}, 25, v0
v_and_b32 v{TA+7}, 0x40000000, v{TA+7}
v_add_u32 v{TA+7}, v{TA+7}, v7""".split('\n')
    fin2 = [f'v_pk_add_f32 {vr(P+j,2)}, {vr(P+j,2)}, {vr(P+j+8,2)}' for j in range(0, 8, 2)] + [f'v_pk_add_f32 {vr(P+j,2)}, {vr(P+j,2)}, {vr(P+j+4,2)}' for j in range(0, 4, 2)] + \
           [f'v_permlane16_swap_b32 v{P}, v{P+1}', f'v_permlane16_swap_b32 v{P+2}, v{P+3}', f'v_add_f32 v{P}, v{P}, v{P+1}', f'v_add_f32 v{P+2}, v{P+2}, v{P+3}']
    fin2 += halves(P, P+2) + ln_list(P, P+1, 896, P+2, P+5, P+4) + [f'v_mul_f32 v{P+5}, v{P+5}, v{P+4}']
    for q in range(4):
        for i in range(4): fin2.append(f'v_pk_fma_f32 {vr(A2+8*q+2*i,2)}, {vr(A2+8*q+2*i,2)}, {vr(P+4,2)}, {vr(P+4,2)} op_sel:[0,0,1] op_sel_hi:[1,0,1]')
        for i in range(4): fin2.append(f'v_cvt_pk_bf16_f32 v{U+4*q+i}, v{A2+8*q+2*i}, v{A2+8*q+2*i+1}')
        fin2.append((f'ds_write_b128 v{TA+q}, {vr(U+4*q,4)}', 'tw'))
    for q in range(4):
        ks2, fb = divmod(q, 2)
        fin2.append((f'ds_read_b64_tr_b16 {vr(A2+4*q,2)}, v{TA+4+fb} offset:{ks2*2048}', f'tr{q}'))
        fin2.append((f'ds_read_b64_tr_b16 {vr(A2+2+4*q,2)}, v{TA+5-fb} offset:{ks2*2048 + 512}', f'tr{q}'))
    fin4 = []
    for q in range(4): fin4 += [lambda q=q: a.waitlg(f'tr{q}'), (f'buffer_store_dwordx4 {vr(A2+4*q,4)}, v7, s[12:15], s52 offen offset:{1024*q} sc1', 'z2st')]
    tp = opt.get('tp', 41); tc = opt.get('tc', 47)
    assert tp >= 37 and tc >= 41
    fills = {t: [] for t in range(32, 70)}
    fills[34] += taddr[:8]; fills[35] += taddr[8:16]; fills[36] += taddr[16:]
    fills[33] += ['s_lshl_b32 s31, s35, 5', 'v_and_b32 v3, 31, v0', 'v_add_lshl_u32 v3, v3, s31, 1', ('global_load_ushort v3, v3, s[18:19]', 'bsp')]
    for j in range(4): fills[tp + j//2].append((pl[j], 'pl'))
    if pre2 < 4: fills[tp + 1].append('s_barrier')
    def waddr(d):
        if not M16: return ['s_lshl_b32 s31, s29, 12'] + rowread_list(d, d+1, 's31') + [f'v_xor_b32 v{d+i}, {32*i}, v{d}' for i in range(1, 4)]
        return ['s_lshl_b32 s31, s29, 12', f'v_lshrrev_b32 v{d+1}, 4, v0', f'v_bfe_u32 v{d}, v0, 1, 3', f'v_xor_b32 v{d}, v{d}, v{d+1}', f'v_lshlrev_b32 v{d}, 4, v{d}',
                f'v_and_b32 v{d+1}, 15, v0', f'v_lshl_add_u32 v{d}, v{d+1}, 7, v{d}', f'v_add_u32 v{d}, s31, v{d}', f'v_xor_b32 v{d+1}, 64, v{d}']
    def wsrc(base, ks, slot): return f'v{base+ks} offset:{slot*16384}' if not M16 else f'v{base+ks//2} offset:{slot*16384 + (ks&1)*2048}'
    def rreads(r, base): return [(f'ds_read_b128 {vr(X+16*r+4*ks,4)}, {wsrc(base, ks, r%4)}', f'res{r}') for ks in range(4)]
    t0 = tc + 1
    if OWN: fills[tc] += [f'v_add_u32 v{TA}, s32, v7'] + [(f'ds_write_b128 v{TA}, {vr(A2+4*q,4)} offset:{1024*q}', 'own') for q in range(4)]
    if hcl == 'z':
        fills[tc] += [f'v_mov_b32 v{T2+4+i}, -1' for i in range(4)] + [(f'buffer_store_dwordx4 {vr(T2+4,4)}, v7, s[12:15], s54 offen offset:{1024*q} sc1', 'hcl') for q in range(4)]
    if NR >= 4:
        fills[t0] += waddr(RA) + ['s_barrier']
        rr = sum([rreads(r, RA) for r in range(4)], [])
        rper = opt.get('rper', 3)
        for j in range(16):
            t = max(t0 + 1 + j // rper, 33 + j)
            fills[t].append(rr[j])
    assert NR == 4
    tb1 = max(52, t0 + 3 + 15 // opt.get('rper', 3))
    fills[tb1] += [lambda: a.waitlg('res3'), 's_barrier']
    assert M16 and hcl != 'z'
    ld, ad, ub, ca = ssm.ubuild(A2 + 16, X + 64, A2, A2 + 31)
    if lu:
        ca = ad[6:10] + ca; ld = []; ad = []; ub = []
    if opt.get('noub'): ld = []; ub = []
    fills[t0] += ld
    tu = max(t0 + 1, 49)
    fills[tu+1] += ad[:11]; fills[tu+2] += ad[11:]
    u0 = max(tb1, tu + 2, opt.get('tf', 55)) + 1
    u1 = opt.get('u1', 65)
    for j in range(u0, u1): fills[j] += ub[(j-u0)*len(ub)//(u1-u0):(j-u0+1)*len(ub)//(u1-u0)]
    fills[61] = fills[61] + cs_write(1, A2 + 31)
    tf = opt.get('tf', 55)
    flagz = g.setflag('s53', A2 + 30) + [lambda: stamp(7)]
    fills[tf] += flagz
    fp = lambda i: stamp(i, True) if opt.get('fine') == 'p3' else None
    for t in range(32, 64):
        if t in (32, tp, tp + 4, tc): fp({32: 3, tp: 4, tp + 4: 5, tc: 6}[t])
        if t in (tc + 1, tc + 2, tc + 6, tc + 10, tf, tf + 1): fp({tc + 1: 10, tc + 2: 11, tc + 6: 12, tc + 10: 13, tf: 14, tf + 1: 15}[t])
        if t == tc:
            a.waitvm('pl'); fp(7)
            if not opt.get('nost'): g.spin(pl, range(P, P+16), Q, True)
            stamp(4); fp(8)
            a.emit(fin2); fp(9)
        a.waitlg(f'wr{t}')
        rd = wreads(t + AH) if t + AH < 64 else []
        if t == tc:
            m = mfmas(t); a.emit(m + fin4 + rd + fills[t]); stamp(5)
        else: a.emit(merge(mfmas(t), rd + fills[t]))
    a.emit(fills[64])
    stamp(6)
    a.emit(cs_read(1, T2))
    gw = opt.get('gw', 0)
    if gw: a('v_rcp_f32 v24, v4')
    a.emit(waddr(8) + (gconst(26, 4) if gw else []))
    a.emit(cs_apply(A1, T2))
    a.emit(ca)
    Z1 = 112
    if gw: a.emit(gelu_pk(A1, 32, 26, 24, 16))
    else:
        for i in range(16): a(f'v_pk_mul_f32 {vr(A1+2*i,2)}, {vr(A1+2*i,2)}, v[4:5] op_sel_hi:[1,0]')
    for i in range(15, -1, -1): a(f'v_cvt_pk_bf16_f32 v{Z1+i}, v{A1+2*i}, v{A1+2*i+1}')
    if M16:
        a(f'v_lshlrev_b32 v10, 16, v3\nv_lshlrev_b32 v11, 16, v3\nv_and_b32 v12, 255, v7\nv_bfe_u32 v14, v0, 4, 1\nv_lshl_add_u32 v12, v14, 9, v12\nv_lshrrev_b32 v14, 5, v0\nv_lshl_add_u32 v12, v14, 11, v12\nv_add_u32 v12, {L_Z - 8192*ZX}, v12')
        a('v_permlane16_swap_b32 v10, v11')
        for p in range(4):
            for j in range(2): a(f'v_permlane16_swap_b32 v{Z1+4*p+j}, v{Z1+4*p+2+j}')
        a(f'v_mov_b32 v14, {fbits(C1)}')
        if bi:
            for i in range(16): a(f'v_pk_mov_b32 {vr(32+2*i,2)}, v[10:11], v[10:11] op_sel:[{(i>>1)&1},{(i>>1)&1}]')
    else: a(f'v_add_u32 v12, {L_Z}, v7\nv_lshlrev_b32 v4, 16, v3\nv_mov_b32 v14, {fbits(C1)}')
    cpre, cg = ssm.conv()
    if npre:
        emit_plain(a, cpre + sum(cg[:10*npre], [])); cg = cg[10*npre:]; cpre = []
    stamp(8)
    assert NR <= 4
    a('; ===== w_sp @ z2 with the convolution and gelu(z1) in its shadow =====')
    ACC = 32; F = [64, 88]
    def rd2(k, half):
        L = []
        if M16:
            wr = [(f'ds_read_b128 {vr(F[half]+4*tb,4)}, {wsrc(8, 2*half+tb, SIDX[k]%4)}', f'g{k}_{2*half}') for tb in range(2)] if k in SIDX else []
            zr = [(f'ds_read_b128 {vr(F[half]+8+4*fb,4)}, v12 offset:{(ZS(k)+ZX)*8192 + half*4096 + (fb>>1)*1024 + (fb&1)*256}', f'g{k}_{2*half + fb//2}') for fb in range(4)]
            return wr + zr
        for j in range(2):
            ks = 2*half + j
            if k in SIDX: L.append((f'ds_read_b128 {vr(F[half]+12*j,4)}, v{8+ks} offset:{(SIDX[k]%4)*16384}', f'g{k}_{ks}'))
            for fb in range(2): L.append((f'ds_read_b128 {vr(F[half]+12*j+4+4*fb,4)}, v12 offset:{ZS(k)*8192+ks*2048+fb*1024}', f'g{k}_{ks}'))
        return L
    def mm2(k, half):
        L = []
        if M16:
            for fb in range(4):
                pair = []
                for tb in range(2):
                    wreg = F[half]+4*tb if k in SIDX else X + 16*MEM[k] + 4*(2*half+tb)
                    d = ACC + 8*fb + 4*tb
                    pair.append(f'v_mfma_f32_16x16x32_bf16 {vr(d,4)}, {vr(F[half]+8+4*fb,4)}, {vr(wreg,4)}, {"0" if (k == 0 and half == 0 and not bi) else vr(d,4)}')
                if opt.get('snake', 1) == 1 and fb & 1: pair.reverse()
                L.append((f'g{k}_{2*half + fb//2}', pair))
            if opt.get('snake') == 2:
                m = [x[1] for x in L]
                L = [(L[0][0], [m[0][0], m[1][0]]), (L[2][0], [m[2][0], m[3][0]]), (L[2][0], [m[3][1], m[2][1]]), (L[2][0], [m[1][1], m[0][1]])]
            return L
        for j in range(2):
            wreg = F[half]+12*j if k in SIDX else X + 16*MEM[k] + 4*(2*half+j)
            for fb in range(2):
                c = '0' if (k == 0 and half == 0 and j == 0) else vr(ACC+16*fb, 16)
                L.append((f'g{k}_{2*half+j}', [f'v_mfma_f32_32x32x16_bf16 {vr(ACC+16*fb,16)}, {vr(F[half]+12*j+4+4*fb,4)}, {vr(wreg,4)}, {c}']))
        return L
    kf = 0
    c0, c1 = opt.get('c0', 2), opt.get('c1', 25)
    plan = {}
    def spread(groups, slots, wts):
        cum = 0; tot = sum(int(wts[s[2]]) for s in slots); done = 0
        for s in slots:
            cum += int(wts[s[2]]); n = cum * len(groups) // tot
            plan.setdefault(s, []).extend(groups[done:n]); done = n
    allslots = [(k, ph, i) for k in range(32) for ph in range(2) for i in range(4) if (k, ph) != (0, 0)]
    if cg and not opt.get('noconv'): spread(cg, [s for s in allslots if c0 <= s[0] <= c1], opt.get('cw', '0001'))
    if cpre: spread([[x] for x in cpre], [s for s in allslots if (kf, 1) <= s[:2] and s[0] < c0], '1113')
    if not gw and not opt.get('nog1'): spread([[x] for x in gelu_packed(Z1, 16, 128, 14)], [s for s in allslots if opt.get('g0', RPOS[0] + 3) <= s[0] < opt.get('ge', 30)], '2223')
    fin, fflag = ssm.finish()
    sst = [x for x in fin if isinstance(x, tuple) and x[1] == 'sst']
    spread([[x] for x in fin if x not in sst], [s for s in allslots if c1 + 1 <= s[0] <= c1 + 2], '2223')
    plan.setdefault((opt.get('sk', c1 + 2), 1, 3), []).append(sst)
    assert c1 + 2 <= 30
    for k in range(33):
        if k in (0, 31): a.waitall(vm=False)
        elif not rlx or k >= 28: a.waitlg(f'g{k-1}_3')
        a('s_barrier')
        if k == 0: stamp(9)
        if str(opt.get('fine')).startswith('g2'):
            k0 = int(opt['fine'][2:])
            if k0 <= k < k0 + 13: stamp(3 + k - k0, True)
        for ph in range(2):
            m = (mm2(k-1, 1) if k > 0 else []) if ph == 0 else (mm2(k, 0) if k < 32 else [])
            r = rd2(k, ph) if k < 32 else []
            if not m:
                a.emit(r); continue
            for i, (tg, ins) in enumerate(m):
                a.waitlg(tg)
                a.emit(merge(ins, r[2*i:2*i+2]))
                for x in plan.get((k, ph, i), []): a.emit(x)
                if k == 31:
                    for j in range(2):
                        z = 8*ph + 2*i + j
                        a(f'v_lshlrev_b32 v{128+2*z}, 16, v{Z1+z}\nv_and_b32 v{129+2*z}, s33, v{Z1+z}')
    stamp(10)
    a.emit(fflag[:2])
    for q in range(4):
        for i in range(4):
            p = ACC + 8*q + 2*i
            if bi: pass
            elif M16: a(f'v_pk_add_f32 {vr(p,2)}, {vr(p,2)}, v[10:11] op_sel:[0,{i//2}] op_sel_hi:[1,{i//2}]')
            else: a(f'v_pk_add_f32 {vr(p,2)}, {vr(p,2)}, v[4:5] op_sel_hi:[1,0]')
        for i in range(4):
            p = ACC + 8*q + 2*i
            a(f'v_pk_mul_f32 {vr(p,2)}, {vr(p,2)}, {vr(128+8*q+2*i,2)}')
        for i in range(4): a(f'v_cvt_pk_bf16_f32 v{F[0]+4*q+i}, v{ACC+8*q+2*i}, v{ACC+8*q+2*i+1}')
        def hout(q):
            if M16:
                for j in range(2): a(f'v_permlane16_swap_b32 v{F[0]+4*q+j}, v{F[0]+4*q+2+j}')
            a(f'buffer_store_dwordx4 {vr(F[0]+4*q,4)}, v7, s[12:15], s54 offen offset:{1024*q} sc1', 'hst')
        hout(q)
    a.emit(fflag[2:])
    if hb: a('s_barrier')
    stamp(11)
    nb['gc'] = count_bars(st0) + 2 + (w3m < 14)

    a(f'{lab("g3comp")}:')
    HB = 16; ACC = 160; WB = [224, 240]; SR = 192; SF = 200; XR = 216; XF = 136; T = 152
    a('s_and_b32 s36, s29, 1\ns_lshr_b32 s37, s29, 1\ns_lshl_b32 s32, s26, 1\ns_add_u32 s32, s32, s30')
    a.emit(trread_list(1, 2))
    a(f'''s_lshl_b32 s55, s37, 6
s_lshl_b32 s31, s37, 12
v_xor_b32 v1, s55, v1
v_add_u32 v1, s31, v1
v_xor_b32 v2, 64, v1
v_add_u32 v3, {L_Z}, v1
v_add_u32 v4, {L_Z}, v2
s_lshl_b32 s3, s36, 12
s_add_u32 s3, s3, {L_X3}''')
    a.emit(rowread_list(9, 10, 's3'))
    a(f'''v_xor_b32 v9, s55, v9
v_xor_b32 v10, 32, v9
v_lshrrev_b32 v11, 2, v0
v_and_b32 v12, 3, v0
v_lshlrev_b32 v13, 4, v12
v_lshl_add_u32 v15, v11, 10, v13
v_bfe_u32 v13, v0, 3, 3
v_xor_b32 v12, v12, v13
v_lshlrev_b32 v12, 4, v12
v_xor_b32 v12, s55, v12
v_lshl_add_u32 v12, v11, 7, v12
v_add_u32 v14, s3, v12
v_lshrrev_b32 v11, 5, v0
v_bfe_u32 v13, v0, 2, 2
v_lshl_add_u32 v11, v11, 3, v13
v_lshlrev_b32 v11, 7, v11
v_bfe_u32 v13, v0, 3, 1
v_xor_b32 v13, s36, v13
v_lshl_add_u32 v11, v13, 6, v11
v_bfe_u32 v13, v0, 4, 1
v_lshl_add_u32 v11, v13, 5, v11
v_and_b32 v13, 3, v0
v_lshl_add_u32 v11, v13, 3, v11
s_add_u32 s31, s31, {L_S3}
v_add_u32 v11, s31, v11
s_lshl_b32 s3, s32, 1
s_add_u32 s3, s3, s36
s_lshl_b32 s61, s3, 15
s_mul_i32 s38, s3, 57344
s_lshl_b32 s3, s27, 7
s_add_u32 s61, s61, s3
s_add_u32 s61, s61, s55
s_lshl_b32 s3, s37, 11
s_add_u32 s38, s38, s3
s_add_u32 s38, s38, {WS_HF}
s_lshl_b32 s3, s29, 12
s_add_u32 s3, s3, {L_U}
v_add_u32 v8, s3, v7
v_xor_b32 v13, 8192, v8
v_mov_b32 v12, {fbits(-LOG2E)}''')
    do = opt.get('do', 0)
    if do: a('v_and_b32 v14, 31, v0\nv_lshrrev_b32 v15, 5, v0\nv_lshlrev_b32 v15, 4, v15\nv_lshl_add_u32 v15, v14, 10, v15')
    fl_ = opt.get('fl', 1)
    if fl_:
        a(f'''v_lshrrev_b32 v14, 3, v0
v_and_b32 v15, 7, v0
v_lshrrev_b32 v5, 4, v0
v_xor_b32 v5, v5, v15
v_lshlrev_b32 v15, 4, v15
v_lshl_add_u32 v15, v14, 10, v15
v_lshlrev_b32 v5, 4, v5
v_lshl_add_u32 v14, v14, 7, v5
s_lshl_b32 s3, s29, 11
s_add_u32 s3, s3, {L_X3}
v_add_u32 v14, s3, v14
v_xor_b32 v5, 64, v14
s_lshl_b32 s61, s32, 16
s_lshl_b32 s3, s29, 14
s_add_u32 s61, s61, s3
s_lshl_b32 s3, s27, 7
s_add_u32 s61, s61, s3''')
    for j in range(14): a(f's_add_u32 s{40+j}, s38, {j << 12}')
    a(f's_mov_b32 s39, {SPIN >> 3}')
    aw = opt.get('aw', 1)
    if aw: a(f's_waitcnt vmcnt({aw})')
    else: a.waitall(lg=False)
    stamp(12)
    NI = opt.get('ni', 5)
    def hl(j): return [f'buffer_load_dwordx4 {vr(HB+8*j+4*p,4)}, v7, s[12:15], s{40+(j if not opt.get("hfix") else 0)} offen offset:{1024*p} sc1' for p in range(2)]
    def rdw(j, ks):
        w = W3LOC[j]; hi = w >= L_Z; w -= L_Z * hi
        return [(f'ds_read_b64_tr_b16 {vr(WB[j&1]+8*ks+4*b+2*p,2)}, v{1+b+2*hi} offset:{w+ks*2048+512*p}', f'w{j}_{ks}') for b in (1, 0) for p in range(2)]
    for j in range(NI): a.emit([(x, f'h{j}') for x in hl(j)])
    a('s_barrier')
    stamp(13)
    a.emit(rdw(0, 0) + rdw(0, 1))
    es = opt.get('es', 8)
    xs = [(f'ds_read_b128 {vr(XR+4*p,4)}, v{9+p}', 'xr') for p in range(2)]
    un = sum([[f'v_lshlrev_b32 v{XF+2*i}, 16, v{XR+i}', f'v_and_b32 v{XF+2*i+1}, s33, v{XR+i}'] for i in range(8)], [])
    retry = []
    NP = opt.get('np', 1)
    issued = lambda j: min(14, NI + NP * j)
    def check(j):
        lc = a.newlab('hchk'); lr = a.newlab('hretry')
        a.waitvm(f'h{j}')
        H = HB + 8*j
        a(f'{lc}:\nv_max3_u32 v{T}, v{H}, v{H+1}, v{H+2}\nv_max3_u32 v{T+1}, v{H+3}, v{H+4}, v{H+5}\nv_max3_u32 v{T}, v{T}, v{H+6}, v{H+7}\nv_max_u32 v{T}, v{T}, v{T+1}')
        a(f'v_cmp_eq_u32 vcc, -1, v{T}')
        return lc, lr
    def cbr(j, lc, lr, mid=None):
        a(f's_cbranch_vccnz {lr}\n{lc}x:' if not opt.get('nohr') else f'{lc}x:')
        retry.append((lr, lc, j, sum([hl(i) for i in range(j, min(issued(j), j + opt.get('nrt', 5)))], [])))
    lc, lr = check(0); cbr(0, lc, lr)
    stamp(14)
    for j in range(14):
        if opt.get('fine') == 'g3' and j % 2 == 0: stamp(3 + j // 2, True)
        seq = []
        for ks in range(2):
            for b in (1, 0):
                seq.append((ks, f'v_mfma_f32_32x32x16_bf16 {vr(ACC+16*b,16)}, {vr(WB[j&1]+8*ks+4*b,4)}, {vr(HB+8*j+4*ks,4)}, {"0" if (j == 0 and ks == 0) else vr(ACC+16*b,16)}'))
        if j == 13: seq = [seq[0], seq[2], seq[1], seq[3]]
        nxt = (rdw(j+1, 0) + rdw(j+1, 1)) if j < 13 else []
        for i, (ks, ins) in enumerate(seq):
            a.waitlg(f'w{j}_{ks}')
            a(ins)
            if j == w3m - 1 and i == 0 and w3m < 14: a('s_barrier')
            if i < 2:
                a.emit(nxt[3*i:3*i+3])
                new = [(x, f'h{s_}') for s_ in range(issued(j), issued(j+1)) for x in hl(s_)]
                a.emit(new[i*len(new)//2:(i+1)*len(new)//2])
            if j == es and i in (0, 1): a.emit(xs[3*i:3*i+3])
            if j > es and i in (0, 1, 3):
                a.waitlg('xr'); a.emit(un[:4]); un = un[4:]
            if i == 2 and j < 13: lc, lr = check(j + 1)
            if i == 3 and j < 13:
                a.emit(nxt[6:]); cbr(j + 1, lc, lr)
    stamp(15)
    if opt.get('prof'): a(f's_sub_u32 s100, {SPIN >> 3}, s39\ns_mul_i32 s100, s100, 10\ns_add_u32 s100, s100, s66')
    ft_ = lambda i: stamp(i, True) if opt.get('fine') == 'g3' else None
    ft_(10)
    for q in range(4): a(f'ds_write_b128 v8, {vr(ACC+16+4*q,4)} offset:{1024*q}', 'rw')
    a.waitall(vm=False); ft_(11); a('s_barrier'); ft_(12)
    assert not un
    for q in range(2): a(f'ds_read_b128 {vr(WB[0]+4*q,4)}, v13 offset:{1024*q}', f'rr0')
    for q in range(4): a(f'ds_read_b64_tr_b16 {vr(SR+2*q,2)}, v11 offset:{2048*(q//2)+512*(q%2)}', 'sr')
    for q in range(2, 4): a(f'ds_read_b128 {vr(WB[0]+4*q,4)}, v13 offset:{1024*q}', f'rr1')
    for p in range(2):
        B = ACC + 8*p
        a.waitlg(f'rr{p}')
        if p == 0: ft_(13)
        for i in range(4): a(f'v_pk_add_f32 {vr(B+2*i,2)}, {vr(B+2*i,2)}, {vr(WB[0]+8*p+2*i,2)}')
        for i in range(4): a(f'v_pk_mul_f32 {vr(T+2*i,2)}, {vr(B+2*i,2)}, v[12:13] op_sel_hi:[1,0]')
        for i in range(8): a(f'v_exp_f32 v{T+i}, v{T+i}')
        a.waitlg('sr')
        for i in range(4): a(f'v_lshlrev_b32 v{SF+8*p+2*i}, 16, v{SR+4*p+i}\nv_and_b32 v{SF+8*p+2*i+1}, s33, v{SR+4*p+i}')
        for i in range(4): a(f'v_pk_mul_f32 {vr(B+2*i,2)}, {vr(B+2*i,2)}, {vr(SF+8*p+2*i,2)}')
        for i in range(4): a(f'v_pk_add_f32 {vr(T+2*i,2)}, {vr(T+2*i,2)}, 1.0 op_sel_hi:[1,0]')
        for i in range(8): a(f'v_rcp_f32 v{T+i}, v{T+i}')
        for i in range(4): a(f'v_pk_fma_f32 {vr(B+2*i,2)}, {vr(B+2*i,2)}, {vr(T+2*i,2)}, {vr(XF+8*p+2*i,2)}')
        for i in range(4): a(f'v_cvt_pk_bf16_f32 v{HB+4*p+i}, v{B+2*i}, v{B+2*i+1}')
        if do: a(f'buffer_store_dwordx4 {vr(HB+4*p,4)}, v15, s[20:23], s61 offen offset:{32*p} {opt.get("outflag","sc1").replace("-", "")}', 'ost')
        else: a(f'ds_write_b128 v{9+p}, {vr(HB+4*p,4)}', 'ow')
    ft_(14)
    if fl_:
        a.waitall(vm=False); a('s_barrier')
        for p in range(2): a(f'ds_read_b128 {vr(HB+8+4*p,4)}, v{5 if p else 14} offset:{1024*p}', f'or{p}')
    else:
        for p in range(0 if do else 2): a(f'ds_read_b128 {vr(HB+8+4*p,4)}, v14 offset:{2048*p}', f'or{p}')
    for p in range(0 if do else 2):
        a.waitlg(f'or{p}')
        if p: a(f's_add_u32 s61, s61, {8192 if fl_ else 16384}')
        a(f'buffer_store_dwordx4 {vr(HB+8+4*p,4)}, v15, s[20:23], s61 offen {opt.get("outflag","sc1").replace("-", "")}', 'ost')
    stamp(16)
    sk = a.newlab('noepoch')
    a(f's_or_b32 s3, s2, s29\ns_cmp_lg_u32 s3, 0\ns_cbranch_scc1 {sk}\nv_mov_b32 v1, s24\ns_mov_b32 s3, {WS_EPOCH}\ns_mov_b64 exec, 1')
    a('buffer_store_dword v1, off, s[12:15], s3 sc1')
    a(f's_mov_b64 exec, -1\n{sk}:')
    if opt.get('span'):
        a(f's_waitcnt vmcnt(0)\ns_memrealtime s[64:65]\ns_lshl_b32 s3, s2, 2\ns_add_u32 s3, s3, s29\ns_lshl_b32 s3, s3, 3\ns_add_u32 s3, s3, {WS_PROF}\ns_waitcnt lgkmcnt(0)\nv_mov_b32 v2, s62\nv_mov_b32 v3, s64\ns_mov_b64 exec, 1')
        a('buffer_store_dwordx2 v[2:3], off, s[12:15], s3')
    if opt.get('dbg'):
        sk = a.newlab('nodbg')
        a(f's_lshr_b32 s3, s2, 3\ns_or_b32 s3, s3, s29\ns_cmp_lg_u32 s3, 0\ns_cbranch_scc1 {sk}\ns_load_dwordx2 s[16:17], s[0:1], {KA["dbg"]}\ns_memrealtime s[64:65]\ns_waitcnt lgkmcnt(0)')
        a(f's_and_b32 s62, s62, 0xfffff\ns_and_b32 s64, s{66 + 2*opt["dbg"] if opt["dbg"] > 0 else 64}, 0xfffff\nv_mov_b32 v1, s62\nv_mov_b32 v2, s64\ns_lshl_b32 s3, s2, 2\nv_mov_b32 v3, s3')
        a('global_store_dword v3, v1, s[16:17]\nglobal_store_dword v3, v2, s[16:17] offset:32')
        a(f'{sk}:')
    g.prof_store()
    a('s_endpgm')
    for x in g.cold: a.L.append(x)
    g.cold = []
    for lr, lc, j, lds_ in retry:
        H = HB + 8*j
        a(f'{lr}:\ns_sub_u32 s39, s39, 1\ns_cmp_lt_i32 s39, 0\ns_cbranch_scc1 {lc}x')
        for x in lds_: a.L.append(x)
        a(f's_waitcnt vmcnt(0)\nv_max3_u32 v{T}, v{H}, v{H+1}, v{H+2}\nv_max3_u32 v{T+1}, v{H+3}, v{H+4}, v{H+5}\nv_max3_u32 v{T}, v{T}, v{H+6}, v{H+7}\nv_max_u32 v{T}, v{T}, v{T+1}')
        a(f'v_cmp_eq_u32 vcc, -1, v{T}\ns_cbranch_vccnz {lr}\ns_branch {lc}x')

    a(f'{lab("tcomp")}:')
    st0 = len(a.L)
    a.vm = ['prm'] * 6; a.lg = []
    T = 24; X = 64
    a('s_mov_b32 s6, 0x200000\ns_mov_b32 s7, 0x20000\ns_and_b32 s5, s5, 0xffff')
    a('s_lshl_b32 s32, s29, 14\ns_lshl_b32 s35, s26, 1\ns_add_u32 s35, s35, s30\ns_lshl_b32 s35, s35, 1\ns_and_b32 s3, s29, 1\ns_add_u32 s35, s35, s3\ns_lshl_b32 s3, s35, 5\ns_lshr_b32 s61, s29, 1\ns_lshl_b32 s38, s61, 9')
    rowoffs(a, 32, 's3', 10)
    for c in range(4):
        a.emit([f's_add_u32 m0, s32, {4096*c}', f's_add_u32 s31, s38, {128*c}'] + [(f'buffer_load_dwordx4 v{32+i}, s[4:7], s31 offen offset:{1024*i} lds', f'x{c}') for i in range(4)])
    cprologue()
    a.emit(rowread_list(8, 9, 's32'))
    a('v_xor_b32 v9, 32, v8\nv_xor_b32 v10, 64, v8\nv_xor_b32 v11, 96, v8')
    a('s_mov_b32 s36, 0x00003f80\ns_mov_b32 s37, 0x3f800000')
    for i in range(4): a(f'v_mov_b32 v{20+i}, 0')
    a('v_lshrrev_b32 v13, 5, v0\nv_lshlrev_b32 v13, 15, v13\nv_and_b32 v16, 31, v0\nv_lshl_add_u32 v12, v16, 2, v13')
    for i in range(1, 4): a(f'v_add_u32 v{12+i}, {8192*i}, v12')
    a(f's_lshl_b32 s31, s35, 7\ns_add_u32 s52, s31, {WS_XNT}\ns_lshl_b32 s3, s61, 20\ns_add_u32 s52, s52, s3')
    a(f's_lshl_b32 s53, s61, 13\ns_add_u32 s53, s53, s31\ns_add_u32 s53, s53, {FX}')
    a(f's_lshl_b32 s31, s35, 13\ns_add_u32 s60, s31, s38\ns_add_u32 s60, s60, {WS_STATS + 14*512}')
    a(f's_lshl_b32 s31, s29, 8\ns_add_u32 s31, s31, {L_CS}\nv_lshl_add_u32 v16, v0, 2, s31\nv_xor_b32 v17, 512, v16')
    a(tagmake)
    for c in range(4):
        a.waitvm(f'x{c}')
        a.emit(xreads(c, 8, 4096*c))
        if c == opt.get('tb', 1): a('s_barrier')
        if c > 0: dots(c-1, 20)
        a.waitlg(f'xr{c}')
    dots(3, 20)
    a('v_add_f32 v20, v20, v22\nv_add_f32 v21, v21, v23\nv_mov_b32 v41, s24\nv_mov_b32 v43, s24\nv_permlane32_swap_b32 v20, v21\nv_add_f32 v22, v20, v21\nv_add_f32 v40, v20, v21\nv_permlane32_swap_b32 v40, v42\ns_mov_b32 exec_hi, 0')
    a(f'buffer_store_dwordx4 v[40:43], v7, s[12:15], s60 offen sc1', 'pub')
    a('s_mov_b64 exec, -1')
    a('ds_write_b32 v16, v22')
    a.waitall(vm=False); a('s_barrier')
    a('ds_read_b32 v20, v17')
    a.waitall(vm=False)
    a('v_add_f32 v20, v20, v22\nv_mov_b32 v21, v20\nv_permlane32_swap_b32 v20, v21')
    a.emit(ln_list(20, 21, 512, 22, 19, 18))
    stamp(2)
    for f in range(16):
        for i in range(4):
            a(f'v_dot2_f32_bf16 v{T+2*i}, v{X+4*f+i}, s36, v19\nv_dot2_f32_bf16 v{T+2*i+1}, v{X+4*f+i}, s37, v19')
        for i in range(4): a(f'v_cvt_pk_bf16_f32 v{X+4*f+i}, v{T+2*i}, v{T+2*i+1}')
        for i in range(4): a(f'v_lshlrev_b32 v{T+2*i}, 16, v{X+4*f+i}\nv_and_b32 v{T+2*i+1}, s33, v{X+4*f+i}')
        for i in range(4): a(f'v_pk_mul_f32 {vr(T+2*i,2)}, {vr(T+2*i,2)}, v[18:19] op_sel_hi:[1,0]')
        for i in range(4): a(f'v_cvt_pk_bf16_f32 v{X+4*f+i}, v{T+2*i}, v{T+2*i+1}')
        for i in range(4): a(f'buffer_store_dword v{X+4*f+i}, v{12+i}, s[12:15], s52 offen sc1', 'xst')
        a('s_add_u32 s52, s52, 65536')
    stamp(3)
    a.emit(ssm.kaddr())
    a.emit(g.setflag('s53', 16))
    stamp(7)
    a('s_barrier')
    a(f's_branch {lab("kgen")}')
    a(f'{lab("tcomp2")}:')
    a.vm = []; a.lg = list(lg_split)
    a.waitall(vm=False); a('s_barrier')
    ld, ad, ub, ca = ssm.ubuild(64, 80, 88, 96)
    emit_plain(a, ld + ad + ca + ub + [BAR]); stamp(9)
    cpre, cg = ssm.conv()
    fin, fflag = ssm.finish()
    emit_plain(a, cpre + sum(cg, []) + fin + fflag + [BAR]); stamp(10)
    a('s_barrier')
    nb['tc'] = count_bars(st0) + 2 + (w3m < 14) - lk
    a(f's_branch {lab("g3comp")}')
    a(f'{lab("done")}:\ns_endpgm')
    assert nb['gl'] == nb['gc'] and nb['tl'] == nb['tc'], nb
    kernel_desc(a, name, 256, 102)
    return finalize(a, name, opt)

DOC = '''
; ---------------------------------------------------------------------------------------------------------
; One launch, 256 workgroups (one per CU), 4 compute waves + 2 helper waves each.  Generated by a script.
;                 the epilogue), gelu, second LayerNorm (partial sums exchanged along the row block), w_sp@z2, gating.
; Hand-offs between workgroups go through d_ws with write-through (sc1) stores and sc1 loads.  Flags carry a launch
; ---------------------------------------------------------------------------------------------------------
'''
NAME = 'recurrent_scan__ssm_conv_s4d__mixer_gmlp__prompt_kernel'
def write(path, args):
    opt = {}
    for kv in args:
        k, _, v = kv.partition('=')
        opt[k] = (int(v) if v.lstrip('-').isdigit() and k != 'cw' else v) if v else True
    try: HDR = open('recurrent_scan__ssm_conv_s4d__mixer_gmlp__prompt.s.ref').read().split('; Override launch')[0]
    except OSError: HDR = ''
    txt = HDR + '; @launch grid=(256,1,1) block=(384,1,1) lds=163840' + DOC + '.amdgcn_target "amdgcn-amd-amdhsa--gfx950"\n' + fused(NAME, opt)
    open(path, 'w').write(txt)

if __name__ == '__main__':
    import sys
    sys.path.insert(0, 'work')
    write(sys.argv[1], sys.argv[2:])
    from hx import build
    import cdna_launch as cl
    co, _ = build(sys.argv[1], 15, NAME)
    p = cl.address_register_problem(co, NAME)
    if p: print('CHECK PROBLEM:', p)
```

```python
from gen import *
import struct, math
def fbits(x): return hex(struct.unpack('<I', struct.pack('<f', x))[0])
def f32(x): return struct.unpack('<f', struct.pack('<f', x))[0]
WS_Z2F = 0; WS_XNT = 4 << 20; WS_HF = 6 << 20; WS_ST = 10 << 20; WS_STATS = 12 << 20; WS_FL = WS_STATS + (512 << 10)
WS_EPOCH = WS_FL + (384 << 10)
WS_PROF = 13 << 20; WS_BYTES = 14 << 20
FZ = WS_FL; FX = WS_FL + 896*128; FH = WS_FL + 1024*128; FT = WS_FL + 1536*128; FS = WS_FL + 2048*128
KA = dict(u=0, logA=8, Aim=16, Cre=24, Cim=32, logdt=40, Dskip=48, bx=56, win=64, wsp=72, bsp=80, wout=88, out=96, dbg=104, ws=112)
LOG2E = math.log2(math.e)
C0 = -2 * LOG2E * math.sqrt(2 / math.pi); C1 = C0 * 0.044715
BAR = ('BAR',)
SPIN = 0x20000
L_SSM = 65536; L_Z = 114688
USTR = 4640; UGRP = 3 * USTR + 4480; L_U = L_SSM; L_RAW = 102400 - 16; L_K = 147456
L_CS = 159744; L_TR = 131072
L_X3 = 81920; L_S3 = 90112; KSTR = 4736

class G:
    def __init__(self, name, opt):
        self.a = Asm(); self.name = name; self.opt = opt; self.comp = False; self.cold = []
    def stamp(self, idx, fine=False):
        if self.opt.get('fine') and not fine and 3 <= idx <= 15 and self.comp: return
        if self.opt.get('dbg') == idx: self.a(f's_memrealtime s[{66+2*idx}:{67+2*idx}]')
        if self.opt.get('prof'): self.a(f's_mem{"real" if self.opt.get("rt") else ""}time s[{66+2*idx}:{67+2*idx}]')
    def prof_store(self):
        if not self.opt.get('prof'): return
        a = self.a
        a('s_memrealtime s[64:65]\ns_memtime s[60:61]')
        a.waitall()
        a('v_mov_b32 v2, 0\ns_sub_u32 s31, s60, s66\nv_writelane_b32 v2, s31, 2')
        for i in range(1, 18):
            a(f's_sub_u32 s31, s{66+2*i}, s{62 if self.opt.get("rt") else 66}\nv_writelane_b32 v2, s31, {i+2}')
        a('v_writelane_b32 v2, s62, 0\nv_writelane_b32 v2, s64, 1')
        a(f's_lshl_b32 s3, s2, 3\ns_add_u32 s3, s3, s29\ns_lshl_b32 s3, s3, 7\ns_add_u32 s3, s3, {WS_PROF}')
        a('v_lshlrev_b32 v1, 2, v0\ns_mov_b32 exec_hi, 0')
        a('buffer_store_dword v2, v1, s[12:15], s3 offen')
    def spin(self, loads, tags, tmp, sentinel=False):
        a = self.a
        lp = a.newlab('sp'); lc = a.newlab('spc'); lo = a.newlab('spo')
        chk = []
        r = list(tags)
        if sentinel:
            cur = r.pop(0)
            while r:
                if len(r) >= 2: chk.append(f'v_max3_u32 v{tmp}, v{cur}, v{r[0]}, v{r[1]}'); r = r[2:]
                else: chk.append(f'v_max_u32 v{tmp}, v{cur}, v{r[0]}'); r = []
                cur = tmp
            chk.append(f'v_cmp_eq_u32 vcc, -1, v{tmp}')
        elif len(r) == 1: chk.append(f'v_cmp_ne_u32 vcc, s24, v{r[0]}')
        else:
            chk.append(f'v_xor_b32 v{tmp}, s24, v{r[0]}')
            for x in r[1:]: chk.append(f'v_bitop3_b32 v{tmp}, v{tmp}, v{x}, s24 bitop3:0xf6')
            chk.append(f'v_cmp_ne_u32 vcc, 0, v{tmp}')
        for x in chk: a(x)
        a(f's_cbranch_vccnz {lp}\n{lo}:')
        self.cold += [f'{lp}:', f's_mov_b32 s39, {SPIN}', f'{lc}:'] + list(loads) + ['s_waitcnt vmcnt(0)'] + chk + \
            [f's_cbranch_vccz {lo}', 's_sub_u32 s39, s39, 1', 's_cmp_lg_u32 s39, 0', f's_cbranch_scc1 {lc}', f's_branch {lo}']
    def setflag(self, soff, vtmp):
        return [f'v_mov_b32 v{vtmp}, s24', lambda: self.a.waitall(lg=False), (f's_mov_b32 exec_hi, 0\nbuffer_store_dword v{vtmp}, v6, s[12:15], {soff} offen sc1\ns_mov_b64 exec, -1', 'flag')]

def ln_list(vS, vQ, n, vT, out_negm, out_r):
    return [f'v_mul_f32 v{vS}, {fbits(-1.0/n)}, v{vS}', f'v_mul_f32 v{vQ}, {fbits(1.0/n)}, v{vQ}', f'v_fma_f32 v{vQ}, -v{vS}, v{vS}, v{vQ}',
            f'v_max_f32 v{vQ}, 0, v{vQ}', f'v_cvt_pk_bf16_f32 v{vQ}, 0, v{vQ}', f'v_add_f32 v{vQ}, {fbits(1e-5)}, v{vQ}', f'v_cvt_pk_bf16_f32 v{vQ}, 0, v{vQ}',
            f'v_sqrt_f32 v{vQ}, v{vQ}', f'v_cvt_pk_bf16_f32 v{out_negm}, 0, v{vS}', f'v_cvt_pk_bf16_f32 v{vQ}, 0, v{vQ}', f'v_rcp_f32 v{out_r}, v{vQ}']

def gelu_pk(A, n, vC, vSD, T):
    L = []
    for b in range(0, n, 8):
        P = [A + b + 2*i for i in range(4)]; Q = [T + 2*i for i in range(4)]
        for p, q in zip(P, Q): L.append(f'v_pk_mul_f32 {vr(q,2)}, {vr(p,2)}, {vr(p,2)}')
        for q in Q: L.append(f'v_pk_fma_f32 {vr(q,2)}, {vr(q,2)}, {vr(vC,2)}, {vr(vC,2)} op_sel:[0,0,1] op_sel_hi:[1,0,1]')
        for p, q in zip(P, Q): L.append(f'v_pk_mul_f32 {vr(q,2)}, {vr(q,2)}, {vr(p,2)}')
        for i in range(8): L.append(f'v_exp_f32 v{T+i}, v{T+i}')
        for q in Q: L.append(f'v_pk_fma_f32 {vr(q,2)}, {vr(q,2)}, {vr(vSD,2)}, {vr(vSD,2)} op_sel_hi:[1,0,0]')
        for i in range(8): L.append(f'v_rcp_f32 v{T+i}, v{T+i}')
        for p, q in zip(P, Q): L.append(f'v_pk_mul_f32 {vr(p,2)}, {vr(p,2)}, {vr(q,2)}')
    return L

def gelu_packed(Z, n, T, vC1):
    L = []
    for b in range(0, n, 2):
        for i in range(2): L += [f'v_lshlrev_b32 v{T+2*i}, 16, v{Z+b+i}', f'v_and_b32 v{T+2*i+1}, s33, v{Z+b+i}']
        for i in range(4): L.append(f'v_mul_f32 v{T+4+i}, v{T+i}, v{T+i}')
        for i in range(4): L.append(f'v_fmaak_f32 v{T+4+i}, v{vC1}, v{T+4+i}, {fbits(C0)}')
        for i in range(4): L.append(f'v_mul_f32 v{T+4+i}, v{T+i}, v{T+4+i}')
        for i in range(4): L.append(f'v_exp_f32 v{T+4+i}, v{T+4+i}')
        for i in range(4): L.append(f'v_add_f32 v{T+4+i}, 1.0, v{T+4+i}')
        for i in range(4): L.append(f'v_rcp_f32 v{T+4+i}, v{T+4+i}')
        for i in range(4): L.append(f'v_mul_f32 v{T+i}, v{T+i}, v{T+4+i}')
        for i in range(2): L.append(f'v_cvt_pk_bf16_f32 v{Z+b+i}, v{T+2*i}, v{T+2*i+1}')
    return L

def stream_emit(a, items, nbar, D, hook=None, always=False, skip=()):
    comp = {}
    for i, it in enumerate(items):
        if it[2] is not None: comp[it[2]] = i + 1
    DD = D if callable(D) else (lambda b: D)
    nb = 0
    def bar(n):
        nonlocal nb
        c = max([comp.get(b, 0) for b in range(nb + 1)])
        assert c <= n, (nb, c, n)
        if hook: hook(nb, -1)
        if c or always: a.L.append(f's_waitcnt vmcnt({min(63, n - c)})')
        if hook: hook(nb, 0)
        if nb not in skip: a.L.append('s_barrier')
        if hook: hook(nb, 1)
        nb += 1
    for i, (setup, ld, cb, need) in enumerate(items):
        while need is not None and nb <= need: bar(i)
        for x in setup:
            if callable(x): x()
            else: a.L.append(x)
        a.L.append(ld)
        while nb < nbar and nb in comp and i + 1 >= comp[nb] + DD(nb): bar(i + 1)
    while nb < nbar: bar(len(items))

def grp(m0, soff_setup, vbase, srd_, soff, same=False, cb=None, need=None, fl='', mreg='s19'):
    L = []
    for i in range(4):
        su = ([f's_add_u32 m0, {mreg}, {m0}'] + (soff_setup or ['s_nop 0'])) if i == 0 else []
        L.append((su, f'buffer_load_dwordx4 v{vbase if same else vbase+i}, {srd_}, {soff} offen offset:{1024*i} {fl} lds', cb, need if i == 0 else None))
    return L

def rowoffs(a, d, rowbase, sh, colbase=None):
    st = 1 << sh
    a(f"""v_lshrrev_b32 v24, 3, v0
v_add_u32 v24, {rowbase}, v24
v_lshlrev_b32 v24, {sh}, v24
v_and_b32 v25, 7, v0
v_lshrrev_b32 v26, 4, v0
v_xor_b32 v25, v25, v26
v_lshl_add_u32 v{d}, v25, 4, v24""")
    if colbase: a(f'v_add_u32 v{d}, {colbase}, v{d}')
    a(f'v_xor_b32 v{d+1}, 64, v{d}\nv_add_u32 v{d+1}, {8*st-1024}, v{d+1}\nv_add_u32 v{d+2}, {16*st-2048}, v{d}\nv_add_u32 v{d+3}, {16*st-2048}, v{d+1}')

def troffs(a, d, stride, colbase):
    a(f"""v_lshrrev_b32 v24, 3, v0
v_mul_u32_u24 v24, {stride}, v24
v_bfe_u32 v25, v0, 4, 1
v_lshlrev_b32 v25, 2, v25
v_and_b32 v26, 7, v0
v_xor_b32 v25, v25, v26
v_lshl_add_u32 v24, v25, 4, v24
v_add_u32 v{d}, {colbase}, v24""")
    for i in range(1, 4): a(f'v_add_u32 v{d+i}, {8*stride-1024}, v{d+i-1}')

def rowread_list(d, t, base):
    return [f'v_lshrrev_b32 v{t}, 5, v0', f'v_bfe_u32 v{d}, v0, 1, 3', f'v_xor_b32 v{d}, v{d}, v{t}', f'v_lshlrev_b32 v{d}, 4, v{d}',
            f'v_and_b32 v{t}, 31, v0', f'v_lshl_add_u32 v{d}, v{t}, 7, v{d}', f'v_add_u32 v{d}, {base}, v{d}']
def trread_list(d, t):
    return [f'v_lshrrev_b32 v{d}, 5, v0', f'v_bfe_u32 v{t}, v0, 2, 2', f'v_lshl_add_u32 v{d}, v{d}, 3, v{t}', f'v_lshlrev_b32 v{d}, 7, v{d}',
            f'v_bfe_u32 v{t}, v0, 3, 1', f'v_lshl_add_u32 v{d}, v{t}, 6, v{d}', f'v_bfe_u32 v{t}, v0, 4, 1', f'v_lshl_add_u32 v{d}, v{t}, 5, v{d}',
            f'v_and_b32 v{t}, 1, v0', f'v_lshl_add_u32 v{d}, v{t}, 4, v{d}', f'v_bfe_u32 v{t}, v0, 1, 1', f'v_lshl_add_u32 v{d}, v{t}, 3, v{d}']

def cost(x):
    if callable(x): return 4
    t = x[0] if isinstance(x, tuple) else x
    if t.startswith(TRANS): return 8
    if t.startswith('v_mfma_f32_32'): return 32
    if t.startswith('v_mfma'): return 12
    return 4

class SSM:
    CA = 16; PR = 208; DS = 5
    def __init__(self, g): self.g = g; self.a = g.a
    def param_addr(self):
        P = self.PR
        return ['s_lshl_b32 s31, s2, 9', 's_lshl_b32 s3, s29, 7', 's_add_u32 s31, s31, s3', f'v_lshl_add_u32 v{P+6}, v0, 1, s31',
                's_lshl_b32 s31, s2, 2', f'v_mov_b32 v{P+7}, s31']
    def param_loads(self):
        P = self.PR
        L = [(f'global_load_dword v{P+4}, v{P+7}, s[48:49]', 'prm')]
        for i in range(4): L.append((f'global_load_ushort v{P+i}, v{P+6}, s[{40+2*i}:{41+2*i}]', 'prm'))
        L.append((f'global_load_dword v{self.DS}, v{P+7}, s[50:51]', 'prm'))
        return L
    def kaddr(self):
        A = 216
        L = ['s_lshl_b32 s31, s29, 14', f's_add_u32 s31, s31, {L_SSM}', f'v_bfe_u32 v{A+4}, v0, 1, 2', f'v_lshlrev_b32 v{A+4}, 4, v{A+4}', f'v_lshl_add_u32 v{A+4}, v0, 6, v{A+4}', f'v_add_u32 v{A}, s31, v{A+4}']
        for b in range(1, 4): L.append(f'v_xor_b32 v{A+b}, {16*b}, v{A}')
        R, t, u = A+4, A+6, A+7
        L += ['s_and_b32 s3, s31, 0xffff8000', f'v_bfe_u32 v{t}, v0, 3, 2', f'v_bfe_u32 v{R}, v0, 1, 1', f'v_xor_b32 v{R}, v{R}, v{t}', f'v_lshlrev_b32 v{R}, 4, v{R}',
              f'v_lshrrev_b32 v{t}, 2, v0', f'v_lshl_add_u32 v{R}, v{t}, 6, v{R}', f'v_and_b32 v{u}, 1, v0', f'v_lshl_add_u32 v{R}, v{u}, 3, v{R}', f'v_add_u32 v{R}, s3, v{R}',
              f'v_xor_b32 v{A+5}, 32, v{R}', 's_and_b32 s3, s29, 1', 's_lshl_b32 s31, s3, 5', f'v_xor_b32 v{A+6}, s31, v{R}',
              f'v_cmp_eq_u32 s[58:59], 0, v{u}', f'v_and_b32 v{u}, 16, v0', f'v_cmp_eq_u32 s[46:47], 0, v{u}']
        L += ['s_lshr_b32 s31, s29, 1', f's_mul_i32 s57, s31, {KSTR}', f's_add_u32 s57, s57, {L_K}', 's_lshl_b32 s3, s3, 8', 's_sub_u32 s3, s57, s3',
              f'v_and_b32 v{A+9}, 255, v7', f'v_sub_u32 v{A+9}, s3, v{A+9}', f'v_lshrrev_b32 v{A+10}, 4, v0',
              f'v_lshlrev_b32 v{A+11}, 2, v{A+10}', f'v_sub_u32 v{A+7}, v{A+9}, v{A+11}', f'v_lshlrev_b32 v{A+11}, 9, v{A+10}', f'v_sub_u32 v{A+14}, v{A+9}, v{A+11}',
              f'v_lshrrev_b32 v{A+11}, 5, v0', f'v_lshlrev_b32 v{A+11}, 9, v{A+11}', f'v_sub_u32 v{A+8}, v{A+9}, v{A+11}', f'v_bfe_u32 v{A+11}, v0, 4, 1', f'v_lshlrev_b32 v{A+11}, 3, v{A+11}', f'v_sub_u32 v{A+8}, v{A+8}, v{A+11}',
              f'v_min_u32 v{A+9}, 39, v0', f'v_lshl_add_u32 v{A+9}, v{A+9}, 4, s57'] + [f'v_mov_b32 v{A+10+i}, 0' for i in range(4)]
        L.append((f'ds_write_b128 v{A+9}, {vr(A+10,4)} offset:4096', 'kt'))
        return L
    def kgen(self):
        a = self.a; P = self.PR; A = 216
        E1, E8, E64, E256, Cc, E2 = 128, 130, 132, 134, 136, 138
        t = 140
        Lhi = f32(LOG2E); Llo = LOG2E - Lhi
        def exp_acc(d, x, t0, t1):
            return [f'v_mul_f32 v{t0}, s40, v{x}', f'v_fma_f32 v{t1}, v{x}, s40, -v{t0}', f'v_fma_f32 v{t1}, v{x}, s41, v{t1}',
                    f'v_exp_f32 v{t0}, v{t0}', f'v_mul_f32 v{t1}, s42, v{t1}', f'v_fma_f32 v{d}, v{t0}, v{t1}, v{t0}']
        L = [f's_mov_b32 s40, {fbits(Lhi)}', f's_mov_b32 s41, {fbits(Llo)}', f's_mov_b32 s42, {fbits(math.log(2))}',
             's_lshr_b32 s31, s29, 1', 's_lshl_b32 s31, s31, 4', lambda: a.waitvm('prm'), lambda: self.g.stamp(17), f'v_lshrrev_b32 v{P+4}, s31, v{P+4}']
        for i in range(5): L.append(f'v_lshlrev_b32 v{P+i}, 16, v{P+i}')
        for x, y in zip(exp_acc(P+4, P+4, t, t+1), exp_acc(P, P, t+2, t+3)): L += [x, y]
        L += [f'v_cvt_pk_bf16_f32 v{P+4}, v{P}, v{P+4}', f'v_lshlrev_b32 v{P}, 16, v{P+4}', f'v_and_b32 v{P+4}, s33, v{P+4}']
        for i in range(4): L.append(f'v_mul_f32 v{P+i}, v{P+i}, v{P+4}')
        L += [f'v_mul_f32 v{t}, {fbits(-LOG2E)}, v{P}', f'v_mul_f32 v{t+4}, 0.15915494, v{P+1}', f'v_add_f32 v{Cc}, v{P+2}, v{P+2}', f'v_add_f32 v{Cc+1}, v{P+3}, v{P+3}']
        for k, p in enumerate([8.0, 64.0, 256.0]): L += [f'v_mul_f32 v{t+1+k}, {fbits(p)}, v{t}', f'v_mul_f32 v{t+5+k}, {fbits(p)}, v{t+4}']
        for k in range(4): L += [f'v_exp_f32 v{t+k}, v{t+k}', f'v_fract_f32 v{t+4+k}, v{t+4+k}']
        for k in range(4): L += [f'v_cos_f32 v{E1+2*k}, v{t+4+k}', f'v_sin_f32 v{E1+1+2*k}, v{t+4+k}']
        for k in range(4): L += [f'v_mul_f32 v{E1+2*k}, v{t+k}, v{E1+2*k}', f'v_mul_f32 v{E1+1+2*k}, v{t+k}, v{E1+1+2*k}']
        fk = lambda i: (lambda: self.g.stamp(i, True) if self.g.opt.get('fine') == 'kg' else None)
        L.append(fk(3))
        O = 140
        def cm(jobs):
            R = []
            for d, x, y in jobs: R.append(f'v_pk_mul_f32 {vr(d,2)}, {vr(x,2)}, {vr(y,2)} op_sel_hi:[1,0]')
            for d, x, y in jobs: R.append(f'v_pk_fma_f32 {vr(d,2)}, {vr(x,2)}, {vr(y,2)}, {vr(d,2)} op_sel:[1,1,0] op_sel_hi:[0,1,1] neg_lo:[1,0,0]')
            return R
        cnt = [0]
        def pack(vals, blk, plane, neg):
            o = O + 8 * (cnt[0] & 1); cnt[0] += 1
            R = []
            for i in range(4): R.append(f'v_cvt_pk_bf16_f32 v{o+i}, v{vals[2*i]}, v{vals[2*i+1]}')
            R.append((f'ds_write_b128 v{A+blk}, {vr(o,4)} offset:{plane*4096}', 'kt'))
            s = '-' if neg else ''
            for i in range(4): R.append(f'v_cvt_pk_bf16_f32 v{o+4+i}, {s}v{vals[2*i]+1}, {s}v{vals[2*i+1]+1}')
            R.append((f'ds_write_b128 v{A+blk}, {vr(o+4,4)} offset:{plane*4096+4096}', 'kt'))
            return R
        B = [156 + 2*i for i in range(26)]
        fa = B[0:8]; fb = B[8:16]; g = [Cc] + B[16:24]
        fa0 = [fa[0], E8] + fa[2:]
        L += [f'v_mov_b32 v{fa[0]}, 1.0', f'v_mov_b32 v{fa[0]+1}, 0']
        L += cm([(fa[2], E8, E8), (g[1], Cc, E1), (E2, E1, E1), (g[8], Cc, E8)])
        L += cm([(fa[3], fa[2], E8), (fa[4], fa[2], fa[2]), (g[2], Cc, E2), (g[3], g[1], E2)])
        L += cm([(fa[5], fa[4], E8), (fa[6], fa[4], fa[2]), (fa[7], fa[4], fa[3]), (g[4], g[2], E2), (g[5], g[3], E2)])
        L += pack(fa0, 0, 2, False)
        fb0 = [E64] + fb[1:]
        L += cm([(g[6], g[4], E2), (g[7], g[5], E2)] + [(fb[i], fa0[i], E64) for i in range(1, 8)])
        L += cm([(fa[i], fb0[i], E64) for i in range(8)])
        L += pack(fb0, 1, 2, False)
        L += cm([(fb[i], fa[i], E64) for i in range(8)])
        L += pack(fa, 2, 2, False)
        h0, h2, h4, h6, h8, i0, i4, i8 = B[0:8]
        j0, j4, j8, k0, k8, l0, l8 = B[8:15]
        L += cm([(h0, g[0], E256), (h2, g[2], E256), (h4, g[4], E256), (h6, g[6], E256), (h8, g[8], E256), (E2, E256, E256)])
        L += pack(fb, 3, 2, False)
        L += cm([(i0, g[0], E2), (i4, g[4], E2), (i8, g[8], E2), (j0, h0, E2), (j4, h4, E2), (j8, h8, E2)])
        L += pack([g[0], g[1], h0, h0, g[2], g[3], h2, h4], 0, 0, True)
        m0, m8, n0, n8 = g[1], g[2], g[3], B[15]
        L += cm([(k0, i0, E2), (k8, i8, E2), (l0, j0, E2), (l8, j8, E2)])
        L += pack([g[4], g[5], h4, h4, g[6], g[7], h6, h8], 1, 0, True)
        L += cm([(m0, k0, E2), (m8, k8, E2), (n0, l0, E2), (n8, l8, E2)])
        L += pack([i0, i4, k0, k8, i4, i8, l0, l8], 2, 0, True)
        L += pack([j0, j4, m0, m8, j4, j8, n0, n8], 3, 0, True)
        L.append(fk(4))
        if self.g.opt.get('lk'):
            def hs():
                lp = a.newlab('khs')
                a(f's_lshl_b32 s31, s29, 2\ns_add_u32 s31, s31, {L_CS + 2048}\nv_mov_b32 v128, s31\nv_xor_b32 v129, 4, v128')
                a('ds_write_b32 v128, v128')
                a(f'{lp}:'); a('ds_read_b32 v130, v129'); a.waitall(vm=False)
                a(f'v_cmp_eq_u32 vcc, 0, v130\ns_cbranch_vccnz {lp}')
            L.append(hs)
        else: L.append(BAR)
        L.append(fk(5))
        D = 128; FR = 136
        def rd(j):
            o = 16384 * (j // 4) + 1024 * (j % 4); b = FR + 12 * (j % 5)
            return [(f'ds_read_b64_tr_b16 {vr(b+4*k+2*p,2)}, v{A+(6,4,5)[k]} offset:{o + 4096*p + (8192 if k == 0 else 0)}', f'kr{j}') for k in range(3) for p in range(2)]
        KA2 = self.g.opt.get('ka', 2)
        for j in range(KA2): L += rd(j)
        for j in range(8):
            b = FR + 12 * (j % 5); nx = rd(j+KA2) if j + KA2 < 8 else []
            L += nx[:3]
            L.append(lambda j=j: a.waitlg(f'kr{j}'))
            L.append(f'v_mfma_f32_16x16x32_bf16 {vr(D,4)}, {vr(b+4,4)}, {vr(b,4)}, {"0" if j == 0 else vr(D,4)}')
            L += nx[3:]
            L.append(f'v_mfma_f32_16x16x32_bf16 {vr(D+4,4)}, {vr(b+8,4)}, {vr(b,4)}, {"0" if j == 0 else vr(D+4,4)}')
        L.append(fk(6))
        O = 196
        L += [f'v_cvt_pk_bf16_f32 v{O}, v{D+1}, v{D}', f'v_cvt_pk_bf16_f32 v{O+1}, v{D+3}, v{D+2}',
              f'v_cndmask_b32 v{O+2}, v{D+5}, v{D+4}, s[46:47]', f'v_cndmask_b32 v{O+5}, v{D+7}, v{D+6}, s[58:59]',
              f'v_cvt_pk_bf16_f32 v{O+4}, v{D+7}, v{D+7}', f'v_cvt_pk_bf16_f32 v{O+5}, v{D+7}, v{O+5}', f'v_cvt_pk_bf16_f32 v{O+6}, v{D+6}, v{D+6}', f'v_cvt_pk_bf16_f32 v{O+7}, v{D+6}, v{D+6}',
              (f'ds_write_b128 v{A+14}, {vr(O+4,4)} offset:{4080-2048}', 'kw'),
              f'v_cvt_pk_bf16_f32 v{O+2}, v{D+5}, v{O+2}', f'v_cvt_pk_bf16_f32 v{O+3}, v{D+4}, v{D+4}',
              (f'ds_write_b64 v{A+8}, {vr(O+2,2)} offset:{4088-1024}', 'kw'),
              (f'ds_write_b32 v{A+7}, v{O} offset:4092', 'kw'), (f'ds_write_b32 v{A+7}, v{O+1} offset:{4092-512}', 'kw')]
        return L
    UA = 13; KA_ = 15
    def ubuild(self, R, T, O, TL):
        a = self.a
        ld = ['s_lshl_b32 s31, s29, 11', f'v_lshl_add_u32 v{TL}, v0, 5, s31', 's_lshl_b32 s31, s2, 13', f's_add_u32 s31, s31, {WS_XNT - 16}']
        ld += [(f'buffer_load_dwordx4 {vr(R+4*k,4)}, v{TL}, s[12:15], s31 offen offset:{16*k} {self.g.opt.get("rawf", "sc1").replace("-", "")}', 'raw') for k in range(3)]
        if self.g.opt.get('r2'):
            ld[-3] = (f's_mov_b64 exec, 1\n{ld[-3][0]}\ns_mov_b64 exec, -1', 'raw')
        ad = ['s_mov_b32 s44, 0x05040100', 's_mov_b32 s45, 0x07060302'] + [f'v_mov_b32 v{T+4+k}, 0' for k in range(4)]
        ad += ['s_lshr_b32 s31, s29, 1', f's_mul_i32 s46, s31, {UGRP}', f's_add_u32 s46, s46, {L_U}', 's_and_b32 s47, s29, 1',
               f'v_lshrrev_b32 v{T+2}, 5, v0', f'v_mul_u32_u24 v{T+2}, {USTR}, v{T+2}', f'v_and_b32 v{T+3}, 31, v0', f'v_min_u32 v{T+3}, 23, v{T+3}',
               f's_mul_i32 s31, s47, {2*USTR}', 's_add_u32 s31, s31, s46', f'v_lshl_add_u32 v{T+3}, v{T+3}, 4, v{T+2}', f'v_add_u32 v{T+3}, s31, v{T+3}',
               's_lshl_b32 s31, s29, 10', f's_add_u32 s31, s31, {L_U + 384}', f'v_add_u32 v{T+1}, s31, v7',
               's_cmp_eq_u32 s29, 0\ns_cselect_b32 s31, 0, -1', f'v_cmp_eq_u32 s[58:59], s31, v0']
        L = [(f'ds_write_b128 v{T+3}, {vr(T+4,4)}', 'uw'), lambda: a.waitvm('raw')]
        for k in range(1, 4): L.append(f'v_cndmask_b32 v{R+k}, v{R+k}, v{T+4}, s[58:59]')
        if self.g.opt.get('r2'):
            for k in range(1, 4): L.append(f'v_mov_b32_dpp v{R+k}, v{R+8+k} wave_shr:1 row_mask:0xf bank_mask:0xf')
        for dl in range(2):
            for e in range(4):
                d = O + 4 * (e & 1)
                for k in range(4): L.append(f'v_perm_b32 v{d+k}, v{R+4+2*k+e-2}, v{R+4+2*k+e-3}, s{44+dl}')
                L.append((f'ds_write_b128 v{T+1}, {vr(d,4)} offset:{dl*UGRP+e*USTR}', 'uw'))
        ca = [f'v_and_b32 v{T}, 3, v0', f'v_mul_u32_u24 v{T}, {USTR}, v{T}', f'v_bfe_u32 v{T+2}, v0, 2, 2', f'v_lshl_add_u32 v{T}, v{T+2}, 7, v{T}',
              f'v_and_b32 v{T+2}, 48, v0', f'v_add3_u32 v{self.UA}, v{T}, v{T+2}, s46', 's_lshl_b32 s3, s47, 9',
              's_sub_u32 s31, s57, s3', 's_add_u32 s31, s31, 632', f'v_and_b32 v{T}, 15, v0', f'v_lshlrev_b32 v{T}, 3, v{T}', f'v_sub_u32 v{T}, v{T+2}, v{T}', f'v_add_u32 v{self.KA_}, s31, v{T}']
        return ld, ad, L, ca
    def conv(self):
        a = self.a; CA = self.CA
        FB = [192, 224]
        def reads(n):
            r, par = divmod(n, 2)
            L = []
            for i in range(4):
                kk = 3 - i
                pp = 2*kk + 1 - par
                if i == 0: L.append((f'ds_read_b128 {vr(FB[n&1],4)}, v{self.UA} offset:{512*par+64*r}', f't{n}_0'))
                for h in range(2): L.append((f'ds_read_b64 {vr(FB[n&1]+16+4*kk+2*h,2)}, v{self.KA_} offset:{3584 - 512*pp + 64*r + 8*h}', f'k{n}_{kk}'))
            for i in range(1, 4): L.append((f'ds_read_b128 {vr(FB[n&1]+4*i,4)}, v{self.UA} offset:{512*(2*i+par)+64*r}', f't{n}_{i}'))
            return L
        G_ = []
        for n in range(16):
            nx = reads(n+1) if n < 15 else []
            m = 0
            for i in range(4):
                for kk in (range(3 - i, -1, -1) if not (self.g.opt.get('csn', 1) and i & 1) else range(0, 4 - i)):
                    A = i + kk
                    tags = [f't{n}_{i}', f'k{n}_{kk}']
                    c = '0' if (n == 0 and i == 0) else vr(CA+4*A, 4)
                    g = [lambda tags=tags: a.waitlg(tags), f'v_mfma_f32_16x16x32_bf16 {vr(CA+4*A,4)}, {vr(FB[n&1]+4*i,4)}, {vr(FB[n&1]+16+4*kk,4)}, {c}']
                    k = 2 if m < 4 else (1 if m < 8 else 0)
                    g += nx[:k]; nx = nx[k:]; m += 1
                    G_.append(g)
            assert not nx
        return reads(0), G_
    def finish(self):
        a = self.a; CA = self.CA; R = 192; T = 224
        L = ['s_lshl_b32 s3, s47, 9', f's_add_u32 s31, s46, {3*USTR + 384}', 's_add_u32 s31, s31, s3', f'v_lshlrev_b32 v{T+1}, 3, v0', f'v_add_u32 v{T}, s31, v{T+1}']
        for k in range(4): L.append((f'ds_read_b64 {vr(R+16+2*k,2)}, v{T} offset:{1024*k}', f'ur{k}'))
        L += ['s_lshr_b32 s31, s29, 1', 's_lshl_b32 s55, s2, 1', 's_add_u32 s55, s55, s31', 's_lshl_b32 s56, s55, 12', 's_add_u32 s56, s56, s3', f's_add_u32 s56, s56, {WS_ST}',
              's_add_u32 s55, s55, s3', 's_lshl_b32 s55, s55, 7', f's_add_u32 s60, s55, {FS}',
              's_lshl_b32 s31, s31, 4', f'v_lshrrev_b32 v{T+2}, s31, v{self.DS}', f'v_lshlrev_b32 v{T+2}, 16, v{T+2}']
        for k in range(4):
            L.append(lambda k=k: a.waitlg(f'ur{k}'))
            for j in range(2): L += [f'v_lshlrev_b32 v{R+4*k+2*j}, 16, v{R+16+2*k+j}', f'v_and_b32 v{R+4*k+2*j+1}, s33, v{R+16+2*k+j}']
            for j in range(4): L.append(f'v_fmac_f32 v{CA+4*k+j}, v{R+4*k+j}, v{T+2}')
            for j in range(2): L.append(f'v_cvt_pk_bf16_f32 v{T+4+2*k+j}, v{CA+4*k+2*j}, v{CA+4*k+2*j+1}')
            L.append((f'buffer_store_dwordx2 {vr(T+4+2*k,2)}, v{T+1}, s[12:15], s56 offen offset:{1024*k} sc1', 'sst'))
        return L, self.g.setflag('s60', T+3)

def emit_plain(a, L):
    n = 0
    for x in L:
        if x is BAR:
            a.waitall(vm=False); a('s_barrier'); n += 1
        else: a.emit([x])
    return n


def sizes_of(lines):
    import subprocess, tempfile, os
    d = tempfile.mkdtemp()
    open(d + '/t.s', 'w').write('.amdgcn_target "amdgcn-amd-amdhsa--gfx950"\n' + '\n'.join(lines) + '\n')
    r = subprocess.run(['llvm-mc', '-triple=amdgcn-amd-amdhsa', '-mcpu=gfx950', '-show-encoding', d + '/t.s'], capture_output=True, text=True)
    assert r.returncode == 0, r.stderr[:2000]
    enc = [len(l.split('encoding: [')[1].split(']')[0].split(',')) for l in r.stdout.split('\n') if 'encoding: [' in l]
    idx = [i for i, l in enumerate(lines) if Ins(l).is_ins]
    assert len(enc) == len(idx), (len(enc), len(idx))
    return dict(zip(idx, enc))

def finalize(a, name, opt):
    if opt.get('emu16'):
        import re
        N = []; cnt = {}; g3 = False
        for x in a.L:
            if x.endswith('g3comp:'): g3 = True
            m = re.match(r'v_mfma_f32_32x32x16_bf16 v\[(\d+):\d+\], (\S+), (\S+), (\S+)', x)
            if m and (opt['emu16'] & (2 if g3 else 1)):
                d = int(m.group(1)); k = cnt.get(d, 0); cnt[d] = k + 1
                qs = range(4) if m.group(4) == '0' else (2*(k&1), 2*(k&1)+1)
                for q in qs: N.append(f'v_mfma_f32_16x16x32_bf16 {vr(d+4*q,4)}, {m.group(2)}, {m.group(3)}, {"0" if m.group(4) == "0" else vr(d+4*q,4)}')
            else: N.append(x)
        a.L = N
    L, _ = pad_hazards([x for x in a.L], opt.get('verbose'))
    warm = [i for i, x in enumerate(L) if x == '@WARM@']
    base = [x if x != '@WARM@' else '' for x in L]
    sz = sizes_of(base)
    start = base.index('.p2align 12')
    out = base[:start + 1]; addr = 0; pads = []
    stop = base.index(f'{name}_tcomp:')
    n = len(base); i = start + 1
    E64 = ('v_add_f32', 'v_mul_f32', 'v_sub_f32', 'v_lshlrev_b32', 'v_and_b32', 'v_xor_b32', 'v_or_b32', 'v_mov_b32', 'v_exp_f32', 'v_rcp_f32', 'v_add_u32', 'v_max_f32',
           'v_lshrrev_b32', 'v_sqrt_f32', 'v_fmac_f32', 'v_max_u32', 'v_min_u32', 'v_sin_f32', 'v_cos_f32', 'v_fract_f32')
    while i < n:
        ln = base[i]
        if i in sz:
            if addr >= 4096 * (len(pads) + 1) and i < stop and not opt.get('nopad'):
                lb = f'{name}_pad{len(pads)}'; pads.append(lb)
                out.append(f'{lb}:'); out.append(f'@PAD{len(pads)-1}@'); addr += 4
            s = sz[i]
            if s == 4 and not opt.get('noalign') and (addr + 4) % 8 == 4:
                j = i + 1; run = 0; mf = 0
                while j < n and (j not in sz or sz[j] == 8):
                    if j in sz:
                        run += 1; mf += base[j].startswith('v_mfma')
                    j += 1
                mn = ln.split()[0]
                if run >= 3 and mn in E64:
                    ln = ln.replace(mn, mn + '_e64', 1); s = 8
                elif run >= 10 and mf == 0:
                    out.append('s_nop 0'); addr += 4
            addr += s
        out.append(ln); i += 1
    res = []; wi = 0
    for k, x in enumerate(out):
        if x.startswith('@PAD'):
            p = int(x[4:-1])
            res.append(f's_cbranch_execz {name + "_warmret0" if p < 2 else pads[p+2] if p + 2 < len(pads) else name + "_warmret1"}')
        elif k in warm and pads:
            res += ['s_mov_b64 exec, 0', 's_cmp_eq_u32 s18, 0', f's_cbranch_scc1 {pads[2*wi]}', f's_branch {pads[2*wi+1]}', f'{name}_warmret{wi}:', 's_mov_b64 exec, -1']
            wi += 1
        else: res.append(x)
    if opt.get('stf'): res = [x.replace(' sc1', ' ' + opt['stf'].replace('_', ' ')) if x.startswith('buffer_store') else x for x in res]
    if opt.get('ldf'): res = [x.replace(' sc1 lds', ' ' + opt['ldf'].replace('_', ' ').replace('-', '') + ' lds') if x.startswith('buffer_load') else x for x in res]
    return '\n'.join(res) + '\n'

def fused(name, opt):
    g = G(name, opt); a = g.a; ssm = SSM(g); stamp = g.stamp
    nb = {'gl': 0, 'gc': 0, 'tl': 0, 'tc': 0}
    rlx = opt.get('rlx', 0); bi = opt.get('bi', 1)
    OWN = opt.get('own', 1); ZN = opt.get('zn', 5); ZX = ZN - 4; ZS = lambda k: (k + 2*OWN + ZX) % ZN - ZX
    NR = opt.get('nr', 4); M16 = opt.get('m16', 1)
    rp = opt.get('rpat', 'SSSSSSSSRSSSSRSSSSRSSSSRSSSSSSSS')
    pat = ''
    while len(pat) < 32:
        ch = rp[len(pat) % len(rp)]
        pat += ch if pat.count('R') < NR else 'S'
    RPOS = [k for k in range(32) if pat[k] == 'R']; SPOS = [k for k in range(32) if pat[k] == 'S']
    MEM = {k: r for r, k in enumerate(RPOS)}; MEM.update({k: NR + s for s, k in enumerate(SPOS)})
    SIDX = {k: s for s, k in enumerate(SPOS)}
    assert OWN and not rlx and min(ZS(k) for k in range(28, 32)) >= 0
    assert len(SPOS) % 4 == 0 and SPOS[-4:] == [28, 29, 30, 31]
    W3 = [(0, 29), (8192, 29), (L_Z + 8192*ZS(28), 29), (16384, 30), (24576, 30), (L_Z + 8192*ZS(29), 30), (32768, 31), (40960, 31), (L_Z + 8192*ZS(30), 31),
          (147456, 31), (155648, 31), (49152, 32), (57344, 32), (L_Z + 8192*ZS(31), 32)]
    W3LOC = [x[0] for x in W3]
    kernel_begin(a, name)
    lab = lambda s: f'{name}_{s}'
    a(f's_cmp_ge_u32 s2, 256\ns_cbranch_scc1 {lab("done")}')
    if opt.get('prof') or opt.get('dbg') or opt.get('span'): a('s_memrealtime s[62:63]\ns_memtime s[66:67]')
    a(f's_load_dwordx2 s[4:5], s[0:1], {KA["u"]}\ns_load_dwordx2 s[12:13], s[0:1], {KA["ws"]}')
    a('''v_lshrrev_b32 v1, 6, v0
s_and_b32 s24, s2, 7
s_bfe_u32 s25, s2, 0x20003
v_readfirstlane_b32 s29, v1
s_lshr_b32 s26, s24, 1
s_lshl_b32 s26, s26, 2
s_add_u32 s26, s26, s25
s_lshr_b32 s27, s2, 5
s_and_b32 s30, s24, 1
s_mul_i32 s28, s30, 7
s_add_u32 s28, s28, s27
v_and_b32 v0, 63, v0''')
    lk = opt.get('lk', 0)
    if lk:
        a(f's_lshl_b32 s31, s29, 2\ns_add_u32 s31, s31, {L_CS + 2048}\nv_mov_b32 v2, s31\nv_mov_b32 v3, 0')
        a.L.append('ds_write_b32 v2, v3')
    a(f's_cmp_ge_u32 s29, 4\ns_cbranch_scc1 {lab("help")}')
    a(f's_load_dwordx8 s[40:47], s[0:1], {KA["logA"]}\ns_load_dwordx4 s[48:51], s[0:1], {KA["logdt"]}')
    a(f's_load_dwordx2 s[18:19], s[0:1], {KA["bsp"]}\ns_load_dwordx2 s[20:21], s[0:1], {KA["out"]}')
    a.emit(ssm.param_addr())
    a(f's_lshl_b32 s35, s26, 2\ns_add_u32 s35, s35, s29\ns_mul_i32 s54, s35, 57344\ns_lshl_b32 s31, s28, 12\ns_add_u32 s54, s54, s31\ns_add_u32 s54, s54, {WS_HF}')
    if opt.get('hcl', 't') == 'g': a('v_lshlrev_b32 v7, 4, v0\nv_mov_b32 v8, -1\nv_mov_b32 v9, -1\nv_mov_b32 v10, -1\nv_mov_b32 v11, -1')
    a('s_waitcnt lgkmcnt(0)')
    tagload = f's_add_u32 s16, s12, {WS_EPOCH}\ns_addc_u32 s17, s13, 0\ns_load_dword s24, s[16:17], 0'
    tagmake = 's_waitcnt lgkmcnt(0)\ns_mul_i32 s24, s24, 0x19660d\ns_add_u32 s24, s24, 0x3c6ef35f'
    a.emit(ssm.param_loads())
    if lk: a('s_barrier')
    a(tagload)
    a(f's_cmp_eq_u32 s27, 7\ns_cbranch_scc1 {lab("tcomp")}')
    hcl = opt.get('hcl', 't')
    if hcl == 'g':
        a(f's_and_b32 s13, s13, 0xffff\ns_mov_b32 s14, {hex(WS_BYTES)}\ns_mov_b32 s15, 0x20000')
        for q in range(4): a(f'buffer_store_dwordx4 v[8:11], v7, s[12:15], s54 offen offset:{1024*q} sc1')
    a(f's_branch {lab("comp")}')
    a(f'{lab("help")}:')
    a(f's_load_dwordx2 s[8:9], s[0:1], {KA["win"]}\ns_load_dwordx2 s[20:21], s[0:1], {KA["wsp"]}\ns_load_dwordx2 s[36:37], s[0:1], {KA["wout"]}')
    if opt.get('lp'): a(f's_setprio {opt["lp"]}')
    a('s_and_b32 s18, s29, 1\ns_lshl_b32 s19, s18, 12')
    srdc = f's_mov_b32 s14, {hex(WS_BYTES)}\ns_mov_b32 s15, 0x20000\ns_mov_b32 s6, 0x200000\ns_mov_b32 s7, 0x20000'
    a(srdc)
    if not opt.get('nocpf'):
        a(f's_getpc_b64 s[56:57]\n{lab("pc")}:\ns_lshr_b32 s31, s2, 2\ns_and_b32 s31, s31, 62\ns_add_u32 s31, s31, s18\nv_and_b32 v1, 7, v0\nv_lshlrev_b32 v1, 6, v1\nv_add_lshl_u32 v1, v1, s31, 7\nv_min_u32 v1, {lab("done")}-{lab("pc")}, v1')
        a('global_load_dword v31, v1, s[56:57]')
    if lk: a(f's_cmp_eq_u32 s27, 7\ns_cbranch_scc0 {lab("gload")}\ns_barrier\ns_branch {lab("thelp")}\n{lab("gload")}:')
    else: a(f's_cmp_eq_u32 s27, 7\ns_cbranch_scc1 {lab("thelp")}')

    def rot3(r):
        sm, sn = opt.get('sm3', 0), opt.get('sn3', 0)
        a(f's_mul_i32 s{r}, s25, {sm}\ns_mul_i32 s31, s27, {sn}\ns_add_u32 s{r}, s{r}, s31\ns_lshr_b32 s{r}, s{r}, 4\ns_sub_u32 s31, s{r}, 14\ns_cmp_ge_u32 s{r}, 14\ns_cselect_b32 s{r}, s31, s{r}')
    def late_loader_setup():
        a(f's_mov_b32 s22, 0x800000\ns_mov_b32 s23, 0x20000\ns_mov_b32 s38, {896*1024}\ns_mov_b32 s39, 0x20000')
        a('s_and_b32 s21, s21, 0xffff\ns_and_b32 s37, s37, 0xffff\ns_and_b32 s13, s13, 0xffff')
        a('v_lshl_add_u32 v14, v0, 4, s19\nv_lshlrev_b32 v15, 7, v0')
        a('s_lshl_b32 s31, s27, 7\ns_lshl_b32 s3, s18, 15\ns_add_u32 s31, s31, s3'); troffs(a, 16, 1024, 's31')
        a('s_lshl_b32 s32, s26, 1\ns_add_u32 s32, s32, s30\ns_lshl_b32 s3, s32, 6'); rowoffs(a, 20, 's3', 10, 's31')
        a(f's_lshl_b32 s35, s2, 13')
        a(f's_lshr_b32 s31, s2, 7\ns_lshl_b32 s31, s31, 13\ns_add_u32 s59, s31, s19\ns_add_u32 s59, s59, {FX}\nv_and_b32 v32, 0xfff, v15')
        if hcl == 't': a(f'v_min_u32 v33, {3*128}, v15\ns_lshl_b32 s31, s26, 9\ns_add_u32 s31, s31, {FH}')
        else:
            a(f'v_min_u32 v33, 13, v0\nv_lshlrev_b32 v33, 13, v33\ns_lshl_b32 s31, s32, 1\ns_add_u32 s31, s31, s18\ns_lshl_b32 s31, s31, 7\ns_add_u32 s31, s31, {FZ}')
        a(f"""v_add_u32 v33, s31, v33
s_lshl_b32 s31, s27, 13
s_bfe_u32 s3, s26, 0x10001
s_lshl_b32 s3, s3, 16
s_add_u32 s31, s31, s3
s_add_u32 s31, s31, s19
s_add_u32 s61, s31, {FS}
v_mov_b32 v36, -1
v_mov_b32 v37, -1
v_mov_b32 v38, -1
v_mov_b32 v39, -1
v_mov_b32 v34, 0
v_lshlrev_b32 v44, 2, v0
s_lshl_b32 s31, s27, 18
s_lshl_b32 s3, s18, 17
s_add_u32 s31, s31, s3
s_lshl_b32 s3, s32, 7
s_add_u32 s31, s31, s3
s_add_u32 s31, s31, {WS_ST}""")
        troffs(a, 40, 4096, 's31')
    def adv(r): return [f's_add_u32 s{r}, s{r}, 1', f's_cmp_eq_u32 s{r}, 14', f's_cselect_b32 s{r}, 0, s{r}']
    def w3(j, need=None): return grp(W3LOC[j], [f's_mov_b32 s56, {j << 16}'], 16, 's[36:39]', 's56', need=need)
    vat = opt.get('vat', 'ssssaaaa').replace('-', ''); NV = len(vat); xat = opt.get('xat', 'a').replace('-', ''); assert NV <= 12 and (NV or not xat)
    def vload(where, pace=None):
        for j in range(14 - NV, 14):
            if vat[j - 14 + NV] != where: continue
            a(f's_mov_b32 s56, {j << 16}')
            for i in range(4): a.L.append(f'buffer_load_dwordx4 {vr(256 - 16*(14-j) + 4*i, 4)}, v{16+i}, s[36:39], s56 offen offset:{1024*i}')
            if pace is not None: a(f's_waitcnt vmcnt({pace})')
        if xat == where:
            for i in range(4): a.L.append(f'buffer_load_dwordx4 {vr(48 + 4*i, 4)}, v{20+i}, s[4:7], 0 offen offset:{1024*i}')
    def vstore():
        if xat:
            a(f'v_add_u32 v1, {L_X3}, v14')
            for i in range(4): a.L.append(f'ds_write_b128 v1, {vr(48 + 4*i, 4)} offset:{1024*i}')
        a(f'v_add_u32 v1, {L_Z}, v14')
        for j in range(14 - NV, 14):
            w = W3LOC[j]; hi = w >= L_Z
            for i in range(4): a.L.append(f'ds_write_b128 v{1 if hi else 14}, {vr(256 - 16*(14-j) + 4*i, 4)} offset:{w - L_Z*hi + 1024*i}')
        a('s_waitcnt lgkmcnt(0)')
    def x3(need=None): return grp(L_X3, None, 20, 's[4:7]', '0', need=need)
    w3m = opt.get('w3m', 14)
    fsload = 'buffer_load_dword v27, v32, s[12:15], s61 offen sc1'
    def s3tail():
        if w3m < 14:
            paced(sum([w3(j) for j in range(w3m, 14)], []), opt.get('thin4', 60))
            a.L.append(fsload)
            a('s_waitcnt vmcnt(1)\ns_barrier\ns_waitcnt vmcnt(0)')
        lspin('s61', 'v32', w3m < 14)
        stream_emit(a, grp(L_S3, None, 40, 's[12:15]', '0', fl='sc1'), 0, 0)
        a('s_waitcnt vmcnt(0)')
        stamp(15)
    def rawg(cb=None): return grp(L_RAW + 16, [f's_add_u32 s31, s35, {WS_XNT}'], 14, 's[12:15]', 's31', True, cb, None, 'sc1')
    def lspin(soff, voff, first=False):
        lp = a.newlab('lsp'); lo = a.newlab('lspo')
        a(f's_mov_b32 s58, {SPIN}')
        if first: a(f's_branch {lp}c')
        a(f'{lp}:')
        a.L.append(f'buffer_load_dword v27, {voff}, s[12:15], {soff} offen sc1'); a.L.append('s_waitcnt vmcnt(0)')
        a(f'{lp}c:\nv_cmp_ne_u32 vcc, s24, v27\ns_cbranch_vccz {lo}\ns_sub_u32 s58, s58, 1\ns_cmp_lg_u32 s58, 0\ns_cbranch_scc1 {lp}\n{lo}:')
    def lflag(soff):
        a('s_mov_b32 exec_hi, 0'); a.L.append(f'buffer_store_dword v35, v44, s[12:15], {soff} offen sc1'); a('s_mov_b64 exec, -1')
    def paced(items, thin):
        for i in range(0, len(items), 4):
            stream_emit(a, items[i:i+4], 0, 0)
            if thin < 60: a(f's_waitcnt vmcnt({thin})')
    ft = opt.get('ft', ''); gs = opt.get('gs', 2); lg = gs.bit_length() - 1
    prog = opt.get('prog', 8)
    RG = 32 if prog else opt.get('rg', 1)
    def k0calc(r, with_c):
        if prog: a(f's_lshr_b32 s{r}, s26, 2\ns_lshl_b32 s{r}, s{r}, 3\ns_add_u32 s{r}, s{r}, {(32 - NR) % 32}')
        else: a(f's_mul_i32 s{r}, s25, {RG // 4 if RG >= 4 else 0}')
    def memidx(d, r, idx):
        if OWN and NR <= idx < NR + 8:
            return [f's_add_u32 s{d}, s47, {idx - NR}', f's_and_b32 s{d}, s{d}, 7', f's_or_b32 s{d}, s{d}, s46']
        return [f's_add_u32 s{d}, s{r}, {idx}', f's_and_b32 s{d}, s{d}, {RG-1}', f's_or_b32 s{d}, s{d}, {idx & ~(RG-1)}']
    def wtouch(groups, other, pace):
        for gi in groups:
            assert RG == 1 or (RG // 4) % gs == 0
            a(f's_xor_b32 s31, s30, {other}\ns_add_u32 s31, s31, {2*gi}\ns_lshl_b32 s31, s31, {lg}\ns_and_b32 s3, s31, {31 & ~(RG-1)}\ns_add_u32 s31, s31, s45\ns_and_b32 s31, s31, {RG-1}\ns_or_b32 s31, s31, s3\ns_lshl_b32 s31, s31, 7')
            for i in range(gs):
                a.L.append(f'buffer_load_dword v30, v29, s[20:23], s31 offen {ft}')
                if i + 1 < gs: a(f's_add_u32 s31, s31, {(64 // gs) * 4096}')
                if pace is not None: a(f's_waitcnt vmcnt({pace})')
    def count_bars(start): return sum(1 for x in a.L[start:] if x.strip() == 's_barrier')

    st0 = len(a.L)
    XO = [131072, 49152, 65536, 81920, 98304, 114688, 131072, 0]
    a('s_lshl_b32 s34, s25, 1\ns_add_u32 s34, s34, s27\ns_and_b32 s34, s34, 7\ns_lshl_b32 s33, s26, 7\ns_lshl_b32 s3, s18, 5\ns_add_u32 s33, s33, s3')
    rowoffs(a, 2, 's33', 10)
    a(f's_lshl_b32 s31, s28, 7\ns_mul_i32 s3, s18, {32*3584}\ns_add_u32 s31, s31, s3'); troffs(a, 6, 3584, 's31')
    def so(c): a(f's_add_u32 s31, s34, {c}\ns_and_b32 s31, s31, 7\ns_lshl_b32 s{40+c}, s31, 7\ns_mul_i32 s{48+c}, s31, {64*3584}')
    for c in range(4): so(c)
    a(f's_mov_b32 s10, {512*3584}\ns_mov_b32 s11, 0x20000')
    a('s_waitcnt lgkmcnt(0)')
    if lk: a('s_barrier')
    a(tagload)
    a('s_and_b32 s5, s5, 0xffff\ns_and_b32 s9, s9, 0xffff')
    f1 = opt.get('f1', '')
    def wg(p, cb=None): return grp(p*8192, [f's_add_u32 s31, s{48+p%8}, {1792 if p < 8 else 0}'], 6, 's[8:11]', 's31', cb=cb, fl=f1)
    def xg(c, need=None):
        return sum([grp(XO[c] + k*8192, [f's_add_u32 s31, s{40+c}, {k*65536}'], 2, 's[4:7]', 's31', cb=c+1, need=need if k == 0 else None, fl=f1) for k in range(2)], [])
    we = opt.get('we', 3)
    items = xg(0) + wg(0, 1) + wg(1, 2) + xg(1) + sum([wg(p, p+1) for p in range(2, we + 1)], [])
    t_ = Asm(); a_ = a; a = t_; vload('s'); a = a_
    su = [lambda: setup2()] if opt.get('early', 2) < 0 else []
    for x in t_.L:
        if x.startswith('buffer'): items.append((su, x, None, 0 if opt.get('sb', 0) else None)); su = []
        else: su.append(x)
    for c in range(2, 8):
        items += xg(c, 1)
        if c > we: items += wg(c, c+1)
    ncs = opt.get('ncs', 4)
    for p in range(8, 8 + ncs): items += wg(p)
    early = opt.get('early', 2)
    def setup2():
        for c in range(4, 8): so(c)
        late_loader_setup()
        rowoffs(a, 10, 's33', 12)
        k0calc(57, True)
    assert early >= 1 or (early < 0 and 's' in vat and 'f' not in vat) or not set(vat) & set('sf')
    if early >= 1: setup2()
    vload('f')
    if early >= 2: a('@WARM@')
    def hook1(b, k):
        if b == 0 and k == -1:
            if early == 0: setup2()
            if early < 2: a('@WARM@')
            a(tagmake + '\nv_mov_b32 v35, s24')
        if k == 1 and b in (1, 8): stamp({1: 1, 8: 2}[b])
    stream_emit(a, items, 9, opt.get('d1', 16), hook1, skip=(0,) if lk else ())
    a('s_lshl_b32 s47, s25, 1\ns_lshr_b32 s46, s26, 2\ns_lshl_b32 s46, s46, 3')
    a(f's_lshl_b32 s34, s28, 18\ns_lshl_b32 s31, s28, 13\ns_lshl_b32 s3, s18, 7\ns_add_u32 s44, s31, s3\ns_add_u32 s44, s44, {FZ}\nv_lshlrev_b32 v28, 1, v32')
    vload('p', opt.get('vp'))
    a('s_barrier')
    stream_emit(a, sum([wg(p) for p in range(8 + ncs, 16)], []), 0, 0)
    fw = opt.get('fw', '')
    wcnt = [0]
    def wst(slot, half, cb=None, need=None):
        if half == 0:
            su = memidx(42, 57, wcnt[0] % opt.get('wfix', 32)) + ['s_lshl_b32 s42, s42, 7']; wcnt[0] += 1
        else: su = ['s_add_u32 s42, s42, 0x40000']
        return grp(slot * 16384 + half*8192, su, 10, 's[20:23]', 's42', cb=cb, need=need, fl=fw)
    def wfull(slot): return wst(slot, 0) + wst(slot, 1)
    def zst(k, cb=None, need=None):
        return grp(L_Z + ZS(k) * 8192, memidx(43, 57, MEM[k] % opt.get('zfix', 32)) + ['s_lshl_b32 s43, s43, 13', 's_add_u32 s43, s43, s34'], 14, 's[12:15]', 's43', True, cb, need, 'sc1')
    pre1 = opt.get('pre1', 2); thin = opt.get('thin', 12)
    for k in range(pre1): paced(wfull(k), thin)
    a(f's_waitcnt vmcnt({8*pre1})\ns_barrier')
    pre2 = opt.get('pre2', 4)
    for k in range(pre1, pre2): paced(wfull(k), thin)
    a('@WARM@')
    if pre2 < 4:
        a('s_barrier')
        for k in range(pre2, 4): paced(wfull(k), 60)
    fxe = opt.get('fxe', 0)
    if fxe: a.L.append('buffer_load_dword v27, v32, s[12:15], s59 offen sc1')
    n0 = len(a.L)
    vload('a', opt.get('vp'))
    nva = sum(1 for x in a.L[n0:] if x.startswith('buffer'))
    stamp(3)
    spre = 4 if NR == 0 else opt.get('spre', 4)
    sp1 = min(spre, opt.get('sp1', 2))
    lu = 0
    if fxe: a(f's_waitcnt vmcnt({nva})')
    lspin('s59', 'v32', bool(fxe))
    if lu:
        UR, UT, UO = 64, 88, 96
        a(f'v_lshlrev_b32 v{UT}, 5, v0\ns_add_u32 s31, s35, s19\ns_add_u32 s31, s31, {WS_XNT - 16}')
        for h in range(2):
            for k in range(3): a.L.append(f'buffer_load_dwordx4 {vr(UR+12*h+4*k,4)}, v{UT}, s[12:15], s31 offen offset:{2048*h + 16*k} sc1')
        a('s_mov_b32 s48, 0x05040100\ns_mov_b32 s49, 0x07060302')
        for k in range(4): a(f'v_mov_b32 v{UT+4+k}, 0')
        a(f'''s_mul_i32 s31, s18, {UGRP}
s_add_u32 s31, s31, {L_U}
v_lshrrev_b32 v{UT+2}, 5, v0
v_mul_u32_u24 v{UT+2}, {USTR}, v{UT+2}
v_and_b32 v{UT+3}, 31, v0
v_min_u32 v{UT+3}, 23, v{UT+3}
v_lshl_add_u32 v{UT+3}, v{UT+3}, 4, v{UT+2}
v_add_u32 v{UT+3}, s31, v{UT+3}
s_lshl_b32 s31, s18, 11
s_add_u32 s31, s31, {L_U + 384}
v_lshl_add_u32 v{UT+1}, v0, 4, s31
s_sub_u32 s31, 0, s18
v_cmp_eq_u32 vcc, s31, v0''')
    def lubuild():
        a.L.append(f'ds_write_b128 v{UT+3}, {vr(UT+4,4)}'); a.L.append(f'ds_write_b128 v{UT+3}, {vr(UT+4,4)} offset:{2*USTR}')
        for h in range(2):
            R = UR + 12*h
            for dl in range(2):
                for e in range(4):
                    d = UO + 4 * (e & 1)
                    for k in range(4): a(f'v_perm_b32 v{d+k}, v{R+4+2*k+e-2}, v{R+4+2*k+e-3}, s{48+dl}')
                    a.L.append(f'ds_write_b128 v{UT+1}, {vr(d,4)} offset:{dl*UGRP + e*USTR + 1024*h}')
        a('s_waitcnt lgkmcnt(0)')
    gt = opt.get('gt', 0)
    def gtouch():
        assert gs == 2 and RG == 32
        a('s_and_b32 s3, s27, 1\ns_lshl_b32 s3, s3, 6\ns_add_u32 s3, s3, s33\nv_lshrrev_b32 v29, 1, v0\nv_add_u32 v29, s3, v29\nv_lshlrev_b32 v29, 5, v29\nv_and_b32 v1, 1, v0\nv_add_lshl_u32 v29, v29, v1, 7')
        for i in range(gt):
            a(f's_lshr_b32 s31, s27, 1\ns_min_u32 s31, s31, 2\ns_add_u32 s31, s31, {8 - 3*gt + 3*i}\ns_lshl_b32 s31, s31, 1\ns_add_u32 s31, s31, s30\ns_lshl_b32 s31, s31, 1\ns_add_u32 s31, s31, s57\ns_and_b32 s31, s31, 31\ns_lshl_b32 s31, s31, 7')
            a.L.append('buffer_load_dword v30, v29, s[20:23], s31 offen')
    if NR >= 4: a('s_barrier')
    if gt: gtouch()
    vload('b', opt.get('vp'))
    if lu:
        a('s_waitcnt vmcnt(0)')
        for k in range(1, 4): a(f'v_cndmask_b32 v{UR+k}, v{UR+k}, v{UT+4}, vcc')
    a('s_barrier')
    if lu == 2: lubuild()
    for k in range(sp1): paced(wfull(k), 60)
    if lu == 1: lubuild()
    lb = opt.get('lb', 0)
    if not lb: a('s_barrier')
    npre = opt.get('npre', 3)
    fzv = 'v28'
    if prog:
        assert all(pat[k] == 'S' for k in range(min(prog, 6)))
        pn = min(prog, pat.index('R') if 'R' in pat else 32)
        a(f's_lshr_b32 s31, s26, 2\ns_lshl_b32 s31, s31, 11\nv_min_u32 v45, {((8 if OWN else pn)-1)*256}, v28\nv_add_u32 v45, s31, v45')
        fzv = 'v45'
    spec = opt.get('spec', 1)
    rest = list(range(sp1, spre)) if NR >= 4 else []
    assert len(rest) <= 2
    for n, k in enumerate(rest):
        if spec: a.L.append(f'buffer_load_dword v{46+n}, {fzv}, s[12:15], s44 offen sc1')
        paced(wfull(k), 60)
    if lb:
        a.L.append(f'buffer_load_dword v27, {fzv}, s[12:15], s44 offen sc1')
        a('s_barrier')
    stamp(4)
    go = a.newlab('zgo')
    if spec:
        for n in range(len(rest)):
            a(f's_waitcnt vmcnt({9*(len(rest)-n) - 1 + lb})\nv_cmp_ne_u32 vcc, s24, v{46+n}\ns_cbranch_vccz {go}')
    if lb: a('s_waitcnt vmcnt(0)')
    if not opt.get('nofz'): lspin('s44', fzv, bool(lb))
    a(f'{go}:')
    stamp(5)
    tiles = [(k - ZX * opt.get('zl', 10) / 10, 0, lambda k=k: zst(k, k, k - ZN + 1 if k >= ZN else None)) for k in range(2*OWN, 32)]
    last = -1
    for s in range(spre, len(SPOS)):
        need = min(SPOS[s-4] + 1 + rlx, max(SPOS[s-4] + 1, 28)) if s >= 4 else None
        for h in range(2):
            key = min(SPOS[s] - 0.5, max((need + 3 if need is not None else 0) - 0.5, last + opt.get('wgap', 10) / 10))
            last = key
            tiles.append((key, s*2 + h + 1, lambda s=s, h=h, need=need: wst(s % 4, h, SPOS[s], need)))
    hc = opt.get('hc', 28)
    if hcl != 'g': tiles.append((hc - 0.9, 0, lambda: [([], 'buffer_load_dword v27, v33, s[12:15], 0 offen sc1', hc, None)]))
    if prog:
        pb = pn - 3 - ZX
        tiles.append((max(pb, 3 - ZX) + 0.1 - ZX, 0, lambda: [([], 'buffer_load_dword v27, v28, s[12:15], s44 offen sc1', pb, None)]))
    tiles.sort(key=lambda x: (x[0], x[1]))
    items = sum([t[2]() for t in tiles], [])
    w3e = opt.get('w3e', 6)
    for j in range(w3e): items += w3(j, W3[j][1])
    hk = {(0,1): 6, (4,1): 7, (8,1): 8, (16,1): 9, (24,1): 10, (31,1): 11, (16,0): 16, (24,0): 17, (32,1): 12}
    hintb = opt.get('hintb', 32)
    def hook2(b, k):
        if (b, k) in hk: stamp(hk[(b, k)])
        if prog and (b, k) == (pb, 1) and not opt.get('nofz'): lspin('s44', 'v28', True)
        if (b, k) == (hc, 1) and hcl != 'g': lspin('0', 'v33', True)
        if (b, k) == (hintb, 1):
            sk = a.newlab('nohint')
            a(f's_or_b32 s3, s27, s18\ns_cmp_lg_u32 s3, 0\ns_cbranch_scc1 {sk}\ns_lshl_b32 s3, s32, 7\ns_add_u32 s3, s3, {FT}')
            lflag('s3')
            a(f'{sk}:')
    stream_emit(a, items, 33, lambda b: opt.get('d2', 32) if b < 30 else opt.get('d2e', 12), hook2, True)
    hb = opt.get('hb', 6)
    if hb:
        paced(([] if xat else x3()) + sum([w3(j) for j in range(w3e, hb)], []), 60)
        hook2(32.5, 1)
        a('s_barrier')
        paced(sum([w3(j) for j in range(max(hb, w3e), w3m - NV)], []), 60)
        if NV:
            assert w3m == 14 and max(hb, w3e) <= 14 - NV
            vstore()
    else: paced(x3() + sum([w3(j) for j in range(w3e, w3m)], []), 60)
    stamp(14)
    hook2(33, 1)
    a('s_waitcnt vmcnt(0)')
    hook2(34, 1)
    a('s_barrier')
    stamp(13)
    s3tail()
    nb['gl'] = count_bars(st0)
    g.prof_store()
    a('s_endpgm')

    a(f'{lab("thelp")}:')
    st0 = len(a.L)
    a('v_mov_b32 v36, -1\nv_mov_b32 v37, -1\nv_mov_b32 v38, -1\nv_mov_b32 v39, -1\nv_lshlrev_b32 v14, 4, v0')
    a(f's_lshl_b32 s31, s26, 1\ns_add_u32 s31, s31, s30\ns_lshl_b32 s31, s31, 1\ns_add_u32 s31, s31, s18\ns_lshl_b32 s31, s31, 13\ns_add_u32 s31, s31, {WS_STATS}')
    a('s_waitcnt lgkmcnt(0)')
    a(tagload)
    a('s_and_b32 s5, s5, 0xffff\ns_and_b32 s13, s13, 0xffff')
    for q in range(4): a.L.append(f'buffer_store_dwordx4 v[36:39], v14, s[12:15], s31 offen offset:{1024*q} sc1')
    late_loader_setup()
    if opt.get('tlbs'): a(f's_load_dwordx2 s[40:41], s[0:1], {KA["out"]}\ns_load_dwordx2 s[42:43], s[0:1], {KA["bsp"]}')
    k0calc(45, False)
    a(f's_lshl_b32 s31, s26, 7\ns_lshl_b32 s3, s18, 6\ns_add_u32 s31, s31, s3\nv_lshrrev_b32 v29, {lg}, v0\nv_add_u32 v29, s31, v29\nv_lshlrev_b32 v29, 5, v29\nv_and_b32 v1, {gs-1}, v0\nv_add_lshl_u32 v29, v29, v1, 7')
    ng = 16 // gs; tp_ = opt.get('tpace', 2); te = opt.get('te', 4) // gs
    a(tagmake + '\nv_mov_b32 v35, s24')
    if opt.get('tlbs'):
        st = opt['tlbs'] << 10
        a('s_lshl_b32 s31, s26, 19\ns_load_dword s46, s[20:21], s31')
        for o in range(0, 12 << 20, st): a(f's_mov_b32 s31, {o}\ns_load_dword s46, s[12:13], s31')
        a('s_load_dword s46, s[42:43], 0\ns_load_dword s46, s[36:37], 0\ns_load_dword s46, s[40:41], 0')
    a('s_waitcnt vmcnt(0)')
    stamp(1)
    a('s_barrier')
    te = opt.get('te', 0) // gs
    wtouch(range(te), 0, None)
    a('s_barrier')
    tm = opt.get('tm', 2) // gs; tn = opt.get('tn', 8) // gs
    wtouch(range(te, max(te, tm)), 0, None); tm = max(te, tm)
    if NV and opt.get('vt', 1):
        a(f's_and_b32 s31, s2, 31\ns_lshl_b32 s31, s31, 1\ns_add_u32 s31, s31, s18\ns_lshl_b32 s31, s31, 13\ns_add_u32 s31, s31, {(14-NV) << 16}')
        for i in range((NV + 7) // 8):
            a.L.append('buffer_load_dword v30, v15, s[36:39], s31 offen')
            a('s_add_u32 s31, s31, 0x80000')
    a('s_barrier')
    wtouch(range(tm, min(tn, ng - 3*gt)), 0, None)
    if not lk: a('s_barrier')
    lspin('s59', 'v32')
    a('s_barrier')
    stamp(5)
    wtouch(range(tn, ng - 3*gt), 0, None)
    a('s_barrier')
    stamp(2)
    if hcl == 't':
        cl_ = a.newlab('hclr')
        a(f's_lshl_b32 s41, s32, 1\ns_add_u32 s41, s41, s18\ns_mul_i32 s31, s41, 57344\ns_sub_u32 s31, s31, s19\ns_add_u32 s31, s31, {WS_HF}\ns_mov_b32 s3, 14\n{cl_}:')
        for q in range(4): a.L.append(f'buffer_store_dwordx4 v[36:39], v14, s[12:15], s31 offen offset:{1024*q} sc1')
        a(f's_add_u32 s31, s31, 4096\ns_sub_u32 s3, s3, 1\ns_cmp_lg_u32 s3, 0\ns_cbranch_scc1 {cl_}')
        a(f's_waitcnt vmcnt(0)\ns_lshl_b32 s31, s41, 7\ns_add_u32 s31, s31, {FH}')
        lflag('s31')
    stamp(3)
    a('s_barrier')
    wtouch(range(opt.get('tskip', 16) // gs, ng), 1, tp_)
    nwo = opt.get('nwo', 14)
    nwo = min(nwo, 14 - NV)
    a(f's_lshl_b32 s41, s25, 1\ns_add_u32 s41, s41, s18\ns_mul_i32 s41, s41, {nwo*8192}\ns_and_b32 s40, s2, 7\ns_mul_i32 s40, s40, {nwo}\ns_lshr_b32 s40, s40, 3')
    for i in range(nwo):
        a('s_lshl_b32 s31, s40, 13\ns_add_u32 s31, s31, s41')
        a.L.append('buffer_load_dword v30, v15, s[36:39], s31 offen')
        a(f's_add_u32 s40, s40, 1\ns_cmp_eq_u32 s40, {nwo}\ns_cselect_b32 s40, 0, s40')
    paced(x3() + sum([w3(j) for j in range(w3m)], []), 60)
    stamp(6)
    if hcl != 't': lspin('0', 'v33')
    stamp(12)
    a(f's_lshl_b32 s3, s32, 7\ns_add_u32 s3, s3, {FT}')
    lspin('s3', 'v34')
    a('s_barrier\ns_barrier')
    stamp(13)
    s3tail()
    nb['tl'] = count_bars(st0)
    g.prof_store()
    a('s_endpgm')

    a('.p2align 12')
    a(f'{lab("comp")}:')
    g.comp = True
    a.vm = ['prm'] * 6 + (['hcl'] * 4 if hcl == 'g' else []); a.lg = []
    def cprologue():
        a(srdc)
        a('s_mov_b32 s33, 0xffff0000\ns_mov_b32 s34, 0x3f803f80\ns_mov_b32 s22, 0x200000\ns_mov_b32 s23, 0x20000')
        a('s_and_b32 s5, s5, 0xffff\ns_and_b32 s13, s13, 0xffff\ns_and_b32 s21, s21, 0xffff')
        a('v_lshlrev_b32 v7, 4, v0\nv_lshlrev_b32 v6, 2, v0')
    cprologue()
    if opt.get('cp'): a(f's_setprio {opt["cp"]}')
    a(f's_lshl_b32 s35, s26, 2\ns_add_u32 s35, s35, s29\ns_lshl_b32 s31, s35, 13\ns_add_u32 s37, s31, {WS_STATS}\ns_add_u32 s60, s37, 4096\ns_lshl_b32 s3, s28, 8\ns_add_u32 s38, s37, s3')
    a.emit(ssm.kaddr())
    X = 128; A2 = 64; A1 = 96; WF = 32
    XR = A1; ST = A1 + 4; T = A1 + 8; SD = A1 + 16; CC = A1 + 18; NM = A1 + 20; FL = A1 + 22
    WR = 8; SEL = 16; CS = 24; NEG = 28
    a('s_lshl_b32 s32, s29, 12\ns_add_u32 s32, s32, 131072')
    a.emit(rowread_list(1, 2, 's32') + trread_list(3, 2))
    for i in range(4):
        a(f's_add_u32 s31, s29, {i}\ns_and_b32 s31, s31, 3\ns_lshl_b32 s3, s31, 5\nv_xor_b32 v{XR+i}, s3, v1\ns_lshl_b32 s3, s31, 11\nv_add_u32 v{WR+2*i}, s3, v3\nv_xor_b32 v{WR+1+2*i}, 64, v{WR+2*i}')
    a(f'''v_bfe_u32 v1, v0, 4, 1
v_lshlrev_b32 v1, 2, v1
v_and_b32 v2, 15, v0
v_cmp_eq_u32 vcc, v1, v2
v_mov_b32 v3, s34
v_add_u32 v1, 8, v1
v_cndmask_b32 v{SEL}, 0, v3, vcc
v_cmp_eq_u32 vcc, v1, v2
s_lshl_b32 s31, s29, 2
s_add_u32 s31, s31, {L_CS}
v_cndmask_b32 v{SEL+4}, 0, v3, vcc
v_add_u32 v1, s31, v7
v_and_b32 v2, 511, v7
v_add_u32 v2, {L_CS}, v2''')
    for i in range(1, 4): a(f'v_mov_b32 v{SEL+i}, v{SEL}\nv_mov_b32 v{SEL+4+i}, v{SEL+4}')
    a(f's_lshl_b32 s31, s35, 12\ns_lshl_b32 s3, s28, 8')
    a(f's_lshl_b32 s52, s28, 18\ns_add_u32 s52, s52, s31')
    a(f's_lshl_b32 s31, s35, 2\ns_add_u32 s53, s31, s3\ns_lshl_b32 s53, s53, 5\ns_add_u32 s53, s53, {FZ}')
    a(tagmake); a.lg = []
    a('; ===== S4D kernel table of this workgroup\'s two channels =====')
    a(f'{lab("kgen")}:')
    emit_plain(a, ssm.kgen() if not opt.get('nokg') else [BAR])
    stamp(1)
    a(f's_cmp_eq_u32 s27, 7\ns_cbranch_scc1 {lab("tcomp2")}')
    lg_split = list(a.lg)
    st0 = len(a.L)
    def xreads(c, base, off): return [(f'ds_read_b128 {vr(X+16*c+4*i,4)}, v{base+i} offset:{off}', f'xr{c}') for i in range(4)]
    XB = [131072, 49152, 49152, 49152, 49152, 114688, 114688, 0]
    def gx(c):
        L = []
        if c and XB[c] != XB[c-1]: L += [f'v_add_u32 v{XR+i}, {hex((XB[c] - XB[c-1]) & 0xffffffff)}, v{XR+i}' for i in range(4)]
        return L, xreads(c, XR, XO[c] - XB[c])
    def dots(c, S):
        for i in range(16):
            r = X + 16*c + i
            a(f'v_dot2c_f32_bf16 v{S + 2*(i&1)}, s34, v{r}\nv_dot2c_f32_bf16 v{S + 1 + 2*(i&1)}, v{r}, v{r}')
    def redux(S): return [f'v_add_f32 v{S}, v{S}, v{S+2}', f'v_add_f32 v{S+1}, v{S+1}, v{S+3}', f'v_mov_b32 v{S+2}, v{S}', f'v_mov_b32 v{S+3}, v{S+1}',
             f'v_permlane32_swap_b32 v{S}, v{S+2}', f'v_permlane32_swap_b32 v{S+1}, v{S+3}', f'v_add_f32 v{S}, v{S}, v{S+2}', f'v_add_f32 v{S+1}, v{S+1}, v{S+3}']
    def wreads(t):
        n, i = divmod(t, 4)
        L = []
        for fb in range(2):
            d = WF + 8*i + 4*fb
            L.append((f'ds_read_b64_tr_b16 {vr(d,2)}, v{WR+2*i+fb} offset:{(n%8)*8192}', f'wr{t}'))
            L.append((f'ds_read_b64_tr_b16 {vr(d+2,2)}, v{WR+2*i+fb} offset:{(n%8)*8192+512}', f'wr{t}'))
        return L
    def mfmas(t):
        n, i = divmod(t, 4); acc = A2 if n < 8 else A1; f = t % 32
        L = []
        for fb in range(2):
            c = '0' if f == 0 else vr(acc+16*fb, 16)
            L.append(f'v_mfma_f32_32x32x16_bf16 {vr(acc+16*fb,16)}, {vr(WF+8*i+4*fb,4)}, {vr(X+4*f,4)}, {c}')
        if i == 0 and not opt.get('nocs'):
            cs = [f'v_mfma_f32_16x16x32_bf16 {vr(CS,4)}, {vr(SEL+4*fb,4)}, {vr(WF+4*fb,4)}, {"0" if (f == 0 and fb == 0) else vr(CS,4)}' for fb in range(2)]
            L = ['\n'.join(cs + L[:1]), L[1]]
        return L
    def cs_write(part, T):
        return [f'v_cvt_pk_bf16_f32 v{T}, v{CS}, v{CS}', f'v_lshlrev_b32 v{T}, 16, v{T}', f'v_sub_f32 v{T}, v{CS}, v{T}', f'v_cvt_pk_bf16_f32 v{T}, v{CS}, v{T}',
                (f'ds_write_b32 v1, v{T} offset:{part*1024}', 'csw')]
    def cs_read(part, T):
        return [lambda: a.waitall(vm=False), 's_barrier'] + [(f'ds_read_b128 {vr(T+4*fb,4)}, v2 offset:{part*1024 + 512*fb}', 'csr') for fb in range(2)]
    def cs_apply(acc, T):
        return [lambda: a.waitlg('csr')] + [f'v_mfma_f32_32x32x16_bf16 {vr(acc+16*fb,16)}, {vr(T+4*fb,4)}, {vr(NEG,4)}, {vr(acc+16*fb,16)}' for fb in range(2)]
    def gconst(cc, r): return [f'v_mul_f32 v{cc+1}, {fbits(C0)}, v{r}', f'v_mul_f32 v{cc}, v{r}, v{r}', f'v_mul_f32 v{cc}, v{cc}, v{cc+1}', f'v_mul_f32 v{cc}, {fbits(0.044715)}, v{cc}']
    def halves(S, Q): return [f'v_permlane32_swap_b32 v{S}, v{Q}', f'v_add_f32 v{S}, v{S}, v{Q}', f'v_mov_b32 v{S+1}, v{S}', f'v_permlane32_swap_b32 v{S}, v{S+1}']
    finA = ['v_cmp_gt_u32 vcc, 32, v0'] + halves(ST, ST+2) + [f'v_mul_f32 v{NM}, {fbits(-1.0/512)}, v{ST}', f'v_cvt_pk_bf16_f32 v{NM+1}, v{NM}, v{NM}'] + \
        [f'v_cndmask_b32 v{NEG+i}, 0, v{NM+1}, vcc' for i in range(4)]
    Q1 = ST + 1
    finB = [f'v_mul_f32 v{Q1}, {fbits(1.0/512)}, v{Q1}', f'v_fma_f32 v{Q1}, -v{NM}, v{NM}, v{Q1}', f'v_max_f32 v{Q1}, 0, v{Q1}', f'v_cvt_pk_bf16_f32 v{Q1}, 0, v{Q1}',
            f'v_add_f32 v{Q1}, {fbits(1e-5)}, v{Q1}', f'v_cvt_pk_bf16_f32 v{Q1}, 0, v{Q1}', f'v_sqrt_f32 v{Q1}, v{Q1}', f'v_cvt_pk_bf16_f32 v{SD}, 0, v{Q1}', f'v_rcp_f32 v4, v{SD}'] + gconst(CC, 4)
    wadd = [f'v_add_u32 v{WR+i}, 65536, v{WR+i}' for i in range(8)]
    padr = [f'v_and_b32 v{FL+2}, 15, v0', f'v_lshrrev_b32 v{FL+1}, 4, v0', f'v_lshlrev_b32 v{FL+2}, 4, v{FL+2}', f'v_lshl_add_u32 v{FL+2}, v{FL+1}, 2, v{FL+2}']
    sload = f'buffer_load_dwordx4 {vr(ST,4)}, v7, s[12:15], s60 offen offset:3072 sc1'
    a.waitall(vm=False)
    a('s_barrier'); a.emit(gx(0)[1] + wreads(0) + wreads(1) + wreads(2))
    ts = opt.get('ts', 17); tk = opt.get('tk', 29)
    for c in range(8):
        fi = opt.get('fine') == 'p1' and c in (3, 4)
        if fi: stamp(3 + 6*(c-3), True)
        if c < 7:
            pre, xr = gx(c+1)
            last = [] if c == 0 else [xlast]
            fills = {0: last + wreads(4*c+3) + pre + ['s_barrier'], 1: xr[:1] + wreads(4*c+4), 2: xr[1:2] + wreads(4*c+5), 3: xr[2:3] + wreads(4*c+6)}
            xlast = xr[3]
        else:
            fills = {0: [xlast] + wreads(4*c+3) + padr, 1: cs_write(0, T) + wadd[:4], 2: wadd[4:] + cs_read(0, T), 3: []}
            fills[tk - 28] += finA
        for i in range(4):
            t = 4*c + i
            if opt.get('fine') == 'p1e' and t >= 19 and t != 22: stamp(3 + t - 19 - (t > 22), True)
            if t == ts: a(sload, 'st1')
            if t == tk:
                a.waitvm('st1'); g.spin([sload], [ST+1, ST+3], FL)
            if opt.get('fine') == 'p1e' and t == tk: stamp(15, True)
            a.waitlg(f'wr{t}')
            a.emit(merge(mfmas(t), fills[i]))
            if fi: stamp(5 + i + 6*(c-3), True)
    stamp(2)
    a.emit(cs_apply(A2, T))
    a.emit(finB)
    if not opt.get('nog2'): a.emit(gelu_pk(A2, 32, CC, SD, T))
    AH = 3
    rd = sum([wreads(t) for t in range(32, 32 + AH)], [])
    st = []
    for i in range(16):
        p = A2 + 2*i
        if i == 0: st.append(f'v_pk_mul_f32 {vr(ST+2,2)}, {vr(p,2)}, {vr(p,2)}')
        else: st += [f'v_pk_add_f32 {vr(ST,2)}, {vr(p-2,2) if i == 1 else vr(ST,2)}, {vr(p,2)}', f'v_pk_fma_f32 {vr(ST+2,2)}, {vr(p,2)}, {vr(p,2)}, {vr(ST+2,2)}']
    st += [f'v_add_f32 v{ST}, v{ST}, v{ST+1}', f'v_add_f32 v{ST+2}, v{ST+2}, v{ST+3}']
    a.emit(st)
    a(f'v_permlane32_swap_b32 v{ST}, v{ST+2}')
    a(f'v_add_f32 v3, v{ST}, v{ST+2}\nv_min_u32 v3, 0xfffffffe, v3')
    a.waitall(lg=False)
    a(f'buffer_store_dword v3, v{FL+2}, s[12:15], s38 offen sc1', 'pub')
    stamp(3)
    a('s_barrier')
    a.emit(rd)
    TA = X; P = X + 8; T2 = A2 + 16; U = X + 16; Q = X + 6; RA = A2 + 28
    pl = [f'buffer_load_dwordx4 {vr(P+4*j,4)}, v{7 if j < 3 else TA+7}, s[12:15], s37 offen offset:{1024*j} sc1' for j in range(4)]
    zcol = f'v_and_b32 v{TA+4}, 56, v{WR}' if not M16 else f'v_and_b32 v{TA+4}, 3, v0\nv_bfe_u32 v{TA+5}, v0, 4, 1\nv_lshl_add_u32 v{TA+4}, v{TA+5}, 2, v{TA+4}\nv_lshlrev_b32 v{TA+4}, 3, v{TA+4}'
    taddr = f"""v_and_b32 v{TA+6}, 7, v0
v_lshrrev_b32 v{TA+7}, 5, v0
v_xor_b32 v{TA+6}, v{TA+6}, v{TA+7}
v_lshlrev_b32 v{TA+6}, 4, v{TA+6}
v_and_b32 v{TA}, 31, v0
v_lshl_add_u32 v{TA}, v{TA}, 7, v{TA+6}
v_add_u32 v{TA}, s32, v{TA}
v_xor_b32 v{TA+1}, 32, v{TA}
v_xor_b32 v{TA+2}, 64, v{TA}
v_xor_b32 v{TA+3}, 96, v{TA}
v_bfe_u32 v{TA+6}, v0, 2, 2
v_lshl_add_u32 v{TA+7}, v{TA+7}, 3, v{TA+6}
v_lshlrev_b32 v{TA+6}, 4, v{TA+6}
{zcol}
v_xor_b32 v{TA+4}, v{TA+4}, v{TA+6}
v_lshl_add_u32 v{TA+4}, v{TA+7}, 7, v{TA+4}
v_add_u32 v{TA+4}, s32, v{TA+4}
v_xor_b32 v{TA+5}, 64, v{TA+4}
v_lshlrev_b32 v{TA+7}, 25, v0
v_and_b32 v{TA+7}, 0x40000000, v{TA+7}
v_add_u32 v{TA+7}, v{TA+7}, v7""".split('\n')
    fin2 = [f'v_pk_add_f32 {vr(P+j,2)}, {vr(P+j,2)}, {vr(P+j+8,2)}' for j in range(0, 8, 2)] + [f'v_pk_add_f32 {vr(P+j,2)}, {vr(P+j,2)}, {vr(P+j+4,2)}' for j in range(0, 4, 2)] + \
           [f'v_permlane16_swap_b32 v{P}, v{P+1}', f'v_permlane16_swap_b32 v{P+2}, v{P+3}', f'v_add_f32 v{P}, v{P}, v{P+1}', f'v_add_f32 v{P+2}, v{P+2}, v{P+3}']
    fin2 += halves(P, P+2) + ln_list(P, P+1, 896, P+2, P+5, P+4) + [f'v_mul_f32 v{P+5}, v{P+5}, v{P+4}']
    for q in range(4):
        for i in range(4): fin2.append(f'v_pk_fma_f32 {vr(A2+8*q+2*i,2)}, {vr(A2+8*q+2*i,2)}, {vr(P+4,2)}, {vr(P+4,2)} op_sel:[0,0,1] op_sel_hi:[1,0,1]')
        for i in range(4): fin2.append(f'v_cvt_pk_bf16_f32 v{U+4*q+i}, v{A2+8*q+2*i}, v{A2+8*q+2*i+1}')
        fin2.append((f'ds_write_b128 v{TA+q}, {vr(U+4*q,4)}', 'tw'))
    for q in range(4):
        ks2, fb = divmod(q, 2)
        fin2.append((f'ds_read_b64_tr_b16 {vr(A2+4*q,2)}, v{TA+4+fb} offset:{ks2*2048}', f'tr{q}'))
        fin2.append((f'ds_read_b64_tr_b16 {vr(A2+2+4*q,2)}, v{TA+5-fb} offset:{ks2*2048 + 512}', f'tr{q}'))
    fin4 = []
    for q in range(4): fin4 += [lambda q=q: a.waitlg(f'tr{q}'), (f'buffer_store_dwordx4 {vr(A2+4*q,4)}, v7, s[12:15], s52 offen offset:{1024*q} sc1', 'z2st')]
    tp = opt.get('tp', 41); tc = opt.get('tc', 47)
    assert tp >= 37 and tc >= 41
    fills = {t: [] for t in range(32, 70)}
    fills[34] += taddr[:8]; fills[35] += taddr[8:16]; fills[36] += taddr[16:]
    fills[33] += ['s_lshl_b32 s31, s35, 5', 'v_and_b32 v3, 31, v0', 'v_add_lshl_u32 v3, v3, s31, 1', ('global_load_ushort v3, v3, s[18:19]', 'bsp')]
    for j in range(4): fills[tp + j//2].append((pl[j], 'pl'))
    if pre2 < 4: fills[tp + 1].append('s_barrier')
    def waddr(d):
        if not M16: return ['s_lshl_b32 s31, s29, 12'] + rowread_list(d, d+1, 's31') + [f'v_xor_b32 v{d+i}, {32*i}, v{d}' for i in range(1, 4)]
        return ['s_lshl_b32 s31, s29, 12', f'v_lshrrev_b32 v{d+1}, 4, v0', f'v_bfe_u32 v{d}, v0, 1, 3', f'v_xor_b32 v{d}, v{d}, v{d+1}', f'v_lshlrev_b32 v{d}, 4, v{d}',
                f'v_and_b32 v{d+1}, 15, v0', f'v_lshl_add_u32 v{d}, v{d+1}, 7, v{d}', f'v_add_u32 v{d}, s31, v{d}', f'v_xor_b32 v{d+1}, 64, v{d}']
    def wsrc(base, ks, slot): return f'v{base+ks} offset:{slot*16384}' if not M16 else f'v{base+ks//2} offset:{slot*16384 + (ks&1)*2048}'
    def rreads(r, base): return [(f'ds_read_b128 {vr(X+16*r+4*ks,4)}, {wsrc(base, ks, r%4)}', f'res{r}') for ks in range(4)]
    t0 = tc + 1
    if OWN: fills[tc] += [f'v_add_u32 v{TA}, s32, v7'] + [(f'ds_write_b128 v{TA}, {vr(A2+4*q,4)} offset:{1024*q}', 'own') for q in range(4)]
    if hcl == 'z':
        fills[tc] += [f'v_mov_b32 v{T2+4+i}, -1' for i in range(4)] + [(f'buffer_store_dwordx4 {vr(T2+4,4)}, v7, s[12:15], s54 offen offset:{1024*q} sc1', 'hcl') for q in range(4)]
    if NR >= 4:
        fills[t0] += waddr(RA) + ['s_barrier']
        rr = sum([rreads(r, RA) for r in range(4)], [])
        rper = opt.get('rper', 3)
        for j in range(16):
            t = max(t0 + 1 + j // rper, 33 + j)
            fills[t].append(rr[j])
    assert NR == 4
    tb1 = max(52, t0 + 3 + 15 // opt.get('rper', 3))
    fills[tb1] += [lambda: a.waitlg('res3'), 's_barrier']
    assert M16 and hcl != 'z'
    ld, ad, ub, ca = ssm.ubuild(A2 + 16, X + 64, A2, A2 + 31)
    if lu:
        ca = ad[6:10] + ca; ld = []; ad = []; ub = []
    if opt.get('noub'): ld = []; ub = []
    fills[t0] += ld
    tu = max(t0 + 1, 49)
    fills[tu+1] += ad[:11]; fills[tu+2] += ad[11:]
    u0 = max(tb1, tu + 2, opt.get('tf', 55)) + 1
    u1 = opt.get('u1', 65)
    for j in range(u0, u1): fills[j] += ub[(j-u0)*len(ub)//(u1-u0):(j-u0+1)*len(ub)//(u1-u0)]
    fills[61] = fills[61] + cs_write(1, A2 + 31)
    tf = opt.get('tf', 55)
    flagz = g.setflag('s53', A2 + 30) + [lambda: stamp(7)]
    fills[tf] += flagz
    fp = lambda i: stamp(i, True) if opt.get('fine') == 'p3' else None
    for t in range(32, 64):
        if t in (32, tp, tp + 4, tc): fp({32: 3, tp: 4, tp + 4: 5, tc: 6}[t])
        if t in (tc + 1, tc + 2, tc + 6, tc + 10, tf, tf + 1): fp({tc + 1: 10, tc + 2: 11, tc + 6: 12, tc + 10: 13, tf: 14, tf + 1: 15}[t])
        if t == tc:
            a.waitvm('pl'); fp(7)
            if not opt.get('nost'): g.spin(pl, range(P, P+16), Q, True)
            stamp(4); fp(8)
            a.emit(fin2); fp(9)
        a.waitlg(f'wr{t}')
        rd = wreads(t + AH) if t + AH < 64 else []
        if t == tc:
            m = mfmas(t); a.emit(m + fin4 + rd + fills[t]); stamp(5)
        else: a.emit(merge(mfmas(t), rd + fills[t]))
    a.emit(fills[64])
    stamp(6)
    a.emit(cs_read(1, T2))
    gw = opt.get('gw', 0)
    if gw: a('v_rcp_f32 v24, v4')
    a.emit(waddr(8) + (gconst(26, 4) if gw else []))
    a.emit(cs_apply(A1, T2))
    a.emit(ca)
    Z1 = 112
    if gw: a.emit(gelu_pk(A1, 32, 26, 24, 16))
    else:
        for i in range(16): a(f'v_pk_mul_f32 {vr(A1+2*i,2)}, {vr(A1+2*i,2)}, v[4:5] op_sel_hi:[1,0]')
    for i in range(15, -1, -1): a(f'v_cvt_pk_bf16_f32 v{Z1+i}, v{A1+2*i}, v{A1+2*i+1}')
    if M16:
        a(f'v_lshlrev_b32 v10, 16, v3\nv_lshlrev_b32 v11, 16, v3\nv_and_b32 v12, 255, v7\nv_bfe_u32 v14, v0, 4, 1\nv_lshl_add_u32 v12, v14, 9, v12\nv_lshrrev_b32 v14, 5, v0\nv_lshl_add_u32 v12, v14, 11, v12\nv_add_u32 v12, {L_Z - 8192*ZX}, v12')
        a('v_permlane16_swap_b32 v10, v11')
        for p in range(4):
            for j in range(2): a(f'v_permlane16_swap_b32 v{Z1+4*p+j}, v{Z1+4*p+2+j}')
        a(f'v_mov_b32 v14, {fbits(C1)}')
        if bi:
            for i in range(16): a(f'v_pk_mov_b32 {vr(32+2*i,2)}, v[10:11], v[10:11] op_sel:[{(i>>1)&1},{(i>>1)&1}]')
    else: a(f'v_add_u32 v12, {L_Z}, v7\nv_lshlrev_b32 v4, 16, v3\nv_mov_b32 v14, {fbits(C1)}')
    cpre, cg = ssm.conv()
    if npre:
        emit_plain(a, cpre + sum(cg[:10*npre], [])); cg = cg[10*npre:]; cpre = []
    stamp(8)
    assert NR <= 4
    a('; ===== w_sp @ z2 with the convolution and gelu(z1) in its shadow =====')
    ACC = 32; F = [64, 88]
    def rd2(k, half):
        L = []
        if M16:
            wr = [(f'ds_read_b128 {vr(F[half]+4*tb,4)}, {wsrc(8, 2*half+tb, SIDX[k]%4)}', f'g{k}_{2*half}') for tb in range(2)] if k in SIDX else []
            zr = [(f'ds_read_b128 {vr(F[half]+8+4*fb,4)}, v12 offset:{(ZS(k)+ZX)*8192 + half*4096 + (fb>>1)*1024 + (fb&1)*256}', f'g{k}_{2*half + fb//2}') for fb in range(4)]
            return wr + zr
        for j in range(2):
            ks = 2*half + j
            if k in SIDX: L.append((f'ds_read_b128 {vr(F[half]+12*j,4)}, v{8+ks} offset:{(SIDX[k]%4)*16384}', f'g{k}_{ks}'))
            for fb in range(2): L.append((f'ds_read_b128 {vr(F[half]+12*j+4+4*fb,4)}, v12 offset:{ZS(k)*8192+ks*2048+fb*1024}', f'g{k}_{ks}'))
        return L
    def mm2(k, half):
        L = []
        if M16:
            for fb in range(4):
                pair = []
                for tb in range(2):
                    wreg = F[half]+4*tb if k in SIDX else X + 16*MEM[k] + 4*(2*half+tb)
                    d = ACC + 8*fb + 4*tb
                    pair.append(f'v_mfma_f32_16x16x32_bf16 {vr(d,4)}, {vr(F[half]+8+4*fb,4)}, {vr(wreg,4)}, {"0" if (k == 0 and half == 0 and not bi) else vr(d,4)}')
                if opt.get('snake', 1) == 1 and fb & 1: pair.reverse()
                L.append((f'g{k}_{2*half + fb//2}', pair))
            if opt.get('snake') == 2:
                m = [x[1] for x in L]
                L = [(L[0][0], [m[0][0], m[1][0]]), (L[2][0], [m[2][0], m[3][0]]), (L[2][0], [m[3][1], m[2][1]]), (L[2][0], [m[1][1], m[0][1]])]
            return L
        for j in range(2):
            wreg = F[half]+12*j if k in SIDX else X + 16*MEM[k] + 4*(2*half+j)
            for fb in range(2):
                c = '0' if (k == 0 and half == 0 and j == 0) else vr(ACC+16*fb, 16)
                L.append((f'g{k}_{2*half+j}', [f'v_mfma_f32_32x32x16_bf16 {vr(ACC+16*fb,16)}, {vr(F[half]+12*j+4+4*fb,4)}, {vr(wreg,4)}, {c}']))
        return L
    kf = 0
    c0, c1 = opt.get('c0', 2), opt.get('c1', 25)
    plan = {}
    def spread(groups, slots, wts):
        cum = 0; tot = sum(int(wts[s[2]]) for s in slots); done = 0
        for s in slots:
            cum += int(wts[s[2]]); n = cum * len(groups) // tot
            plan.setdefault(s, []).extend(groups[done:n]); done = n
    allslots = [(k, ph, i) for k in range(32) for ph in range(2) for i in range(4) if (k, ph) != (0, 0)]
    if cg and not opt.get('noconv'): spread(cg, [s for s in allslots if c0 <= s[0] <= c1], opt.get('cw', '0001'))
    if cpre: spread([[x] for x in cpre], [s for s in allslots if (kf, 1) <= s[:2] and s[0] < c0], '1113')
    if not gw and not opt.get('nog1'): spread([[x] for x in gelu_packed(Z1, 16, 128, 14)], [s for s in allslots if opt.get('g0', RPOS[0] + 3) <= s[0] < opt.get('ge', 30)], '2223')
    fin, fflag = ssm.finish()
    sst = [x for x in fin if isinstance(x, tuple) and x[1] == 'sst']
    spread([[x] for x in fin if x not in sst], [s for s in allslots if c1 + 1 <= s[0] <= c1 + 2], '2223')
    plan.setdefault((opt.get('sk', c1 + 2), 1, 3), []).append(sst)
    assert c1 + 2 <= 30
    for k in range(33):
        if k in (0, 31): a.waitall(vm=False)
        elif not rlx or k >= 28: a.waitlg(f'g{k-1}_3')
        a('s_barrier')
        if k == 0: stamp(9)
        if str(opt.get('fine')).startswith('g2'):
            k0 = int(opt['fine'][2:])
            if k0 <= k < k0 + 13: stamp(3 + k - k0, True)
        for ph in range(2):
            m = (mm2(k-1, 1) if k > 0 else []) if ph == 0 else (mm2(k, 0) if k < 32 else [])
            r = rd2(k, ph) if k < 32 else []
            if not m:
                a.emit(r); continue
            for i, (tg, ins) in enumerate(m):
                a.waitlg(tg)
                a.emit(merge(ins, r[2*i:2*i+2]))
                for x in plan.get((k, ph, i), []): a.emit(x)
                if k == 31:
                    for j in range(2):
                        z = 8*ph + 2*i + j
                        a(f'v_lshlrev_b32 v{128+2*z}, 16, v{Z1+z}\nv_and_b32 v{129+2*z}, s33, v{Z1+z}')
    stamp(10)
    a.emit(fflag[:2])
    for q in range(4):
        for i in range(4):
            p = ACC + 8*q + 2*i
            if bi: pass
            elif M16: a(f'v_pk_add_f32 {vr(p,2)}, {vr(p,2)}, v[10:11] op_sel:[0,{i//2}] op_sel_hi:[1,{i//2}]')
            else: a(f'v_pk_add_f32 {vr(p,2)}, {vr(p,2)}, v[4:5] op_sel_hi:[1,0]')
        for i in range(4):
            p = ACC + 8*q + 2*i
            a(f'v_pk_mul_f32 {vr(p,2)}, {vr(p,2)}, {vr(128+8*q+2*i,2)}')
        for i in range(4): a(f'v_cvt_pk_bf16_f32 v{F[0]+4*q+i}, v{ACC+8*q+2*i}, v{ACC+8*q+2*i+1}')
        def hout(q):
            if M16:
                for j in range(2): a(f'v_permlane16_swap_b32 v{F[0]+4*q+j}, v{F[0]+4*q+2+j}')
            a(f'buffer_store_dwordx4 {vr(F[0]+4*q,4)}, v7, s[12:15], s54 offen offset:{1024*q} sc1', 'hst')
        hout(q)
    a.emit(fflag[2:])
    if hb: a('s_barrier')
    stamp(11)
    nb['gc'] = count_bars(st0) + 2 + (w3m < 14)

    a(f'{lab("g3comp")}:')
    HB = 16; ACC = 160; WB = [224, 240]; SR = 192; SF = 200; XR = 216; XF = 136; T = 152
    a('s_and_b32 s36, s29, 1\ns_lshr_b32 s37, s29, 1\ns_lshl_b32 s32, s26, 1\ns_add_u32 s32, s32, s30')
    a.emit(trread_list(1, 2))
    a(f'''s_lshl_b32 s55, s37, 6
s_lshl_b32 s31, s37, 12
v_xor_b32 v1, s55, v1
v_add_u32 v1, s31, v1
v_xor_b32 v2, 64, v1
v_add_u32 v3, {L_Z}, v1
v_add_u32 v4, {L_Z}, v2
s_lshl_b32 s3, s36, 12
s_add_u32 s3, s3, {L_X3}''')
    a.emit(rowread_list(9, 10, 's3'))
    a(f'''v_xor_b32 v9, s55, v9
v_xor_b32 v10, 32, v9
v_lshrrev_b32 v11, 2, v0
v_and_b32 v12, 3, v0
v_lshlrev_b32 v13, 4, v12
v_lshl_add_u32 v15, v11, 10, v13
v_bfe_u32 v13, v0, 3, 3
v_xor_b32 v12, v12, v13
v_lshlrev_b32 v12, 4, v12
v_xor_b32 v12, s55, v12
v_lshl_add_u32 v12, v11, 7, v12
v_add_u32 v14, s3, v12
v_lshrrev_b32 v11, 5, v0
v_bfe_u32 v13, v0, 2, 2
v_lshl_add_u32 v11, v11, 3, v13
v_lshlrev_b32 v11, 7, v11
v_bfe_u32 v13, v0, 3, 1
v_xor_b32 v13, s36, v13
v_lshl_add_u32 v11, v13, 6, v11
v_bfe_u32 v13, v0, 4, 1
v_lshl_add_u32 v11, v13, 5, v11
v_and_b32 v13, 3, v0
v_lshl_add_u32 v11, v13, 3, v11
s_add_u32 s31, s31, {L_S3}
v_add_u32 v11, s31, v11
s_lshl_b32 s3, s32, 1
s_add_u32 s3, s3, s36
s_lshl_b32 s61, s3, 15
s_mul_i32 s38, s3, 57344
s_lshl_b32 s3, s27, 7
s_add_u32 s61, s61, s3
s_add_u32 s61, s61, s55
s_lshl_b32 s3, s37, 11
s_add_u32 s38, s38, s3
s_add_u32 s38, s38, {WS_HF}
s_lshl_b32 s3, s29, 12
s_add_u32 s3, s3, {L_U}
v_add_u32 v8, s3, v7
v_xor_b32 v13, 8192, v8
v_mov_b32 v12, {fbits(-LOG2E)}''')
    do = opt.get('do', 0)
    if do: a('v_and_b32 v14, 31, v0\nv_lshrrev_b32 v15, 5, v0\nv_lshlrev_b32 v15, 4, v15\nv_lshl_add_u32 v15, v14, 10, v15')
    fl_ = opt.get('fl', 1)
    if fl_:
        a(f'''v_lshrrev_b32 v14, 3, v0
v_and_b32 v15, 7, v0
v_lshrrev_b32 v5, 4, v0
v_xor_b32 v5, v5, v15
v_lshlrev_b32 v15, 4, v15
v_lshl_add_u32 v15, v14, 10, v15
v_lshlrev_b32 v5, 4, v5
v_lshl_add_u32 v14, v14, 7, v5
s_lshl_b32 s3, s29, 11
s_add_u32 s3, s3, {L_X3}
v_add_u32 v14, s3, v14
v_xor_b32 v5, 64, v14
s_lshl_b32 s61, s32, 16
s_lshl_b32 s3, s29, 14
s_add_u32 s61, s61, s3
s_lshl_b32 s3, s27, 7
s_add_u32 s61, s61, s3''')
    for j in range(14): a(f's_add_u32 s{40+j}, s38, {j << 12}')
    a(f's_mov_b32 s39, {SPIN >> 3}')
    aw = opt.get('aw', 1)
    if aw: a(f's_waitcnt vmcnt({aw})')
    else: a.waitall(lg=False)
    stamp(12)
    NI = opt.get('ni', 5)
    def hl(j): return [f'buffer_load_dwordx4 {vr(HB+8*j+4*p,4)}, v7, s[12:15], s{40+(j if not opt.get("hfix") else 0)} offen offset:{1024*p} sc1' for p in range(2)]
    def rdw(j, ks):
        w = W3LOC[j]; hi = w >= L_Z; w -= L_Z * hi
        return [(f'ds_read_b64_tr_b16 {vr(WB[j&1]+8*ks+4*b+2*p,2)}, v{1+b+2*hi} offset:{w+ks*2048+512*p}', f'w{j}_{ks}') for b in (1, 0) for p in range(2)]
    for j in range(NI): a.emit([(x, f'h{j}') for x in hl(j)])
    a('s_barrier')
    stamp(13)
    a.emit(rdw(0, 0) + rdw(0, 1))
    es = opt.get('es', 8)
    xs = [(f'ds_read_b128 {vr(XR+4*p,4)}, v{9+p}', 'xr') for p in range(2)]
    un = sum([[f'v_lshlrev_b32 v{XF+2*i}, 16, v{XR+i}', f'v_and_b32 v{XF+2*i+1}, s33, v{XR+i}'] for i in range(8)], [])
    retry = []
    NP = opt.get('np', 1)
    issued = lambda j: min(14, NI + NP * j)
    def check(j):
        lc = a.newlab('hchk'); lr = a.newlab('hretry')
        a.waitvm(f'h{j}')
        H = HB + 8*j
        a(f'{lc}:\nv_max3_u32 v{T}, v{H}, v{H+1}, v{H+2}\nv_max3_u32 v{T+1}, v{H+3}, v{H+4}, v{H+5}\nv_max3_u32 v{T}, v{T}, v{H+6}, v{H+7}\nv_max_u32 v{T}, v{T}, v{T+1}')
        a(f'v_cmp_eq_u32 vcc, -1, v{T}')
        return lc, lr
    def cbr(j, lc, lr, mid=None):
        a(f's_cbranch_vccnz {lr}\n{lc}x:' if not opt.get('nohr') else f'{lc}x:')
        retry.append((lr, lc, j, sum([hl(i) for i in range(j, min(issued(j), j + opt.get('nrt', 5)))], [])))
    lc, lr = check(0); cbr(0, lc, lr)
    stamp(14)
    for j in range(14):
        if opt.get('fine') == 'g3' and j % 2 == 0: stamp(3 + j // 2, True)
        seq = []
        for ks in range(2):
            for b in (1, 0):
                seq.append((ks, f'v_mfma_f32_32x32x16_bf16 {vr(ACC+16*b,16)}, {vr(WB[j&1]+8*ks+4*b,4)}, {vr(HB+8*j+4*ks,4)}, {"0" if (j == 0 and ks == 0) else vr(ACC+16*b,16)}'))
        if j == 13: seq = [seq[0], seq[2], seq[1], seq[3]]
        nxt = (rdw(j+1, 0) + rdw(j+1, 1)) if j < 13 else []
        for i, (ks, ins) in enumerate(seq):
            a.waitlg(f'w{j}_{ks}')
            a(ins)
            if j == w3m - 1 and i == 0 and w3m < 14: a('s_barrier')
            if i < 2:
                a.emit(nxt[3*i:3*i+3])
                new = [(x, f'h{s_}') for s_ in range(issued(j), issued(j+1)) for x in hl(s_)]
                a.emit(new[i*len(new)//2:(i+1)*len(new)//2])
            if j == es and i in (0, 1): a.emit(xs[3*i:3*i+3])
            if j > es and i in (0, 1, 3):
                a.waitlg('xr'); a.emit(un[:4]); un = un[4:]
            if i == 2 and j < 13: lc, lr = check(j + 1)
            if i == 3 and j < 13:
                a.emit(nxt[6:]); cbr(j + 1, lc, lr)
    stamp(15)
    if opt.get('prof'): a(f's_sub_u32 s100, {SPIN >> 3}, s39\ns_mul_i32 s100, s100, 10\ns_add_u32 s100, s100, s66')
    ft_ = lambda i: stamp(i, True) if opt.get('fine') == 'g3' else None
    ft_(10)
    for q in range(4): a(f'ds_write_b128 v8, {vr(ACC+16+4*q,4)} offset:{1024*q}', 'rw')
    a.waitall(vm=False); ft_(11); a('s_barrier'); ft_(12)
    assert not un
    for q in range(2): a(f'ds_read_b128 {vr(WB[0]+4*q,4)}, v13 offset:{1024*q}', f'rr0')
    for q in range(4): a(f'ds_read_b64_tr_b16 {vr(SR+2*q,2)}, v11 offset:{2048*(q//2)+512*(q%2)}', 'sr')
    for q in range(2, 4): a(f'ds_read_b128 {vr(WB[0]+4*q,4)}, v13 offset:{1024*q}', f'rr1')
    for p in range(2):
        B = ACC + 8*p
        a.waitlg(f'rr{p}')
        if p == 0: ft_(13)
        for i in range(4): a(f'v_pk_add_f32 {vr(B+2*i,2)}, {vr(B+2*i,2)}, {vr(WB[0]+8*p+2*i,2)}')
        for i in range(4): a(f'v_pk_mul_f32 {vr(T+2*i,2)}, {vr(B+2*i,2)}, v[12:13] op_sel_hi:[1,0]')
        for i in range(8): a(f'v_exp_f32 v{T+i}, v{T+i}')
        a.waitlg('sr')
        for i in range(4): a(f'v_lshlrev_b32 v{SF+8*p+2*i}, 16, v{SR+4*p+i}\nv_and_b32 v{SF+8*p+2*i+1}, s33, v{SR+4*p+i}')
        for i in range(4): a(f'v_pk_mul_f32 {vr(B+2*i,2)}, {vr(B+2*i,2)}, {vr(SF+8*p+2*i,2)}')
        for i in range(4): a(f'v_pk_add_f32 {vr(T+2*i,2)}, {vr(T+2*i,2)}, 1.0 op_sel_hi:[1,0]')
        for i in range(8): a(f'v_rcp_f32 v{T+i}, v{T+i}')
        for i in range(4): a(f'v_pk_fma_f32 {vr(B+2*i,2)}, {vr(B+2*i,2)}, {vr(T+2*i,2)}, {vr(XF+8*p+2*i,2)}')
        for i in range(4): a(f'v_cvt_pk_bf16_f32 v{HB+4*p+i}, v{B+2*i}, v{B+2*i+1}')
        if do: a(f'buffer_store_dwordx4 {vr(HB+4*p,4)}, v15, s[20:23], s61 offen offset:{32*p} {opt.get("outflag","sc1").replace("-", "")}', 'ost')
        else: a(f'ds_write_b128 v{9+p}, {vr(HB+4*p,4)}', 'ow')
    ft_(14)
    if fl_:
        a.waitall(vm=False); a('s_barrier')
        for p in range(2): a(f'ds_read_b128 {vr(HB+8+4*p,4)}, v{5 if p else 14} offset:{1024*p}', f'or{p}')
    else:
        for p in range(0 if do else 2): a(f'ds_read_b128 {vr(HB+8+4*p,4)}, v14 offset:{2048*p}', f'or{p}')
    for p in range(0 if do else 2):
        a.waitlg(f'or{p}')
        if p: a(f's_add_u32 s61, s61, {8192 if fl_ else 16384}')
        a(f'buffer_store_dwordx4 {vr(HB+8+4*p,4)}, v15, s[20:23], s61 offen {opt.get("outflag","sc1").replace("-", "")}', 'ost')
    stamp(16)
    sk = a.newlab('noepoch')
    a(f's_or_b32 s3, s2, s29\ns_cmp_lg_u32 s3, 0\ns_cbranch_scc1 {sk}\nv_mov_b32 v1, s24\ns_mov_b32 s3, {WS_EPOCH}\ns_mov_b64 exec, 1')
    a('buffer_store_dword v1, off, s[12:15], s3 sc1')
    a(f's_mov_b64 exec, -1\n{sk}:')
    if opt.get('span'):
        a(f's_waitcnt vmcnt(0)\ns_memrealtime s[64:65]\ns_lshl_b32 s3, s2, 2\ns_add_u32 s3, s3, s29\ns_lshl_b32 s3, s3, 3\ns_add_u32 s3, s3, {WS_PROF}\ns_waitcnt lgkmcnt(0)\nv_mov_b32 v2, s62\nv_mov_b32 v3, s64\ns_mov_b64 exec, 1')
        a('buffer_store_dwordx2 v[2:3], off, s[12:15], s3')
    if opt.get('dbg'):
        sk = a.newlab('nodbg')
        a(f's_lshr_b32 s3, s2, 3\ns_or_b32 s3, s3, s29\ns_cmp_lg_u32 s3, 0\ns_cbranch_scc1 {sk}\ns_load_dwordx2 s[16:17], s[0:1], {KA["dbg"]}\ns_memrealtime s[64:65]\ns_waitcnt lgkmcnt(0)')
        a(f's_and_b32 s62, s62, 0xfffff\ns_and_b32 s64, s{66 + 2*opt["dbg"] if opt["dbg"] > 0 else 64}, 0xfffff\nv_mov_b32 v1, s62\nv_mov_b32 v2, s64\ns_lshl_b32 s3, s2, 2\nv_mov_b32 v3, s3')
        a('global_store_dword v3, v1, s[16:17]\nglobal_store_dword v3, v2, s[16:17] offset:32')
        a(f'{sk}:')
    g.prof_store()
    a('s_endpgm')
    for x in g.cold: a.L.append(x)
    g.cold = []
    for lr, lc, j, lds_ in retry:
        H = HB + 8*j
        a(f'{lr}:\ns_sub_u32 s39, s39, 1\ns_cmp_lt_i32 s39, 0\ns_cbranch_scc1 {lc}x')
        for x in lds_: a.L.append(x)
        a(f's_waitcnt vmcnt(0)\nv_max3_u32 v{T}, v{H}, v{H+1}, v{H+2}\nv_max3_u32 v{T+1}, v{H+3}, v{H+4}, v{H+5}\nv_max3_u32 v{T}, v{T}, v{H+6}, v{H+7}\nv_max_u32 v{T}, v{T}, v{T+1}')
        a(f'v_cmp_eq_u32 vcc, -1, v{T}\ns_cbranch_vccnz {lr}\ns_branch {lc}x')

    a(f'{lab("tcomp")}:')
    st0 = len(a.L)
    a.vm = ['prm'] * 6; a.lg = []
    T = 24; X = 64
    a('s_mov_b32 s6, 0x200000\ns_mov_b32 s7, 0x20000\ns_and_b32 s5, s5, 0xffff')
    a('s_lshl_b32 s32, s29, 14\ns_lshl_b32 s35, s26, 1\ns_add_u32 s35, s35, s30\ns_lshl_b32 s35, s35, 1\ns_and_b32 s3, s29, 1\ns_add_u32 s35, s35, s3\ns_lshl_b32 s3, s35, 5\ns_lshr_b32 s61, s29, 1\ns_lshl_b32 s38, s61, 9')
    rowoffs(a, 32, 's3', 10)
    for c in range(4):
        a.emit([f's_add_u32 m0, s32, {4096*c}', f's_add_u32 s31, s38, {128*c}'] + [(f'buffer_load_dwordx4 v{32+i}, s[4:7], s31 offen offset:{1024*i} lds', f'x{c}') for i in range(4)])
    cprologue()
    a.emit(rowread_list(8, 9, 's32'))
    a('v_xor_b32 v9, 32, v8\nv_xor_b32 v10, 64, v8\nv_xor_b32 v11, 96, v8')
    a('s_mov_b32 s36, 0x00003f80\ns_mov_b32 s37, 0x3f800000')
    for i in range(4): a(f'v_mov_b32 v{20+i}, 0')
    a('v_lshrrev_b32 v13, 5, v0\nv_lshlrev_b32 v13, 15, v13\nv_and_b32 v16, 31, v0\nv_lshl_add_u32 v12, v16, 2, v13')
    for i in range(1, 4): a(f'v_add_u32 v{12+i}, {8192*i}, v12')
    a(f's_lshl_b32 s31, s35, 7\ns_add_u32 s52, s31, {WS_XNT}\ns_lshl_b32 s3, s61, 20\ns_add_u32 s52, s52, s3')
    a(f's_lshl_b32 s53, s61, 13\ns_add_u32 s53, s53, s31\ns_add_u32 s53, s53, {FX}')
    a(f's_lshl_b32 s31, s35, 13\ns_add_u32 s60, s31, s38\ns_add_u32 s60, s60, {WS_STATS + 14*512}')
    a(f's_lshl_b32 s31, s29, 8\ns_add_u32 s31, s31, {L_CS}\nv_lshl_add_u32 v16, v0, 2, s31\nv_xor_b32 v17, 512, v16')
    a(tagmake)
    for c in range(4):
        a.waitvm(f'x{c}')
        a.emit(xreads(c, 8, 4096*c))
        if c == opt.get('tb', 1): a('s_barrier')
        if c > 0: dots(c-1, 20)
        a.waitlg(f'xr{c}')
    dots(3, 20)
    a('v_add_f32 v20, v20, v22\nv_add_f32 v21, v21, v23\nv_mov_b32 v41, s24\nv_mov_b32 v43, s24\nv_permlane32_swap_b32 v20, v21\nv_add_f32 v22, v20, v21\nv_add_f32 v40, v20, v21\nv_permlane32_swap_b32 v40, v42\ns_mov_b32 exec_hi, 0')
    a(f'buffer_store_dwordx4 v[40:43], v7, s[12:15], s60 offen sc1', 'pub')
    a('s_mov_b64 exec, -1')
    a('ds_write_b32 v16, v22')
    a.waitall(vm=False); a('s_barrier')
    a('ds_read_b32 v20, v17')
    a.waitall(vm=False)
    a('v_add_f32 v20, v20, v22\nv_mov_b32 v21, v20\nv_permlane32_swap_b32 v20, v21')
    a.emit(ln_list(20, 21, 512, 22, 19, 18))
    stamp(2)
    for f in range(16):
        for i in range(4):
            a(f'v_dot2_f32_bf16 v{T+2*i}, v{X+4*f+i}, s36, v19\nv_dot2_f32_bf16 v{T+2*i+1}, v{X+4*f+i}, s37, v19')
        for i in range(4): a(f'v_cvt_pk_bf16_f32 v{X+4*f+i}, v{T+2*i}, v{T+2*i+1}')
        for i in range(4): a(f'v_lshlrev_b32 v{T+2*i}, 16, v{X+4*f+i}\nv_and_b32 v{T+2*i+1}, s33, v{X+4*f+i}')
        for i in range(4): a(f'v_pk_mul_f32 {vr(T+2*i,2)}, {vr(T+2*i,2)}, v[18:19] op_sel_hi:[1,0]')
        for i in range(4): a(f'v_cvt_pk_bf16_f32 v{X+4*f+i}, v{T+2*i}, v{T+2*i+1}')
        for i in range(4): a(f'buffer_store_dword v{X+4*f+i}, v{12+i}, s[12:15], s52 offen sc1', 'xst')
        a('s_add_u32 s52, s52, 65536')
    stamp(3)
    a.emit(ssm.kaddr())
    a.emit(g.setflag('s53', 16))
    stamp(7)
    a('s_barrier')
    a(f's_branch {lab("kgen")}')
    a(f'{lab("tcomp2")}:')
    a.vm = []; a.lg = list(lg_split)
    a.waitall(vm=False); a('s_barrier')
    ld, ad, ub, ca = ssm.ubuild(64, 80, 88, 96)
    emit_plain(a, ld + ad + ca + ub + [BAR]); stamp(9)
    cpre, cg = ssm.conv()
    fin, fflag = ssm.finish()
    emit_plain(a, cpre + sum(cg, []) + fin + fflag + [BAR]); stamp(10)
    a('s_barrier')
    nb['tc'] = count_bars(st0) + 2 + (w3m < 14) - lk
    a(f's_branch {lab("g3comp")}')
    a(f'{lab("done")}:\ns_endpgm')
    assert nb['gl'] == nb['gc'] and nb['tl'] == nb['tc'], nb
    kernel_desc(a, name, 256, 102)
    return finalize(a, name, opt)

DOC = '''
; ---------------------------------------------------------------------------------------------------------
; One launch, 256 workgroups (one per CU), 4 compute waves + 2 helper waves each.  Generated by a script.
;                 the epilogue), gelu, second LayerNorm (partial sums exchanged along the row block), w_sp@z2, gating.
; Hand-offs between workgroups go through d_ws with write-through (sc1) stores and sc1 loads.  Flags carry a launch
; ---------------------------------------------------------------------------------------------------------
'''
NAME = 'recurrent_scan__ssm_conv_s4d__mixer_gmlp__prompt_kernel'
def write(path, args):
    opt = {}
    for kv in args:
        k, _, v = kv.partition('=')
        opt[k] = (int(v) if v.lstrip('-').isdigit() and k != 'cw' else v) if v else True
    try: HDR = open('recurrent_scan__ssm_conv_s4d__mixer_gmlp__prompt.s.ref').read().split('; Override launch')[0]
    except OSError: HDR = ''
    txt = HDR + '; @launch grid=(256,1,1) block=(384,1,1) lds=163840' + DOC + '.amdgcn_target "amdgcn-amd-amdhsa--gfx950"\n' + fused(NAME, opt)
    open(path, 'w').write(txt)

if __name__ == '__main__':
    import sys
    sys.path.insert(0, 'work')
    write(sys.argv[1], sys.argv[2:])
    from hx import build
    import cdna_launch as cl
    co, _ = build(sys.argv[1], 15, NAME)
    p = cl.address_register_problem(co, NAME)
    if p: print('CHECK PROBLEM:', p)
```

```python
from gen import *
import struct, math
def fbits(x): return hex(struct.unpack('<I', struct.pack('<f', x))[0])
def f32(x): return struct.unpack('<f', struct.pack('<f', x))[0]
WS_Z2F = 0; WS_XNT = 4 << 20; WS_HF = 6 << 20; WS_ST = 10 << 20; WS_STATS = 12 << 20; WS_FL = WS_STATS + (512 << 10)
WS_EPOCH = WS_FL + (384 << 10)
WS_PROF = 13 << 20; WS_BYTES = 14 << 20
FZ = WS_FL; FX = WS_FL + 896*128; FH = WS_FL + 1024*128; FT = WS_FL + 1536*128; FS = WS_FL + 2048*128
KA = dict(u=0, logA=8, Aim=16, Cre=24, Cim=32, logdt=40, Dskip=48, bx=56, win=64, wsp=72, bsp=80, wout=88, out=96, dbg=104, ws=112)
LOG2E = math.log2(math.e)
C0 = -2 * LOG2E * math.sqrt(2 / math.pi); C1 = C0 * 0.044715
BAR = ('BAR',)
SPIN = 0x20000
L_SSM = 65536; L_Z = 114688
USTR = 4640; UGRP = 3 * USTR + 4480; L_U = L_SSM; L_RAW = 102400 - 16; L_K = 147456
L_CS = 159744; L_TR = 131072
L_X3 = 81920; L_S3 = 90112; KSTR = 4736

class G:
    def __init__(self, name, opt):
        self.a = Asm(); self.name = name; self.opt = opt; self.comp = False; self.cold = []
    def stamp(self, idx, fine=False):
        if self.opt.get('fine') and not fine and 3 <= idx <= 15 and self.comp: return
        if self.opt.get('dbg') == idx: self.a(f's_memrealtime s[{66+2*idx}:{67+2*idx}]')
        if self.opt.get('prof'): self.a(f's_mem{"real" if self.opt.get("rt") else ""}time s[{66+2*idx}:{67+2*idx}]')
    def prof_store(self):
        if not self.opt.get('prof'): return
        a = self.a
        a('s_memrealtime s[64:65]\ns_memtime s[60:61]')
        a.waitall()
        a('v_mov_b32 v2, 0\ns_sub_u32 s31, s60, s66\nv_writelane_b32 v2, s31, 2')
        for i in range(1, 18):
            a(f's_sub_u32 s31, s{66+2*i}, s{62 if self.opt.get("rt") else 66}\nv_writelane_b32 v2, s31, {i+2}')
        a('v_writelane_b32 v2, s62, 0\nv_writelane_b32 v2, s64, 1')
        a(f's_lshl_b32 s3, s2, 3\ns_add_u32 s3, s3, s29\ns_lshl_b32 s3, s3, 7\ns_add_u32 s3, s3, {WS_PROF}')
        a('v_lshlrev_b32 v1, 2, v0\ns_mov_b32 exec_hi, 0')
        a('buffer_store_dword v2, v1, s[12:15], s3 offen')
    def spin(self, loads, tags, tmp, sentinel=False):
        a = self.a
        lp = a.newlab('sp'); lc = a.newlab('spc'); lo = a.newlab('spo')
        chk = []
        r = list(tags)
        if sentinel:
            cur = r.pop(0)
            while r:
                if len(r) >= 2: chk.append(f'v_max3_u32 v{tmp}, v{cur}, v{r[0]}, v{r[1]}'); r = r[2:]
                else: chk.append(f'v_max_u32 v{tmp}, v{cur}, v{r[0]}'); r = []
                cur = tmp
            chk.append(f'v_cmp_eq_u32 vcc, -1, v{tmp}')
        elif len(r) == 1: chk.append(f'v_cmp_ne_u32 vcc, s24, v{r[0]}')
        else:
            chk.append(f'v_xor_b32 v{tmp}, s24, v{r[0]}')
            for x in r[1:]: chk.append(f'v_bitop3_b32 v{tmp}, v{tmp}, v{x}, s24 bitop3:0xf6')
            chk.append(f'v_cmp_ne_u32 vcc, 0, v{tmp}')
        for x in chk: a(x)
        a(f's_cbranch_vccnz {lp}\n{lo}:')
        self.cold += [f'{lp}:', f's_mov_b32 s39, {SPIN}', f'{lc}:'] + list(loads) + ['s_waitcnt vmcnt(0)'] + chk + \
            [f's_cbranch_vccz {lo}', 's_sub_u32 s39, s39, 1', 's_cmp_lg_u32 s39, 0', f's_cbranch_scc1 {lc}', f's_branch {lo}']
    def setflag(self, soff, vtmp):
        return [f'v_mov_b32 v{vtmp}, s24', lambda: self.a.waitall(lg=False), (f's_mov_b32 exec_hi, 0\nbuffer_store_dword v{vtmp}, v6, s[12:15], {soff} offen sc1\ns_mov_b64 exec, -1', 'flag')]

def ln_list(vS, vQ, n, vT, out_negm, out_r):
    return [f'v_mul_f32 v{vS}, {fbits(-1.0/n)}, v{vS}', f'v_mul_f32 v{vQ}, {fbits(1.0/n)}, v{vQ}', f'v_fma_f32 v{vQ}, -v{vS}, v{vS}, v{vQ}',
            f'v_max_f32 v{vQ}, 0, v{vQ}', f'v_cvt_pk_bf16_f32 v{vQ}, 0, v{vQ}', f'v_add_f32 v{vQ}, {fbits(1e-5)}, v{vQ}', f'v_cvt_pk_bf16_f32 v{vQ}, 0, v{vQ}',
            f'v_sqrt_f32 v{vQ}, v{vQ}', f'v_cvt_pk_bf16_f32 v{out_negm}, 0, v{vS}', f'v_cvt_pk_bf16_f32 v{vQ}, 0, v{vQ}', f'v_rcp_f32 v{out_r}, v{vQ}']

def gelu_pk(A, n, vC, vSD, T):
    L = []
    for b in range(0, n, 8):
        P = [A + b + 2*i for i in range(4)]; Q = [T + 2*i for i in range(4)]
        for p, q in zip(P, Q): L.append(f'v_pk_mul_f32 {vr(q,2)}, {vr(p,2)}, {vr(p,2)}')
        for q in Q: L.append(f'v_pk_fma_f32 {vr(q,2)}, {vr(q,2)}, {vr(vC,2)}, {vr(vC,2)} op_sel:[0,0,1] op_sel_hi:[1,0,1]')
        for p, q in zip(P, Q): L.append(f'v_pk_mul_f32 {vr(q,2)}, {vr(q,2)}, {vr(p,2)}')
        for i in range(8): L.append(f'v_exp_f32 v{T+i}, v{T+i}')
        for q in Q: L.append(f'v_pk_fma_f32 {vr(q,2)}, {vr(q,2)}, {vr(vSD,2)}, {vr(vSD,2)} op_sel_hi:[1,0,0]')
        for i in range(8): L.append(f'v_rcp_f32 v{T+i}, v{T+i}')
        for p, q in zip(P, Q): L.append(f'v_pk_mul_f32 {vr(p,2)}, {vr(p,2)}, {vr(q,2)}')
    return L

def gelu_packed(Z, n, T, vC1):
    L = []
    for b in range(0, n, 2):
        for i in range(2): L += [f'v_lshlrev_b32 v{T+2*i}, 16, v{Z+b+i}', f'v_and_b32 v{T+2*i+1}, s33, v{Z+b+i}']
        for i in range(4): L.append(f'v_mul_f32 v{T+4+i}, v{T+i}, v{T+i}')
        for i in range(4): L.append(f'v_fmaak_f32 v{T+4+i}, v{vC1}, v{T+4+i}, {fbits(C0)}')
        for i in range(4): L.append(f'v_mul_f32 v{T+4+i}, v{T+i}, v{T+4+i}')
        for i in range(4): L.append(f'v_exp_f32 v{T+4+i}, v{T+4+i}')
        for i in range(4): L.append(f'v_add_f32 v{T+4+i}, 1.0, v{T+4+i}')
        for i in range(4): L.append(f'v_rcp_f32 v{T+4+i}, v{T+4+i}')
        for i in range(4): L.append(f'v_mul_f32 v{T+i}, v{T+i}, v{T+4+i}')
        for i in range(2): L.append(f'v_cvt_pk_bf16_f32 v{Z+b+i}, v{T+2*i}, v{T+2*i+1}')
    return L

def stream_emit(a, items, nbar, D, hook=None, always=False, skip=()):
    comp = {}
    for i, it in enumerate(items):
        if it[2] is not None: comp[it[2]] = i + 1
    DD = D if callable(D) else (lambda b: D)
    nb = 0
    def bar(n):
        nonlocal nb
        c = max([comp.get(b, 0) for b in range(nb + 1)])
        assert c <= n, (nb, c, n)
        if hook: hook(nb, -1)
        if c or always: a.L.append(f's_waitcnt vmcnt({min(63, n - c)})')
        if hook: hook(nb, 0)
        if nb not in skip: a.L.append('s_barrier')
        if hook: hook(nb, 1)
        nb += 1
    for i, (setup, ld, cb, need) in enumerate(items):
        while need is not None and nb <= need: bar(i)
        for x in setup:
            if callable(x): x()
            else: a.L.append(x)
        a.L.append(ld)
        while nb < nbar and nb in comp and i + 1 >= comp[nb] + DD(nb): bar(i + 1)
    while nb < nbar: bar(len(items))

def grp(m0, soff_setup, vbase, srd_, soff, same=False, cb=None, need=None, fl='', mreg='s19'):
    L = []
    for i in range(4):
        su = ([f's_add_u32 m0, {mreg}, {m0}'] + (soff_setup or ['s_nop 0'])) if i == 0 else []
        L.append((su, f'buffer_load_dwordx4 v{vbase if same else vbase+i}, {srd_}, {soff} offen offset:{1024*i} {fl} lds', cb, need if i == 0 else None))
    return L

def rowoffs(a, d, rowbase, sh, colbase=None):
    st = 1 << sh
    a(f"""v_lshrrev_b32 v24, 3, v0
v_add_u32 v24, {rowbase}, v24
v_lshlrev_b32 v24, {sh}, v24
v_and_b32 v25, 7, v0
v_lshrrev_b32 v26, 4, v0
v_xor_b32 v25, v25, v26
v_lshl_add_u32 v{d}, v25, 4, v24""")
    if colbase: a(f'v_add_u32 v{d}, {colbase}, v{d}')
    a(f'v_xor_b32 v{d+1}, 64, v{d}\nv_add_u32 v{d+1}, {8*st-1024}, v{d+1}\nv_add_u32 v{d+2}, {16*st-2048}, v{d}\nv_add_u32 v{d+3}, {16*st-2048}, v{d+1}')

def troffs(a, d, stride, colbase):
    a(f"""v_lshrrev_b32 v24, 3, v0
v_mul_u32_u24 v24, {stride}, v24
v_bfe_u32 v25, v0, 4, 1
v_lshlrev_b32 v25, 2, v25
v_and_b32 v26, 7, v0
v_xor_b32 v25, v25, v26
v_lshl_add_u32 v24, v25, 4, v24
v_add_u32 v{d}, {colbase}, v24""")
    for i in range(1, 4): a(f'v_add_u32 v{d+i}, {8*stride-1024}, v{d+i-1}')

def rowread_list(d, t, base):
    return [f'v_lshrrev_b32 v{t}, 5, v0', f'v_bfe_u32 v{d}, v0, 1, 3', f'v_xor_b32 v{d}, v{d}, v{t}', f'v_lshlrev_b32 v{d}, 4, v{d}',
            f'v_and_b32 v{t}, 31, v0', f'v_lshl_add_u32 v{d}, v{t}, 7, v{d}', f'v_add_u32 v{d}, {base}, v{d}']
def trread_list(d, t):
    return [f'v_lshrrev_b32 v{d}, 5, v0', f'v_bfe_u32 v{t}, v0, 2, 2', f'v_lshl_add_u32 v{d}, v{d}, 3, v{t}', f'v_lshlrev_b32 v{d}, 7, v{d}',
            f'v_bfe_u32 v{t}, v0, 3, 1', f'v_lshl_add_u32 v{d}, v{t}, 6, v{d}', f'v_bfe_u32 v{t}, v0, 4, 1', f'v_lshl_add_u32 v{d}, v{t}, 5, v{d}',
            f'v_and_b32 v{t}, 1, v0', f'v_lshl_add_u32 v{d}, v{t}, 4, v{d}', f'v_bfe_u32 v{t}, v0, 1, 1', f'v_lshl_add_u32 v{d}, v{t}, 3, v{d}']

def cost(x):
    if callable(x): return 4
    t = x[0] if isinstance(x, tuple) else x
    if t.startswith(TRANS): return 8
    if t.startswith('v_mfma_f32_32'): return 32
    if t.startswith('v_mfma'): return 12
    return 4

class SSM:
    CA = 16; PR = 208; DS = 5; FB = [192, 224]
    def __init__(self, g): self.g = g; self.a = g.a
    def param_addr(self):
        P = self.PR
        return ['s_lshl_b32 s31, s2, 9', 's_lshl_b32 s3, s29, 7', 's_add_u32 s31, s31, s3', f'v_lshl_add_u32 v{P+6}, v0, 1, s31',
                's_lshl_b32 s31, s2, 2', f'v_mov_b32 v{P+7}, s31']
    def param_loads(self):
        P = self.PR
        L = [(f'global_load_dword v{P+4}, v{P+7}, s[48:49]', 'prm')]
        for i in range(4): L.append((f'global_load_ushort v{P+i}, v{P+6}, s[{40+2*i}:{41+2*i}]', 'prm'))
        L.append((f'global_load_dword v{self.DS}, v{P+7}, s[50:51]', 'prm'))
        return L
    def kaddr(self):
        A = 216
        L = ['s_lshl_b32 s31, s29, 14', f's_add_u32 s31, s31, {L_SSM}', f'v_bfe_u32 v{A+4}, v0, 1, 2', f'v_lshlrev_b32 v{A+4}, 4, v{A+4}', f'v_lshl_add_u32 v{A+4}, v0, 6, v{A+4}', f'v_add_u32 v{A}, s31, v{A+4}']
        for b in range(1, 4): L.append(f'v_xor_b32 v{A+b}, {16*b}, v{A}')
        R, t, u = A+4, A+6, A+7
        L += ['s_and_b32 s3, s31, 0xffff8000', f'v_bfe_u32 v{t}, v0, 3, 2', f'v_bfe_u32 v{R}, v0, 1, 1', f'v_xor_b32 v{R}, v{R}, v{t}', f'v_lshlrev_b32 v{R}, 4, v{R}',
              f'v_lshrrev_b32 v{t}, 2, v0', f'v_lshl_add_u32 v{R}, v{t}, 6, v{R}', f'v_and_b32 v{u}, 1, v0', f'v_lshl_add_u32 v{R}, v{u}, 3, v{R}', f'v_add_u32 v{R}, s3, v{R}',
              f'v_xor_b32 v{A+5}, 32, v{R}', 's_and_b32 s3, s29, 1', 's_lshl_b32 s31, s3, 5', f'v_xor_b32 v{A+6}, s31, v{R}',
              f'v_cmp_eq_u32 s[58:59], 0, v{u}', f'v_and_b32 v{u}, 16, v0', f'v_cmp_eq_u32 s[46:47], 0, v{u}']
        L += ['s_lshr_b32 s31, s29, 1', f's_mul_i32 s57, s31, {KSTR}', f's_add_u32 s57, s57, {L_K}', 's_lshl_b32 s3, s3, 8', 's_sub_u32 s3, s57, s3',
              f'v_and_b32 v{A+9}, 255, v7', f'v_sub_u32 v{A+9}, s3, v{A+9}', f'v_lshrrev_b32 v{A+10}, 4, v0',
              f'v_lshlrev_b32 v{A+11}, 2, v{A+10}', f'v_sub_u32 v{A+7}, v{A+9}, v{A+11}', f'v_lshlrev_b32 v{A+11}, 9, v{A+10}', f'v_sub_u32 v{A+14}, v{A+9}, v{A+11}',
              f'v_lshrrev_b32 v{A+11}, 5, v0', f'v_lshlrev_b32 v{A+11}, 9, v{A+11}', f'v_sub_u32 v{A+8}, v{A+9}, v{A+11}', f'v_bfe_u32 v{A+11}, v0, 4, 1', f'v_lshlrev_b32 v{A+11}, 3, v{A+11}', f'v_sub_u32 v{A+8}, v{A+8}, v{A+11}',
              f'v_min_u32 v{A+9}, 39, v0', f'v_lshl_add_u32 v{A+9}, v{A+9}, 4, s57'] + [f'v_mov_b32 v{A+10+i}, 0' for i in range(4)]
        L.append((f'ds_write_b128 v{A+9}, {vr(A+10,4)} offset:4096', 'kt'))
        return L
    def kgen(self):
        a = self.a; P = self.PR; A = 216
        E1, E8, E64, E256, Cc, E2 = 128, 130, 132, 134, 136, 138
        t = 140
        Lhi = f32(LOG2E); Llo = LOG2E - Lhi
        def exp_acc(d, x, t0, t1):
            return [f'v_mul_f32 v{t0}, s40, v{x}', f'v_fma_f32 v{t1}, v{x}, s40, -v{t0}', f'v_fma_f32 v{t1}, v{x}, s41, v{t1}',
                    f'v_exp_f32 v{t0}, v{t0}', f'v_mul_f32 v{t1}, s42, v{t1}', f'v_fma_f32 v{d}, v{t0}, v{t1}, v{t0}']
        L = [f's_mov_b32 s40, {fbits(Lhi)}', f's_mov_b32 s41, {fbits(Llo)}', f's_mov_b32 s42, {fbits(math.log(2))}',
             's_lshr_b32 s31, s29, 1', 's_lshl_b32 s31, s31, 4', lambda: a.waitvm('prm'), lambda: self.g.stamp(17), f'v_lshrrev_b32 v{P+4}, s31, v{P+4}']
        for i in range(5): L.append(f'v_lshlrev_b32 v{P+i}, 16, v{P+i}')
        for x, y in zip(exp_acc(P+4, P+4, t, t+1), exp_acc(P, P, t+2, t+3)): L += [x, y]
        L += [f'v_cvt_pk_bf16_f32 v{P+4}, v{P}, v{P+4}', f'v_lshlrev_b32 v{P}, 16, v{P+4}', f'v_and_b32 v{P+4}, s33, v{P+4}']
        for i in range(4): L.append(f'v_mul_f32 v{P+i}, v{P+i}, v{P+4}')
        L += [f'v_mul_f32 v{t}, {fbits(-LOG2E)}, v{P}', f'v_mul_f32 v{t+4}, 0.15915494, v{P+1}', f'v_add_f32 v{Cc}, v{P+2}, v{P+2}', f'v_add_f32 v{Cc+1}, v{P+3}, v{P+3}']
        for k, p in enumerate([8.0, 64.0, 256.0]): L += [f'v_mul_f32 v{t+1+k}, {fbits(p)}, v{t}', f'v_mul_f32 v{t+5+k}, {fbits(p)}, v{t+4}']
        for k in range(4): L += [f'v_exp_f32 v{t+k}, v{t+k}', f'v_fract_f32 v{t+4+k}, v{t+4+k}']
        for k in range(4): L += [f'v_cos_f32 v{E1+2*k}, v{t+4+k}', f'v_sin_f32 v{E1+1+2*k}, v{t+4+k}']
        for k in range(4): L += [f'v_mul_f32 v{E1+2*k}, v{t+k}, v{E1+2*k}', f'v_mul_f32 v{E1+1+2*k}, v{t+k}, v{E1+1+2*k}']
        fk = lambda i: (lambda: self.g.stamp(i, True) if self.g.opt.get('fine') == 'kg' else None)
        L.append(fk(3))
        O = 140
        def cm(jobs):
            R = []
            for d, x, y in jobs: R.append(f'v_pk_mul_f32 {vr(d,2)}, {vr(x,2)}, {vr(y,2)} op_sel_hi:[1,0]')
            for d, x, y in jobs: R.append(f'v_pk_fma_f32 {vr(d,2)}, {vr(x,2)}, {vr(y,2)}, {vr(d,2)} op_sel:[1,1,0] op_sel_hi:[0,1,1] neg_lo:[1,0,0]')
            return R
        cnt = [0]
        def pack(vals, blk, plane, neg):
            o = O + 8 * (cnt[0] & 1); cnt[0] += 1
            R = []
            for i in range(4): R.append(f'v_cvt_pk_bf16_f32 v{o+i}, v{vals[2*i]}, v{vals[2*i+1]}')
            R.append((f'ds_write_b128 v{A+blk}, {vr(o,4)} offset:{plane*4096}', 'kt'))
            s = '-' if neg else ''
            for i in range(4): R.append(f'v_cvt_pk_bf16_f32 v{o+4+i}, {s}v{vals[2*i]+1}, {s}v{vals[2*i+1]+1}')
            R.append((f'ds_write_b128 v{A+blk}, {vr(o+4,4)} offset:{plane*4096+4096}', 'kt'))
            return R
        B = [156 + 2*i for i in range(26)]
        fa = B[0:8]; fb = B[8:16]; g = [Cc] + B[16:24]
        fa0 = [fa[0], E8] + fa[2:]
        L += [f'v_mov_b32 v{fa[0]}, 1.0', f'v_mov_b32 v{fa[0]+1}, 0']
        L += cm([(fa[2], E8, E8), (g[1], Cc, E1), (E2, E1, E1), (g[8], Cc, E8)])
        L += cm([(fa[3], fa[2], E8), (fa[4], fa[2], fa[2]), (g[2], Cc, E2), (g[3], g[1], E2)])
        L += cm([(fa[5], fa[4], E8), (fa[6], fa[4], fa[2]), (fa[7], fa[4], fa[3]), (g[4], g[2], E2), (g[5], g[3], E2)])
        L += pack(fa0, 0, 2, False)
        fb0 = [E64] + fb[1:]
        L += cm([(g[6], g[4], E2), (g[7], g[5], E2)] + [(fb[i], fa0[i], E64) for i in range(1, 8)])
        L += cm([(fa[i], fb0[i], E64) for i in range(8)])
        L += pack(fb0, 1, 2, False)
        L += cm([(fb[i], fa[i], E64) for i in range(8)])
        L += pack(fa, 2, 2, False)
        h0, h2, h4, h6, h8, i0, i4, i8 = B[0:8]
        j0, j4, j8, k0, k8, l0, l8 = B[8:15]
        L += cm([(h0, g[0], E256), (h2, g[2], E256), (h4, g[4], E256), (h6, g[6], E256), (h8, g[8], E256), (E2, E256, E256)])
        L += pack(fb, 3, 2, False)
        L += cm([(i0, g[0], E2), (i4, g[4], E2), (i8, g[8], E2), (j0, h0, E2), (j4, h4, E2), (j8, h8, E2)])
        L += pack([g[0], g[1], h0, h0, g[2], g[3], h2, h4], 0, 0, True)
        m0, m8, n0, n8 = g[1], g[2], g[3], B[15]
        L += cm([(k0, i0, E2), (k8, i8, E2), (l0, j0, E2), (l8, j8, E2)])
        L += pack([g[4], g[5], h4, h4, g[6], g[7], h6, h8], 1, 0, True)
        L += cm([(m0, k0, E2), (m8, k8, E2), (n0, l0, E2), (n8, l8, E2)])
        L += pack([i0, i4, k0, k8, i4, i8, l0, l8], 2, 0, True)
        L += pack([j0, j4, m0, m8, j4, j8, n0, n8], 3, 0, True)
        L.append(fk(4))
        if self.g.opt.get('lk'):
            def hs():
                lp = a.newlab('khs')
                a(f's_lshl_b32 s31, s29, 2\ns_add_u32 s31, s31, {L_CS + 2048}\nv_mov_b32 v128, s31\nv_xor_b32 v129, 4, v128')
                a('ds_write_b32 v128, v128')
                a(f'{lp}:'); a('ds_read_b32 v130, v129'); a.waitall(vm=False)
                a(f'v_cmp_eq_u32 vcc, 0, v130\ns_cbranch_vccnz {lp}')
            L.append(hs)
        else: L.append(BAR)
        L.append(fk(5))
        D = 128; FR = 136
        def rd(j):
            o = 16384 * (j // 4) + 1024 * (j % 4); b = FR + 12 * (j % 5)
            return [(f'ds_read_b64_tr_b16 {vr(b+4*k+2*p,2)}, v{A+(6,4,5)[k]} offset:{o + 4096*p + (8192 if k == 0 else 0)}', f'kr{j}') for k in range(3) for p in range(2)]
        KA2 = self.g.opt.get('ka', 2)
        for j in range(KA2): L += rd(j)
        for j in range(8):
            b = FR + 12 * (j % 5); nx = rd(j+KA2) if j + KA2 < 8 else []
            L += nx[:3]
            L.append(lambda j=j: a.waitlg(f'kr{j}'))
            L.append(f'v_mfma_f32_16x16x32_bf16 {vr(D,4)}, {vr(b+4,4)}, {vr(b,4)}, {"0" if j == 0 else vr(D,4)}')
            L += nx[3:]
            L.append(f'v_mfma_f32_16x16x32_bf16 {vr(D+4,4)}, {vr(b+8,4)}, {vr(b,4)}, {"0" if j == 0 else vr(D+4,4)}')
        L.append(fk(6))
        O = 196
        L += [f'v_cvt_pk_bf16_f32 v{O}, v{D+1}, v{D}', f'v_cvt_pk_bf16_f32 v{O+1}, v{D+3}, v{D+2}',
              f'v_cndmask_b32 v{O+2}, v{D+5}, v{D+4}, s[46:47]', f'v_cndmask_b32 v{O+5}, v{D+7}, v{D+6}, s[58:59]',
              f'v_cvt_pk_bf16_f32 v{O+4}, v{D+7}, v{D+7}', f'v_cvt_pk_bf16_f32 v{O+5}, v{D+7}, v{O+5}', f'v_cvt_pk_bf16_f32 v{O+6}, v{D+6}, v{D+6}', f'v_cvt_pk_bf16_f32 v{O+7}, v{D+6}, v{D+6}',
              (f'ds_write_b128 v{A+14}, {vr(O+4,4)} offset:{4080-2048}', 'kw'),
              f'v_cvt_pk_bf16_f32 v{O+2}, v{D+5}, v{O+2}', f'v_cvt_pk_bf16_f32 v{O+3}, v{D+4}, v{D+4}',
              (f'ds_write_b64 v{A+8}, {vr(O+2,2)} offset:{4088-1024}', 'kw'),
              (f'ds_write_b32 v{A+7}, v{O} offset:4092', 'kw'), (f'ds_write_b32 v{A+7}, v{O+1} offset:{4092-512}', 'kw')]
        return L
    UA = 13; KA_ = 15
    def ubuild(self, R, T, O, TL):
        a = self.a
        ld = ['s_lshl_b32 s31, s29, 11', f'v_lshl_add_u32 v{TL}, v0, 5, s31', 's_lshl_b32 s31, s2, 13', f's_add_u32 s31, s31, {WS_XNT - 16}']
        ld += [(f'buffer_load_dwordx4 {vr(R+4*k,4)}, v{TL}, s[12:15], s31 offen offset:{16*k} {self.g.opt.get("rawf", "sc1").replace("-", "")}', 'raw') for k in range(3)]
        if self.g.opt.get('r2'):
            ld[-3] = (f's_mov_b64 exec, 1\n{ld[-3][0]}\ns_mov_b64 exec, -1', 'raw')
        ad = ['s_mov_b32 s44, 0x05040100', 's_mov_b32 s45, 0x07060302'] + [f'v_mov_b32 v{T+4+k}, 0' for k in range(4)]
        ad += ['s_lshr_b32 s31, s29, 1', f's_mul_i32 s46, s31, {UGRP}', f's_add_u32 s46, s46, {L_U}', 's_and_b32 s47, s29, 1',
               f'v_lshrrev_b32 v{T+2}, 5, v0', f'v_mul_u32_u24 v{T+2}, {USTR}, v{T+2}', f'v_and_b32 v{T+3}, 31, v0', f'v_min_u32 v{T+3}, 23, v{T+3}',
               f's_mul_i32 s31, s47, {2*USTR}', 's_add_u32 s31, s31, s46', f'v_lshl_add_u32 v{T+3}, v{T+3}, 4, v{T+2}', f'v_add_u32 v{T+3}, s31, v{T+3}',
               's_lshl_b32 s31, s29, 10', f's_add_u32 s31, s31, {L_U + 384}', f'v_add_u32 v{T+1}, s31, v7',
               's_cmp_eq_u32 s29, 0\ns_cselect_b32 s31, 0, -1', f'v_cmp_eq_u32 s[58:59], s31, v0']
        L = [(f'ds_write_b128 v{T+3}, {vr(T+4,4)}', 'uw'), lambda: a.waitvm('raw')]
        for k in range(1, 4): L.append(f'v_cndmask_b32 v{R+k}, v{R+k}, v{T+4}, s[58:59]')
        if self.g.opt.get('r2'):
            for k in range(1, 4): L.append(f'v_mov_b32_dpp v{R+k}, v{R+8+k} wave_shr:1 row_mask:0xf bank_mask:0xf')
        for dl in range(2):
            for e in range(4):
                d = O + 4 * (e & 1)
                for k in range(4): L.append(f'v_perm_b32 v{d+k}, v{R+4+2*k+e-2}, v{R+4+2*k+e-3}, s{44+dl}')
                L.append((f'ds_write_b128 v{T+1}, {vr(d,4)} offset:{dl*UGRP+e*USTR}', 'uw'))
        ca = [f'v_and_b32 v{T}, 3, v0', f'v_mul_u32_u24 v{T}, {USTR}, v{T}', f'v_bfe_u32 v{T+2}, v0, 2, 2', f'v_lshl_add_u32 v{T}, v{T+2}, 7, v{T}',
              f'v_and_b32 v{T+2}, 48, v0', f'v_add3_u32 v{self.UA}, v{T}, v{T+2}, s46', 's_lshl_b32 s3, s47, 9',
              's_sub_u32 s31, s57, s3', 's_add_u32 s31, s31, 632', f'v_and_b32 v{T}, 15, v0', f'v_lshlrev_b32 v{T}, 3, v{T}', f'v_sub_u32 v{T}, v{T+2}, v{T}', f'v_add_u32 v{self.KA_}, s31, v{T}']
        return ld, ad, L, ca
    def conv(self):
        a = self.a; CA = self.CA
        FB = self.FB
        def reads(n):
            r, par = divmod(n, 2)
            L = []
            for i in range(4):
                kk = 3 - i
                pp = 2*kk + 1 - par
                if i == 0: L.append((f'ds_read_b128 {vr(FB[n&1],4)}, v{self.UA} offset:{512*par+64*r}', f't{n}_0'))
                for h in range(2): L.append((f'ds_read_b64 {vr(FB[n&1]+16+4*kk+2*h,2)}, v{self.KA_} offset:{3584 - 512*pp + 64*r + 8*h}', f'k{n}_{kk}'))
            for i in range(1, 4): L.append((f'ds_read_b128 {vr(FB[n&1]+4*i,4)}, v{self.UA} offset:{512*(2*i+par)+64*r}', f't{n}_{i}'))
            return L
        G_ = []
        for n in range(16):
            nx = reads(n+1) if n < 15 else []
            m = 0
            for i in range(4):
                for kk in (range(3 - i, -1, -1) if not (self.g.opt.get('csn', 1) and i & 1) else range(0, 4 - i)):
                    A = i + kk
                    tags = [f't{n}_{i}', f'k{n}_{kk}']
                    c = '0' if (n == 0 and i == 0) else vr(CA+4*A, 4)
                    g = [lambda tags=tags: a.waitlg(tags), f'v_mfma_f32_16x16x32_bf16 {vr(CA+4*A,4)}, {vr(FB[n&1]+4*i,4)}, {vr(FB[n&1]+16+4*kk,4)}, {c}']
                    k = int(self.g.opt.get('cr', '2222111100')[m])
                    g += nx[:k]; nx = nx[k:]; m += 1
                    G_.append(g)
            assert not nx
        return reads(0), G_
    def finish(self):
        a = self.a; CA = self.CA; R, T = self.FB
        L = ['s_lshl_b32 s3, s47, 9', f's_add_u32 s31, s46, {3*USTR + 384}', 's_add_u32 s31, s31, s3', f'v_lshlrev_b32 v{T+1}, 3, v0', f'v_add_u32 v{T}, s31, v{T+1}']
        for k in range(4): L.append((f'ds_read_b64 {vr(R+16+2*k,2)}, v{T} offset:{1024*k}', f'ur{k}'))
        L += ['s_lshr_b32 s31, s29, 1', 's_lshl_b32 s55, s2, 1', 's_add_u32 s55, s55, s31', 's_lshl_b32 s56, s55, 12', 's_add_u32 s56, s56, s3', f's_add_u32 s56, s56, {WS_ST}',
              's_add_u32 s55, s55, s3', 's_lshl_b32 s55, s55, 7', f's_add_u32 s60, s55, {FS}',
              's_lshl_b32 s31, s31, 4', f'v_lshrrev_b32 v{T+2}, s31, v{self.DS}', f'v_lshlrev_b32 v{T+2}, 16, v{T+2}']
        for k in range(4):
            L.append(lambda k=k: a.waitlg(f'ur{k}'))
            for j in range(2): L += [f'v_lshlrev_b32 v{R+4*k+2*j}, 16, v{R+16+2*k+j}', f'v_and_b32 v{R+4*k+2*j+1}, s33, v{R+16+2*k+j}']
            for j in range(4): L.append(f'v_fmac_f32 v{CA+4*k+j}, v{R+4*k+j}, v{T+2}')
            for j in range(2): L.append(f'v_cvt_pk_bf16_f32 v{T+4+2*k+j}, v{CA+4*k+2*j}, v{CA+4*k+2*j+1}')
            L.append((f'buffer_store_dwordx2 {vr(T+4+2*k,2)}, v{T+1}, s[12:15], s56 offen offset:{1024*k} sc1', 'sst'))
        return L, self.g.setflag('s60', T+3)

def emit_plain(a, L):
    n = 0
    for x in L:
        if x is BAR:
            a.waitall(vm=False); a('s_barrier'); n += 1
        else: a.emit([x])
    return n


def sizes_of(lines):
    import subprocess, tempfile, os
    d = tempfile.mkdtemp()
    open(d + '/t.s', 'w').write('.amdgcn_target "amdgcn-amd-amdhsa--gfx950"\n' + '\n'.join(lines) + '\n')
    r = subprocess.run(['llvm-mc', '-triple=amdgcn-amd-amdhsa', '-mcpu=gfx950', '-show-encoding', d + '/t.s'], capture_output=True, text=True)
    assert r.returncode == 0, r.stderr[:2000]
    enc = [len(l.split('encoding: [')[1].split(']')[0].split(',')) for l in r.stdout.split('\n') if 'encoding: [' in l]
    idx = [i for i, l in enumerate(lines) if Ins(l).is_ins]
    assert len(enc) == len(idx), (len(enc), len(idx))
    return dict(zip(idx, enc))

def finalize(a, name, opt):
    if opt.get('jit'):
        N = []; n = 0
        for x in a.L:
            N.append(x)
            if x.strip() == 's_barrier':
                n += 1
                lb = f'jit_{n}'
                N += ['s_cselect_b32 s101, 1, 0', 's_memtime s[98:99]', 's_waitcnt lgkmcnt(0)', f's_lshr_b32 s98, s98, {2 + n % 3}', f's_and_b32 s98, s98, {opt["jit"]}',
                      's_cmp_lg_u32 s98, 0', f's_cbranch_scc1 {lb}', f's_sleep {(8, 24, 60)[n % 3]}', f'{lb}:', 's_cmp_eq_u32 s101, 1']
        a.L = N
    if opt.get('emu16'):
        import re
        N = []; cnt = {}; g3 = False
        for x in a.L:
            if x.endswith('g3comp:'): g3 = True
            m = re.match(r'v_mfma_f32_32x32x16_bf16 v\[(\d+):\d+\], (\S+), (\S+), (\S+)', x)
            if m and (opt['emu16'] & (2 if g3 else 1)):
                d = int(m.group(1)); k = cnt.get(d, 0); cnt[d] = k + 1
                qs = range(4) if m.group(4) == '0' else (2*(k&1), 2*(k&1)+1)
                for q in qs: N.append(f'v_mfma_f32_16x16x32_bf16 {vr(d+4*q,4)}, {m.group(2)}, {m.group(3)}, {"0" if m.group(4) == "0" else vr(d+4*q,4)}')
            else: N.append(x)
        a.L = N
    L, _ = pad_hazards([x for x in a.L], opt.get('verbose'))
    warm = [i for i, x in enumerate(L) if x == '@WARM@']
    base = [x if x != '@WARM@' else '' for x in L]
    sz = sizes_of(base)
    start = base.index('.p2align 12')
    out = base[:start + 1]; addr = 0; pads = []
    stop = base.index(f'{name}_tcomp:')
    n = len(base); i = start + 1
    E64 = ('v_add_f32', 'v_mul_f32', 'v_sub_f32', 'v_lshlrev_b32', 'v_and_b32', 'v_xor_b32', 'v_or_b32', 'v_mov_b32', 'v_exp_f32', 'v_rcp_f32', 'v_add_u32', 'v_max_f32',
           'v_lshrrev_b32', 'v_sqrt_f32', 'v_fmac_f32', 'v_max_u32', 'v_min_u32', 'v_sin_f32', 'v_cos_f32', 'v_fract_f32')
    while i < n:
        ln = base[i]
        if i in sz:
            if addr >= 4096 * (len(pads) + 1) and i < stop and not opt.get('nopad'):
                lb = f'{name}_pad{len(pads)}'; pads.append(lb)
                out.append(f'{lb}:'); out.append(f'@PAD{len(pads)-1}@'); addr += 4
            s = sz[i]
            if s == 4 and not opt.get('noalign') and (addr + 4) % 8 == 4:
                j = i + 1; run = 0; mf = 0
                while j < n and (j not in sz or sz[j] == 8):
                    if j in sz:
                        run += 1; mf += base[j].startswith('v_mfma')
                    j += 1
                mn = ln.split()[0]
                if run >= 3 and mn in E64:
                    ln = ln.replace(mn, mn + '_e64', 1); s = 8
                elif run >= 10 and mf == 0:
                    out.append('s_nop 0'); addr += 4
            addr += s
        out.append(ln); i += 1
    res = []; wi = 0
    for k, x in enumerate(out):
        if x.startswith('@PAD'):
            p = int(x[4:-1])
            res.append(f's_cbranch_execz {name + "_warmret0" if p < 2 else pads[p+2] if p + 2 < len(pads) else name + "_warmret1"}')
        elif k in warm and pads:
            res += ['s_mov_b64 exec, 0', 's_cmp_eq_u32 s18, 0', f's_cbranch_scc1 {pads[2*wi]}', f's_branch {pads[2*wi+1]}', f'{name}_warmret{wi}:', 's_mov_b64 exec, -1']
            wi += 1
        else: res.append(x)
    if opt.get('stf'): res = [x.replace(' sc1', ' ' + opt['stf'].replace('_', ' ')) if x.startswith('buffer_store') else x for x in res]
    if opt.get('ldf'): res = [x.replace(' sc1 lds', ' ' + opt['ldf'].replace('_', ' ').replace('-', '') + ' lds') if x.startswith('buffer_load') else x for x in res]
    return '\n'.join(res) + '\n'

def fused(name, opt):
    g = G(name, opt); a = g.a; ssm = SSM(g); stamp = g.stamp
    nb = {'gl': 0, 'gc': 0, 'tl': 0, 'tc': 0}
    rlx = opt.get('rlx', 0); bi = opt.get('bi', 1)
    OWN = opt.get('own', 1); ZN = opt.get('zn', 5); ZX = ZN - 4; ZS = lambda k: (k + 2*OWN + ZX) % ZN - ZX
    NR = opt.get('nr', 4); M16 = opt.get('m16', 1)
    if NR == 8: ssm.FB = [32, 64]
    rp = opt.get('rpat', 'SSSSSSSSRSSSSRSSSSRSSSSRSSSSSSSS' if NR == 4 else 'SSSSSSRSRSSRSSRSSRSSRSSRSSRSSSSS')
    pat = ''
    while len(pat) < 32:
        ch = rp[len(pat) % len(rp)]
        pat += ch if pat.count('R') < NR else 'S'
    RPOS = [k for k in range(32) if pat[k] == 'R']; SPOS = [k for k in range(32) if pat[k] == 'S']
    MEM = {k: r for r, k in enumerate(RPOS)}; MEM.update({k: NR + s for s, k in enumerate(SPOS)})
    SIDX = {k: s for s, k in enumerate(SPOS)}
    assert OWN and not rlx and min(ZS(k) for k in range(28, 32)) >= 0
    assert len(SPOS) % 4 == 0 and SPOS[-4:] == [28, 29, 30, 31]
    W3 = [(0, 29), (8192, 29), (L_Z + 8192*ZS(28), 29), (16384, 30), (24576, 30), (L_Z + 8192*ZS(29), 30), (32768, 31), (40960, 31), (L_Z + 8192*ZS(30), 31),
          (147456, 31), (155648, 31), (49152, 32), (57344, 32), (L_Z + 8192*ZS(31), 32)]
    W3LOC = [x[0] for x in W3]
    kernel_begin(a, name)
    lab = lambda s: f'{name}_{s}'
    a(f's_cmp_ge_u32 s2, 256\ns_cbranch_scc1 {lab("done")}')
    if opt.get('prof') or opt.get('dbg') or opt.get('span'): a('s_memrealtime s[62:63]\ns_memtime s[66:67]')
    a(f's_load_dwordx2 s[4:5], s[0:1], {KA["u"]}\ns_load_dwordx2 s[12:13], s[0:1], {KA["ws"]}')
    a('''v_lshrrev_b32 v1, 6, v0
s_and_b32 s24, s2, 7
s_bfe_u32 s25, s2, 0x20003
v_readfirstlane_b32 s29, v1
s_lshr_b32 s26, s24, 1
s_lshl_b32 s26, s26, 2
s_add_u32 s26, s26, s25
@CDEC@
s_and_b32 s30, s24, 1
s_mul_i32 s28, s30, 7
s_add_u32 s28, s28, s27
v_and_b32 v0, 63, v0''')
    i_ = a.L.index('@CDEC@')
    a.L[i_:i_+1] = ['s_add_u32 s27, s2, 224', 's_bfe_u32 s27, s27, 0x30005'] if opt.get('tfirst') else ['s_lshr_b32 s27, s2, 5']
    lk = opt.get('lk', 0)
    if lk:
        a(f's_lshl_b32 s31, s29, 2\ns_add_u32 s31, s31, {L_CS + 2048}\nv_mov_b32 v2, s31\nv_mov_b32 v3, 0')
        a.L.append('ds_write_b32 v2, v3')
    a(f's_cmp_ge_u32 s29, 4\ns_cbranch_scc1 {lab("help")}')
    a(f's_load_dwordx8 s[40:47], s[0:1], {KA["logA"]}\ns_load_dwordx4 s[48:51], s[0:1], {KA["logdt"]}')
    a(f's_load_dwordx2 s[18:19], s[0:1], {KA["bsp"]}\ns_load_dwordx2 s[20:21], s[0:1], {KA["out"]}')
    a.emit(ssm.param_addr())
    a(f's_lshl_b32 s35, s26, 2\ns_add_u32 s35, s35, s29\ns_mul_i32 s54, s35, 57344\ns_lshl_b32 s31, s28, 12\ns_add_u32 s54, s54, s31\ns_add_u32 s54, s54, {WS_HF}')
    if opt.get('hcl', 't') == 'g': a('v_lshlrev_b32 v7, 4, v0\nv_mov_b32 v8, -1\nv_mov_b32 v9, -1\nv_mov_b32 v10, -1\nv_mov_b32 v11, -1')
    a('s_waitcnt lgkmcnt(0)')
    tagload = f's_add_u32 s16, s12, {WS_EPOCH}\ns_addc_u32 s17, s13, 0\ns_load_dword s24, s[16:17], 0'
    tagmake = 's_waitcnt lgkmcnt(0)\ns_mul_i32 s24, s24, 0x19660d\ns_add_u32 s24, s24, 0x3c6ef35f'
    a.emit(ssm.param_loads())
    if lk: a('s_barrier')
    a(tagload)
    a(f's_cmp_eq_u32 s27, 7\ns_cbranch_scc1 {lab("tcomp")}')
    hcl = opt.get('hcl', 't')
    if hcl == 'g':
        a(f's_and_b32 s13, s13, 0xffff\ns_mov_b32 s14, {hex(WS_BYTES)}\ns_mov_b32 s15, 0x20000')
        for q in range(4): a(f'buffer_store_dwordx4 v[8:11], v7, s[12:15], s54 offen offset:{1024*q} sc1')
    a(f's_branch {lab("comp")}')
    a(f'{lab("help")}:')
    a(f's_load_dwordx2 s[8:9], s[0:1], {KA["win"]}\ns_load_dwordx2 s[20:21], s[0:1], {KA["wsp"]}\ns_load_dwordx2 s[36:37], s[0:1], {KA["wout"]}')
    if opt.get('lp'): a(f's_setprio {opt["lp"]}')
    a('s_and_b32 s18, s29, 1\ns_lshl_b32 s19, s18, 12')
    srdc = f's_mov_b32 s14, {hex(WS_BYTES)}\ns_mov_b32 s15, 0x20000\ns_mov_b32 s6, 0x200000\ns_mov_b32 s7, 0x20000'
    a(srdc)
    if not opt.get('nocpf'):
        a(f's_getpc_b64 s[56:57]\n{lab("pc")}:\ns_lshr_b32 s31, s2, 2\ns_and_b32 s31, s31, 62\ns_add_u32 s31, s31, s18\nv_and_b32 v1, 7, v0\nv_lshlrev_b32 v1, 6, v1\nv_add_lshl_u32 v1, v1, s31, 7\nv_min_u32 v1, {lab("done")}-{lab("pc")}, v1')
        a('global_load_dword v31, v1, s[56:57]')
    if lk: a(f's_cmp_eq_u32 s27, 7\ns_cbranch_scc0 {lab("gload")}\ns_barrier\ns_branch {lab("thelp")}\n{lab("gload")}:')
    else: a(f's_cmp_eq_u32 s27, 7\ns_cbranch_scc1 {lab("thelp")}')

    def rot3(r):
        sm, sn = opt.get('sm3', 0), opt.get('sn3', 0)
        a(f's_mul_i32 s{r}, s25, {sm}\ns_mul_i32 s31, s27, {sn}\ns_add_u32 s{r}, s{r}, s31\ns_lshr_b32 s{r}, s{r}, 4\ns_sub_u32 s31, s{r}, 14\ns_cmp_ge_u32 s{r}, 14\ns_cselect_b32 s{r}, s31, s{r}')
    def late_loader_setup():
        a(f's_mov_b32 s22, 0x800000\ns_mov_b32 s23, 0x20000\ns_mov_b32 s38, {896*1024}\ns_mov_b32 s39, 0x20000')
        a('s_and_b32 s21, s21, 0xffff\ns_and_b32 s37, s37, 0xffff\ns_and_b32 s13, s13, 0xffff')
        a('v_lshl_add_u32 v14, v0, 4, s19\nv_lshlrev_b32 v15, 7, v0')
        a('s_lshl_b32 s31, s27, 7\ns_lshl_b32 s3, s18, 15\ns_add_u32 s31, s31, s3'); troffs(a, 16, 1024, 's31')
        a('s_lshl_b32 s32, s26, 1\ns_add_u32 s32, s32, s30\ns_lshl_b32 s3, s32, 6'); rowoffs(a, 20, 's3', 10, 's31')
        a(f's_lshl_b32 s35, s2, 13')
        a(f's_lshr_b32 s31, s2, 7\ns_lshl_b32 s31, s31, 13\ns_add_u32 s59, s31, s19\ns_add_u32 s59, s59, {FX}\nv_and_b32 v32, 0xfff, v15')
        if hcl == 't': a(f'v_min_u32 v33, {3*128}, v15\ns_lshl_b32 s31, s26, 9\ns_add_u32 s31, s31, {FH}')
        else:
            a(f'v_min_u32 v33, 13, v0\nv_lshlrev_b32 v33, 13, v33\ns_lshl_b32 s31, s32, 1\ns_add_u32 s31, s31, s18\ns_lshl_b32 s31, s31, 7\ns_add_u32 s31, s31, {FZ}')
        a(f"""v_add_u32 v33, s31, v33
s_lshl_b32 s31, s27, 13
s_bfe_u32 s3, s26, 0x10001
s_lshl_b32 s3, s3, 16
s_add_u32 s31, s31, s3
s_add_u32 s31, s31, s19
s_add_u32 s61, s31, {FS}
v_mov_b32 v36, -1
v_mov_b32 v37, -1
v_mov_b32 v38, -1
v_mov_b32 v39, -1
v_mov_b32 v34, 0
v_lshlrev_b32 v44, 2, v0
s_lshl_b32 s31, s27, 18
s_lshl_b32 s3, s18, 17
s_add_u32 s31, s31, s3
s_lshl_b32 s3, s32, 7
s_add_u32 s31, s31, s3
s_add_u32 s31, s31, {WS_ST}""")
        troffs(a, 40, 4096, 's31')
    def adv(r): return [f's_add_u32 s{r}, s{r}, 1', f's_cmp_eq_u32 s{r}, 14', f's_cselect_b32 s{r}, 0, s{r}']
    def w3(j, need=None): return grp(W3LOC[j], [f's_mov_b32 s56, {j << 16}'], 16, 's[36:39]', 's56', need=need)
    vat = opt.get('vat', 'ssssaaaa').replace('-', ''); NV = len(vat); xat = opt.get('xat', 'a').replace('-', ''); assert NV <= 12 and (NV or not xat)
    def vload(where, pace=None):
        for j in range(14 - NV, 14):
            if vat[j - 14 + NV] != where: continue
            a(f's_mov_b32 s56, {j << 16}')
            for i in range(4): a.L.append(f'buffer_load_dwordx4 {vr(256 - 16*(14-j) + 4*i, 4)}, v{16+i}, s[36:39], s56 offen offset:{1024*i}')
            if pace is not None: a(f's_waitcnt vmcnt({pace})')
        if xat == where:
            for i in range(4): a.L.append(f'buffer_load_dwordx4 {vr(48 + 4*i, 4)}, v{20+i}, s[4:7], 0 offen offset:{1024*i}')
    def vstore():
        if xat:
            a(f'v_add_u32 v1, {L_X3}, v14')
            for i in range(4): a.L.append(f'ds_write_b128 v1, {vr(48 + 4*i, 4)} offset:{1024*i}')
        a(f'v_add_u32 v1, {L_Z}, v14')
        for j in range(14 - NV, 14):
            w = W3LOC[j]; hi = w >= L_Z
            for i in range(4): a.L.append(f'ds_write_b128 v{1 if hi else 14}, {vr(256 - 16*(14-j) + 4*i, 4)} offset:{w - L_Z*hi + 1024*i}')
        a('s_waitcnt lgkmcnt(0)')
    def x3(need=None): return grp(L_X3, None, 20, 's[4:7]', '0', need=need)
    w3m = opt.get('w3m', 14)
    fsload = 'buffer_load_dword v27, v32, s[12:15], s61 offen sc1'
    def s3tail():
        if w3m < 14:
            paced(sum([w3(j) for j in range(w3m, 14)], []), opt.get('thin4', 60))
            a.L.append(fsload)
            a('s_waitcnt vmcnt(1)\ns_barrier\ns_waitcnt vmcnt(0)')
        lspin('s61', 'v32', w3m < 14)
        stream_emit(a, grp(L_S3, None, 40, 's[12:15]', '0', fl='sc1'), 0, 0)
        a('s_waitcnt vmcnt(0)')
        stamp(15)
    def rawg(cb=None): return grp(L_RAW + 16, [f's_add_u32 s31, s35, {WS_XNT}'], 14, 's[12:15]', 's31', True, cb, None, 'sc1')
    def lspin(soff, voff, first=False):
        lp = a.newlab('lsp'); lo = a.newlab('lspo')
        a(f's_mov_b32 s58, {SPIN}')
        if first: a(f's_branch {lp}c')
        a(f'{lp}:')
        a.L.append(f'buffer_load_dword v27, {voff}, s[12:15], {soff} offen sc1'); a.L.append('s_waitcnt vmcnt(0)')
        a(f'{lp}c:\nv_cmp_ne_u32 vcc, s24, v27\ns_cbranch_vccz {lo}\ns_sub_u32 s58, s58, 1\ns_cmp_lg_u32 s58, 0\ns_cbranch_scc1 {lp}\n{lo}:')
    def lflag(soff):
        a('s_mov_b32 exec_hi, 0'); a.L.append(f'buffer_store_dword v35, v44, s[12:15], {soff} offen sc1'); a('s_mov_b64 exec, -1')
    def paced(items, thin):
        for i in range(0, len(items), 4):
            stream_emit(a, items[i:i+4], 0, 0)
            if thin < 60: a(f's_waitcnt vmcnt({thin})')
    ft = opt.get('ft', ''); gs = opt.get('gs', 2); lg = gs.bit_length() - 1
    prog = opt.get('prog', 8)
    RG = 32 if prog else opt.get('rg', 1)
    def k0calc(r, with_c):
        if prog: a(f's_lshr_b32 s{r}, s26, 2\ns_lshl_b32 s{r}, s{r}, 3\ns_add_u32 s{r}, s{r}, {(32 - NR) % 32}')
        else: a(f's_mul_i32 s{r}, s25, {RG // 4 if RG >= 4 else 0}')
    def memidx(d, r, idx):
        if OWN and NR <= idx < NR + 8:
            return [f's_add_u32 s{d}, s47, {idx - NR}', f's_and_b32 s{d}, s{d}, 7', f's_or_b32 s{d}, s{d}, s46']
        return [f's_add_u32 s{d}, s{r}, {idx}', f's_and_b32 s{d}, s{d}, {RG-1}', f's_or_b32 s{d}, s{d}, {idx & ~(RG-1)}']
    def wtouch(groups, other, pace):
        for gi in groups:
            assert RG == 1 or (RG // 4) % gs == 0
            a(f's_xor_b32 s31, s30, {other}\ns_add_u32 s31, s31, {2*gi}\ns_lshl_b32 s31, s31, {lg}\ns_and_b32 s3, s31, {31 & ~(RG-1)}\ns_add_u32 s31, s31, s45\ns_and_b32 s31, s31, {RG-1}\ns_or_b32 s31, s31, s3\ns_lshl_b32 s31, s31, 7')
            for i in range(gs):
                a.L.append(f'buffer_load_dword v30, v29, s[20:23], s31 offen {ft}')
                if i + 1 < gs: a(f's_add_u32 s31, s31, {(64 // gs) * 4096}')
                if pace is not None: a(f's_waitcnt vmcnt({pace})')
    def count_bars(start): return sum(1 for x in a.L[start:] if x.strip() == 's_barrier')

    st0 = len(a.L)
    XO = [131072, 49152, 65536, 81920, 98304, 114688, 131072, 0]
    a('s_lshl_b32 s34, s25, 1\ns_add_u32 s34, s34, s27\ns_and_b32 s34, s34, 7\ns_lshl_b32 s33, s26, 7\ns_lshl_b32 s3, s18, 5\ns_add_u32 s33, s33, s3')
    rowoffs(a, 2, 's33', 10)
    a(f's_lshl_b32 s31, s28, 7\ns_mul_i32 s3, s18, {32*3584}\ns_add_u32 s31, s31, s3'); troffs(a, 6, 3584, 's31')
    def so(c): a(f's_add_u32 s31, s34, {c}\ns_and_b32 s31, s31, 7\ns_lshl_b32 s{40+c}, s31, 7\ns_mul_i32 s{48+c}, s31, {64*3584}')
    for c in range(4): so(c)
    a(f's_mov_b32 s10, {512*3584}\ns_mov_b32 s11, 0x20000')
    a('s_waitcnt lgkmcnt(0)')
    if lk: a('s_barrier')
    a(tagload)
    a('s_and_b32 s5, s5, 0xffff\ns_and_b32 s9, s9, 0xffff')
    f1 = opt.get('f1', '')
    def wg(p, cb=None): return grp(p*8192, [f's_add_u32 s31, s{48+p%8}, {1792 if p < 8 else 0}'], 6, 's[8:11]', 's31', cb=cb, fl=f1)
    def xg(c, need=None):
        return sum([grp(XO[c] + k*8192, [f's_add_u32 s31, s{40+c}, {k*65536}'], 2, 's[4:7]', 's31', cb=c+1, need=need if k == 0 else None, fl=f1) for k in range(2)], [])
    we = opt.get('we', 3)
    items = xg(0) + wg(0, 1) + wg(1, 2) + xg(1) + sum([wg(p, p+1) for p in range(2, we + 1)], [])
    t_ = Asm(); a_ = a; a = t_; vload('s'); a = a_
    su = [lambda: setup2()] if opt.get('early', 2) < 0 else []
    for x in t_.L:
        if x.startswith('buffer'): items.append((su, x, None, 0 if opt.get('sb', 0) else None)); su = []
        else: su.append(x)
    for c in range(2, 8):
        items += xg(c, 1)
        if c > we: items += wg(c, c+1)
    ncs = opt.get('ncs', 4)
    for p in range(8, 8 + ncs): items += wg(p)
    early = opt.get('early', 2)
    def setup2():
        for c in range(4, 8): so(c)
        late_loader_setup()
        rowoffs(a, 10, 's33', 12)
        k0calc(57, True)
    assert early >= 1 or (early < 0 and 's' in vat and 'f' not in vat) or not set(vat) & set('sf')
    if early >= 1: setup2()
    vload('f')
    if early >= 2: a('@WARM@')
    def hook1(b, k):
        if b == 0 and k == -1:
            if early == 0: setup2()
            if early < 2: a('@WARM@')
            a(tagmake + '\nv_mov_b32 v35, s24')
        if k == 1 and b in (1, 8): stamp({1: 1, 8: 2}[b])
    stream_emit(a, items, 9, opt.get('d1', 16), hook1, skip=(0,) if lk else ())
    a('s_lshl_b32 s47, s25, 1\ns_lshr_b32 s46, s26, 2\ns_lshl_b32 s46, s46, 3')
    a(f's_lshl_b32 s34, s28, 18\ns_lshl_b32 s31, s28, 13\ns_lshl_b32 s3, s18, 7\ns_add_u32 s44, s31, s3\ns_add_u32 s44, s44, {FZ}\nv_lshlrev_b32 v28, 1, v32')
    vload('p', opt.get('vp'))
    a('s_barrier')
    stream_emit(a, sum([wg(p) for p in range(8 + ncs, 16)], []), 0, 0)
    fw = opt.get('fw', '')
    wcnt = [0]
    def wst(slot, half, cb=None, need=None):
        if half == 0:
            su = memidx(42, 57, wcnt[0] % opt.get('wfix', 32)) + ['s_lshl_b32 s42, s42, 7']; wcnt[0] += 1
        else: su = ['s_add_u32 s42, s42, 0x40000']
        return grp(slot * 16384 + half*8192, su, 10, 's[20:23]', 's42', cb=cb, need=need, fl=fw)
    def wfull(slot): return wst(slot, 0) + wst(slot, 1)
    def zst(k, cb=None, need=None):
        return grp(L_Z + ZS(k) * 8192, memidx(43, 57, MEM[k] % opt.get('zfix', 32)) + ['s_lshl_b32 s43, s43, 13', 's_add_u32 s43, s43, s34'], 14, 's[12:15]', 's43', True, cb, need, 'sc1')
    pre1 = opt.get('pre1', 2); thin = opt.get('thin', 12)
    for k in range(pre1): paced(wfull(k), thin)
    a(f's_waitcnt vmcnt({8*pre1})\ns_barrier')
    pre2 = opt.get('pre2', 4)
    for k in range(pre1, pre2): paced(wfull(k), thin)
    a('@WARM@')
    if pre2 < 4:
        a('s_barrier')
        for k in range(pre2, 4): paced(wfull(k), 60)
    fxe = opt.get('fxe', 0)
    if fxe: a.L.append('buffer_load_dword v27, v32, s[12:15], s59 offen sc1')
    n0 = len(a.L)
    vload('a', opt.get('vp'))
    nva = sum(1 for x in a.L[n0:] if x.startswith('buffer'))
    stamp(3)
    spre = 4 if NR == 0 else opt.get('spre', 4)
    sp1 = min(spre, opt.get('sp1', 2))
    lu = 0
    if fxe: a(f's_waitcnt vmcnt({nva})')
    lspin('s59', 'v32', bool(fxe))
    if lu:
        UR, UT, UO = 64, 88, 96
        a(f'v_lshlrev_b32 v{UT}, 5, v0\ns_add_u32 s31, s35, s19\ns_add_u32 s31, s31, {WS_XNT - 16}')
        for h in range(2):
            for k in range(3): a.L.append(f'buffer_load_dwordx4 {vr(UR+12*h+4*k,4)}, v{UT}, s[12:15], s31 offen offset:{2048*h + 16*k} sc1')
        a('s_mov_b32 s48, 0x05040100\ns_mov_b32 s49, 0x07060302')
        for k in range(4): a(f'v_mov_b32 v{UT+4+k}, 0')
        a(f'''s_mul_i32 s31, s18, {UGRP}
s_add_u32 s31, s31, {L_U}
v_lshrrev_b32 v{UT+2}, 5, v0
v_mul_u32_u24 v{UT+2}, {USTR}, v{UT+2}
v_and_b32 v{UT+3}, 31, v0
v_min_u32 v{UT+3}, 23, v{UT+3}
v_lshl_add_u32 v{UT+3}, v{UT+3}, 4, v{UT+2}
v_add_u32 v{UT+3}, s31, v{UT+3}
s_lshl_b32 s31, s18, 11
s_add_u32 s31, s31, {L_U + 384}
v_lshl_add_u32 v{UT+1}, v0, 4, s31
s_sub_u32 s31, 0, s18
v_cmp_eq_u32 vcc, s31, v0''')
    def lubuild():
        a.L.append(f'ds_write_b128 v{UT+3}, {vr(UT+4,4)}'); a.L.append(f'ds_write_b128 v{UT+3}, {vr(UT+4,4)} offset:{2*USTR}')
        for h in range(2):
            R = UR + 12*h
            for dl in range(2):
                for e in range(4):
                    d = UO + 4 * (e & 1)
                    for k in range(4): a(f'v_perm_b32 v{d+k}, v{R+4+2*k+e-2}, v{R+4+2*k+e-3}, s{48+dl}')
                    a.L.append(f'ds_write_b128 v{UT+1}, {vr(d,4)} offset:{dl*UGRP + e*USTR + 1024*h}')
        a('s_waitcnt lgkmcnt(0)')
    gt = opt.get('gt', 0)
    def gtouch():
        assert gs == 2 and RG == 32
        a('s_and_b32 s3, s27, 1\ns_lshl_b32 s3, s3, 6\ns_add_u32 s3, s3, s33\nv_lshrrev_b32 v29, 1, v0\nv_add_u32 v29, s3, v29\nv_lshlrev_b32 v29, 5, v29\nv_and_b32 v1, 1, v0\nv_add_lshl_u32 v29, v29, v1, 7')
        for i in range(gt):
            a(f's_lshr_b32 s31, s27, 1\ns_min_u32 s31, s31, 2\ns_add_u32 s31, s31, {8 - 3*gt + 3*i}\ns_lshl_b32 s31, s31, 1\ns_add_u32 s31, s31, s30\ns_lshl_b32 s31, s31, 1\ns_add_u32 s31, s31, s57\ns_and_b32 s31, s31, 31\ns_lshl_b32 s31, s31, 7')
            a.L.append('buffer_load_dword v30, v29, s[20:23], s31 offen')
    if NR >= 4: a('s_barrier')
    if gt: gtouch()
    vload('b', opt.get('vp'))
    if lu:
        a('s_waitcnt vmcnt(0)')
        for k in range(1, 4): a(f'v_cndmask_b32 v{UR+k}, v{UR+k}, v{UT+4}, vcc')
    a('s_barrier')
    if lu == 2: lubuild()
    for k in range(sp1): paced(wfull(k), 60)
    if lu == 1: lubuild()
    lb = opt.get('lb', 0)
    if not lb: a('s_barrier')
    if NR == 8:
        assert not lb
        for k in range(sp1, 4): paced(wfull(k), 60)
        n0 = len(a.L); vload('c'); nvc = sum(1 for x in a.L[n0:] if x.startswith('buffer'))
        a(f's_waitcnt vmcnt({nvc})\ns_barrier\ns_barrier')
        sp1 = 2
        for k in range(sp1): paced(wfull(k), 60)
    npre = opt.get('npre', 3)
    fzv = 'v28'
    if prog:
        assert all(pat[k] == 'S' for k in range(min(prog, 6)))
        pn = min(prog, pat.index('R') if 'R' in pat else 32)
        a(f's_lshr_b32 s31, s26, 2\ns_lshl_b32 s31, s31, 11\nv_min_u32 v45, {((8 if OWN else pn)-1)*256}, v28\nv_add_u32 v45, s31, v45')
        fzv = 'v45'
    spec = opt.get('spec', 1)
    rest = list(range(sp1, spre)) if NR >= 4 else []
    assert len(rest) <= 2
    for n, k in enumerate(rest):
        if spec: a.L.append(f'buffer_load_dword v{46+n}, {fzv}, s[12:15], s44 offen sc1')
        paced(wfull(k), 60)
    if lb:
        a.L.append(f'buffer_load_dword v27, {fzv}, s[12:15], s44 offen sc1')
        a('s_barrier')
    stamp(4)
    go = a.newlab('zgo')
    if spec:
        for n in range(len(rest)):
            a(f's_waitcnt vmcnt({9*(len(rest)-n) - 1 + lb})\nv_cmp_ne_u32 vcc, s24, v{46+n}\ns_cbranch_vccz {go}')
    if lb: a('s_waitcnt vmcnt(0)')
    if not opt.get('nofz'): lspin('s44', fzv, bool(lb))
    a(f'{go}:')
    stamp(5)
    tiles = [(k - ZX * opt.get('zl', 10) / 10, 0, lambda k=k: zst(k, k, k - ZN + 1 if k >= ZN else None)) for k in range(2*OWN, 32)]
    last = -1
    for s in range(spre, len(SPOS)):
        need = min(SPOS[s-4] + 1 + rlx, max(SPOS[s-4] + 1, 28)) if s >= 4 else None
        for h in range(2):
            key = min(SPOS[s] - 0.5, max((need + 3 if need is not None else 0) - 0.5, last + opt.get('wgap', 10) / 10))
            last = key
            tiles.append((key, s*2 + h + 1, lambda s=s, h=h, need=need: wst(s % 4, h, SPOS[s], need)))
    hc = opt.get('hc', 28)
    if hcl != 'g': tiles.append((hc - 0.9, 0, lambda: [([], 'buffer_load_dword v27, v33, s[12:15], 0 offen sc1', hc, None)]))
    if prog:
        pb = pn - 3 - ZX
        tiles.append((max(pb, 3 - ZX) + 0.1 - ZX, 0, lambda: [([], 'buffer_load_dword v27, v28, s[12:15], s44 offen sc1', pb, None)]))
    t_ = Asm(); a_ = a; a = t_; vload('d'); a = a_
    vi = []; su = []
    for x in t_.L:
        if x.startswith('buffer'): vi.append((su, x, None, None)); su = []
        else: su.append(x)
    if vi: tiles.append((3.2, 0, lambda: vi))
    tiles.sort(key=lambda x: (x[0], x[1]))
    items = sum([t[2]() for t in tiles], [])
    w3e = opt.get('w3e', 6)
    for j in range(w3e): items += w3(j, W3[j][1])
    hk = {(0,1): 6, (4,1): 7, (8,1): 8, (16,1): 9, (24,1): 10, (31,1): 11, (16,0): 16, (24,0): 17, (32,1): 12}
    hintb = opt.get('hintb', 32)
    def hook2(b, k):
        if (b, k) in hk: stamp(hk[(b, k)])
        if prog and (b, k) == (pb, 1) and not opt.get('nofz'): lspin('s44', 'v28', True)
        if (b, k) == (hc, 1) and hcl != 'g': lspin('0', 'v33', True)
        if (b, k) == (hintb, 1):
            sk = a.newlab('nohint')
            a(f's_or_b32 s3, s27, s18\ns_cmp_lg_u32 s3, 0\ns_cbranch_scc1 {sk}\ns_lshl_b32 s3, s32, 7\ns_add_u32 s3, s3, {FT}')
            lflag('s3')
            a(f'{sk}:')
    stream_emit(a, items, 33, lambda b: opt.get('d2', 32) if b < 30 else opt.get('d2e', 12), hook2, True)
    hb = opt.get('hb', 6)
    if hb:
        paced(([] if xat else x3()) + sum([w3(j) for j in range(w3e, hb)], []), 60)
        hook2(32.5, 1)
        a('s_barrier')
        paced(sum([w3(j) for j in range(max(hb, w3e), w3m - NV)], []), 60)
        if NV:
            assert w3m == 14 and max(hb, w3e) <= 14 - NV
            vstore()
    else: paced(x3() + sum([w3(j) for j in range(w3e, w3m)], []), 60)
    stamp(14)
    hook2(33, 1)
    a('s_waitcnt vmcnt(0)')
    hook2(34, 1)
    a('s_barrier')
    stamp(13)
    s3tail()
    nb['gl'] = count_bars(st0)
    g.prof_store()
    a('s_endpgm')

    a(f'{lab("thelp")}:')
    st0 = len(a.L)
    a('v_mov_b32 v36, -1\nv_mov_b32 v37, -1\nv_mov_b32 v38, -1\nv_mov_b32 v39, -1\nv_lshlrev_b32 v14, 4, v0')
    a(f's_lshl_b32 s31, s26, 1\ns_add_u32 s31, s31, s30\ns_lshl_b32 s31, s31, 1\ns_add_u32 s31, s31, s18\ns_lshl_b32 s31, s31, 13\ns_add_u32 s31, s31, {WS_STATS}')
    a('s_waitcnt lgkmcnt(0)')
    a(tagload)
    a('s_and_b32 s5, s5, 0xffff\ns_and_b32 s13, s13, 0xffff')
    for q in range(4): a.L.append(f'buffer_store_dwordx4 v[36:39], v14, s[12:15], s31 offen offset:{1024*q} sc1')
    late_loader_setup()
    if opt.get('tlbs'): a(f's_load_dwordx2 s[40:41], s[0:1], {KA["out"]}\ns_load_dwordx2 s[42:43], s[0:1], {KA["bsp"]}')
    k0calc(45, False)
    a(f's_lshl_b32 s31, s26, 7\ns_lshl_b32 s3, s18, 6\ns_add_u32 s31, s31, s3\nv_lshrrev_b32 v29, {lg}, v0\nv_add_u32 v29, s31, v29\nv_lshlrev_b32 v29, 5, v29\nv_and_b32 v1, {gs-1}, v0\nv_add_lshl_u32 v29, v29, v1, 7')
    ng = 16 // gs; tp_ = opt.get('tpace', 2); te = opt.get('te', 4) // gs
    a(tagmake + '\nv_mov_b32 v35, s24')
    if opt.get('tlbs'):
        st = opt['tlbs'] << 10
        a('s_lshl_b32 s31, s26, 19\ns_load_dword s46, s[20:21], s31')
        for o in range(0, 12 << 20, st): a(f's_mov_b32 s31, {o}\ns_load_dword s46, s[12:13], s31')
        a('s_load_dword s46, s[42:43], 0\ns_load_dword s46, s[36:37], 0\ns_load_dword s46, s[40:41], 0')
    a('s_waitcnt vmcnt(0)')
    stamp(1)
    a('s_barrier')
    te = opt.get('te', 0) // gs
    wtouch(range(te), 0, None)
    a('s_barrier')
    tm = opt.get('tm', 2) // gs; tn = opt.get('tn', 8) // gs
    wtouch(range(te, max(te, tm)), 0, None); tm = max(te, tm)
    if NV and opt.get('vt', 1):
        a(f's_and_b32 s31, s2, 31\ns_lshl_b32 s31, s31, 1\ns_add_u32 s31, s31, s18\ns_lshl_b32 s31, s31, 13\ns_add_u32 s31, s31, {(14-NV) << 16}')
        for i in range((NV + 7) // 8):
            a.L.append('buffer_load_dword v30, v15, s[36:39], s31 offen')
            a('s_add_u32 s31, s31, 0x80000')
    a('s_barrier')
    wtouch(range(tm, min(tn, ng - 3*gt)), 0, None)
    if not lk: a('s_barrier')
    lspin('s59', 'v32')
    a('s_barrier')
    stamp(5)
    wtouch(range(tn, ng - 3*gt), 0, None)
    a('s_barrier')
    stamp(2)
    if hcl == 't':
        cl_ = a.newlab('hclr')
        a(f's_lshl_b32 s41, s32, 1\ns_add_u32 s41, s41, s18\ns_mul_i32 s31, s41, 57344\ns_sub_u32 s31, s31, s19\ns_add_u32 s31, s31, {WS_HF}\ns_mov_b32 s3, 14\n{cl_}:')
        for q in range(4): a.L.append(f'buffer_store_dwordx4 v[36:39], v14, s[12:15], s31 offen offset:{1024*q} sc1')
        a(f's_add_u32 s31, s31, 4096\ns_sub_u32 s3, s3, 1\ns_cmp_lg_u32 s3, 0\ns_cbranch_scc1 {cl_}')
        a(f's_waitcnt vmcnt(0)\ns_lshl_b32 s31, s41, 7\ns_add_u32 s31, s31, {FH}')
        lflag('s31')
    stamp(3)
    a('s_barrier')
    wtouch(range(opt.get('tskip', 16) // gs, ng), 1, tp_)
    nwo = opt.get('nwo', 14)
    nwo = min(nwo, 14 - NV)
    a(f's_lshl_b32 s41, s25, 1\ns_add_u32 s41, s41, s18\ns_mul_i32 s41, s41, {nwo*8192}\ns_and_b32 s40, s2, 7\ns_mul_i32 s40, s40, {nwo}\ns_lshr_b32 s40, s40, 3')
    for i in range(nwo):
        a('s_lshl_b32 s31, s40, 13\ns_add_u32 s31, s31, s41')
        a.L.append('buffer_load_dword v30, v15, s[36:39], s31 offen')
        a(f's_add_u32 s40, s40, 1\ns_cmp_eq_u32 s40, {nwo}\ns_cselect_b32 s40, 0, s40')
    paced(x3() + sum([w3(j) for j in range(w3m)], []), 60)
    stamp(6)
    if hcl != 't': lspin('0', 'v33')
    stamp(12)
    a(f's_lshl_b32 s3, s32, 7\ns_add_u32 s3, s3, {FT}')
    lspin('s3', 'v34')
    a('s_barrier\ns_barrier')
    stamp(13)
    s3tail()
    nb['tl'] = count_bars(st0)
    g.prof_store()
    a('s_endpgm')

    a('.p2align 12')
    a(f'{lab("comp")}:')
    g.comp = True
    a.vm = ['prm'] * 6 + (['hcl'] * 4 if hcl == 'g' else []); a.lg = []
    def cprologue():
        a(srdc)
        a('s_mov_b32 s33, 0xffff0000\ns_mov_b32 s34, 0x3f803f80\ns_mov_b32 s22, 0x200000\ns_mov_b32 s23, 0x20000')
        a('s_and_b32 s5, s5, 0xffff\ns_and_b32 s13, s13, 0xffff\ns_and_b32 s21, s21, 0xffff')
        a('v_lshlrev_b32 v7, 4, v0\nv_lshlrev_b32 v6, 2, v0')
    cprologue()
    if opt.get('cp'): a(f's_setprio {opt["cp"]}')
    a(f's_lshl_b32 s35, s26, 2\ns_add_u32 s35, s35, s29\ns_lshl_b32 s31, s35, 13\ns_add_u32 s37, s31, {WS_STATS}\ns_add_u32 s60, s37, 4096\ns_lshl_b32 s3, s28, 8\ns_add_u32 s38, s37, s3')
    a.emit(ssm.kaddr())
    X = 128; A2 = 64; A1 = 96; WF = 32
    XR = A1; ST = A1 + 4; T = A1 + 8; SD = A1 + 16; CC = A1 + 18; NM = A1 + 20; FL = A1 + 22
    WR = 8; SEL = 16; CS = 24; NEG = 28
    a('s_lshl_b32 s32, s29, 12\ns_add_u32 s32, s32, 131072')
    a.emit(rowread_list(1, 2, 's32') + trread_list(3, 2))
    for i in range(4):
        a(f's_add_u32 s31, s29, {i}\ns_and_b32 s31, s31, 3\ns_lshl_b32 s3, s31, 5\nv_xor_b32 v{XR+i}, s3, v1\ns_lshl_b32 s3, s31, 11\nv_add_u32 v{WR+2*i}, s3, v3\nv_xor_b32 v{WR+1+2*i}, 64, v{WR+2*i}')
    a(f'''v_bfe_u32 v1, v0, 4, 1
v_lshlrev_b32 v1, 2, v1
v_and_b32 v2, 15, v0
v_cmp_eq_u32 vcc, v1, v2
v_mov_b32 v3, s34
v_add_u32 v1, 8, v1
v_cndmask_b32 v{SEL}, 0, v3, vcc
v_cmp_eq_u32 vcc, v1, v2
s_lshl_b32 s31, s29, 2
s_add_u32 s31, s31, {L_CS}
v_cndmask_b32 v{SEL+4}, 0, v3, vcc
v_add_u32 v1, s31, v7
v_and_b32 v2, 511, v7
v_add_u32 v2, {L_CS}, v2''')
    for i in range(1, 4): a(f'v_mov_b32 v{SEL+i}, v{SEL}\nv_mov_b32 v{SEL+4+i}, v{SEL+4}')
    a(f's_lshl_b32 s31, s35, 12\ns_lshl_b32 s3, s28, 8')
    a(f's_lshl_b32 s52, s28, 18\ns_add_u32 s52, s52, s31')
    a(f's_lshl_b32 s31, s35, 2\ns_add_u32 s53, s31, s3\ns_lshl_b32 s53, s53, 5\ns_add_u32 s53, s53, {FZ}')
    a(tagmake); a.lg = []
    a('; ===== S4D kernel table of this workgroup\'s two channels =====')
    a(f'{lab("kgen")}:')
    emit_plain(a, ssm.kgen() if not opt.get('nokg') else [BAR])
    stamp(1)
    a(f's_cmp_eq_u32 s27, 7\ns_cbranch_scc1 {lab("tcomp2")}')
    lg_split = list(a.lg)
    st0 = len(a.L)
    def xreads(c, base, off): return [(f'ds_read_b128 {vr(X+16*c+4*i,4)}, v{base+i} offset:{off}', f'xr{c}') for i in range(4)]
    XB = [131072, 49152, 49152, 49152, 49152, 114688, 114688, 0]
    def gx(c):
        L = []
        if c and XB[c] != XB[c-1]: L += [f'v_add_u32 v{XR+i}, {hex((XB[c] - XB[c-1]) & 0xffffffff)}, v{XR+i}' for i in range(4)]
        return L, xreads(c, XR, XO[c] - XB[c])
    def dots(c, S):
        for i in range(16):
            r = X + 16*c + i
            a(f'v_dot2c_f32_bf16 v{S + 2*(i&1)}, s34, v{r}\nv_dot2c_f32_bf16 v{S + 1 + 2*(i&1)}, v{r}, v{r}')
    def redux(S): return [f'v_add_f32 v{S}, v{S}, v{S+2}', f'v_add_f32 v{S+1}, v{S+1}, v{S+3}', f'v_mov_b32 v{S+2}, v{S}', f'v_mov_b32 v{S+3}, v{S+1}',
             f'v_permlane32_swap_b32 v{S}, v{S+2}', f'v_permlane32_swap_b32 v{S+1}, v{S+3}', f'v_add_f32 v{S}, v{S}, v{S+2}', f'v_add_f32 v{S+1}, v{S+1}, v{S+3}']
    def wreads(t):
        n, i = divmod(t, 4)
        L = []
        for fb in range(2):
            d = WF + 8*i + 4*fb
            L.append((f'ds_read_b64_tr_b16 {vr(d,2)}, v{WR+2*i+fb} offset:{(n%8)*8192}', f'wr{t}'))
            L.append((f'ds_read_b64_tr_b16 {vr(d+2,2)}, v{WR+2*i+fb} offset:{(n%8)*8192+512}', f'wr{t}'))
        return L
    def mfmas(t):
        n, i = divmod(t, 4); acc = A2 if n < 8 else A1; f = t % 32
        L = []
        for fb in range(2):
            c = '0' if f == 0 else vr(acc+16*fb, 16)
            L.append(f'v_mfma_f32_32x32x16_bf16 {vr(acc+16*fb,16)}, {vr(WF+8*i+4*fb,4)}, {vr(X+4*f,4)}, {c}')
        if i == 0 and not opt.get('nocs'):
            cs = [f'v_mfma_f32_16x16x32_bf16 {vr(CS,4)}, {vr(SEL+4*fb,4)}, {vr(WF+4*fb,4)}, {"0" if (f == 0 and fb == 0) else vr(CS,4)}' for fb in range(2)]
            L = ['\n'.join(cs + L[:1]), L[1]]
        return L
    def cs_write(part, T):
        return [f'v_cvt_pk_bf16_f32 v{T}, v{CS}, v{CS}', f'v_lshlrev_b32 v{T}, 16, v{T}', f'v_sub_f32 v{T}, v{CS}, v{T}', f'v_cvt_pk_bf16_f32 v{T}, v{CS}, v{T}',
                (f'ds_write_b32 v1, v{T} offset:{part*1024}', 'csw')]
    def cs_read(part, T):
        return [lambda: a.waitall(vm=False), 's_barrier'] + [(f'ds_read_b128 {vr(T+4*fb,4)}, v2 offset:{part*1024 + 512*fb}', 'csr') for fb in range(2)]
    def cs_apply(acc, T):
        return [lambda: a.waitlg('csr')] + [f'v_mfma_f32_32x32x16_bf16 {vr(acc+16*fb,16)}, {vr(T+4*fb,4)}, {vr(NEG,4)}, {vr(acc+16*fb,16)}' for fb in range(2)]
    def gconst(cc, r): return [f'v_mul_f32 v{cc+1}, {fbits(C0)}, v{r}', f'v_mul_f32 v{cc}, v{r}, v{r}', f'v_mul_f32 v{cc}, v{cc}, v{cc+1}', f'v_mul_f32 v{cc}, {fbits(0.044715)}, v{cc}']
    def halves(S, Q): return [f'v_permlane32_swap_b32 v{S}, v{Q}', f'v_add_f32 v{S}, v{S}, v{Q}', f'v_mov_b32 v{S+1}, v{S}', f'v_permlane32_swap_b32 v{S}, v{S+1}']
    finA = ['v_cmp_gt_u32 vcc, 32, v0'] + halves(ST, ST+2) + [f'v_mul_f32 v{NM}, {fbits(-1.0/512)}, v{ST}', f'v_cvt_pk_bf16_f32 v{NM+1}, v{NM}, v{NM}'] + \
        [f'v_cndmask_b32 v{NEG+i}, 0, v{NM+1}, vcc' for i in range(4)]
    Q1 = ST + 1
    finB = [f'v_mul_f32 v{Q1}, {fbits(1.0/512)}, v{Q1}', f'v_fma_f32 v{Q1}, -v{NM}, v{NM}, v{Q1}', f'v_max_f32 v{Q1}, 0, v{Q1}', f'v_cvt_pk_bf16_f32 v{Q1}, 0, v{Q1}',
            f'v_add_f32 v{Q1}, {fbits(1e-5)}, v{Q1}', f'v_cvt_pk_bf16_f32 v{Q1}, 0, v{Q1}', f'v_sqrt_f32 v{Q1}, v{Q1}', f'v_cvt_pk_bf16_f32 v{SD}, 0, v{Q1}', f'v_rcp_f32 v4, v{SD}'] + gconst(CC, 4)
    wadd = [f'v_add_u32 v{WR+i}, 65536, v{WR+i}' for i in range(8)]
    padr = [f'v_and_b32 v{FL+2}, 15, v0', f'v_lshrrev_b32 v{FL+1}, 4, v0', f'v_lshlrev_b32 v{FL+2}, 4, v{FL+2}', f'v_lshl_add_u32 v{FL+2}, v{FL+1}, 2, v{FL+2}']
    sload = f'buffer_load_dwordx4 {vr(ST,4)}, v7, s[12:15], s60 offen offset:3072 sc1'
    a.waitall(vm=False)
    a('s_barrier'); a.emit(gx(0)[1] + wreads(0) + wreads(1) + wreads(2))
    ts = opt.get('ts', 17); tk = opt.get('tk', 29)
    for c in range(8):
        fi = opt.get('fine') == 'p1' and c in (3, 4)
        if fi: stamp(3 + 6*(c-3), True)
        if c < 7:
            pre, xr = gx(c+1)
            last = [] if c == 0 else [xlast]
            fills = {0: last + wreads(4*c+3) + pre + ['s_barrier'], 1: xr[:1] + wreads(4*c+4), 2: xr[1:2] + wreads(4*c+5), 3: xr[2:3] + wreads(4*c+6)}
            xlast = xr[3]
        else:
            fills = {0: [xlast] + wreads(4*c+3) + padr, 1: cs_write(0, T) + wadd[:4], 2: wadd[4:] + cs_read(0, T), 3: []}
            fills[tk - 28] += finA
        for i in range(4):
            t = 4*c + i
            if opt.get('fine') == 'p1e' and t >= 19 and t != 22: stamp(3 + t - 19 - (t > 22), True)
            if t == ts: a(sload, 'st1')
            if t == tk:
                a.waitvm('st1'); g.spin([sload], [ST+1, ST+3], FL)
            if opt.get('fine') == 'p1e' and t == tk: stamp(15, True)
            a.waitlg(f'wr{t}')
            a.emit(merge(mfmas(t), fills[i]))
            if fi: stamp(5 + i + 6*(c-3), True)
    stamp(2)
    a.emit(cs_apply(A2, T))
    a.emit(finB)
    if not opt.get('nog2'): a.emit(gelu_pk(A2, 32, CC, SD, T))
    AH = 3
    rd = sum([wreads(t) for t in range(32, 32 + AH)], [])
    st = []
    for i in range(16):
        p = A2 + 2*i
        if i == 0: st.append(f'v_pk_mul_f32 {vr(ST+2,2)}, {vr(p,2)}, {vr(p,2)}')
        else: st += [f'v_pk_add_f32 {vr(ST,2)}, {vr(p-2,2) if i == 1 else vr(ST,2)}, {vr(p,2)}', f'v_pk_fma_f32 {vr(ST+2,2)}, {vr(p,2)}, {vr(p,2)}, {vr(ST+2,2)}']
    st += [f'v_add_f32 v{ST}, v{ST}, v{ST+1}', f'v_add_f32 v{ST+2}, v{ST+2}, v{ST+3}']
    a.emit(st)
    a(f'v_permlane32_swap_b32 v{ST}, v{ST+2}')
    a(f'v_add_f32 v3, v{ST}, v{ST+2}\nv_min_u32 v3, 0xfffffffe, v3')
    a.waitall(lg=False)
    a(f'buffer_store_dword v3, v{FL+2}, s[12:15], s38 offen sc1', 'pub')
    stamp(3)
    a('s_barrier')
    a.emit(rd)
    TA = X; P = X + 8; T2 = A2 + 16; U = X + 16; Q = X + 6; RA = A2 + 28
    pl = [f'buffer_load_dwordx4 {vr(P+4*j,4)}, v{7 if j < 3 else TA+7}, s[12:15], s37 offen offset:{1024*j} sc1' for j in range(4)]
    zcol = f'v_and_b32 v{TA+4}, 56, v{WR}' if not M16 else f'v_and_b32 v{TA+4}, 3, v0\nv_bfe_u32 v{TA+5}, v0, 4, 1\nv_lshl_add_u32 v{TA+4}, v{TA+5}, 2, v{TA+4}\nv_lshlrev_b32 v{TA+4}, 3, v{TA+4}'
    taddr = f"""v_and_b32 v{TA+6}, 7, v0
v_lshrrev_b32 v{TA+7}, 5, v0
v_xor_b32 v{TA+6}, v{TA+6}, v{TA+7}
v_lshlrev_b32 v{TA+6}, 4, v{TA+6}
v_and_b32 v{TA}, 31, v0
v_lshl_add_u32 v{TA}, v{TA}, 7, v{TA+6}
v_add_u32 v{TA}, s32, v{TA}
v_xor_b32 v{TA+1}, 32, v{TA}
v_xor_b32 v{TA+2}, 64, v{TA}
v_xor_b32 v{TA+3}, 96, v{TA}
v_bfe_u32 v{TA+6}, v0, 2, 2
v_lshl_add_u32 v{TA+7}, v{TA+7}, 3, v{TA+6}
v_lshlrev_b32 v{TA+6}, 4, v{TA+6}
{zcol}
v_xor_b32 v{TA+4}, v{TA+4}, v{TA+6}
v_lshl_add_u32 v{TA+4}, v{TA+7}, 7, v{TA+4}
v_add_u32 v{TA+4}, s32, v{TA+4}
v_xor_b32 v{TA+5}, 64, v{TA+4}
v_lshlrev_b32 v{TA+7}, 25, v0
v_and_b32 v{TA+7}, 0x40000000, v{TA+7}
v_add_u32 v{TA+7}, v{TA+7}, v7""".split('\n')
    fin2 = [f'v_pk_add_f32 {vr(P+j,2)}, {vr(P+j,2)}, {vr(P+j+8,2)}' for j in range(0, 8, 2)] + [f'v_pk_add_f32 {vr(P+j,2)}, {vr(P+j,2)}, {vr(P+j+4,2)}' for j in range(0, 4, 2)] + \
           [f'v_permlane16_swap_b32 v{P}, v{P+1}', f'v_permlane16_swap_b32 v{P+2}, v{P+3}', f'v_add_f32 v{P}, v{P}, v{P+1}', f'v_add_f32 v{P+2}, v{P+2}, v{P+3}']
    fin2 += halves(P, P+2) + ln_list(P, P+1, 896, P+2, P+5, P+4) + [f'v_mul_f32 v{P+5}, v{P+5}, v{P+4}']
    for q in range(4):
        for i in range(4): fin2.append(f'v_pk_fma_f32 {vr(A2+8*q+2*i,2)}, {vr(A2+8*q+2*i,2)}, {vr(P+4,2)}, {vr(P+4,2)} op_sel:[0,0,1] op_sel_hi:[1,0,1]')
        for i in range(4): fin2.append(f'v_cvt_pk_bf16_f32 v{U+4*q+i}, v{A2+8*q+2*i}, v{A2+8*q+2*i+1}')
        fin2.append((f'ds_write_b128 v{TA+q}, {vr(U+4*q,4)}', 'tw'))
    for q in range(4):
        ks2, fb = divmod(q, 2)
        fin2.append((f'ds_read_b64_tr_b16 {vr(A2+4*q,2)}, v{TA+4+fb} offset:{ks2*2048}', f'tr{q}'))
        fin2.append((f'ds_read_b64_tr_b16 {vr(A2+2+4*q,2)}, v{TA+5-fb} offset:{ks2*2048 + 512}', f'tr{q}'))
    fin4 = []
    for q in range(4): fin4 += [lambda q=q: a.waitlg(f'tr{q}'), (f'buffer_store_dwordx4 {vr(A2+4*q,4)}, v7, s[12:15], s52 offen offset:{1024*q} sc1', 'z2st')]
    tp = opt.get('tp', 41); tc = opt.get('tc', 47)
    assert tp >= 37 and tc >= 41
    fills = {t: [] for t in range(32, 70)}
    fills[34] += taddr[:8]; fills[35] += taddr[8:16]; fills[36] += taddr[16:]
    fills[33] += ['s_lshl_b32 s31, s35, 5', 'v_and_b32 v3, 31, v0', 'v_add_lshl_u32 v3, v3, s31, 1', ('global_load_ushort v3, v3, s[18:19]', 'bsp')]
    for j in range(4): fills[tp + j//2].append((pl[j], 'pl'))
    if pre2 < 4: fills[tp + 1].append('s_barrier')
    def waddr(d):
        if not M16: return ['s_lshl_b32 s31, s29, 12'] + rowread_list(d, d+1, 's31') + [f'v_xor_b32 v{d+i}, {32*i}, v{d}' for i in range(1, 4)]
        return ['s_lshl_b32 s31, s29, 12', f'v_lshrrev_b32 v{d+1}, 4, v0', f'v_bfe_u32 v{d}, v0, 1, 3', f'v_xor_b32 v{d}, v{d}, v{d+1}', f'v_lshlrev_b32 v{d}, 4, v{d}',
                f'v_and_b32 v{d+1}, 15, v0', f'v_lshl_add_u32 v{d}, v{d+1}, 7, v{d}', f'v_add_u32 v{d}, s31, v{d}', f'v_xor_b32 v{d+1}, 64, v{d}']
    def wsrc(base, ks, slot): return f'v{base+ks} offset:{slot*16384}' if not M16 else f'v{base+ks//2} offset:{slot*16384 + (ks&1)*2048}'
    def rreads(r, base): return [(f'ds_read_b128 {vr(X+16*r+4*ks,4)}, {wsrc(base, ks, r%4)}', f'res{r}') for ks in range(4)]
    t0 = tc + 1
    if OWN: fills[tc] += [f'v_add_u32 v{TA}, s32, v7'] + [(f'ds_write_b128 v{TA}, {vr(A2+4*q,4)} offset:{1024*q}', 'own') for q in range(4)]
    if hcl == 'z':
        fills[tc] += [f'v_mov_b32 v{T2+4+i}, -1' for i in range(4)] + [(f'buffer_store_dwordx4 {vr(T2+4,4)}, v7, s[12:15], s54 offen offset:{1024*q} sc1', 'hcl') for q in range(4)]
    if NR >= 4:
        fills[t0] += waddr(RA) + ['s_barrier']
        rr = sum([rreads(r, RA) for r in range(4)], [])
        rper = opt.get('rper', 3)
        for j in range(16):
            t = max(t0 + 1 + j // rper, 33 + j)
            fills[t].append(rr[j])
    assert NR in (4, 8)
    tb1 = max(52, t0 + 3 + 15 // opt.get('rper', 3))
    fills[tb1] += [lambda: a.waitlg('res3'), 's_barrier']
    assert M16 and hcl != 'z'
    ld, ad, ub, ca = ssm.ubuild(A2 + 16, X + 64, A2, A2 + 31)
    if lu:
        ca = ad[6:10] + ca; ld = []; ad = []; ub = []
    if opt.get('noub'): ld = []; ub = []
    fills[t0] += ld
    tu = max(t0 + 1, 49)
    fills[tu+1] += ad[:11]; fills[tu+2] += ad[11:]
    u0 = min(64, max(tb1, tu + 2, opt.get('tf', 55)) + 1)
    u1 = opt.get('u1', 65)
    for j in range(u0, u1): fills[j] += ub[(j-u0)*len(ub)//(u1-u0):(j-u0+1)*len(ub)//(u1-u0)]
    fills[61] = fills[61] + cs_write(1, A2 + 31)
    tf = opt.get('tf', 55)
    flagz = g.setflag('s53', A2 + 30) + [lambda: stamp(7)]
    if tf < 64: fills[tf] += flagz
    else: fills[64] = flagz + fills[64]
    fp = lambda i: stamp(i, True) if opt.get('fine') == 'p3' else None
    for t in range(32, 64):
        if t in (32, tp, tp + 4, tc): fp({32: 3, tp: 4, tp + 4: 5, tc: 6}[t])
        if t in (tc + 1, tc + 2, tc + 6, tc + 10, tf, tf + 1): fp({tc + 1: 10, tc + 2: 11, tc + 6: 12, tc + 10: 13, tf: 14, tf + 1: 15}[t])
        if t == tc:
            a.waitvm('pl'); fp(7)
            if not opt.get('nost'): g.spin(pl, range(P, P+16), Q, True)
            stamp(4); fp(8)
            a.emit(fin2); fp(9)
        a.waitlg(f'wr{t}')
        rd = wreads(t + AH) if t + AH < 64 else []
        if t == tc:
            m = mfmas(t); a.emit(m + fin4 + rd + fills[t]); stamp(5)
        else: a.emit(merge(mfmas(t), rd + fills[t]))
    a.emit(fills[64])
    stamp(6)
    a.emit(cs_read(1, T2))
    gw = opt.get('gw', 0)
    if gw: a('v_rcp_f32 v24, v4')
    a.emit(waddr(8) + (gconst(26, 4) if gw else []))
    a.emit(cs_apply(A1, T2))
    a.emit(ca)
    Z1 = 112
    if gw: a.emit(gelu_pk(A1, 32, 26, 24, 16))
    else:
        for i in range(16): a(f'v_pk_mul_f32 {vr(A1+2*i,2)}, {vr(A1+2*i,2)}, v[4:5] op_sel_hi:[1,0]')
    for i in range(15, -1, -1): a(f'v_cvt_pk_bf16_f32 v{Z1+i}, v{A1+2*i}, v{A1+2*i+1}')
    if M16:
        a(f'v_lshlrev_b32 v10, 16, v3\nv_lshlrev_b32 v11, 16, v3\nv_and_b32 v12, 255, v7\nv_bfe_u32 v14, v0, 4, 1\nv_lshl_add_u32 v12, v14, 9, v12\nv_lshrrev_b32 v14, 5, v0\nv_lshl_add_u32 v12, v14, 11, v12\nv_add_u32 v12, {L_Z - 8192*ZX}, v12')
        a('v_permlane16_swap_b32 v10, v11')
        for p in range(4):
            for j in range(2): a(f'v_permlane16_swap_b32 v{Z1+4*p+j}, v{Z1+4*p+2+j}')
        a(f'v_mov_b32 v14, {fbits(C1)}')
        if bi and NR == 4:
            for i in range(16): a(f'v_pk_mov_b32 {vr(32+2*i,2)}, v[10:11], v[10:11] op_sel:[{(i>>1)&1},{(i>>1)&1}]')
    else: a(f'v_add_u32 v12, {L_Z}, v7\nv_lshlrev_b32 v4, 16, v3\nv_mov_b32 v14, {fbits(C1)}')
    cpre, cg = ssm.conv()
    if NR == 8:
        n1 = 10 * opt.get('n1', 3)
        rr = sum([rreads(r, 8) for r in range(4, 8)], [])
        cg[n1 - 1].append('s_barrier')
        for j in range(16): cg[n1 + j + j // 4].append(rr[j])
        cg[n1 + 25] += [lambda: a.waitlg('res7'), 's_barrier']
        fin, fflag = ssm.finish()
        fflag = g.setflag('s60', 24)
        a.emit(cpre + sum(cg, []) + fin); cg = []; cpre = []
        for i in range(16): a(f'v_pk_mov_b32 {vr(32+2*i,2)}, v[10:11], v[10:11] op_sel:[{(i>>1)&1},{(i>>1)&1}]')
    elif npre:
        emit_plain(a, cpre + sum(cg[:10*npre], [])); cg = cg[10*npre:]; cpre = []
    stamp(8)
    a('; ===== w_sp @ z2 with the convolution and gelu(z1) in its shadow =====')
    ACC = 32; F = [64, 88]
    def rd2(k, half):
        L = []
        if M16:
            wr = [(f'ds_read_b128 {vr(F[half]+4*tb,4)}, {wsrc(8, 2*half+tb, SIDX[k]%4)}', f'g{k}_{2*half}') for tb in range(2)] if k in SIDX else []
            zr = [(f'ds_read_b128 {vr(F[half]+8+4*fb,4)}, v12 offset:{(ZS(k)+ZX)*8192 + half*4096 + (fb>>1)*1024 + (fb&1)*256}', f'g{k}_{2*half + fb//2}') for fb in range(4)]
            return wr + zr
        for j in range(2):
            ks = 2*half + j
            if k in SIDX: L.append((f'ds_read_b128 {vr(F[half]+12*j,4)}, v{8+ks} offset:{(SIDX[k]%4)*16384}', f'g{k}_{ks}'))
            for fb in range(2): L.append((f'ds_read_b128 {vr(F[half]+12*j+4+4*fb,4)}, v12 offset:{ZS(k)*8192+ks*2048+fb*1024}', f'g{k}_{ks}'))
        return L
    def mm2(k, half):
        L = []
        if M16:
            for fb in range(4):
                pair = []
                for tb in range(2):
                    wreg = F[half]+4*tb if k in SIDX else X + 16*MEM[k] + 4*(2*half+tb)
                    d = ACC + 8*fb + 4*tb
                    pair.append(f'v_mfma_f32_16x16x32_bf16 {vr(d,4)}, {vr(F[half]+8+4*fb,4)}, {vr(wreg,4)}, {"0" if (k == 0 and half == 0 and not bi) else vr(d,4)}')
                if opt.get('snake', 1) == 1 and fb & 1: pair.reverse()
                L.append((f'g{k}_{2*half + fb//2}', pair))
            if opt.get('snake') == 2:
                m = [x[1] for x in L]
                L = [(L[0][0], [m[0][0], m[1][0]]), (L[2][0], [m[2][0], m[3][0]]), (L[2][0], [m[3][1], m[2][1]]), (L[2][0], [m[1][1], m[0][1]])]
            return L
        for j in range(2):
            wreg = F[half]+12*j if k in SIDX else X + 16*MEM[k] + 4*(2*half+j)
            for fb in range(2):
                c = '0' if (k == 0 and half == 0 and j == 0) else vr(ACC+16*fb, 16)
                L.append((f'g{k}_{2*half+j}', [f'v_mfma_f32_32x32x16_bf16 {vr(ACC+16*fb,16)}, {vr(F[half]+12*j+4+4*fb,4)}, {vr(wreg,4)}, {c}']))
        return L
    kf = 0
    c0, c1 = opt.get('c0', 2), opt.get('c1', 25)
    plan = {}
    def spread(groups, slots, wts):
        cum = 0; tot = sum(int(wts[s[2]]) for s in slots); done = 0
        for s in slots:
            cum += int(wts[s[2]]); n = cum * len(groups) // tot
            plan.setdefault(s, []).extend(groups[done:n]); done = n
    allslots = [(k, ph, i) for k in range(32) for ph in range(2) for i in range(4) if (k, ph) != (0, 0)]
    if cg and not opt.get('noconv'): spread(cg, [s for s in allslots if c0 <= s[0] <= c1], opt.get('cw', '0001'))
    if cpre: spread([[x] for x in cpre], [s for s in allslots if (kf, 1) <= s[:2] and s[0] < c0], '1113')
    if not gw and not opt.get('nog1'): spread([[x] for x in gelu_packed(Z1, 16, 128 if NR == 4 else 16, 14)], [s for s in allslots if opt.get('g0', RPOS[0] + 3 if NR == 4 else 0) <= s[0] < opt.get('ge', 30)], '2223')
    if NR == 4:
        fin, fflag = ssm.finish()
        sst = [x for x in fin if isinstance(x, tuple) and x[1] == 'sst']
        spread([[x] for x in fin if x not in sst], [s for s in allslots if c1 + 1 <= s[0] <= c1 + 2], '2223')
        plan.setdefault((opt.get('sk', c1 + 2), 1, 3), []).append(sst)
    assert c1 + 2 <= 30
    for k in range(33):
        if k in (0, 31): a.waitall(vm=False)
        elif not rlx or k >= 28: a.waitlg(f'g{k-1}_3')
        a('s_barrier')
        if k == 0: stamp(9)
        if str(opt.get('fine')).startswith('g2'):
            k0 = int(opt['fine'][2:])
            if k0 <= k < k0 + 13: stamp(3 + k - k0, True)
        for ph in range(2):
            m = (mm2(k-1, 1) if k > 0 else []) if ph == 0 else (mm2(k, 0) if k < 32 else [])
            r = rd2(k, ph) if k < 32 else []
            if not m:
                a.emit(r); continue
            for i, (tg, ins) in enumerate(m):
                a.waitlg(tg)
                a.emit(merge(ins, r[2*i:2*i+2]))
                for x in plan.get((k, ph, i), []): a.emit(x)
                if k == 31:
                    for j in range(2):
                        z = 8*ph + 2*i + j
                        a(f'v_lshlrev_b32 v{128+2*z}, 16, v{Z1+z}\nv_and_b32 v{129+2*z}, s33, v{Z1+z}')
    stamp(10)
    a.emit(fflag[:2])
    for q in range(4):
        for i in range(4):
            p = ACC + 8*q + 2*i
            if bi: pass
            elif M16: a(f'v_pk_add_f32 {vr(p,2)}, {vr(p,2)}, v[10:11] op_sel:[0,{i//2}] op_sel_hi:[1,{i//2}]')
            else: a(f'v_pk_add_f32 {vr(p,2)}, {vr(p,2)}, v[4:5] op_sel_hi:[1,0]')
        for i in range(4):
            p = ACC + 8*q + 2*i
            a(f'v_pk_mul_f32 {vr(p,2)}, {vr(p,2)}, {vr(128+8*q+2*i,2)}')
        for i in range(4): a(f'v_cvt_pk_bf16_f32 v{F[0]+4*q+i}, v{ACC+8*q+2*i}, v{ACC+8*q+2*i+1}')
        def hout(q):
            if M16:
                for j in range(2): a(f'v_permlane16_swap_b32 v{F[0]+4*q+j}, v{F[0]+4*q+2+j}')
            a(f'buffer_store_dwordx4 {vr(F[0]+4*q,4)}, v7, s[12:15], s54 offen offset:{1024*q} sc1', 'hst')
        hout(q)
    a.emit(fflag[2:])
    if hb: a('s_barrier')
    stamp(11)
    nb['gc'] = count_bars(st0) + 2 + (w3m < 14)

    a(f'{lab("g3comp")}:')
    HB = 16; ACC = 160; WB = [224, 240]; SR = 192; SF = 200; XR = 216; XF = 136; T = 152
    a('s_and_b32 s36, s29, 1\ns_lshr_b32 s37, s29, 1\ns_lshl_b32 s32, s26, 1\ns_add_u32 s32, s32, s30')
    a.emit(trread_list(1, 2))
    a(f'''s_lshl_b32 s55, s37, 6
s_lshl_b32 s31, s37, 12
v_xor_b32 v1, s55, v1
v_add_u32 v1, s31, v1
v_xor_b32 v2, 64, v1
v_add_u32 v3, {L_Z}, v1
v_add_u32 v4, {L_Z}, v2
s_lshl_b32 s3, s36, 12
s_add_u32 s3, s3, {L_X3}''')
    a.emit(rowread_list(9, 10, 's3'))
    a(f'''v_xor_b32 v9, s55, v9
v_xor_b32 v10, 32, v9
v_lshrrev_b32 v11, 2, v0
v_and_b32 v12, 3, v0
v_lshlrev_b32 v13, 4, v12
v_lshl_add_u32 v15, v11, 10, v13
v_bfe_u32 v13, v0, 3, 3
v_xor_b32 v12, v12, v13
v_lshlrev_b32 v12, 4, v12
v_xor_b32 v12, s55, v12
v_lshl_add_u32 v12, v11, 7, v12
v_add_u32 v14, s3, v12
v_lshrrev_b32 v11, 5, v0
v_bfe_u32 v13, v0, 2, 2
v_lshl_add_u32 v11, v11, 3, v13
v_lshlrev_b32 v11, 7, v11
v_bfe_u32 v13, v0, 3, 1
v_xor_b32 v13, s36, v13
v_lshl_add_u32 v11, v13, 6, v11
v_bfe_u32 v13, v0, 4, 1
v_lshl_add_u32 v11, v13, 5, v11
v_and_b32 v13, 3, v0
v_lshl_add_u32 v11, v13, 3, v11
s_add_u32 s31, s31, {L_S3}
v_add_u32 v11, s31, v11
s_lshl_b32 s3, s32, 1
s_add_u32 s3, s3, s36
s_lshl_b32 s61, s3, 15
s_mul_i32 s38, s3, 57344
s_lshl_b32 s3, s27, 7
s_add_u32 s61, s61, s3
s_add_u32 s61, s61, s55
s_lshl_b32 s3, s37, 11
s_add_u32 s38, s38, s3
s_add_u32 s38, s38, {WS_HF}
s_lshl_b32 s3, s29, 12
s_add_u32 s3, s3, {L_U}
v_add_u32 v8, s3, v7
v_xor_b32 v13, 8192, v8
v_mov_b32 v12, {fbits(-LOG2E)}''')
    do = opt.get('do', 0)
    if do: a('v_and_b32 v14, 31, v0\nv_lshrrev_b32 v15, 5, v0\nv_lshlrev_b32 v15, 4, v15\nv_lshl_add_u32 v15, v14, 10, v15')
    fl_ = opt.get('fl', 1)
    if fl_:
        a(f'''v_lshrrev_b32 v14, 3, v0
v_and_b32 v15, 7, v0
v_lshrrev_b32 v5, 4, v0
v_xor_b32 v5, v5, v15
v_lshlrev_b32 v15, 4, v15
v_lshl_add_u32 v15, v14, 10, v15
v_lshlrev_b32 v5, 4, v5
v_lshl_add_u32 v14, v14, 7, v5
s_lshl_b32 s3, s29, 11
s_add_u32 s3, s3, {L_X3}
v_add_u32 v14, s3, v14
v_xor_b32 v5, 64, v14
s_lshl_b32 s61, s32, 16
s_lshl_b32 s3, s29, 14
s_add_u32 s61, s61, s3
s_lshl_b32 s3, s27, 7
s_add_u32 s61, s61, s3''')
    for j in range(14): a(f's_add_u32 s{40+j}, s38, {j << 12}')
    a(f's_mov_b32 s39, {SPIN >> 3}')
    aw = opt.get('aw', 1)
    if aw: a(f's_waitcnt vmcnt({aw})')
    else: a.waitall(lg=False)
    stamp(12)
    NI = opt.get('ni', 5)
    def hl(j): return [f'buffer_load_dwordx4 {vr(HB+8*j+4*p,4)}, v7, s[12:15], s{40+(j if not opt.get("hfix") else 0)} offen offset:{1024*p} sc1' for p in range(2)]
    def rdw(j, ks):
        w = W3LOC[j]; hi = w >= L_Z; w -= L_Z * hi
        return [(f'ds_read_b64_tr_b16 {vr(WB[j&1]+8*ks+4*b+2*p,2)}, v{1+b+2*hi} offset:{w+ks*2048+512*p}', f'w{j}_{ks}') for b in (1, 0) for p in range(2)]
    for j in range(NI): a.emit([(x, f'h{j}') for x in hl(j)])
    a('s_barrier')
    stamp(13)
    a.emit(rdw(0, 0) + rdw(0, 1))
    es = opt.get('es', 8)
    xs = [(f'ds_read_b128 {vr(XR+4*p,4)}, v{9+p}', 'xr') for p in range(2)]
    un = sum([[f'v_lshlrev_b32 v{XF+2*i}, 16, v{XR+i}', f'v_and_b32 v{XF+2*i+1}, s33, v{XR+i}'] for i in range(8)], [])
    retry = []
    NP = opt.get('np', 1)
    issued = lambda j: min(14, NI + NP * j)
    def check(j):
        lc = a.newlab('hchk'); lr = a.newlab('hretry')
        a.waitvm(f'h{j}')
        H = HB + 8*j
        a(f'{lc}:\nv_max3_u32 v{T}, v{H}, v{H+1}, v{H+2}\nv_max3_u32 v{T+1}, v{H+3}, v{H+4}, v{H+5}\nv_max3_u32 v{T}, v{T}, v{H+6}, v{H+7}\nv_max_u32 v{T}, v{T}, v{T+1}')
        a(f'v_cmp_eq_u32 vcc, -1, v{T}')
        return lc, lr
    def cbr(j, lc, lr, mid=None):
        a(f's_cbranch_vccnz {lr}\n{lc}x:' if not opt.get('nohr') else f'{lc}x:')
        retry.append((lr, lc, j, sum([hl(i) for i in range(j, min(issued(j), j + opt.get('nrt', 5)))], [])))
    lc, lr = check(0); cbr(0, lc, lr)
    stamp(14)
    for j in range(14):
        if opt.get('fine') == 'g3' and j % 2 == 0: stamp(3 + j // 2, True)
        seq = []
        for ks in range(2):
            for b in (1, 0):
                seq.append((ks, f'v_mfma_f32_32x32x16_bf16 {vr(ACC+16*b,16)}, {vr(WB[j&1]+8*ks+4*b,4)}, {vr(HB+8*j+4*ks,4)}, {"0" if (j == 0 and ks == 0) else vr(ACC+16*b,16)}'))
        if j == 13: seq = [seq[0], seq[2], seq[1], seq[3]]
        nxt = (rdw(j+1, 0) + rdw(j+1, 1)) if j < 13 else []
        for i, (ks, ins) in enumerate(seq):
            a.waitlg(f'w{j}_{ks}')
            a(ins)
            if j == w3m - 1 and i == 0 and w3m < 14: a('s_barrier')
            if i < 2:
                a.emit(nxt[3*i:3*i+3])
                new = [(x, f'h{s_}') for s_ in range(issued(j), issued(j+1)) for x in hl(s_)]
                a.emit(new[i*len(new)//2:(i+1)*len(new)//2])
            if j == es and i in (0, 1): a.emit(xs[3*i:3*i+3])
            if j > es and i in (0, 1, 3):
                a.waitlg('xr'); a.emit(un[:4]); un = un[4:]
            if i == 2 and j < 13: lc, lr = check(j + 1)
            if i == 3 and j < 13:
                a.emit(nxt[6:]); cbr(j + 1, lc, lr)
    stamp(15)
    if opt.get('prof'): a(f's_sub_u32 s100, {SPIN >> 3}, s39\ns_mul_i32 s100, s100, 10\ns_add_u32 s100, s100, s66')
    ft_ = lambda i: stamp(i, True) if opt.get('fine') == 'g3' else None
    ft_(10)
    for q in range(4): a(f'ds_write_b128 v8, {vr(ACC+16+4*q,4)} offset:{1024*q}', 'rw')
    a.waitall(vm=False); ft_(11); a('s_barrier'); ft_(12)
    assert not un
    for q in range(2): a(f'ds_read_b128 {vr(WB[0]+4*q,4)}, v13 offset:{1024*q}', f'rr0')
    for q in range(4): a(f'ds_read_b64_tr_b16 {vr(SR+2*q,2)}, v11 offset:{2048*(q//2)+512*(q%2)}', 'sr')
    for q in range(2, 4): a(f'ds_read_b128 {vr(WB[0]+4*q,4)}, v13 offset:{1024*q}', f'rr1')
    for p in range(2):
        B = ACC + 8*p
        a.waitlg(f'rr{p}')
        if p == 0: ft_(13)
        for i in range(4): a(f'v_pk_add_f32 {vr(B+2*i,2)}, {vr(B+2*i,2)}, {vr(WB[0]+8*p+2*i,2)}')
        for i in range(4): a(f'v_pk_mul_f32 {vr(T+2*i,2)}, {vr(B+2*i,2)}, v[12:13] op_sel_hi:[1,0]')
        for i in range(8): a(f'v_exp_f32 v{T+i}, v{T+i}')
        a.waitlg('sr')
        for i in range(4): a(f'v_lshlrev_b32 v{SF+8*p+2*i}, 16, v{SR+4*p+i}\nv_and_b32 v{SF+8*p+2*i+1}, s33, v{SR+4*p+i}')
        for i in range(4): a(f'v_pk_mul_f32 {vr(B+2*i,2)}, {vr(B+2*i,2)}, {vr(SF+8*p+2*i,2)}')
        for i in range(4): a(f'v_pk_add_f32 {vr(T+2*i,2)}, {vr(T+2*i,2)}, 1.0 op_sel_hi:[1,0]')
        for i in range(8): a(f'v_rcp_f32 v{T+i}, v{T+i}')
        for i in range(4): a(f'v_pk_fma_f32 {vr(B+2*i,2)}, {vr(B+2*i,2)}, {vr(T+2*i,2)}, {vr(XF+8*p+2*i,2)}')
        for i in range(4): a(f'v_cvt_pk_bf16_f32 v{HB+4*p+i}, v{B+2*i}, v{B+2*i+1}')
        if do: a(f'buffer_store_dwordx4 {vr(HB+4*p,4)}, v15, s[20:23], s61 offen offset:{32*p} {opt.get("outflag","sc1").replace("-", "")}', 'ost')
        else: a(f'ds_write_b128 v{9+p}, {vr(HB+4*p,4)}', 'ow')
    ft_(14)
    if fl_:
        a.waitall(vm=False); a('s_barrier')
        for p in range(2): a(f'ds_read_b128 {vr(HB+8+4*p,4)}, v{5 if p else 14} offset:{1024*p}', f'or{p}')
    else:
        for p in range(0 if do else 2): a(f'ds_read_b128 {vr(HB+8+4*p,4)}, v14 offset:{2048*p}', f'or{p}')
    for p in range(0 if do else 2):
        a.waitlg(f'or{p}')
        if p: a(f's_add_u32 s61, s61, {8192 if fl_ else 16384}')
        a(f'buffer_store_dwordx4 {vr(HB+8+4*p,4)}, v15, s[20:23], s61 offen {opt.get("outflag","sc1").replace("-", "")}', 'ost')
    stamp(16)
    sk = a.newlab('noepoch')
    a(f's_lshl_b32 s3, s29, 8\ns_or_b32 s3, s2, s3\ns_cmp_lg_u32 s3, 32\ns_cbranch_scc1 {sk}\nv_mov_b32 v1, s24\ns_mov_b32 s3, {WS_EPOCH}\ns_mov_b64 exec, 1')
    a('buffer_store_dword v1, off, s[12:15], s3 sc1')
    a(f's_mov_b64 exec, -1\n{sk}:')
    if opt.get('span'):
        a(f's_waitcnt vmcnt(0)\ns_memrealtime s[64:65]\ns_lshl_b32 s3, s2, 2\ns_add_u32 s3, s3, s29\ns_lshl_b32 s3, s3, 3\ns_add_u32 s3, s3, {WS_PROF}\ns_waitcnt lgkmcnt(0)\nv_mov_b32 v2, s62\nv_mov_b32 v3, s64\ns_mov_b64 exec, 1')
        a('buffer_store_dwordx2 v[2:3], off, s[12:15], s3')
    if opt.get('dbg'):
        sk = a.newlab('nodbg')
        a(f's_lshr_b32 s3, s2, 3\ns_or_b32 s3, s3, s29\ns_cmp_lg_u32 s3, 0\ns_cbranch_scc1 {sk}\ns_load_dwordx2 s[16:17], s[0:1], {KA["dbg"]}\ns_memrealtime s[64:65]\ns_waitcnt lgkmcnt(0)')
        a(f's_and_b32 s62, s62, 0xfffff\ns_and_b32 s64, s{66 + 2*opt["dbg"] if opt["dbg"] > 0 else 64}, 0xfffff\nv_mov_b32 v1, s62\nv_mov_b32 v2, s64\ns_lshl_b32 s3, s2, 2\nv_mov_b32 v3, s3')
        a('global_store_dword v3, v1, s[16:17]\nglobal_store_dword v3, v2, s[16:17] offset:32')
        a(f'{sk}:')
    g.prof_store()
    a('s_endpgm')
    for x in g.cold: a.L.append(x)
    g.cold = []
    for lr, lc, j, lds_ in retry:
        H = HB + 8*j
        a(f'{lr}:\ns_sub_u32 s39, s39, 1\ns_cmp_lt_i32 s39, 0\ns_cbranch_scc1 {lc}x')
        for x in lds_: a.L.append(x)
        a(f's_waitcnt vmcnt(0)\nv_max3_u32 v{T}, v{H}, v{H+1}, v{H+2}\nv_max3_u32 v{T+1}, v{H+3}, v{H+4}, v{H+5}\nv_max3_u32 v{T}, v{T}, v{H+6}, v{H+7}\nv_max_u32 v{T}, v{T}, v{T+1}')
        a(f'v_cmp_eq_u32 vcc, -1, v{T}\ns_cbranch_vccnz {lr}\ns_branch {lc}x')

    a(f'{lab("tcomp")}:')
    st0 = len(a.L)
    a.vm = ['prm'] * 6; a.lg = []
    T = 24; X = 64
    a('s_mov_b32 s6, 0x200000\ns_mov_b32 s7, 0x20000\ns_and_b32 s5, s5, 0xffff')
    a('s_lshl_b32 s32, s29, 14\ns_lshl_b32 s35, s26, 1\ns_add_u32 s35, s35, s30\ns_lshl_b32 s35, s35, 1\ns_and_b32 s3, s29, 1\ns_add_u32 s35, s35, s3\ns_lshl_b32 s3, s35, 5\ns_lshr_b32 s61, s29, 1\ns_lshl_b32 s38, s61, 9')
    rowoffs(a, 32, 's3', 10)
    for c in range(4):
        a.emit([f's_add_u32 m0, s32, {4096*c}', f's_add_u32 s31, s38, {128*c}'] + [(f'buffer_load_dwordx4 v{32+i}, s[4:7], s31 offen offset:{1024*i} lds', f'x{c}') for i in range(4)])
    cprologue()
    a.emit(rowread_list(8, 9, 's32'))
    a('v_xor_b32 v9, 32, v8\nv_xor_b32 v10, 64, v8\nv_xor_b32 v11, 96, v8')
    a('s_mov_b32 s36, 0x00003f80\ns_mov_b32 s37, 0x3f800000')
    for i in range(4): a(f'v_mov_b32 v{20+i}, 0')
    a('v_lshrrev_b32 v13, 5, v0\nv_lshlrev_b32 v13, 15, v13\nv_and_b32 v16, 31, v0\nv_lshl_add_u32 v12, v16, 2, v13')
    for i in range(1, 4): a(f'v_add_u32 v{12+i}, {8192*i}, v12')
    a(f's_lshl_b32 s31, s35, 7\ns_add_u32 s52, s31, {WS_XNT}\ns_lshl_b32 s3, s61, 20\ns_add_u32 s52, s52, s3')
    a(f's_lshl_b32 s53, s61, 13\ns_add_u32 s53, s53, s31\ns_add_u32 s53, s53, {FX}')
    a(f's_lshl_b32 s31, s35, 13\ns_add_u32 s60, s31, s38\ns_add_u32 s60, s60, {WS_STATS + 14*512}')
    a(f's_lshl_b32 s31, s29, 8\ns_add_u32 s31, s31, {L_CS}\nv_lshl_add_u32 v16, v0, 2, s31\nv_xor_b32 v17, 512, v16')
    a(tagmake)
    for c in range(4):
        a.waitvm(f'x{c}')
        a.emit(xreads(c, 8, 4096*c))
        if c == opt.get('tb', 1): a('s_barrier')
        if c > 0: dots(c-1, 20)
        a.waitlg(f'xr{c}')
    dots(3, 20)
    a('v_add_f32 v20, v20, v22\nv_add_f32 v21, v21, v23\nv_mov_b32 v41, s24\nv_mov_b32 v43, s24\nv_permlane32_swap_b32 v20, v21\nv_add_f32 v22, v20, v21\nv_add_f32 v40, v20, v21\nv_permlane32_swap_b32 v40, v42\ns_mov_b32 exec_hi, 0')
    a(f'buffer_store_dwordx4 v[40:43], v7, s[12:15], s60 offen sc1', 'pub')
    a('s_mov_b64 exec, -1')
    a('ds_write_b32 v16, v22')
    a.waitall(vm=False); a('s_barrier')
    a('ds_read_b32 v20, v17')
    a.waitall(vm=False)
    a('v_add_f32 v20, v20, v22\nv_mov_b32 v21, v20\nv_permlane32_swap_b32 v20, v21')
    a.emit(ln_list(20, 21, 512, 22, 19, 18))
    stamp(2)
    for f in range(16):
        for i in range(4):
            a(f'v_dot2_f32_bf16 v{T+2*i}, v{X+4*f+i}, s36, v19\nv_dot2_f32_bf16 v{T+2*i+1}, v{X+4*f+i}, s37, v19')
        for i in range(4): a(f'v_cvt_pk_bf16_f32 v{X+4*f+i}, v{T+2*i}, v{T+2*i+1}')
        for i in range(4): a(f'v_lshlrev_b32 v{T+2*i}, 16, v{X+4*f+i}\nv_and_b32 v{T+2*i+1}, s33, v{X+4*f+i}')
        for i in range(4): a(f'v_pk_mul_f32 {vr(T+2*i,2)}, {vr(T+2*i,2)}, v[18:19] op_sel_hi:[1,0]')
        for i in range(4): a(f'v_cvt_pk_bf16_f32 v{X+4*f+i}, v{T+2*i}, v{T+2*i+1}')
        for i in range(4): a(f'buffer_store_dword v{X+4*f+i}, v{12+i}, s[12:15], s52 offen sc1', 'xst')
        a('s_add_u32 s52, s52, 65536')
    stamp(3)
    a.emit(ssm.kaddr())
    a.emit(g.setflag('s53', 16))
    stamp(7)
    a('s_barrier')
    a(f's_branch {lab("kgen")}')
    a(f'{lab("tcomp2")}:')
    a.vm = []; a.lg = list(lg_split)
    a.waitall(vm=False); a('s_barrier')
    ssm.FB = [192, 224]
    ld, ad, ub, ca = ssm.ubuild(64, 80, 88, 96)
    emit_plain(a, ld + ad + ca + ub + [BAR]); stamp(9)
    cpre, cg = ssm.conv()
    fin, fflag = ssm.finish()
    emit_plain(a, cpre + sum(cg, []) + fin + fflag + [BAR]); stamp(10)
    a('s_barrier')
    nb['tc'] = count_bars(st0) + 2 + (w3m < 14) - lk
    a(f's_branch {lab("g3comp")}')
    a(f'{lab("done")}:\ns_endpgm')
    assert nb['gl'] == nb['gc'] and nb['tl'] == nb['tc'], nb
    kernel_desc(a, name, 256, 102)
    return finalize(a, name, opt)

DOC = '''
; ---------------------------------------------------------------------------------------------------------
; One launch, 256 workgroups (one per CU), 4 compute waves + 2 helper waves each.  Generated by a script.
;                 the epilogue), gelu, second LayerNorm (partial sums exchanged along the row block), w_sp@z2, gating.
; Hand-offs between workgroups go through d_ws with write-through (sc1) stores and sc1 loads.  Flags carry a launch
; ---------------------------------------------------------------------------------------------------------
'''
NAME = 'recurrent_scan__ssm_conv_s4d__mixer_gmlp__prompt_kernel'
def write(path, args):
    opt = {}
    for kv in args:
        k, _, v = kv.partition('=')
        opt[k] = (int(v) if v.lstrip('-').isdigit() and k not in ('cw', 'cr') else v) if v else True
    try: HDR = open('recurrent_scan__ssm_conv_s4d__mixer_gmlp__prompt.s.ref').read().split('; Override launch')[0]
    except OSError: HDR = ''
    txt = HDR + '; @launch grid=(256,1,1) block=(384,1,1) lds=163840' + DOC + '.amdgcn_target "amdgcn-amd-amdhsa--gfx950"\n' + fused(NAME, opt)
    open(path, 'w').write(txt)

if __name__ == '__main__':
    import sys
    sys.path.insert(0, 'work')
    write(sys.argv[1], sys.argv[2:])
    from hx import build
    import cdna_launch as cl
    co, _ = build(sys.argv[1], 15, NAME)
    p = cl.address_register_problem(co, NAME)
    if p: print('CHECK PROBLEM:', p)
```
